```python
import torch

def _softmax(x, axis=-1):
    return torch.softmax(x, dim=axis)

def _gelu(x):
    return torch.nn.functional.gelu(x, approximate='tanh')

def _silu(x):
    return torch.nn.functional.silu(x)

def _sigmoid(x):
    return torch.sigmoid(x)

def _layernorm(x, axis=-1, eps=1e-05):
    m = x.mean(dim=axis, keepdim=True)
    v = x.var(dim=axis, keepdim=True, unbiased=False)
    return (x - m) / torch.sqrt(v + eps)

def _scatter_add(tgt, idx, src, axis=0):
    return tgt.clone().index_add_(axis, idx, src)

def _segment_sum(src, seg, n):
    out = torch.zeros((n,) + src.shape[1:], dtype=src.dtype)
    return out.index_add_(0, seg, src)

def _pad(x, pw):
    flat = tuple((v for pair in reversed(pw) for v in pair))
    return torch.nn.functional.pad(x, flat)
kernel_name = 'adaLN_cond__mha_block_cached__glu_gated_swiglu__decode'

def setup_inputs():

    _w = lambda a: (lambda t: t.to(torch.bfloat16) if t.is_floating_point() else t)(torch.as_tensor(a))

    def _A_setup():
        B, Sq, D = (2, 1, 512)
        H, Sk, Dh = (32, 8192, 128)
        return {'x': _w((lambda *s: torch.randn(*s, dtype=torch.bfloat16) * 0.1)(B, Sq, D)), 'k_cache': _w((lambda *s: torch.randn(*s, dtype=torch.bfloat16) * 0.8)(B, H, Sk, Dh)), 'v_cache': _w((lambda *s: torch.randn(*s, dtype=torch.bfloat16) * 3.2)(B, H, Sk, Dh)), 'wq': _w((lambda *s: torch.randn(*s, dtype=torch.bfloat16) * 0.8)(D, H * Dh) * D ** (-0.5)), 'wo': _w((lambda *s: torch.randn(*s, dtype=torch.bfloat16) * 3.2)(H * Dh, D) * (H * Dh) ** (-0.5))}
    _A_in = _A_setup()

    def _B_setup():
        B, S, D, F = (2, 1, 512, 1376)
        return {'x': _w((lambda *s: torch.randn(*s, dtype=torch.bfloat16) * 0.1)(B, S, D)), 'w1': _w((lambda *s: torch.randn(*s, dtype=torch.bfloat16) * 3.2)(D, F) * (2.0 / D) ** 0.5), 'w3': _w((lambda *s: torch.randn(*s, dtype=torch.bfloat16) * 3.2)(D, F) * (2.0 / D) ** 0.5), 'w2': _w((lambda *s: torch.randn(*s, dtype=torch.bfloat16) * 3.2)(F, D) * (2.0 / F) ** 0.5)}
    _B_in = _B_setup()
    return {'A_x': _A_in['x'], 'A_k_cache': _A_in['k_cache'], 'A_v_cache': _A_in['v_cache'], 'A_wq': _A_in['wq'], 'A_wo': _A_in['wo'], 'B_x': _B_in['x'], 'B_w1': _B_in['w1'], 'B_w3': _B_in['w3'], 'B_w2': _B_in['w2'], 'c': _w((lambda *s: torch.randn(*s, dtype=torch.bfloat16) * 0.2)(2, 512) * 8.0), 'w_mod': _w((lambda *s: torch.randn(*s, dtype=torch.bfloat16) * 0.2)(512, 6 * 512) * 512 ** (-0.5) * 8.0)}

def reference(A_x, A_k_cache, A_v_cache, A_wq, A_wo, B_x, B_w1, B_w3, B_w2, c, w_mod):

    def _A_ref(x, k_cache, v_cache, wq, wo):
        B, Sq, D = x.shape
        H, Dh = (32, 128)
        q = (lambda x, *d: x.permute(*d))((x @ wq).reshape(B, Sq, H, Dh), 0, 2, 1, 3)
        scores = torch.einsum('bhqd,bhkd->bhqk', q, k_cache) * Dh ** (-0.5)
        p = _softmax(scores, axis=-1)
        o = torch.einsum('bhqk,bhkd->bhqd', p, v_cache)
        return (lambda x, *d: x.permute(*d))(o, 0, 2, 1, 3).reshape(B, Sq, H * Dh) @ wo

    def _B_ref(x, w1, w3, w2):
        gate = torch.einsum('bsd,df->bsf', x, w1)
        up = torch.einsum('bsd,df->bsf', x, w3)
        h = _silu(gate) * up
        out = torch.einsum('bsf,fd->bsd', h, w2)
        return out
    x = A_x
    mod = (_silu(c) @ w_mod).reshape(c.shape[0], 6, 1, -1)
    sa, ca, ga, sb, cb, gb = (mod[:, 0].clone(), mod[:, 1].clone(), mod[:, 2].clone(), mod[:, 3].clone(), mod[:, 4].clone(), mod[:, 5].clone())
    h = _layernorm(x, axis=-1) * (1 + ca) + sa
    x = x + ga * _A_ref(h, A_k_cache, A_v_cache, A_wq, A_wo)
    h = _layernorm(x, axis=-1) * (1 + cb) + sb
    x = x + gb * _B_ref(h, B_w1, B_w3, B_w2)
    return x
```

```python
import sys, struct

NAME = "adaLN_cond__mha_block_cached__glu_gated_swiglu__decode"

def f32(x):
    return "0x%08x" % struct.unpack("<I", struct.pack("<f", x))[0]

LOG2E = 1.4426950408889634
SCALE = 128 ** -0.5

MOD_OFF = 0x0000
Q_OFF = 0x8000
PART_OFF = 0x10000
ATT_OFF = 0x50000
HH_OFF = 0x58000
WS_USED = 0x5A000
STAMP_OFF = 0x10000000
L_A = 0
L_D = L_A + 2048
L_ST = L_D + 2048
L_Q = L_ST + 64
L_CNT = L_Q + 256
L_ML = L_CNT + 16
L_P = 4608
L_W = L_P + 8192
LDS_BYTES = L_W + 90112

R_MOD0, R_Q0, R_WO0, R_UP0, R_DN0, R_NONE0 = 0, 48, 112, 176, 219, 235
SENT = 0xFFFFFFFF


class Gen:
    def __init__(self, R=3, B=32, stamps=False, nchunk=16, sleep=1):
        self.o = []
        self.R, self.B, self.stamps, self.nchunk, self.sleep = R, B, stamps, nchunk, sleep
        self.uid = 0

    def A(self, s):
        self.o.append("    " + s)

    def L(self, s):
        self.o.append(s + ":")

    def lab(self, p):
        self.uid += 1
        return f"L_{p}_{self.uid}"

    def nop(self, n):
        while n > 0:
            k = min(n, 16)
            self.A(f"s_nop {k-1}")
            n -= k

    def srd(self, d, b, nbytes):
        self.A(f"s_mov_b32 s{d}, s{b}")
        self.A(f"s_mov_b32 s{d+1}, s{b+1}")
        self.A(f"s_mov_b32 s{d+2}, {nbytes}")
        self.A(f"s_mov_b32 s{d+3}, 0x20000")

    def stamp(self, idx, vtmp=None):
        if not self.stamps:
            return
        A = self.A
        A("s_memrealtime s[90:91]")
        A("s_mov_b64 s[92:93], exec")
        A("s_mov_b64 exec, 1")
        A("s_lshl_b32 s94, s2, 7")
        A(f"s_add_u32 s94, s94, {STAMP_OFF + idx*8}")
        A("s_waitcnt lgkmcnt(0)")
        A("v_mov_b32 v166, s90")
        A("v_mov_b32 v167, s91")
        A("buffer_store_dwordx2 v[166:167], off, s[84:87], s94")
        A("s_mov_b64 exec, s[92:93]")

    def rnd2(self, a, b, t):
        self.A(f"v_cvt_pk_bf16_f32 v{t}, v{a}, v{b}")
        self.A(f"v_lshlrev_b32 v{a}, 16, v{t}")
        self.A(f"v_and_b32 v{b}, 0xffff0000, v{t}")

    def rnd1(self, a):
        self.A(f"v_cvt_pk_bf16_f32 v{a}, v{a}, v{a}")
        self.A(f"v_and_b32 v{a}, 0xffff0000, v{a}")

    def unpack2(self, src, lo, hi):
        self.A(f"v_lshlrev_b32 v{lo}, 16, v{src}")
        self.A(f"v_and_b32 v{hi}, 0xffff0000, v{src}")

    def allred32(self, regs, tmps):
        A = self.A
        for rot in (8, 4, 2, 1):
            self.nop(2 if len(regs) < 2 else max(0, 2 - (len(regs) - 1)))
            for r in regs:
                A(f"v_add_f32_dpp v{r}, v{r}, v{r} row_ror:{rot} row_mask:0xf bank_mask:0xf")
        for r, t in zip(regs, tmps):
            A(f"v_mov_b32 v{t}, v{r}")
        self.nop(2)
        for r, t in zip(regs, tmps):
            A(f"v_permlane16_swap_b32 v{r}, v{t}")
        self.nop(1)
        for r, t in zip(regs, tmps):
            A(f"v_add_f32 v{r}, v{r}, v{t}")

    def poll_head(self):
        l = self.lab("poll")
        self.L(l)
        return l

    def poll_tail(self, l):
        A = self.A
        d = self.lab("pdone")
        A(f"s_cbranch_vccz {d}")
        A("s_cmp_eq_u32 s88, 0")
        A(f"s_cbranch_scc1 {d}")
        A("s_sub_u32 s88, s88, 1")
        A(f"s_sleep {self.sleep}")
        A(f"s_branch {l}")
        self.L(d)

    def check_sent(self, regs, t):
        A = self.A
        regs = list(regs)
        A(f"v_max_u32 v{t}, v{regs[0]}, v{regs[1]}")
        regs = regs[2:]
        while len(regs) >= 2:
            A(f"v_max3_u32 v{t}, v{t}, v{regs[0]}, v{regs[1]}")
            regs = regs[2:]
        if regs:
            A(f"v_max_u32 v{t}, v{t}, v{regs[0]}")
        A(f"v_cmp_eq_u32 vcc, -1, v{t}")

    def check_tags(self, regs, t):
        A = self.A
        A(f"v_xor_b32 v{t}, s80, v{regs[0]}")
        for r in regs[1:]:
            A(f"v_xor_b32 v{t+1}, s80, v{r}")
            A(f"v_or_b32 v{t}, v{t}, v{t+1}")
        A(f"v_cmp_ne_u32 vcc, 0, v{t}")

    def dma_weights(self, srd, nins, voff, row_step_bytes, lds_base_s, soff0=0, pol="nt"):
        A = self.A
        A(f"s_mov_b32 s70, {soff0}")
        A(f"s_add_u32 s71, s{lds_base_s}, {L_W}")
        for i in range(nins):
            A("s_mov_b32 m0, s71")
            A(f"s_add_u32 s71, s71, 1024")
            A(f"buffer_load_dwordx4 v{voff}, s[{srd}:{srd+3}], s70 offen {pol} lds")
            A(f"s_add_u32 s70, s70, {row_step_bytes}")

    def tr_reads(self, vaddr, breg, nk, cgs, rowb):
        for t in range(nk):
            for ci, cgoff in enumerate(cgs):
                r = breg + (t * len(cgs) + ci) * 4
                off = t * 32 * rowb + cgoff
                self.A(f"ds_read_b64_tr_b16 v[{r}:{r+1}], v{vaddr} offset:{off}")
                self.A(f"ds_read_b64_tr_b16 v[{r+2}:{r+3}], v{vaddr} offset:{off + 4*rowb}")

    def mfmas(self, areg, breg, dreg, nk, ncg):
        for t in range(nk):
            for c in range(ncg):
                a = areg + 4 * t
                b = breg + (t * ncg + c) * 4
                d = dreg + 4 * c
                src = "0" if t == 0 else f"v[{d}:{d+3}]"
                self.A(f"v_mfma_f32_16x16x32_bf16 v[{d}:{d+3}], v[{a}:{a+3}], v[{b}:{b+3}], {src}")

    def d_to_lds(self, dreg, ncg, x0, x1, vaddr):
        A = self.A
        self.nop(8)
        for c in range(ncg):
            A(f"v_mov_b32_dpp v{x0}, v{dreg+4*c} quad_perm:[0,1,2,3] row_mask:{1<<c:#x} bank_mask:0xf")
            A(f"v_mov_b32_dpp v{x1}, v{dreg+4*c+1} quad_perm:[0,1,2,3] row_mask:{1<<c:#x} bank_mask:0xf")
        A(f"ds_write_b32 v{vaddr}, v{x0}")
        A(f"ds_write_b32 v{vaddr}, v{x1} offset:256")

    def a_frags_from_stage(self, vaddr, areg):
        for t in range(4):
            self.A(f"ds_read_b128 v[{areg+4*t}:{areg+4*t+3}], v{vaddr} offset:{t*64}")

    def build(self):
        A, L = self.A, self.L
        o = self.o
        o.append(f"; @launch grid=(256,1,1) block=(768,1,1) lds={LDS_BYTES}")
        o.append('.amdgcn_target "amdgcn-amd-amdhsa--gfx950"')
        o.append(".text")
        o.append(f".globl {NAME}_kernel")
        o.append(".p2align 8")
        o.append(f".type {NAME}_kernel,@function")
        L(f"{NAME}_kernel")
        A("s_cmp_ge_u32 s2, 256")
        A("s_cbranch_scc1 L_end")
        A("s_load_dwordx4 s[4:7], s[0:1], 8")
        A("s_load_dwordx4 s[96:99], s[0:1], 96")
        A("v_lshrrev_b32 v1, 6, v0")
        A("v_and_b32 v2, 63, v0")
        A("v_readfirstlane_b32 s3, v1")
        A("s_and_b32 s40, s2, 7")
        A("s_lshr_b32 s40, s40, 1")
        A("s_lshr_b32 s43, s2, 4")
        A("s_lshl_b32 s43, s43, 2")
        A("s_add_u32 s40, s40, s43")
        A("s_and_b32 s41, s2, 1")
        A("s_lshr_b32 s43, s2, 3")
        A("s_and_b32 s43, s43, 1")
        A("s_lshl_b32 s43, s43, 1")
        A("s_add_u32 s41, s41, s43")
        A("s_cmp_ge_u32 s3, 8")
        A("s_cbranch_scc1 L_helper")
        self.streamer()
        L("L_helper")
        self.helper()
        L("L_end")
        A("s_endpgm")
        o.append('.section .rodata,"a"')
        o.append(".p2align 6")
        o.append(f".amdhsa_kernel {NAME}_kernel")
        o.append("  .amdhsa_next_free_vgpr 168")
        o.append("  .amdhsa_next_free_sgpr 102")
        o.append("  .amdhsa_accum_offset 168")
        o.append("  .amdhsa_group_segment_fixed_size 0")
        o.append("  .amdhsa_kernarg_size 112")
        o.append("  .amdhsa_user_sgpr_count 2")
        o.append("  .amdhsa_user_sgpr_kernarg_segment_ptr 1")
        o.append("  .amdhsa_system_sgpr_workgroup_id_x 1")
        o.append(".end_amdhsa_kernel")
        return "\n".join(o) + "\n"

    def streamer(self):
        A, L = self.A, self.L
        R, B, NCH = self.R, self.B, self.nchunk
        VOFF, QF, MK, D, M, MN, LS = 1, 2, 6, 10, 14, 15, 16
        AC, T0, T1, S, PP = 17, 21, 22, 23, 24
        AS = 26
        LANE = 34
        RING = 168 - 4 * B - (2 if self.stamps else 0)
        RING -= RING % 2
        assert RING >= 36
        A(f"v_mov_b32 v{LANE}, v2")
        A("s_lshl_b32 s44, s41, 3")
        A("s_add_u32 s44, s44, s3")
        A("s_lshl_b32 s44, s44, 12")
        A("s_lshl_b32 s45, s40, 21")
        A("s_add_u32 s44, s44, s45")
        A(f"v_lshlrev_b32 v{VOFF}, 4, v2")
        A(f"v_add_u32 v{VOFF}, s44, v{VOFF}")
        A("s_waitcnt lgkmcnt(0)")
        self.srd(8, 4, 0x8000000)
        self.srd(12, 6, 0x8000000)
        if self.stamps:
            self.srd(84, 98, 0x20000000)
        N = NCH * 8

        def issue(p):
            i, j = divmod(p, 8)
            t, j = divmod(j, 4)
            r = RING + 4 * (p % B)
            srd = "s[8:11]" if t == 0 else "s[12:15]"
            if j == 0 and t == 0:
                A(f"s_mov_b32 s16, {i * 32 * 4096}")
            A(f"buffer_load_dwordx4 v[{r}:{r+3}], v{VOFF}, {srd}, s16 offen offset:{j*1024} nt")

        for p in range(R):
            issue(p)
        A(f"v_and_b32 v{T0}, 15, v{LANE}")
        A(f"v_and_b32 v{T1}, 1, v{LANE}")
        A(f"v_lshlrev_b32 v{T1}, 4, v{T1}")
        A(f"s_mov_b32 s17, 0xffff")
        A(f"v_mov_b32 v{S}, s17")
        A(f"v_lshlrev_b32 v{T1}, v{T1}, v{S}")
        A(f"v_lshrrev_b32 v{T0}, 1, v{T0}")
        for k in range(4):
            A(f"v_cmp_eq_u32 vcc, {k}, v{T0}")
            self.nop(2)
            A(f"v_cndmask_b32 v{MK+k}, 0, v{T1}, vcc")
        for k in range(4):
            A(f"v_mov_b32 v{D+k}, 0")
        A(f"v_mov_b32 v{M}, {f32(-3.0e38)}")
        A(f"v_mov_b32 v{MN}, 0")
        A(f"v_mov_b32 v{LS}, 0")
        A(f"s_mov_b32 s18, {f32(SCALE)}")
        A(f"s_mov_b32 s19, {f32(LOG2E)}")
        A("s_barrier")
        for p in range(R, B):
            A(f"s_waitcnt vmcnt({R-1})")
            issue(p)
        self.stamp(1)
        A("s_barrier")
        A(f"v_and_b32 v{T0}, 15, v{LANE}")
        A(f"v_lshlrev_b32 v{T0}, 4, v{T0}")
        A(f"ds_read_b128 v[{QF}:{QF+3}], v{T0} offset:{L_Q}")
        A("s_waitcnt lgkmcnt(0)")
        if self.stamps:
            A("s_waitcnt vmcnt(0)")
        beta = [0, 2, 1, 3]
        st = {"I": B, "landed": (B if self.stamps else B - R)}

        def need(c):
            if c >= st["landed"]:
                A(f"s_waitcnt vmcnt({st['I'] - 1 - c})")
                st["landed"] = c + 1

        def paced_issue():
            I = st["I"]
            if I >= N:
                return
            if I - st["landed"] >= R:
                A(f"s_waitcnt vmcnt({R-1})")
                st["landed"] = I - (R - 1)
            issue(I)
            st["I"] = I + 1

        def consume(c):
            i, j = divmod(c, 8)
            t, j = divmod(j, 4)
            r = RING + 4 * (c % B)
            need(c)
            if t == 0:
                A(f"v_dot2_f32_bf16 v{AC+j}, v{r}, v{QF}, 0")
                for k in range(1, 4):
                    A(f"v_dot2_f32_bf16 v{AC+j}, v{r+k}, v{QF+k}, v{AC+j}")
            else:
                a = AS + 4 * (j & 1)
                for k in range(4):
                    A(f"v_and_b32_dpp v{a+k}, v{PP}, v{MK+k} row_newbcast:{4*beta[j]} row_mask:0xf bank_mask:0xf")
                self.nop(2)
                A(f"v_mfma_f32_16x16x32_bf16 v[{D}:{D+3}], v[{a}:{a+3}], v[{r}:{r+3}], v[{D}:{D+3}]")

        def softmax():
            self.nop(3)
            A(f"v_add_f32_dpp v{T0}, v{AC}, v{AC} row_ror:8 row_mask:0xf bank_mask:0x3")
            A(f"v_add_f32_dpp v{T1}, v{AC+2}, v{AC+2} row_ror:8 row_mask:0xf bank_mask:0x3")
            A(f"v_add_f32_dpp v{T0}, v{AC+1}, v{AC+1} row_ror:8 row_mask:0xf bank_mask:0xc")
            A(f"v_add_f32_dpp v{T1}, v{AC+3}, v{AC+3} row_ror:8 row_mask:0xf bank_mask:0xc")
            self.nop(1)
            A(f"v_add_f32_dpp v{S}, v{T0}, v{T0} row_shl:4 row_mask:0xf bank_mask:0x5")
            A(f"v_add_f32_dpp v{S}, v{T1}, v{T1} row_shr:4 row_mask:0xf bank_mask:0xa")
            self.nop(2)
            A(f"v_add_f32_dpp v{S}, v{S}, v{S} quad_perm:[2,3,0,1] row_mask:0xf bank_mask:0xf")
            self.nop(2)
            A(f"v_add_f32_dpp v{S}, v{S}, v{S} quad_perm:[1,0,3,2] row_mask:0xf bank_mask:0xf")
            self.rnd1(S)
            A(f"v_mul_f32 v{S}, s18, v{S}")
            self.rnd1(S)
            A(f"v_cmp_gt_f32 vcc, v{S}, v{M}")
            bk = self.lab("back")
            A(f"s_cbranch_vccz {bk}")
            A("s_call_b64 s[46:47], L_rare")
            L(bk)
            A(f"v_fma_f32 v{T0}, v{S}, s19, v{MN}")
            A(f"v_exp_f32 v{T0}, v{T0}")
            self.nop(1)
            A(f"v_add_f32 v{LS}, v{LS}, v{T0}")
            A(f"v_cvt_pk_bf16_f32 v{PP}, v{T0}, v{T0}")
            self.nop(2)

        c = 0
        while c < N:
            lag = st["I"] - c
            ncons = 2 if lag > R + 1 else 1
            if lag <= R + 1 or True:
                pass
            if st["I"] < N and st["I"] - B < c and lag <= R:
                paced_issue()
            for _ in range(ncons):
                if c >= N:
                    break
                consume(c)
                c += 1
                if c % 8 == 4:
                    softmax()
            if st["I"] < N and st["I"] - B < c and (st["I"] - c) > R:
                paced_issue()
        self.stamp(2)
        A(f"v_add_f32_dpp v{LS}, v{LS}, v{LS} row_ror:4 row_mask:0xf bank_mask:0xf")
        self.nop(2)
        A(f"v_add_f32_dpp v{LS}, v{LS}, v{LS} row_ror:8 row_mask:0xf bank_mask:0xf")
        self.nop(2)
        A(f"v_add_f32_dpp v{LS}, v{LS}, v{LS} row_bcast:15 row_mask:0xa bank_mask:0xf")
        self.nop(2)
        A(f"v_add_f32_dpp v{LS}, v{LS}, v{LS} row_bcast:31 row_mask:0xc bank_mask:0xf")
        A(f"v_and_b32 v{T0}, 15, v{LANE}")
        A(f"v_lshlrev_b32 v{T0}, 5, v{T0}")
        A(f"v_lshrrev_b32 v{T1}, 4, v{LANE}")
        A(f"v_and_b32 v{S}, 1, v{T1}")
        A(f"v_lshl_add_u32 v{T0}, v{S}, 4, v{T0}")
        A(f"v_lshrrev_b32 v{T1}, 1, v{T1}")
        A(f"v_lshl_add_u32 v{T0}, v{T1}, 9, v{T0}")
        A("s_lshl_b32 s20, s3, 10")
        A(f"v_add_u32 v{T0}, s20, v{T0}")
        A(f"ds_write_b128 v{T0}, v[{D}:{D+3}] offset:{L_P}")
        A(f"v_mov_b32 v{MN}, v{LS}")
        A("s_lshl_b32 s20, s3, 3")
        A(f"v_mov_b32 v{T1}, s20")
        A("s_mov_b32 exec_lo, 0")
        A("s_mov_b32 exec_hi, 0x80000000")
        A(f"ds_write_b64 v{T1}, v[{M}:{M+1}] offset:{L_ML}")
        A("s_waitcnt lgkmcnt(0)")
        A("s_barrier")
        A("s_endpgm")
        L("L_rare")
        A(f"v_max_f32_dpp v{T0}, v{S}, v{S} row_ror:4 row_mask:0xf bank_mask:0xf")
        self.nop(2)
        A(f"v_max_f32_dpp v{T0}, v{T0}, v{T0} row_ror:8 row_mask:0xf bank_mask:0xf")
        self.nop(1)
        A(f"v_readlane_b32 s20, v{T0}, 0")
        A(f"v_readlane_b32 s21, v{T0}, 16")
        A(f"v_readlane_b32 s22, v{T0}, 32")
        A(f"v_readlane_b32 s23, v{T0}, 48")
        A(f"v_max_f32 v{T1}, s20, v{M}")
        A(f"v_max_f32 v{T1}, s21, v{T1}")
        A(f"v_max_f32 v{T1}, s22, v{T1}")
        A(f"v_max_f32 v{T1}, s23, v{T1}")
        A(f"v_sub_f32 v{T0}, v{M}, v{T1}")
        A(f"v_mul_f32 v{T0}, s19, v{T0}")
        A(f"v_exp_f32 v{T0}, v{T0}")
        A(f"v_mov_b32 v{M}, v{T1}")
        A(f"v_mul_f32 v{MN}, s19, v{T1}")
        A(f"v_sub_f32 v{MN}, 0, v{MN}")
        for k in range(4):
            A(f"v_mul_f32 v{D+k}, v{D+k}, v{T0}")
        A(f"v_mul_f32 v{LS}, v{LS}, v{T0}")
        A("s_setpc_b64 s[46:47]")

    def helper(self):
        A, L = self.A, self.L
        A("s_setprio 2")
        A("s_sub_u32 s3, s3, 8")
        A("s_load_dwordx2 s[24:25], s[0:1], 0")
        A("s_load_dwordx4 s[28:31], s[0:1], 24")
        A("s_load_dwordx4 s[32:35], s[0:1], 48")
        A("s_load_dwordx4 s[36:39], s[0:1], 64")
        A("s_load_dwordx4 s[48:51], s[0:1], 80")
        A("s_mov_b32 s88, 0x40000")
        HB, HI, G, TT = 3, 4, 5, 6
        A(f"v_lshrrev_b32 v{HB}, 5, v2")
        A(f"v_and_b32 v{HI}, 31, v2")
        A(f"v_lshrrev_b32 v{G}, 4, v2")
        A(f"v_and_b32 v{TT}, 15, v2")
        VAW, VAR, VDW, VTR = 7, 8, 9, 10
        A("s_lshl_b32 s52, s3, 9")
        A(f"v_lshlrev_b32 v{VAW}, 8, v{HB}")
        A(f"v_lshl_add_u32 v{VAW}, v{HI}, 3, v{VAW}")
        A(f"s_add_u32 s53, s52, {L_A}")
        A(f"v_add_u32 v{VAW}, s53, v{VAW}")
        A(f"v_and_b32 v{VAR}, 1, v2")
        A(f"v_lshlrev_b32 v{VAR}, 8, v{VAR}")
        A(f"v_lshl_add_u32 v{VAR}, v{G}, 4, v{VAR}")
        A(f"v_add_u32 v{VAR}, s53, v{VAR}")
        A(f"s_add_u32 s53, s52, {L_D}")
        A(f"v_lshlrev_b32 v{VDW}, 2, v2")
        A(f"v_add_u32 v{VDW}, s53, v{VDW}")
        A("s_waitcnt lgkmcnt(0)")
        self.srd(84, 98, 0x20000000)
        self.srd(76, 96, 256)
        self.srd(20, 24, 2048)
        A(f"s_add_u32 s16, s98, {HH_OFF}")
        A("s_addc_u32 s17, s99, 0")
        A(f"s_mov_b32 s18, {43*128}")
        A("s_mov_b32 s19, 0x20000")
        self.srd(72, 50, 2048)
        for r in range(10, 24):
            A(f"v_mov_b32 v{r}, 0")
        for r in (54, 55, 56, 57, 59, 60, 61, 62):
            A(f"s_mov_b32 s{r}, 0")
        self.stamp(0)
        A(f"s_cmp_lt_u32 s2, {R_Q0}")
        A("s_cbranch_scc1 L_pro_mod")
        A(f"s_cmp_lt_u32 s2, {R_WO0}")
        A("s_cbranch_scc1 L_pro_q")
        A("s_branch L_common1")

        BF, AF, DT = 40, 24, 12
        DT = 104
        TMP = 120

        def wide_voff(rowbytes, colbyte_s):
            A("s_lshl_b32 s54, s3, 7")
            A("v_lshrrev_b32 v11, 3, v2")
            A("v_add_u32 v11, s54, v11")
            A(f"s_mov_b32 s55, {rowbytes}")
            A("v_mul_lo_u32 v11, v11, s55")
            A(f"v_and_b32 v{TMP}, 7, v2")
            A(f"v_lshl_add_u32 v11, v{TMP}, 4, v11")
            A(f"v_add_u32 v11, s{colbyte_s}, v11")

        def wide_tr_base():
            A(f"v_lshrrev_b32 v{VTR}, 2, v{TT}")
            A(f"v_lshl_add_u32 v{VTR}, v{G}, 3, v{VTR}")
            A(f"v_lshlrev_b32 v{VTR}, 7, v{VTR}")
            A(f"v_and_b32 v{TMP}, 3, v{TT}")
            A(f"v_lshl_add_u32 v{VTR}, v{TMP}, 3, v{VTR}")
            A("s_lshl_b32 s54, s3, 14")
            A(f"s_add_u32 s54, s54, {L_W}")
            A(f"v_add_u32 v{VTR}, s54, v{VTR}")

        L("L_pro_mod")
        self.srd(12, 38, 2048)
        A(f"v_lshlrev_b32 v{TMP}, 10, v{HB}")
        A(f"v_lshl_add_u32 v{TMP}, v{HI}, 3, v{TMP}")
        A("s_lshl_b32 s54, s3, 8")
        A(f"buffer_load_dwordx2 v[{TMP+2}:{TMP+3}], v{TMP}, s[12:15], s54 offen")
        self.srd(8, 48, 512 * 6144)
        A("s_lshl_b32 s56, s2, 7")
        wide_voff(6144, 56)
        A("s_lshl_b32 s57, s3, 14")
        self.dma_weights(8, 16, 11, 8 * 6144, 57)
        wide_tr_base()
        A("s_waitcnt vmcnt(16)")
        X = TMP + 4
        self.unpack2(TMP + 2, X, X + 1)
        self.unpack2(TMP + 3, X + 2, X + 3)
        A(f"s_mov_b32 s58, {f32(-LOG2E)}")
        for k in range(4):
            A(f"v_mul_f32 v{X+4+k}, s58, v{X+k}")
        for k in range(4):
            A(f"v_exp_f32 v{X+4+k}, v{X+4+k}")
        self.nop(1)
        for k in range(4):
            A(f"v_add_f32 v{X+4+k}, 1.0, v{X+4+k}")
        for k in range(4):
            A(f"v_rcp_f32 v{X+4+k}, v{X+4+k}")
        self.nop(1)
        for k in range(4):
            A(f"v_mul_f32 v{X+k}, v{X+k}, v{X+4+k}")
        A(f"v_cvt_pk_bf16_f32 v{X+8}, v{X}, v{X+1}")
        A(f"v_cvt_pk_bf16_f32 v{X+9}, v{X+2}, v{X+3}")
        A(f"ds_write_b64 v{VAW}, v[{X+8}:{X+9}]")
        A("s_lshr_b32 s60, s2, 3")
        A("s_lshl_b32 s60, s60, 12")
        A("s_and_b32 s61, s2, 7")
        A("s_lshl_b32 s61, s61, 8")
        A("s_add_u32 s60, s60, s61")
        A(f"s_add_u32 s60, s60, {MOD_OFF}")
        A("s_mov_b32 s61, 2048")
        A("s_mov_b32 s62, 0")
        A("s_branch L_common1")

        L("L_pro_q")
        A(f"v_lshlrev_b32 v{TMP}, 10, v{HB}")
        A(f"v_lshl_add_u32 v{TMP+1}, v{HI}, 5, v{TMP}")
        A(f"buffer_load_dwordx4 v[{TMP+4}:{TMP+7}], v{TMP+1}, s[20:23], 0 offen")
        A(f"buffer_load_dwordx4 v[{TMP+8}:{TMP+11}], v{TMP+1}, s[20:23], 0 offen offset:16")
        A(f"v_lshl_add_u32 v{TMP}, v{HI}, 3, v{TMP}")
        A("s_lshl_b32 s54, s3, 8")
        A(f"buffer_load_dwordx2 v[{TMP+2}:{TMP+3}], v{TMP}, s[20:23], s54 offen")
        self.srd(8, 28, 512 * 8192)
        A(f"s_sub_u32 s59, s2, {R_Q0}")
        A("s_lshl_b32 s56, s59, 7")
        wide_voff(8192, 56)
        A("s_lshl_b32 s57, s3, 14")
        self.dma_weights(8, 16, 11, 8 * 8192, 57)
        wide_tr_base()
        A("s_waitcnt vmcnt(16)")
        S1, S2, U0, U1 = TMP + 12, TMP + 13, TMP + 14, TMP + 15
        A(f"v_mov_b32 v{S1}, 0")
        A(f"v_mov_b32 v{S2}, 0")
        for k in range(8):
            self.unpack2(TMP + 4 + k, U0, U1)
            A(f"v_add_f32 v{S1}, v{S1}, v{U0}")
            A(f"v_fmac_f32 v{S2}, v{U0}, v{U0}")
            A(f"v_add_f32 v{S1}, v{S1}, v{U1}")
            A(f"v_fmac_f32 v{S2}, v{U1}, v{U1}")
        self.allred32([S1, S2], [U0, U1])
        NX = TMP + 16
        self.unpack2(TMP + 2, NX, NX + 1)
        self.unpack2(TMP + 3, NX + 2, NX + 3)
        self.ln_norm(S1, S2, NX, U0, U1)
        A("s_lshl_b32 s60, s59, 8")
        A(f"s_add_u32 s60, s60, {Q_OFF}")
        A("s_mov_b32 s61, 16384")
        A("s_mov_b32 s62, 1")
        L("L_common1")
        CL = TMP + 24
        for k in range(4):
            A(f"v_mov_b32 v{CL+k}, -1")
        A("s_cmp_eq_u32 s3, 3")
        A("s_cbranch_scc0 L_noclear")
        A("s_lshl_b32 s63, s40, 2")
        A("s_add_u32 s63, s63, s41")
        A("s_lshl_b32 s63, s63, 10")
        A(f"s_add_u32 s63, s63, {PART_OFF}")
        A(f"v_lshlrev_b32 v{CL+4}, 4, v2")
        A("s_mov_b32 exec_lo, -1")
        A("s_mov_b32 exec_hi, 1")
        A(f"buffer_store_dwordx4 v[{CL}:{CL+3}], v{CL+4}, s[84:87], s63 offen sc1")
        A("s_mov_b64 exec, -1")
        A(f"s_sub_u32 s64, s2, {R_WO0}")
        A("s_cmp_lt_u32 s64, 64")
        A("s_cbranch_scc0 L_noclr_wo")
        A("s_lshr_b32 s65, s64, 3")
        A("s_lshl_b32 s65, s65, 12")
        A("s_and_b32 s66, s64, 7")
        A("s_lshl_b32 s66, s66, 8")
        A("s_add_u32 s65, s65, s66")
        A(f"s_add_u32 s65, s65, {ATT_OFF}")
        A(f"v_lshlrev_b32 v{CL+4}, 11, v{G}")
        A(f"v_lshl_add_u32 v{CL+4}, v{TT}, 4, v{CL+4}")
        A("s_mov_b32 exec_hi, 0")
        A(f"buffer_store_dwordx4 v[{CL}:{CL+3}], v{CL+4}, s[84:87], s65 offen sc1")
        A("s_mov_b64 exec, -1")
        L("L_noclr_wo")
        A(f"s_sub_u32 s64, s2, {R_UP0}")
        A("s_cmp_lt_u32 s64, 43")
        A("s_cbranch_scc0 L_noclr_up")
        A("s_lshl_b32 s65, s64, 7")
        A(f"s_add_u32 s65, s65, {HH_OFF}")
        A(f"v_lshlrev_b32 v{CL+4}, 4, v2")
        A("s_mov_b64 exec, 0xff")
        A(f"buffer_store_dwordx4 v[{CL}:{CL+3}], v{CL+4}, s[84:87], s65 offen sc1")
        A("s_mov_b64 exec, -1")
        L("L_noclr_up")
        L("L_noclear")
        A("s_cmp_eq_u32 s3, 0")
        A("s_cbranch_scc0 L_notag")
        A(f"v_mov_b32 v{CL+4}, {L_CNT}")
        A(f"v_mov_b32 v{CL+5}, 0")
        A(f"ds_write_b32 v{CL+4}, v{CL+5}")
        A("s_cmp_lt_u32 s2, 8")
        A("s_cbranch_scc0 L_notag")
        A("s_memrealtime s[66:67]")
        A("s_waitcnt lgkmcnt(0)")
        A("s_or_b32 s66, s66, 1")
        A(f"v_mov_b32 v{CL+4}, s66")
        A("s_mov_b64 exec, 1")
        A(f"buffer_atomic_cmpswap v[{CL+4}:{CL+5}], off, s[76:79], 0 sc1")
        A("s_mov_b64 exec, -1")
        L("L_notag")
        A("s_waitcnt lgkmcnt(0)")
        A("s_barrier")
        pl = self.poll_head()
        A(f"buffer_load_dword v{CL+4}, off, s[76:79], 0 sc1")
        A("s_waitcnt vmcnt(0)")
        A(f"v_cmp_eq_u32 vcc, 0, v{CL+4}")
        self.poll_tail(pl)
        A(f"v_readfirstlane_b32 s80, v{CL+4}")
        A("s_cmp_eq_u32 s3, 3")
        A("s_cbranch_scc0 L_nocount")
        A("s_and_b32 s63, s2, 3")
        A("s_lshl_b32 s63, s63, 2")
        A("s_add_u32 s63, s63, 128")
        A(f"v_mov_b32 v{CL+5}, 1")
        A("s_mov_b64 exec, 1")
        A(f"buffer_atomic_add v{CL+5}, off, s[76:79], s63 sc1")
        A("s_mov_b64 exec, -1")
        L("L_nocount")
        A(f"s_cmp_lt_u32 s2, {R_WO0}")
        A("s_cbranch_scc0 L_qgather")
        self.tr_reads(VTR, BF, 4, [0, 32, 64, 96], 128)
        A("s_cmp_eq_u32 s62, 0")
        A("s_cbranch_scc1 L_pro_gemv")
        GA = TMP + 4
        A(f"v_lshlrev_b32 v{TMP}, 11, v{HB}")
        A(f"v_lshl_add_u32 v{TMP}, v{HI}, 4, v{TMP}")
        A("s_lshl_b32 s54, s3, 9")
        A(f"s_add_u32 s54, s54, {MOD_OFF}")
        A(f"s_add_u32 s55, s54, 4096")
        pl = self.poll_head()
        A(f"buffer_load_dwordx4 v[{GA}:{GA+3}], v{TMP}, s[84:87], s55 offen sc1")
        A(f"buffer_load_dwordx4 v[{GA+4}:{GA+7}], v{TMP}, s[84:87], s54 offen sc1")
        A("s_waitcnt vmcnt(0)")
        self.check_tags([GA + 1, GA + 3, GA + 5, GA + 7], TMP + 1)
        self.poll_tail(pl)
        self.stamp(3)
        T4 = TMP + 20
        self.unpack2(GA, T4, T4 + 1)
        self.unpack2(GA + 2, T4 + 2, T4 + 3)
        for k in range(4):
            A(f"v_add_f32 v{T4+k}, 1.0, v{T4+k}")
        self.rnd2(T4, T4 + 1, TMP + 1)
        self.rnd2(T4 + 2, T4 + 3, TMP + 2)
        self.modulate(NX, T4, GA + 4, GA + 6, TMP + 1, TMP + 24, VAW)
        L("L_pro_gemv")
        A("s_waitcnt lgkmcnt(0)")
        self.a_frags_from_stage(VAR, AF)
        A("s_waitcnt lgkmcnt(0)")
        self.mfmas(AF, BF, DT, 4, 4)
        self.d_to_lds(DT, 4, TMP, TMP + 1, VDW)
        A(f"v_mov_b32 v{TMP+2}, {L_CNT}")
        A(f"v_mov_b32 v{TMP+3}, 1")
        A("s_waitcnt lgkmcnt(0)")
        A("s_mov_b64 exec, 1")
        A(f"ds_add_rtn_u32 v{TMP+4}, v{TMP+2}, v{TMP+3}")
        A("s_mov_b64 exec, -1")
        A("s_waitcnt lgkmcnt(0)")
        A(f"v_readfirstlane_b32 s54, v{TMP+4}")
        A("s_cmp_eq_u32 s54, 3")
        A("s_cbranch_scc0 L_qgather")
        self.d_sum(G, TT, TMP)
        A(f"v_cvt_pk_bf16_f32 v{TMP+8}, v{TMP+4}, v{TMP+5}")
        A(f"v_mov_b32 v{TMP+9}, s80")
        A(f"v_cvt_pk_bf16_f32 v{TMP+10}, v{TMP+6}, v{TMP+7}")
        A(f"v_mov_b32 v{TMP+11}, s80")
        A(f"v_mul_lo_u32 v{TMP}, v{G}, s61")
        A(f"v_lshl_add_u32 v{TMP}, v{TT}, 4, v{TMP}")
        A("s_mov_b32 exec_hi, 0")
        A(f"buffer_store_dwordx4 v[{TMP+8}:{TMP+11}], v{TMP}, s[84:87], s60 offen sc1")
        A("s_mov_b64 exec, -1")
        self.stamp(4)
        L("L_qgather")
        A("s_cmp_eq_u32 s3, 0")
        A("s_cbranch_scc0 L_b2")
        A("s_lshl_b32 s54, s40, 9")
        A(f"s_add_u32 s54, s54, {Q_OFF}")
        A(f"v_lshlrev_b32 v{TMP}, 3, v2")
        pl = self.poll_head()
        A(f"buffer_load_dwordx2 v[{TMP+2}:{TMP+3}], v{TMP}, s[84:87], s54 offen sc1")
        A("s_waitcnt vmcnt(0)")
        A(f"v_cmp_ne_u32 vcc, s80, v{TMP+3}")
        self.poll_tail(pl)
        A(f"v_lshlrev_b32 v{TMP}, 2, v2")
        A(f"ds_write_b32 v{TMP}, v{TMP+2} offset:{L_Q}")
        A("s_waitcnt lgkmcnt(0)")
        self.stamp(5)
        L("L_b2")
        A("s_barrier")
        A(f"s_cmp_lt_u32 s2, {R_WO0}")
        A("s_cbranch_scc1 L_b3")
        A(f"s_cmp_ge_u32 s2, {R_NONE0}")
        A("s_cbranch_scc1 L_b3")
        A(f"s_cmp_lt_u32 s2, {R_UP0}")
        A("s_cbranch_scc1 L_prep_wo")
        A(f"s_cmp_lt_u32 s2, {R_DN0}")
        A("s_cbranch_scc1 L_prep_up")
        A("s_branch L_prep_dn")

        def narrow_voff(rowbytes, rows_per_wave, colbyte_s):
            A(f"s_mul_i32 s54, s3, {rows_per_wave}")
            A("v_lshrrev_b32 v11, 2, v2")
            A("v_add_u32 v11, s54, v11")
            A(f"s_mov_b32 s55, {rowbytes}")
            A("v_mul_lo_u32 v11, v11, s55")
            A(f"v_and_b32 v{VTR}, 3, v2")
            A(f"v_lshl_add_u32 v11, v{VTR}, 4, v11")
            A(f"v_add_u32 v11, s{colbyte_s}, v11")

        def narrow_tr_base(rows_per_wave):
            A(f"v_lshrrev_b32 v{VTR}, 2, v{TT}")
            A(f"v_lshl_add_u32 v{VTR}, v{G}, 3, v{VTR}")
            A(f"v_lshlrev_b32 v{VTR}, 6, v{VTR}")
            A(f"v_and_b32 v12, 3, v{TT}")
            A(f"v_lshl_add_u32 v{VTR}, v12, 3, v{VTR}")
            A(f"s_mul_i32 s54, s3, {rows_per_wave*64}")
            A(f"s_add_u32 s54, s54, {L_W}")
            A(f"v_add_u32 v{VTR}, s54, v{VTR}")

        def wait_cleared(t):
            pl = self.poll_head()
            A(f"buffer_load_dwordx4 v[{t}:{t+3}], off, s[76:79], 0 offset:128 sc1")
            A("s_waitcnt vmcnt(0)")
            A(f"v_add_u32 v{t}, v{t}, v{t+1}")
            A(f"v_add3_u32 v{t}, v{t}, v{t+2}, v{t+3}")
            A(f"v_cmp_ne_u32 vcc, 256, v{t}")
            self.poll_tail(pl)

        L("L_prep_wo")
        A(f"s_sub_u32 s59, s2, {R_WO0}")
        self.srd(8, 30, 4096 * 1024)
        A("s_lshr_b32 s56, s59, 3")
        A("s_lshl_b32 s56, s56, 19")
        A("s_and_b32 s57, s59, 7")
        A("s_lshl_b32 s57, s57, 7")
        A("s_add_u32 s56, s56, s57")
        wide_voff(1024, 56)
        A("s_lshl_b32 s57, s3, 14")
        self.dma_weights(8, 16, 11, 8 * 1024, 57)
        wide_tr_base()
        wait_cleared(TMP)
        self.tr_reads(VTR, BF, 4, [0, 32, 64, 96], 128)
        A(f"v_lshlrev_b32 v11, 17, v{HB}")
        A(f"v_lshl_add_u32 v12, v{HI}, 4, v11")
        A("s_lshr_b32 s56, s59, 3")
        A("s_lshl_b32 s60, s56, 12")
        A("s_lshl_b32 s56, s56, 2")
        A("s_add_u32 s56, s56, s3")
        A("s_lshl_b32 s56, s56, 12")
        A(f"s_add_u32 s56, s56, {PART_OFF}")
        A("s_and_b32 s57, s59, 7")
        A("s_lshl_b32 s57, s57, 8")
        A("s_add_u32 s60, s60, s57")
        A(f"s_add_u32 s60, s60, {ATT_OFF}")
        A("s_waitcnt lgkmcnt(0)")
        A("s_branch L_b3")

        XV, GAV, T4U, SBV = TMP + 28, TMP + 32, TMP + 36, TMP + 40
        L("L_prep_up")
        A(f"s_sub_u32 s59, s2, {R_UP0}")
        self.srd(8, 32, 512 * 2752)
        self.srd(12, 34, 512 * 2752)
        A("s_lshl_b32 s56, s59, 6")
        narrow_voff(2752, 128, 56)
        A("s_lshl_b32 s57, s3, 13")
        self.dma_weights(8, 8, 11, 16 * 2752, 57)
        A("s_add_u32 s57, s57, 32768")
        self.dma_weights(12, 8, 11, 16 * 2752, 57)
        narrow_tr_base(128)
        A(f"v_lshlrev_b32 v{TMP}, 10, v{HB}")
        A(f"v_lshl_add_u32 v{TMP}, v{HI}, 3, v{TMP}")
        A("s_lshl_b32 s54, s3, 8")
        A(f"buffer_load_dwordx2 v[{TMP+2}:{TMP+3}], v{TMP}, s[20:23], s54 offen")
        A(f"v_lshlrev_b32 v{TMP}, 11, v{HB}")
        A(f"v_lshl_add_u32 v{TMP}, v{HI}, 4, v{TMP}")
        A("s_lshl_b32 s54, s3, 9")
        A(f"s_add_u32 s54, s54, {MOD_OFF + 2*4096}")
        A(f"s_add_u32 s55, s54, 4096")
        A(f"s_add_u32 s56, s54, 8192")
        GA = TMP + 4
        pl = self.poll_head()
        A(f"buffer_load_dwordx4 v[{GA}:{GA+3}], v{TMP}, s[84:87], s54 offen sc1")
        A(f"buffer_load_dwordx4 v[{GA+4}:{GA+7}], v{TMP}, s[84:87], s55 offen sc1")
        A(f"buffer_load_dwordx4 v[{GA+8}:{GA+11}], v{TMP}, s[84:87], s56 offen sc1")
        A("s_waitcnt vmcnt(0)")
        self.check_tags([GA + 1, GA + 3, GA + 5, GA + 7, GA + 9, GA + 11], TMP + 16)
        self.poll_tail(pl)
        self.unpack2(TMP + 2, XV, XV + 1)
        self.unpack2(TMP + 3, XV + 2, XV + 3)
        self.unpack2(GA, GAV, GAV + 1)
        self.unpack2(GA + 2, GAV + 2, GAV + 3)
        A(f"v_mov_b32 v{SBV}, v{GA+4}")
        A(f"v_mov_b32 v{SBV+1}, v{GA+6}")
        self.unpack2(GA + 8, T4U, T4U + 1)
        self.unpack2(GA + 10, T4U + 2, T4U + 3)
        for k in range(4):
            A(f"v_add_f32 v{T4U+k}, 1.0, v{T4U+k}")
        self.rnd2(T4U, T4U + 1, TMP + 1)
        self.rnd2(T4U + 2, T4U + 3, TMP + 1)
        wait_cleared(TMP)
        self.tr_reads(VTR, BF, 4, [0, 32, 32768, 32768 + 32], 64)
        A(f"v_lshlrev_b32 v12, 11, v{HB}")
        A(f"v_lshl_add_u32 v12, v{HI}, 4, v12")
        A("s_lshl_b32 s56, s3, 9")
        A(f"s_add_u32 s56, s56, {ATT_OFF}")
        A("s_lshl_b32 s60, s59, 7")
        A(f"s_add_u32 s60, s60, {HH_OFF}")
        A("s_waitcnt lgkmcnt(0)")
        A("s_branch L_b3")

        DBF, DAF, DDT = 32, 120, 24
        L("L_prep_dn")
        A(f"s_sub_u32 s59, s2, {R_DN0}")
        self.srd(8, 36, 1376 * 1024)
        A("s_lshl_b32 s56, s59, 6")
        narrow_voff(1024, 352, 56)
        A(f"s_mul_i32 s57, s3, {352*64}")
        self.dma_weights(8, 22, 11, 16 * 1024, 57)
        narrow_tr_base(352)
        A("v_lshrrev_b32 v13, 3, v2")
        A("v_and_b32 v13, 1, v13")
        A("v_and_b32 v14, 7, v2")
        A("v_lshlrev_b32 v15, 10, v13")
        A("v_lshl_add_u32 v15, v14, 3, v15")
        A("buffer_load_dwordx2 v[16:17], v15, s[20:23], s56 offen")
        A("v_lshlrev_b32 v15, 11, v13")
        A("v_lshl_add_u32 v15, v14, 4, v15")
        A("s_lshl_b32 s54, s59, 7")
        A(f"s_add_u32 s55, s54, {MOD_OFF + 5*4096}")
        A(f"s_add_u32 s54, s54, {MOD_OFF + 2*4096}")
        pl = self.poll_head()
        A(f"buffer_load_dwordx4 v[{DAF}:{DAF+3}], v15, s[84:87], s54 offen sc1")
        A(f"buffer_load_dwordx4 v[{DAF+4}:{DAF+7}], v15, s[84:87], s55 offen sc1")
        A("s_waitcnt vmcnt(0)")
        self.check_tags([DAF + 1, DAF + 3, DAF + 5, DAF + 7], DAF + 8)
        self.poll_tail(pl)
        A(f"v_mov_b32 v18, v{DAF}")
        A(f"v_mov_b32 v19, v{DAF+2}")
        A(f"v_mov_b32 v20, v{DAF+4}")
        A(f"v_mov_b32 v21, v{DAF+6}")
        wait_cleared(DAF)
        self.tr_reads(VTR, DBF, 11, [0, 32], 64)
        A("s_lshl_b32 s56, s59, 7")
        A(f"s_add_u32 s56, s56, {ATT_OFF}")
        A("v_and_b32 v12, 1, v2")
        A("v_lshlrev_b32 v12, 6, v12")
        A(f"v_lshl_add_u32 v12, v{G}, 4, v12")
        A(f"s_mul_i32 s57, s3, {11*128}")
        A("s_waitcnt lgkmcnt(0)")
        L("L_b3")
        A("s_barrier")
        self.stamp(6)
        A("s_cmp_eq_u32 s3, 0")
        A("s_cbranch_scc0 L_tail")
        C = 120
        A(f"v_and_b32 v{C}, 7, v2")
        A(f"v_lshlrev_b32 v{C}, 3, v{C}")
        A(f"ds_read_b64 v[{C+2}:{C+3}], v{C} offset:{L_ML}")
        A(f"v_lshlrev_b32 v{C+1}, 3, v2")
        for w in range(8):
            A(f"ds_read_b64 v[{C+8+2*w}:{C+9+2*w}], v{C+1} offset:{L_P + w*1024}")
        A("s_waitcnt lgkmcnt(8)")
        A(f"v_max_f32_dpp v{C+4}, v{C+2}, v{C+2} row_ror:1 row_mask:0xf bank_mask:0xf")
        self.nop(2)
        A(f"v_max_f32_dpp v{C+4}, v{C+4}, v{C+4} row_ror:2 row_mask:0xf bank_mask:0xf")
        self.nop(2)
        A(f"v_max_f32_dpp v{C+4}, v{C+4}, v{C+4} row_ror:4 row_mask:0xf bank_mask:0xf")
        A(f"s_mov_b32 s58, {f32(LOG2E)}")
        A(f"v_sub_f32 v{C+6}, v{C+2}, v{C+4}")
        A(f"v_mul_f32 v{C+6}, s58, v{C+6}")
        A(f"v_exp_f32 v{C+6}, v{C+6}")
        self.nop(1)
        A(f"v_mul_f32 v{C+5}, v{C+6}, v{C+3}")
        self.nop(2)
        A(f"v_add_f32_dpp v{C+5}, v{C+5}, v{C+5} row_ror:1 row_mask:0xf bank_mask:0xf")
        self.nop(2)
        A(f"v_add_f32_dpp v{C+5}, v{C+5}, v{C+5} row_ror:2 row_mask:0xf bank_mask:0xf")
        self.nop(2)
        A(f"v_add_f32_dpp v{C+5}, v{C+5}, v{C+5} row_ror:4 row_mask:0xf bank_mask:0xf")
        A("s_waitcnt lgkmcnt(0)")
        A(f"v_mul_f32_dpp v{C+24}, v{C+6}, v{C+8} row_newbcast:0 row_mask:0xf bank_mask:0xf")
        A(f"v_mul_f32_dpp v{C+25}, v{C+6}, v{C+9} row_newbcast:0 row_mask:0xf bank_mask:0xf")
        for w in range(1, 8):
            A(f"v_fmac_f32_dpp v{C+24}, v{C+6}, v{C+8+2*w} row_newbcast:{w} row_mask:0xf bank_mask:0xf")
            A(f"v_fmac_f32_dpp v{C+25}, v{C+6}, v{C+9+2*w} row_newbcast:{w} row_mask:0xf bank_mask:0xf")
        for r in (C + 24, C + 25, C + 4, C + 5):
            A(f"v_min_u32 v{r}, -2, v{r}")
        A("s_lshl_b32 s63, s40, 2")
        A("s_add_u32 s63, s63, s41")
        A("s_lshl_b32 s63, s63, 10")
        A(f"s_add_u32 s63, s63, {PART_OFF}")
        A(f"buffer_store_dwordx2 v[{C+24}:{C+25}], v{C+1}, s[84:87], s63 offen sc1")
        A("s_mov_b64 exec, 1")
        A(f"buffer_store_dwordx2 v[{C+4}:{C+5}], off, s[84:87], s63 offset:512 sc1")
        A("s_mov_b64 exec, -1")
        self.stamp(7)
        L("L_tail")
        A(f"s_cmp_lt_u32 s2, {R_WO0}")
        A("s_cbranch_scc1 L_end")
        A(f"s_cmp_ge_u32 s2, {R_NONE0}")
        A("s_cbranch_scc1 L_end")
        A(f"s_cmp_lt_u32 s2, {R_UP0}")
        A("s_cbranch_scc1 L_tail_wo")
        A(f"s_cmp_lt_u32 s2, {R_DN0}")
        A("s_cbranch_scc1 L_tail_up")
        A("s_branch L_tail_dn")

        L("L_tail_wo")
        O = TMP
        pl = self.poll_head()
        for s in range(4):
            A(f"buffer_load_dwordx4 v[{O+4*s}:{O+4*s+3}], v12, s[84:87], s56 offen offset:{s*1024} sc1")
            A(f"buffer_load_dwordx2 v[{O+16+2*s}:{O+17+2*s}], v11, s[84:87], s56 offen offset:{s*1024+512} sc1")
        A("s_waitcnt vmcnt(0)")
        self.check_sent(range(O, O + 24), O + 24)
        self.poll_tail(pl)
        self.stamp(8)
        MM, LL = O + 24, O + 25
        A(f"v_max3_f32 v{MM}, v{O+16}, v{O+18}, v{O+20}")
        A(f"v_max_f32 v{MM}, v{MM}, v{O+22}")
        A(f"s_mov_b32 s58, {f32(LOG2E)}")
        for s in range(4):
            A(f"v_sub_f32 v{O+16+2*s}, v{O+16+2*s}, v{MM}")
        for s in range(4):
            A(f"v_mul_f32 v{O+16+2*s}, s58, v{O+16+2*s}")
        for s in range(4):
            A(f"v_exp_f32 v{O+16+2*s}, v{O+16+2*s}")
        self.nop(1)
        A(f"v_mul_f32 v{LL}, v{O+16}, v{O+17}")
        for s in range(1, 4):
            A(f"v_fmac_f32 v{LL}, v{O+16+2*s}, v{O+17+2*s}")
        A(f"v_rcp_f32 v{LL}, v{LL}")
        for k in range(4):
            A(f"v_mul_f32 v{O+k}, v{O+16}, v{O+k}")
        for s in range(1, 4):
            for k in range(4):
                A(f"v_fmac_f32 v{O+k}, v{O+16+2*s}, v{O+4*s+k}")
        for k in range(4):
            A(f"v_mul_f32 v{O+k}, v{LL}, v{O+k}")
        A(f"v_cvt_pk_bf16_f32 v{O+4}, v{O}, v{O+1}")
        A(f"v_cvt_pk_bf16_f32 v{O+5}, v{O+2}, v{O+3}")
        A(f"ds_write_b64 v{VAW}, v[{O+4}:{O+5}]")
        A("s_waitcnt lgkmcnt(0)")
        self.a_frags_from_stage(VAR, AF)
        A("s_waitcnt lgkmcnt(0)")
        self.mfmas(AF, BF, DT, 4, 4)
        self.d_to_lds(DT, 4, TMP, TMP + 1, VDW)
        A("s_waitcnt lgkmcnt(0)")
        A("s_barrier")
        A("s_cmp_eq_u32 s3, 0")
        A("s_cbranch_scc0 L_end")
        self.d_sum(G, TT, TMP)
        for k in range(4):
            A(f"v_min_u32 v{TMP+4+k}, -2, v{TMP+4+k}")
        A(f"v_lshlrev_b32 v{TMP}, 11, v{G}")
        A(f"v_lshl_add_u32 v{TMP}, v{TT}, 4, v{TMP}")
        A("s_mov_b32 exec_hi, 0")
        A(f"buffer_store_dwordx4 v[{TMP+4}:{TMP+7}], v{TMP}, s[84:87], s60 offen sc1")
        self.stamp(9)
        A("s_endpgm")

        L("L_tail_up")
        P = 12
        P = DT
        regs = [AF + 4 * i for i in range(4)] + [DT + 4 * i for i in range(4)]
        pl = self.poll_head()
        for hg in range(8):
            if hg:
                A(f"s_add_u32 s57, s56, {hg*4096}")
                A(f"buffer_load_dwordx4 v[{regs[hg]}:{regs[hg]+3}], v12, s[84:87], s57 offen sc1")
            else:
                A(f"buffer_load_dwordx4 v[{regs[hg]}:{regs[hg]+3}], v12, s[84:87], s56 offen sc1")
        A("s_waitcnt vmcnt(0)")
        self.check_sent([r + k for r in regs for k in range(4)], TMP)
        self.poll_tail(pl)
        self.stamp(8)
        X1 = TMP + 4
        self.sum8_x1(regs, X1, XV, GAV, TMP)
        S1, S2, U0, U1 = TMP + 8, TMP + 9, TMP + 10, TMP + 11
        A(f"v_add_f32 v{S1}, v{X1}, v{X1+1}")
        A(f"v_mul_f32 v{S2}, v{X1}, v{X1}")
        A(f"v_add_f32 v{U0}, v{X1+2}, v{X1+3}")
        A(f"v_fmac_f32 v{S2}, v{X1+1}, v{X1+1}")
        A(f"v_add_f32 v{S1}, v{S1}, v{U0}")
        A(f"v_fmac_f32 v{S2}, v{X1+2}, v{X1+2}")
        A(f"v_fmac_f32 v{S2}, v{X1+3}, v{X1+3}")
        self.allred32([S1, S2], [U0, U1])
        A(f"v_lshlrev_b32 v{U0}, 5, v{HB}")
        A("s_lshl_b32 s54, s3, 3")
        A(f"v_add_u32 v{U1}, s54, v{U0}")
        A(f"ds_write_b64 v{U1}, v[{S1}:{S2}] offset:{L_ST}")
        A("s_waitcnt lgkmcnt(0)")
        A("s_barrier")
        Q8 = TMP + 12
        A(f"ds_read_b128 v[{Q8}:{Q8+3}], v{U0} offset:{L_ST}")
        A(f"ds_read_b128 v[{Q8+4}:{Q8+7}], v{U0} offset:{L_ST+16}")
        A("s_waitcnt lgkmcnt(0)")
        A(f"v_add_f32 v{S1}, v{Q8}, v{Q8+2}")
        A(f"v_add_f32 v{S2}, v{Q8+1}, v{Q8+3}")
        A(f"v_add_f32 v{U0}, v{Q8+4}, v{Q8+6}")
        A(f"v_add_f32 v{U1}, v{Q8+5}, v{Q8+7}")
        A(f"v_add_f32 v{S1}, v{S1}, v{U0}")
        A(f"v_add_f32 v{S2}, v{S2}, v{U1}")
        self.ln_norm(S1, S2, X1, U0, U1)
        self.modulate(X1, T4U, SBV, SBV + 1, TMP, TMP + 12, VAW)
        A("s_waitcnt lgkmcnt(0)")
        self.a_frags_from_stage(VAR, AF)
        A("s_waitcnt lgkmcnt(0)")
        self.mfmas(AF, BF, DT, 4, 4)
        self.d_to_lds(DT, 4, TMP, TMP + 1, VDW)
        A("s_waitcnt lgkmcnt(0)")
        A("s_barrier")
        A("s_cmp_eq_u32 s3, 0")
        A("s_cbranch_scc0 L_end")
        A(f"v_lshrrev_b32 v{TMP}, 3, v2")
        A(f"v_and_b32 v{TMP}, 1, v{TMP}")
        A(f"v_and_b32 v{TMP+1}, 7, v2")
        A(f"v_lshlrev_b32 v{TMP+2}, 8, v{TMP}")
        A(f"v_lshl_add_u32 v{TMP+2}, v{TMP+1}, 4, v{TMP+2}")
        GT = AF
        for j in range(4):
            A(f"ds_read_b128 v[{AF+4*j}:{AF+4*j+3}], v{TMP+2} offset:{L_D + j*512}")
            A(f"ds_read_b128 v[{DT+4*j}:{DT+4*j+3}], v{TMP+2} offset:{L_D + j*512 + 128}")
        A(f"v_lshlrev_b32 v{TMP+3}, 6, v{TMP}")
        A(f"v_lshl_add_u32 v{TMP+3}, v{TMP+1}, 3, v{TMP+3}")
        A("s_waitcnt lgkmcnt(0)")
        for base in (AF, DT):
            for k in range(4):
                A(f"v_add_f32 v{base+k}, v{base+k}, v{base+4+k}")
                A(f"v_add_f32 v{base+8+k}, v{base+8+k}, v{base+12+k}")
            for k in range(4):
                A(f"v_add_f32 v{base+k}, v{base+k}, v{base+8+k}")
            self.rnd2(base, base + 1, base + 4)
            self.rnd2(base + 2, base + 3, base + 5)
        A(f"s_mov_b32 s58, {f32(-LOG2E)}")
        for k in range(4):
            A(f"v_mul_f32 v{AF+4+k}, s58, v{AF+k}")
        for k in range(4):
            A(f"v_exp_f32 v{AF+4+k}, v{AF+4+k}")
        self.nop(1)
        for k in range(4):
            A(f"v_add_f32 v{AF+4+k}, 1.0, v{AF+4+k}")
        for k in range(4):
            A(f"v_rcp_f32 v{AF+4+k}, v{AF+4+k}")
        self.nop(1)
        for k in range(4):
            A(f"v_mul_f32 v{AF+k}, v{AF+k}, v{AF+4+k}")
        self.rnd2(AF, AF + 1, AF + 4)
        self.rnd2(AF + 2, AF + 3, AF + 5)
        for k in range(4):
            A(f"v_mul_f32 v{AF+k}, v{AF+k}, v{DT+k}")
        A(f"v_cvt_pk_bf16_f32 v{AF+8}, v{AF}, v{AF+1}")
        A(f"v_cvt_pk_bf16_f32 v{AF+9}, v{AF+2}, v{AF+3}")
        A(f"v_min_u32 v{AF+8}, -2, v{AF+8}")
        A(f"v_min_u32 v{AF+9}, -2, v{AF+9}")
        A("s_mov_b64 exec, 0xffff")
        A(f"buffer_store_dwordx2 v[{AF+8}:{AF+9}], v{TMP+3}, s[84:87], s60 offen sc1")
        self.stamp(9)
        A("s_endpgm")

        L("L_tail_dn")
        A("s_cmp_eq_u32 s3, 0")
        A("s_cbranch_scc0 L_dn_hh")
        regs = [DAF + 4 * i for i in range(8)]
        pl = self.poll_head()
        for hg in range(8):
            if hg:
                A(f"s_add_u32 s54, s56, {hg*4096}")
                A(f"buffer_load_dwordx4 v[{regs[hg]}:{regs[hg]+3}], v15, s[84:87], s54 offen sc1")
            else:
                A(f"buffer_load_dwordx4 v[{regs[hg]}:{regs[hg]+3}], v15, s[84:87], s56 offen sc1")
        A("s_waitcnt vmcnt(0)")
        self.check_sent([r + k for r in regs for k in range(4)], DAF + 32)
        self.poll_tail(pl)
        self.unpack2(16, DAF + 32, DAF + 33)
        self.unpack2(17, DAF + 34, DAF + 35)
        self.unpack2(18, DAF + 36, DAF + 37)
        self.unpack2(19, DAF + 38, DAF + 39)
        self.sum8_x1(regs, DAF + 40, DAF + 32, DAF + 36, 22)
        A(f"v_cvt_pk_bf16_f32 v16, v{DAF+40}, v{DAF+41}")
        A(f"v_cvt_pk_bf16_f32 v17, v{DAF+42}, v{DAF+43}")
        L("L_dn_hh")
        pl = self.poll_head()
        for t in range(11):
            A(f"buffer_load_dwordx4 v[{DAF+4*t}:{DAF+4*t+3}], v12, s[16:19], s57 offen offset:{t*128} sc1")
        A("s_waitcnt vmcnt(0)")
        self.check_sent(range(DAF, DAF + 44), 22)
        self.poll_tail(pl)
        self.stamp(8)
        self.mfmas(DAF, DBF, DDT, 11, 2)
        self.d_to_lds(DDT, 2, 22, 23, VDW)
        A("s_waitcnt lgkmcnt(0)")
        A("s_barrier")
        A("s_cmp_eq_u32 s3, 0")
        A("s_cbranch_scc0 L_end")
        A("v_lshlrev_b32 v22, 8, v13")
        A("v_lshl_add_u32 v22, v14, 4, v22")
        F = DAF
        for j in range(4):
            A(f"ds_read_b128 v[{F+4*j}:{F+4*j+3}], v22 offset:{L_D + j*512}")
        self.unpack2(20, F + 16, F + 17)
        self.unpack2(21, F + 18, F + 19)
        self.unpack2(16, F + 20, F + 21)
        self.unpack2(17, F + 22, F + 23)
        A("v_lshlrev_b32 v23, 10, v13")
        A("v_lshl_add_u32 v23, v14, 3, v23")
        A("s_lshl_b32 s54, s59, 6")
        A("s_waitcnt lgkmcnt(0)")
        for k in range(4):
            A(f"v_add_f32 v{F+k}, v{F+k}, v{F+4+k}")
            A(f"v_add_f32 v{F+8+k}, v{F+8+k}, v{F+12+k}")
        for k in range(4):
            A(f"v_add_f32 v{F+k}, v{F+k}, v{F+8+k}")
        self.rnd2(F, F + 1, F + 4)
        self.rnd2(F + 2, F + 3, F + 5)
        for k in range(4):
            A(f"v_mul_f32 v{F+k}, v{F+k}, v{F+16+k}")
        self.rnd2(F, F + 1, F + 4)
        self.rnd2(F + 2, F + 3, F + 5)
        for k in range(4):
            A(f"v_add_f32 v{F+k}, v{F+k}, v{F+20+k}")
        A(f"v_cvt_pk_bf16_f32 v{F+8}, v{F}, v{F+1}")
        A(f"v_cvt_pk_bf16_f32 v{F+9}, v{F+2}, v{F+3}")
        A("s_mov_b64 exec, 0xffff")
        A(f"buffer_store_dwordx2 v[{F+8}:{F+9}], v23, s[72:75], s54 offen")
        self.stamp(9)
        A("s_endpgm")

    def d_sum(self, G, TT, t):
        A = self.A
        A(f"v_and_b32 v{t}, 1, v{G}")
        A(f"v_lshlrev_b32 v{t}, 8, v{t}")
        A(f"v_lshl_add_u32 v{t}, v{TT}, 4, v{t}")
        for j in range(4):
            A(f"ds_read_b128 v[{t+4+4*j}:{t+7+4*j}], v{t} offset:{L_D + j*512}")
        A("s_waitcnt lgkmcnt(0)")
        for k in range(4):
            A(f"v_add_f32 v{t+4+k}, v{t+4+k}, v{t+8+k}")
            A(f"v_add_f32 v{t+12+k}, v{t+12+k}, v{t+16+k}")
        for k in range(4):
            A(f"v_add_f32 v{t+4+k}, v{t+4+k}, v{t+12+k}")

    def sum8_x1(self, regs, X1, XV, GAV, t):
        A = self.A
        for a, b in ((0, 1), (2, 3), (4, 5), (6, 7), (0, 2), (4, 6)):
            for k in range(4):
                A(f"v_add_f32 v{regs[a]+k}, v{regs[a]+k}, v{regs[b]+k}")
        for k in range(4):
            A(f"v_add_f32 v{X1+k}, v{regs[0]+k}, v{regs[4]+k}")
        self.rnd2(X1, X1 + 1, t)
        self.rnd2(X1 + 2, X1 + 3, t + 1)
        for k in range(4):
            A(f"v_mul_f32 v{X1+k}, v{X1+k}, v{GAV+k}")
        self.rnd2(X1, X1 + 1, t)
        self.rnd2(X1 + 2, X1 + 3, t + 1)
        for k in range(4):
            A(f"v_add_f32 v{X1+k}, v{X1+k}, v{XV+k}")
        self.rnd2(X1, X1 + 1, t)
        self.rnd2(X1 + 2, X1 + 3, t + 1)

    def ln_norm(self, S1, S2, X, U0, U1):
        A = self.A
        A(f"s_mov_b32 s58, {f32(1.0/512)}")
        A(f"v_mul_f32 v{S1}, s58, v{S1}")
        A(f"v_mul_f32 v{S2}, s58, v{S2}")
        A(f"v_fma_f32 v{S2}, -v{S1}, v{S1}, v{S2}")
        A(f"v_max_f32 v{S2}, 0, v{S2}")
        self.rnd2(S1, S2, U0)
        A(f"v_add_f32 v{S2}, {f32(1e-5)}, v{S2}")
        self.rnd1(S2)
        A(f"v_sqrt_f32 v{S2}, v{S2}")
        for k in range(4):
            A(f"v_sub_f32 v{X+k}, v{X+k}, v{S1}")
        self.rnd1(S2)
        A(f"v_rcp_f32 v{S2}, v{S2}")
        self.rnd2(X, X + 1, U0)
        self.rnd2(X + 2, X + 3, U1)
        for k in range(4):
            A(f"v_mul_f32 v{X+k}, v{X+k}, v{S2}")
        self.rnd2(X, X + 1, U0)
        self.rnd2(X + 2, X + 3, U1)

    def modulate(self, N, T4, sp0, sp1, t0, w, VAW):
        A = self.A
        for k in range(4):
            A(f"v_mul_f32 v{N+k}, v{N+k}, v{T4+k}")
        self.rnd2(N, N + 1, t0)
        self.rnd2(N + 2, N + 3, t0 + 1)
        self.unpack2(sp0, w, w + 1)
        self.unpack2(sp1, w + 2, w + 3)
        for k in range(4):
            A(f"v_add_f32 v{N+k}, v{N+k}, v{w+k}")
        A(f"v_cvt_pk_bf16_f32 v{w+4}, v{N}, v{N+1}")
        A(f"v_cvt_pk_bf16_f32 v{w+5}, v{N+2}, v{N+3}")
        A(f"ds_write_b64 v{VAW}, v[{w+4}:{w+5}]")


HEADER = open("cdna_kernels/%s.s.ref" % NAME).read().split("; Override launch geometry")[0] if True else ""

if __name__ == "__main__":
    import argparse
    ap = argparse.ArgumentParser()
    ap.add_argument("-o", default="k.s")
    ap.add_argument("--R", type=int, default=3)
    ap.add_argument("--B", type=int, default=32)
    ap.add_argument("--stamps", action="store_true")
    ap.add_argument("--sleep", type=int, default=1)
    a = ap.parse_args()
    B = a.B
    if a.stamps and B > 32:
        B = 32
    g = Gen(R=a.R, B=B, stamps=a.stamps, sleep=a.sleep)
    open(a.o, "w").write(HEADER + g.build())
```

```python
import sys, struct

NAME = "adaLN_cond__mha_block_cached__glu_gated_swiglu__decode"

def f32(x):
    return "0x%08x" % struct.unpack("<I", struct.pack("<f", x))[0]

LOG2E = 1.4426950408889634
SCALE = 128 ** -0.5

MOD_OFF = 0x0000
Q_OFF = 0x8000
PART_OFF = 0x10000
ATT_OFF = 0x50000
HH_OFF = 0x58000
CNT_OFF = 0x5A000
WS_USED = 0x5C080
STAMP_OFF = 0x10000000
L_A = 0
L_D = L_A + 2048
L_ST = L_D + 2048
L_Q = L_ST + 64
L_CNT = L_Q + 256
L_QF = L_CNT + 16
L_ML = L_QF + 16
L_P = 4608
L_W = L_P + 8192
LDS_BYTES = L_W + 90112

R_MOD0, R_Q0, R_WO0, R_WO1, R_UP0, R_UP1, R_DN0 = 0, 48, 112, 176, 192, 235, 240
SENT = 0xFFFFFFFF


class Gen:
    def __init__(self, R=3, B=32, stamps=False, NS=12, sleep=1, R0=3, grp='iod', CP=0, dbg='', pace=0, tpol='nt', xmap=False, flagq=False, ps1=1, ps2=1, TH=480):
        self.o = []
        self.R, self.B, self.stamps, self.NS, self.sleep, self.R0, self.grp = R, B, stamps, NS, sleep, R0, grp
        self.uid = 0
        self.CP = CP
        self.dbg = dbg
        self.TH = TH
        self.ps1, self.ps2 = ps1, ps2
        self.pace, self.tpol, self.xmap, self.flagq = pace, tpol, xmap, flagq

    def A(self, s):
        self.o.append("    " + s)

    def L(self, s):
        self.o.append(s + ":")

    def lab(self, p):
        self.uid += 1
        return f"L_{p}_{self.uid}"

    def nop(self, n):
        while n > 0:
            k = min(n, 16)
            self.A(f"s_nop {k-1}")
            n -= k

    def srd(self, d, b, nbytes):
        self.A(f"s_mov_b32 s{d}, s{b}")
        self.A(f"s_mov_b32 s{d+1}, s{b+1}")
        self.A(f"s_mov_b32 s{d+2}, {nbytes}")
        self.A(f"s_mov_b32 s{d+3}, 0x20000")

    def stamp(self, idx, src=None, wave=False):
        if not self.stamps:
            return
        A = self.A
        if src is None:
            A("s_memrealtime s[90:91]")
        else:
            A(f"s_mov_b64 s[90:91], {src}")
        A("s_mov_b64 s[92:93], exec")
        A("s_mov_b64 exec, 1")
        A("s_lshl_b32 s94, s2, 9")
        if wave:
            A("s_lshl_b32 s95, s3, 5")
            A("s_add_u32 s94, s94, s95")
        A(f"s_add_u32 s94, s94, {STAMP_OFF + idx*8}")
        A("s_waitcnt lgkmcnt(0)")
        A("v_mov_b32 v166, s90")
        A("v_mov_b32 v167, s91")
        A("buffer_store_dwordx2 v[166:167], off, s[84:87], s94")
        A("s_mov_b64 exec, s[92:93]")

    def rnd2(self, a, b, t):
        self.A(f"v_cvt_pk_bf16_f32 v{t}, v{a}, v{b}")
        self.A(f"v_lshlrev_b32 v{a}, 16, v{t}")
        self.A(f"v_and_b32 v{b}, 0xffff0000, v{t}")

    def rnd1(self, a):
        self.A(f"v_cvt_pk_bf16_f32 v{a}, v{a}, v{a}")
        self.A(f"v_and_b32 v{a}, 0xffff0000, v{a}")

    def unpack2(self, src, lo, hi):
        self.A(f"v_lshlrev_b32 v{lo}, 16, v{src}")
        self.A(f"v_and_b32 v{hi}, 0xffff0000, v{src}")

    def allred32(self, regs, tmps):
        A = self.A
        for rot in (8, 4, 2, 1):
            self.nop(2 if len(regs) < 2 else max(0, 2 - (len(regs) - 1)))
            for r in regs:
                A(f"v_add_f32_dpp v{r}, v{r}, v{r} row_ror:{rot} row_mask:0xf bank_mask:0xf")
        for r, t in zip(regs, tmps):
            A(f"v_mov_b32 v{t}, v{r}")
        self.nop(2)
        for r, t in zip(regs, tmps):
            A(f"v_permlane16_swap_b32 v{r}, v{t}")
        self.nop(1)
        for r, t in zip(regs, tmps):
            A(f"v_add_f32 v{r}, v{r}, v{t}")

    def slice_of(self, dst, r0, n):
        A = self.A
        A(f"s_sub_u32 s{dst}, s89, {r0}")
        if not self.xmap:
            return
        q, rem = divmod(n, 8)
        A(f"s_and_b32 s68, s{dst}, 7")
        A(f"s_lshr_b32 s{dst}, s{dst}, 3")
        A(f"s_min_u32 s69, s68, {rem}")
        A(f"s_mul_i32 s68, s68, {q}")
        A(f"s_add_u32 s{dst}, s{dst}, s68")
        A(f"s_add_u32 s{dst}, s{dst}, s69")

    def poll_head(self):
        l = self.lab("poll")
        self.L(l)
        return l

    def poll_tail(self, l, sleep=None):
        A = self.A
        d = self.lab("pdone")
        A(f"s_cbranch_vccz {d}")
        A("s_cmp_eq_u32 s88, 0")
        A(f"s_cbranch_scc1 {d}")
        A("s_sub_u32 s88, s88, 1")
        A(f"s_sleep {self.sleep if sleep is None else sleep}")
        A(f"s_branch {l}")
        self.L(d)

    def check_sent(self, regs, t):
        A = self.A
        regs = list(regs)
        A(f"v_max_u32 v{t}, v{regs[0]}, v{regs[1]}")
        regs = regs[2:]
        while len(regs) >= 2:
            A(f"v_max3_u32 v{t}, v{t}, v{regs[0]}, v{regs[1]}")
            regs = regs[2:]
        if regs:
            A(f"v_max_u32 v{t}, v{t}, v{regs[0]}")
        A(f"v_cmp_eq_u32 vcc, -1, v{t}")

    def check_tags(self, regs, t):
        A = self.A
        A(f"v_xor_b32 v{t}, s80, v{regs[0]}")
        for r in regs[1:]:
            A(f"v_xor_b32 v{t+1}, s80, v{r}")
            A(f"v_or_b32 v{t}, v{t}, v{t+1}")
        A(f"v_cmp_ne_u32 vcc, 0, v{t}")

    def dma_weights(self, srd, nins, voff, row_step_bytes, lds_base_s, soff0=0, pol="nt", skip=""):
        A = self.A
        if "notaildma" in self.dbg and getattr(self, "intail", False):
            return
        if "noprodma" in self.dbg and not getattr(self, "intail", False):
            nins = 16
            A(f"s_mov_b32 s{srd+2}, 0")
        A(f"s_mov_b32 s70, {soff0}")
        A(f"s_add_u32 s71, s{lds_base_s}, {L_W}")
        intail = getattr(self, "intail", False)
        if intail:
            pol = self.tpol
            if skip and skip in self.dbg:
                return
        for i in range(nins):
            if intail and self.pace and i >= self.pace:
                A(f"s_waitcnt vmcnt({self.pace-1})")
            A("s_mov_b32 m0, s71")
            A(f"s_add_u32 s71, s71, 1024")
            A(f"buffer_load_dwordx4 v{voff}, s[{srd}:{srd+3}], s70 offen {pol} lds")
            A(f"s_add_u32 s70, s70, {row_step_bytes}")

    def tr_reads(self, vaddr, breg, nk, cgs, rowb):
        for t in range(nk):
            for ci, cgoff in enumerate(cgs):
                r = breg + (t * len(cgs) + ci) * 4
                off = t * 32 * rowb + cgoff
                self.A(f"ds_read_b64_tr_b16 v[{r}:{r+1}], v{vaddr} offset:{off}")
                self.A(f"ds_read_b64_tr_b16 v[{r+2}:{r+3}], v{vaddr} offset:{off + 4*rowb}")

    def mfmas(self, areg, breg, dreg, nk, ncg):
        for t in range(nk):
            for c in range(ncg):
                a = areg + 4 * t
                b = breg + (t * ncg + c) * 4
                d = dreg + 4 * c
                src = "0" if t == 0 else f"v[{d}:{d+3}]"
                self.A(f"v_mfma_f32_16x16x32_bf16 v[{d}:{d+3}], v[{a}:{a+3}], v[{b}:{b+3}], {src}")

    def d_to_lds(self, dreg, ncg, x0, x1, vaddr):
        A = self.A
        self.nop(8)
        for c in range(ncg):
            A(f"v_mov_b32_dpp v{x0}, v{dreg+4*c} quad_perm:[0,1,2,3] row_mask:{1<<c:#x} bank_mask:0xf")
            A(f"v_mov_b32_dpp v{x1}, v{dreg+4*c+1} quad_perm:[0,1,2,3] row_mask:{1<<c:#x} bank_mask:0xf")
        A(f"ds_write_b32 v{vaddr}, v{x0}")
        A(f"ds_write_b32 v{vaddr}, v{x1} offset:256")

    def a_frags_from_stage(self, vaddr, areg):
        for t in range(4):
            self.A(f"ds_read_b128 v[{areg+4*t}:{areg+4*t+3}], v{vaddr} offset:{t*64}")

    def build(self):
        A, L = self.A, self.L
        o = self.o
        o.append(f"; @launch grid=(256,1,1) block=(768,1,1) lds={LDS_BYTES}")
        o.append('.amdgcn_target "amdgcn-amd-amdhsa--gfx950"')
        o.append(".text")
        o.append(f".globl {NAME}_kernel")
        o.append(".p2align 8")
        o.append(f".type {NAME}_kernel,@function")
        L(f"{NAME}_kernel")
        if self.stamps:
            A("s_memrealtime s[100:101]")
        A("s_cmp_ge_u32 s2, 256")
        A("s_cbranch_scc1 L_end")
        A("s_load_dwordx4 s[4:7], s[0:1], 8")
        A("s_load_dwordx4 s[96:99], s[0:1], 96")
        A("v_lshrrev_b32 v1, 6, v0")
        A("v_and_b32 v2, 63, v0")
        A("v_readfirstlane_b32 s3, v1")
        if self.grp == "pair":
            A("s_and_b32 s40, s2, 7")
            A("s_lshr_b32 s40, s40, 1")
            A("s_lshr_b32 s43, s2, 4")
            A("s_lshl_b32 s43, s43, 2")
            A("s_add_u32 s40, s40, s43")
            A("s_and_b32 s41, s2, 1")
            A("s_lshr_b32 s43, s2, 3")
            A("s_and_b32 s43, s43, 1")
            A("s_lshl_b32 s43, s43, 1")
            A("s_add_u32 s41, s41, s43")
        else:
            A("s_lshr_b32 s41, s2, 1")
            A("s_xor_b32 s40, s41, s2")
            A("s_and_b32 s40, s40, 1")
            A("s_and_b32 s41, s41, 3")
            A("s_lshr_b32 s43, s2, 3")
            A("s_lshl_b32 s43, s43, 1")
            A("s_add_u32 s40, s40, s43")
        A("s_lshr_b32 s89, s40, 1")
        A("s_add_u32 s89, s89, s41")
        A("s_and_b32 s89, s89, 3")
        A("s_lshl_b32 s89, s89, 6")
        A("s_add_u32 s89, s89, s40")
        A("s_cmp_ge_u32 s3, 8")
        A("s_cbranch_scc1 L_helper")
        self.streamer()
        L("L_helper")
        self.helper()
        L("L_end")
        A("s_endpgm")
        o.append('.section .rodata,"a"')
        o.append(".p2align 6")
        o.append(f".amdhsa_kernel {NAME}_kernel")
        o.append("  .amdhsa_next_free_vgpr 168")
        o.append("  .amdhsa_next_free_sgpr 102")
        o.append("  .amdhsa_accum_offset 168")
        o.append("  .amdhsa_group_segment_fixed_size 0")
        o.append("  .amdhsa_kernarg_size 112")
        o.append("  .amdhsa_user_sgpr_count 2")
        o.append("  .amdhsa_user_sgpr_kernarg_segment_ptr 1")
        o.append("  .amdhsa_system_sgpr_workgroup_id_x 1")
        o.append(".end_amdhsa_kernel")
        return "\n".join(o) + "\n"

    def streamer(self):
        A, L = self.A, self.L
        R, B, NS, R0 = self.R, self.B, self.NS, self.R0
        VOFF, QF, MK, D, M, MN, LS = 1, 2, 6, 10, 14, 15, 16
        AC, T0, T1, S, PP = 17, 21, 22, 23, 24
        AS = 26
        LANE = 34
        EP, CLM = 35, 25
        RING = 168 - 4 * B - (2 if self.stamps else 0)
        RING -= RING % 2
        assert RING >= 36
        A(f"v_mov_b32 v{LANE}, v2")
        A("s_lshl_b32 s44, s41, 3")
        A("s_add_u32 s44, s44, s3")
        A("s_lshl_b32 s44, s44, 12")
        A("s_lshl_b32 s45, s40, 21")
        A(f"v_lshlrev_b32 v{VOFF}, 4, v2")
        A(f"v_add_u32 v{VOFF}, s45, v{VOFF}")
        A("s_waitcnt lgkmcnt(0)")
        self.srd(8, 4, 0x8000000)
        self.srd(12, 6, 0x8000000)
        N = (NS - 1) * 8 + R
        NC = (NS - 1) * 8

        def issue(p):
            i, j = divmod(p, 8)
            t, j = divmod(j, 4)
            r = RING + 4 * (p % B)
            srd = "s[8:11]" if t == 0 else "s[12:15]"
            if j == 0 and t == 0:
                A(f"s_add_u32 s16, s44, {i * 32 * 4096}")
                if self.stamps and i < 14:
                    A(f"s_memrealtime s[{48+2*i}:{49+2*i}]")
            A(f"buffer_load_dwordx4 v[{r}:{r+3}], v{VOFF}, {srd}, s16 offen offset:{j*1024} nt")

        for p in range(R0):
            issue(p)
        if self.stamps:
            A("s_memrealtime s[30:31]")
        self.srd(84, 98, 0x20000000)
        A("s_barrier")
        A("s_lshl_b32 s45, s40, 7")
        A(f"s_add_u32 s45, s45, {CNT_OFF}")
        A("s_lshl_b32 s42, s3, 2")
        A("s_add_u32 s45, s45, s42")
        A("s_lshl_b32 s42, s3, 12")
        A("s_add_u32 s26, s98, s45")
        A("s_addc_u32 s27, s99, 0")
        A(f"v_and_b32 v{T0}, 15, v{LANE}")
        A(f"v_and_b32 v{T1}, 1, v{LANE}")
        A(f"v_lshlrev_b32 v{T1}, 4, v{T1}")
        A(f"s_mov_b32 s17, 0xffff")
        A(f"v_mov_b32 v{S}, s17")
        A(f"v_lshlrev_b32 v{T1}, v{T1}, v{S}")
        A(f"v_lshrrev_b32 v{T0}, 1, v{T0}")
        for k in range(4):
            A(f"v_cmp_eq_u32 vcc, {k}, v{T0}")
            self.nop(2)
            A(f"v_cndmask_b32 v{MK+k}, 0, v{T1}, vcc")
        for k in range(4):
            A(f"v_mov_b32 v{D+k}, 0")
        A(f"v_mov_b32 v{M}, {f32(-3.0e38)}")
        A(f"v_mov_b32 v{MN}, 0")
        A(f"v_mov_b32 v{LS}, 0")
        A(f"s_mov_b32 s18, {f32(SCALE)}")
        A(f"s_mov_b32 s19, {f32(LOG2E)}")
        for p in range(R0, B):
            A(f"s_waitcnt vmcnt({R0-1 if p < 8 else R-1})")
            issue(p)
        self.stamp(1)
        self.stamp(11, "s[100:101]")
        self.stamp(12, "s[30:31]")
        A(f"v_and_b32 v{T0}, 15, v{LANE}")
        A(f"v_lshlrev_b32 v{T0}, 4, v{T0}")
        if not self.flagq:
            A("s_barrier")
            A(f"ds_read_b128 v[{QF}:{QF+3}], v{T0} offset:{L_Q}")
            A("s_waitcnt lgkmcnt(0)")
        else:
            A(f"v_mov_b32 v{T1}, 0")
            A("s_mov_b32 s88, 0x400000")
            pl = self.poll_head()
            A(f"ds_read_b64 v[{AS}:{AS+1}], v{T1} offset:{L_QF}")
            A(f"ds_read_b128 v[{QF}:{QF+3}], v{T0} offset:{L_Q}")
            A("s_waitcnt lgkmcnt(0)")
            A(f"v_and_b32 v{AS}, v{AS}, v{AS+1}")
            A(f"v_cmp_eq_u32 vcc, 0, v{AS}")
            self.poll_tail(pl, sleep=1)
        if self.stamps:
            A("s_waitcnt vmcnt(0)")
        beta = [0, 2, 1, 3]
        st = {"I": B, "landed": (B if self.stamps else B - R)}

        def need(c):
            if c >= st["landed"]:
                A(f"s_waitcnt vmcnt({st['I'] - 1 - c})")
                st["landed"] = c + 1

        def paced_issue():
            I = st["I"]
            if I >= N:
                return
            if I - st["landed"] >= R:
                A(f"s_waitcnt vmcnt({R-1})")
                st["landed"] = I - (R - 1)
            issue(I)
            st["I"] = I + 1

        def consume(c):
            i, j = divmod(c, 8)
            t, j = divmod(j, 4)
            r = RING + 4 * (c % B)
            need(c)
            if "nocomp" in self.dbg:
                A(f"v_xor_b32 v{AC}, v{AC}, v{r}")
            elif t == 0:
                A(f"v_dot2_f32_bf16 v{AC+j}, v{r}, v{QF}, 0")
                for k in range(1, 4):
                    A(f"v_dot2_f32_bf16 v{AC+j}, v{r+k}, v{QF+k}, v{AC+j}")
            else:
                a = AS + 4 * (j & 1)
                for k in range(4):
                    A(f"v_and_b32_dpp v{a+k}, v{PP}, v{MK+k} row_newbcast:{4*beta[j]} row_mask:0xf bank_mask:0xf")
                self.nop(2)
                A(f"v_mfma_f32_16x16x32_bf16 v[{D}:{D+3}], v[{a}:{a+3}], v[{r}:{r+3}], v[{D}:{D+3}]")

        def softmax():
            if "nocomp" in self.dbg:
                return
            self.nop(3)
            A(f"v_add_f32_dpp v{T0}, v{AC}, v{AC} row_ror:8 row_mask:0xf bank_mask:0x3")
            A(f"v_add_f32_dpp v{T1}, v{AC+2}, v{AC+2} row_ror:8 row_mask:0xf bank_mask:0x3")
            A(f"v_add_f32_dpp v{T0}, v{AC+1}, v{AC+1} row_ror:8 row_mask:0xf bank_mask:0xc")
            A(f"v_add_f32_dpp v{T1}, v{AC+3}, v{AC+3} row_ror:8 row_mask:0xf bank_mask:0xc")
            self.nop(1)
            A(f"v_add_f32_dpp v{S}, v{T0}, v{T0} row_shl:4 row_mask:0xf bank_mask:0x5")
            A(f"v_add_f32_dpp v{S}, v{T1}, v{T1} row_shr:4 row_mask:0xf bank_mask:0xa")
            self.nop(2)
            A(f"v_add_f32_dpp v{S}, v{S}, v{S} quad_perm:[2,3,0,1] row_mask:0xf bank_mask:0xf")
            self.nop(2)
            A(f"v_add_f32_dpp v{S}, v{S}, v{S} quad_perm:[1,0,3,2] row_mask:0xf bank_mask:0xf")
            self.rnd1(S)
            A(f"v_mul_f32 v{S}, s18, v{S}")
            self.rnd1(S)
            A(f"v_cmp_gt_f32 vcc, v{S}, v{M}")
            bk = self.lab("back")
            A(f"s_cbranch_vccz {bk}")
            A("s_call_b64 s[46:47], L_rare")
            L(bk)
            A(f"v_fma_f32 v{T0}, v{S}, s19, v{MN}")
            A(f"v_exp_f32 v{T0}, v{T0}")
            self.nop(1)
            A(f"v_add_f32 v{LS}, v{LS}, v{T0}")
            A(f"v_cvt_pk_bf16_f32 v{PP}, v{T0}, v{T0}")
            self.nop(2)

        c = 0
        while c < NC:
            lag = st["I"] - c
            ncons = 2 if lag > R + 1 else 1
            if st["I"] < N and st["I"] - B < c and lag <= R:
                paced_issue()
            for _ in range(ncons):
                if c >= NC:
                    break
                consume(c)
                c += 1
                if c % 8 == 4:
                    softmax()
            if st["I"] < N and st["I"] - B < c and (st["I"] - c) > R:
                paced_issue()
        assert st["I"] == N, (st, N)
        base = (NS - 1) * 8
        alt = (base + 8) % B
        st["landed"] = 1 << 30

        def ld(pos, sl, soff):
            t, jl = divmod(pos, 4)
            r = RING + 4 * (sl % B)
            srd = "s[8:11]" if t == 0 else "s[12:15]"
            A(f"buffer_load_dwordx4 v[{r}:{r+3}], v{VOFF}, {srd}, {soff} offen offset:{jl*1024} nt")

        CP = self.CP

        def claim():
            A("s_mov_b32 s24, 1")
            A("s_atomic_add s24, s[26:27], 0 glc")

        def eat(sl, j_from, younger):
            for j in range(j_from, 8):
                A(f"s_waitcnt vmcnt({younger + 7 - j})")
                consume(sl + j)
                if j == 3:
                    softmax()

        if self.stamps:
            A("s_mov_b32 s78, 0")
            A("s_mov_b32 s79, 0")
        j0 = 8 - R
        assert CP < j0
        L("L_dyn")
        if self.stamps:
            A("s_add_u32 s78, s78, 1")
        for j in range(8):
            if j == CP:
                claim()
            if j == j0:
                A("s_waitcnt lgkmcnt(0)")
                A(f"s_cmp_ge_u32 s24, {self.TH // 8}")
                A("s_cbranch_scc1 L_fin")
                A("s_lshl_b32 s16, s24, 15")
                A("s_add_u32 s16, s16, s42")
            A(f"s_waitcnt vmcnt({R-1})")
            jj = j + R
            ld(jj % 8, base + jj % 8, "s16")
            consume(base + j)
            if j == 3:
                softmax()
        A("s_branch L_dyn")
        L("L_fin")
        if self.stamps:
            A("s_memrealtime s[76:77]")
        A("s_cmp_ge_u32 s24, 64")
        A("s_cbranch_scc1 L_fin_last")
        A("s_lshl_b32 s25, s24, 15")
        A("s_add_u32 s25, s25, s42")
        claim()
        for jj in range(8):
            ld(jj, alt + jj, "s25")
        eat(base, j0, 8)
        for (P, Q, me, other) in ((alt, base, "A", "B"), (base, alt, "B", "A")):
            L(f"L_eg{me}")
            A("s_waitcnt lgkmcnt(0)")
            A("s_cmp_ge_u32 s24, 64")
            A(f"s_cbranch_scc1 L_drain{me}")
            A("s_lshl_b32 s25, s24, 15")
            A("s_add_u32 s25, s25, s42")
            claim()
            for jj in range(8):
                ld(jj, Q + jj, "s25")
            eat(P, 0, 8)
            if me == "B":
                A("s_branch L_egA")
        L("L_drainA")
        eat(alt, 0, 0)
        A("s_branch L_done")
        L("L_drainB")
        eat(base, 0, 0)
        A("s_branch L_done")
        L("L_fin_last")
        eat(base, j0, 0)
        L("L_done")
        self.stamp(2)
        self.stamp(32, wave=True)
        self.stamp(33, "s[76:77]", wave=True)
        self.stamp(34, "s[78:79]", wave=True)
        if self.stamps:
            A("s_cmp_eq_u32 s3, 0")
            A("s_cbranch_scc0 L_noprof")
            for i in range(min(NS, 14)):
                self.stamp(16 + i, f"s[{48+2*i}:{49+2*i}]")
            self.stamp(16 + 14)
            L("L_noprof")
        A(f"v_add_f32_dpp v{LS}, v{LS}, v{LS} row_ror:4 row_mask:0xf bank_mask:0xf")
        self.nop(2)
        A(f"v_add_f32_dpp v{LS}, v{LS}, v{LS} row_ror:8 row_mask:0xf bank_mask:0xf")
        self.nop(2)
        A(f"v_add_f32_dpp v{LS}, v{LS}, v{LS} row_bcast:15 row_mask:0xa bank_mask:0xf")
        self.nop(2)
        A(f"v_add_f32_dpp v{LS}, v{LS}, v{LS} row_bcast:31 row_mask:0xc bank_mask:0xf")
        A(f"v_and_b32 v{T0}, 15, v{LANE}")
        A(f"v_lshlrev_b32 v{T0}, 5, v{T0}")
        A(f"v_lshrrev_b32 v{T1}, 4, v{LANE}")
        A(f"v_and_b32 v{S}, 1, v{T1}")
        A(f"v_lshl_add_u32 v{T0}, v{S}, 4, v{T0}")
        A(f"v_lshrrev_b32 v{T1}, 1, v{T1}")
        A(f"v_lshl_add_u32 v{T0}, v{T1}, 9, v{T0}")
        A("s_lshl_b32 s20, s3, 10")
        A(f"v_add_u32 v{T0}, s20, v{T0}")
        A(f"ds_write_b128 v{T0}, v[{D}:{D+3}] offset:{L_P}")
        A(f"v_mov_b32 v{MN}, v{LS}")
        A("s_lshl_b32 s20, s3, 3")
        A(f"v_mov_b32 v{T1}, s20")
        A("s_mov_b32 exec_lo, 0")
        A("s_mov_b32 exec_hi, 0x80000000")
        A(f"ds_write_b64 v{T1}, v[{M}:{M+1}] offset:{L_ML}")
        A("s_waitcnt lgkmcnt(0)")
        A("s_barrier")
        A("s_endpgm")
        L("L_rare")
        A(f"v_max_f32_dpp v{T0}, v{S}, v{S} row_ror:4 row_mask:0xf bank_mask:0xf")
        self.nop(2)
        A(f"v_max_f32_dpp v{T0}, v{T0}, v{T0} row_ror:8 row_mask:0xf bank_mask:0xf")
        self.nop(1)
        A(f"v_readlane_b32 s20, v{T0}, 0")
        A(f"v_readlane_b32 s21, v{T0}, 16")
        A(f"v_readlane_b32 s22, v{T0}, 32")
        A(f"v_readlane_b32 s23, v{T0}, 48")
        A(f"v_max_f32 v{T1}, s20, v{M}")
        A(f"v_max_f32 v{T1}, s21, v{T1}")
        A(f"v_max_f32 v{T1}, s22, v{T1}")
        A(f"v_max_f32 v{T1}, s23, v{T1}")
        A(f"v_sub_f32 v{T0}, v{M}, v{T1}")
        A(f"v_mul_f32 v{T0}, s19, v{T0}")
        A(f"v_exp_f32 v{T0}, v{T0}")
        A(f"v_mov_b32 v{M}, v{T1}")
        A(f"v_mul_f32 v{MN}, s19, v{T1}")
        A(f"v_sub_f32 v{MN}, 0, v{MN}")
        for k in range(4):
            A(f"v_mul_f32 v{D+k}, v{D+k}, v{T0}")
        A(f"v_mul_f32 v{LS}, v{LS}, v{T0}")
        A("s_setpc_b64 s[46:47]")

    def helper(self):
        A, L = self.A, self.L
        A("s_setprio 2")
        A("s_sub_u32 s3, s3, 8")
        A("s_load_dwordx2 s[24:25], s[0:1], 0")
        A("s_load_dwordx4 s[28:31], s[0:1], 24")
        A("s_load_dwordx4 s[32:35], s[0:1], 48")
        A("s_load_dwordx4 s[36:39], s[0:1], 64")
        A("s_load_dwordx4 s[48:51], s[0:1], 80")
        A("s_memrealtime s[66:67]")
        A("s_mov_b32 s88, 0x40000")
        A("v_mov_b32 v12, 0")
        A("v_mov_b32 v13, 0")
        A("v_mov_b32 v14, 0")
        A("v_mov_b32 v15, 0")
        A(f"ds_write_b128 v12, v[12:15] offset:{L_CNT}")
        A(f"ds_write_b64 v12, v[12:13] offset:{L_QF}")
        HB, HI, G, TT = 3, 4, 5, 6
        A(f"v_lshrrev_b32 v{HB}, 5, v2")
        A(f"v_and_b32 v{HI}, 31, v2")
        A(f"v_lshrrev_b32 v{G}, 4, v2")
        A(f"v_and_b32 v{TT}, 15, v2")
        VAW, VAR, VDW, VTR = 7, 8, 9, 10
        A("s_lshl_b32 s52, s3, 9")
        A(f"v_lshlrev_b32 v{VAW}, 8, v{HB}")
        A(f"v_lshl_add_u32 v{VAW}, v{HI}, 3, v{VAW}")
        A(f"s_add_u32 s53, s52, {L_A}")
        A(f"v_add_u32 v{VAW}, s53, v{VAW}")
        A(f"v_and_b32 v{VAR}, 1, v2")
        A(f"v_lshlrev_b32 v{VAR}, 8, v{VAR}")
        A(f"v_lshl_add_u32 v{VAR}, v{G}, 4, v{VAR}")
        A(f"v_add_u32 v{VAR}, s53, v{VAR}")
        A(f"s_add_u32 s53, s52, {L_D}")
        A(f"v_lshlrev_b32 v{VDW}, 2, v2")
        A(f"v_add_u32 v{VDW}, s53, v{VDW}")
        A("s_waitcnt lgkmcnt(0)")
        self.srd(84, 98, 0x20000000)
        self.srd(76, 96, 256)
        A("s_or_b32 s54, s2, s3")
        A("s_cmp_eq_u32 s54, 0")
        A("s_cbranch_scc0 L_notagw")
        A("s_or_b32 s66, s66, 1")
        A("v_mov_b32 v12, s66")
        A("s_mov_b64 exec, 1")
        A("buffer_store_dword v12, off, s[76:79], 0 sc1")
        A("s_mov_b64 exec, -1")
        L("L_notagw")
        self.srd(20, 24, 2048)
        A(f"s_add_u32 s16, s98, {HH_OFF}")
        A("s_addc_u32 s17, s99, 0")
        A(f"s_mov_b32 s18, {43*128}")
        A("s_mov_b32 s19, 0x20000")
        self.srd(72, 50, 2048)
        for r in range(10, 24):
            A(f"v_mov_b32 v{r}, 0")
        for r in (54, 55, 56, 57, 59, 60, 61, 62):
            A(f"s_mov_b32 s{r}, 0")
        self.stamp(0)
        A(f"s_cmp_lt_u32 s89, {R_Q0}")
        A("s_cbranch_scc1 L_pro_mod")
        A(f"s_cmp_lt_u32 s89, {R_WO0}")
        A("s_cbranch_scc1 L_pro_q")
        A("s_barrier")
        A("s_branch L_common1")

        BF, AF, DT = 40, 24, 12
        DT = 104
        TMP = 120

        def wide_voff(rowbytes, colbyte_s):
            A("s_lshl_b32 s54, s3, 7")
            A("v_lshrrev_b32 v11, 3, v2")
            A("v_add_u32 v11, s54, v11")
            A(f"s_mov_b32 s55, {rowbytes}")
            A("v_mul_lo_u32 v11, v11, s55")
            A(f"v_and_b32 v{TMP}, 7, v2")
            A(f"v_lshl_add_u32 v11, v{TMP}, 4, v11")
            A(f"v_add_u32 v11, s{colbyte_s}, v11")

        def wide_tr_base():
            A(f"v_lshrrev_b32 v{VTR}, 2, v{TT}")
            A(f"v_lshl_add_u32 v{VTR}, v{G}, 3, v{VTR}")
            A(f"v_lshlrev_b32 v{VTR}, 7, v{VTR}")
            A(f"v_and_b32 v{TMP}, 3, v{TT}")
            A(f"v_lshl_add_u32 v{VTR}, v{TMP}, 3, v{VTR}")
            A("s_lshl_b32 s54, s3, 14")
            A(f"s_add_u32 s54, s54, {L_W}")
            A(f"v_add_u32 v{VTR}, s54, v{VTR}")

        L("L_pro_mod")
        self.srd(12, 38, 2048)
        A(f"v_lshlrev_b32 v{TMP}, 10, v{HB}")
        A(f"v_lshl_add_u32 v{TMP}, v{HI}, 3, v{TMP}")
        A("s_lshl_b32 s54, s3, 8")
        A(f"buffer_load_dwordx2 v[{TMP+2}:{TMP+3}], v{TMP}, s[12:15], s54 offen")
        self.srd(8, 48, 512 * 6144)
        A("s_lshl_b32 s56, s89, 7")
        wide_voff(6144, 56)
        A("s_lshl_b32 s57, s3, 14")
        self.dma_weights(8, 16, 11, 8 * 6144, 57)
        A("s_barrier")
        wide_tr_base()
        A("s_waitcnt vmcnt(16)")
        X = TMP + 4
        self.unpack2(TMP + 2, X, X + 1)
        self.unpack2(TMP + 3, X + 2, X + 3)
        A(f"s_mov_b32 s58, {f32(-LOG2E)}")
        for k in range(4):
            A(f"v_mul_f32 v{X+4+k}, s58, v{X+k}")
        for k in range(4):
            A(f"v_exp_f32 v{X+4+k}, v{X+4+k}")
        self.nop(1)
        for k in range(4):
            A(f"v_add_f32 v{X+4+k}, 1.0, v{X+4+k}")
        for k in range(4):
            A(f"v_rcp_f32 v{X+4+k}, v{X+4+k}")
        self.nop(1)
        for k in range(4):
            A(f"v_mul_f32 v{X+k}, v{X+k}, v{X+4+k}")
        A(f"v_cvt_pk_bf16_f32 v{X+8}, v{X}, v{X+1}")
        A(f"v_cvt_pk_bf16_f32 v{X+9}, v{X+2}, v{X+3}")
        A(f"ds_write_b64 v{VAW}, v[{X+8}:{X+9}]")
        A("s_lshr_b32 s60, s89, 3")
        A("s_lshl_b32 s60, s60, 12")
        A("s_and_b32 s61, s89, 7")
        A("s_lshl_b32 s61, s61, 8")
        A("s_add_u32 s60, s60, s61")
        A(f"s_add_u32 s60, s60, {MOD_OFF}")
        A("s_mov_b32 s61, 2048")
        A("s_mov_b32 s62, 0")
        A("s_branch L_common1")

        L("L_pro_q")
        A(f"v_lshlrev_b32 v{TMP}, 10, v{HB}")
        A(f"v_lshl_add_u32 v{TMP+1}, v{HI}, 5, v{TMP}")
        A(f"buffer_load_dwordx4 v[{TMP+4}:{TMP+7}], v{TMP+1}, s[20:23], 0 offen")
        A(f"buffer_load_dwordx4 v[{TMP+8}:{TMP+11}], v{TMP+1}, s[20:23], 0 offen offset:16")
        A(f"v_lshl_add_u32 v{TMP}, v{HI}, 3, v{TMP}")
        A("s_lshl_b32 s54, s3, 8")
        A(f"buffer_load_dwordx2 v[{TMP+2}:{TMP+3}], v{TMP}, s[20:23], s54 offen")
        self.srd(8, 28, 512 * 8192)
        A(f"s_sub_u32 s59, s89, {R_Q0}")
        A("s_lshl_b32 s56, s59, 7")
        wide_voff(8192, 56)
        A("s_lshl_b32 s57, s3, 14")
        self.dma_weights(8, 16, 11, 8 * 8192, 57)
        A("s_barrier")
        wide_tr_base()
        A("s_waitcnt vmcnt(16)")
        S1, S2, U0, U1 = TMP + 12, TMP + 13, TMP + 14, TMP + 15
        A(f"v_mov_b32 v{S1}, 0")
        A(f"v_mov_b32 v{S2}, 0")
        for k in range(8):
            self.unpack2(TMP + 4 + k, U0, U1)
            A(f"v_add_f32 v{S1}, v{S1}, v{U0}")
            A(f"v_fmac_f32 v{S2}, v{U0}, v{U0}")
            A(f"v_add_f32 v{S1}, v{S1}, v{U1}")
            A(f"v_fmac_f32 v{S2}, v{U1}, v{U1}")
        self.allred32([S1, S2], [U0, U1])
        NX = TMP + 16
        self.unpack2(TMP + 2, NX, NX + 1)
        self.unpack2(TMP + 3, NX + 2, NX + 3)
        self.ln_norm(S1, S2, NX, U0, U1)
        A("s_lshl_b32 s60, s59, 8")
        A(f"s_add_u32 s60, s60, {Q_OFF}")
        A("s_mov_b32 s61, 16384")
        A("s_mov_b32 s62, 1")
        L("L_common1")
        A("buffer_load_dword v165, off, s[76:79], 0 sc1")
        CL = TMP + 24
        for k in range(4):
            A(f"v_mov_b32 v{CL+k}, -1")
        A("s_cmp_eq_u32 s3, 3")
        A("s_cbranch_scc0 L_noclear")
        A("s_lshl_b32 s63, s40, 2")
        A("s_add_u32 s63, s63, s41")
        A("s_lshl_b32 s63, s63, 10")
        A(f"s_add_u32 s63, s63, {PART_OFF}")
        A(f"v_lshlrev_b32 v{CL+4}, 4, v2")
        A("s_mov_b32 exec_lo, -1")
        A("s_mov_b32 exec_hi, 1")
        A(f"buffer_store_dwordx4 v[{CL}:{CL+3}], v{CL+4}, s[84:87], s63 offen sc1")
        A("s_mov_b64 exec, -1")
        A(f"s_sub_u32 s64, s89, {R_WO0}")
        A("s_cmp_lt_u32 s64, 64")
        A("s_cbranch_scc0 L_noclr_wo")
        self.slice_of(64, R_WO0, 64)
        A("s_lshr_b32 s65, s64, 3")
        A("s_lshl_b32 s65, s65, 12")
        A("s_and_b32 s66, s64, 7")
        A("s_lshl_b32 s66, s66, 8")
        A("s_add_u32 s65, s65, s66")
        A(f"s_add_u32 s65, s65, {ATT_OFF}")
        A(f"v_lshlrev_b32 v{CL+4}, 11, v{G}")
        A(f"v_lshl_add_u32 v{CL+4}, v{TT}, 4, v{CL+4}")
        A("s_mov_b32 exec_hi, 0")
        A(f"buffer_store_dwordx4 v[{CL}:{CL+3}], v{CL+4}, s[84:87], s65 offen sc1")
        A("s_mov_b64 exec, -1")
        L("L_noclr_wo")
        A(f"s_sub_u32 s64, s89, {R_UP0}")
        A("s_cmp_lt_u32 s64, 43")
        A("s_cbranch_scc0 L_noclr_up")
        self.slice_of(64, R_UP0, 43)
        A("s_lshl_b32 s65, s64, 7")
        A(f"s_add_u32 s65, s65, {HH_OFF}")
        A(f"v_lshlrev_b32 v{CL+4}, 4, v2")
        A("s_mov_b64 exec, 0xff")
        A(f"buffer_store_dwordx4 v[{CL}:{CL+3}], v{CL+4}, s[84:87], s65 offen sc1")
        A("s_mov_b64 exec, -1")
        L("L_noclr_up")
        A("s_cmp_eq_u32 s41, 0")
        A("s_cbranch_scc0 L_noclr_cnt")
        A("s_lshl_b32 s65, s40, 7")
        A(f"s_add_u32 s65, s65, {CNT_OFF}")
        A(f"v_mov_b32 v{CL+4}, {self.NS*4}")
        A(f"v_lshlrev_b32 v{CL+5}, 2, v2")
        A("s_mov_b64 exec, 0xff")
        A(f"buffer_store_dword v{CL+4}, v{CL+5}, s[84:87], s65 offen sc1")
        A("s_mov_b64 exec, -1")
        L("L_noclr_cnt")
        L("L_noclear")
        A("s_waitcnt vmcnt(0)")
        A("v_cmp_eq_u32 vcc, 0, v165")
        A("s_cbranch_vccz L_gottag")
        pl = self.poll_head()
        A("buffer_load_dword v165, off, s[76:79], 0 sc1")
        A("s_waitcnt vmcnt(0)")
        A("v_cmp_eq_u32 vcc, 0, v165")
        self.poll_tail(pl, sleep=2)
        L("L_gottag")
        A("v_readfirstlane_b32 s80, v165")
        self.stamp(10)
        A("s_cmp_eq_u32 s3, 3")
        A("s_cbranch_scc0 L_nocount")
        A("s_and_b32 s63, s2, 3")
        A("s_lshl_b32 s63, s63, 2")
        A("s_add_u32 s63, s63, 128")
        A(f"v_mov_b32 v{CL+5}, 1")
        A("s_mov_b64 exec, 1")
        A(f"buffer_atomic_add v{CL+5}, off, s[76:79], s63 sc1")
        A("s_cmp_eq_u32 s41, 0")
        A("s_cbranch_scc0 L_nocnttag")
        A(f"v_mov_b32 v{CL+4}, s80")
        A(f"buffer_store_dword v{CL+4}, off, s[84:87], s65 offset:64 sc1")
        L("L_nocnttag")
        A("s_mov_b64 exec, -1")
        L("L_nocount")
        A(f"s_cmp_lt_u32 s89, {R_WO0}")
        A("s_cbranch_scc0 L_qgather")
        self.tr_reads(VTR, BF, 4, [0, 32, 64, 96], 128)
        A("s_cmp_eq_u32 s62, 0")
        A("s_cbranch_scc1 L_pro_gemv")
        GA = TMP + 4
        A(f"v_lshlrev_b32 v{TMP}, 11, v{HB}")
        A(f"v_lshl_add_u32 v{TMP}, v{HI}, 4, v{TMP}")
        A("s_lshl_b32 s54, s3, 9")
        A(f"s_add_u32 s54, s54, {MOD_OFF}")
        A(f"s_add_u32 s55, s54, 4096")
        pl = self.poll_head()
        A(f"buffer_load_dwordx4 v[{GA}:{GA+3}], v{TMP}, s[84:87], s55 offen sc1")
        A(f"buffer_load_dwordx4 v[{GA+4}:{GA+7}], v{TMP}, s[84:87], s54 offen sc1")
        A("s_waitcnt vmcnt(0)")
        self.check_tags([GA + 1, GA + 3, GA + 5, GA + 7], TMP + 1)
        self.poll_tail(pl, sleep=self.ps1)
        self.stamp(3)
        T4 = TMP + 20
        self.unpack2(GA, T4, T4 + 1)
        self.unpack2(GA + 2, T4 + 2, T4 + 3)
        for k in range(4):
            A(f"v_add_f32 v{T4+k}, 1.0, v{T4+k}")
        self.rnd2(T4, T4 + 1, TMP + 1)
        self.rnd2(T4 + 2, T4 + 3, TMP + 2)
        self.modulate(NX, T4, GA + 4, GA + 6, TMP + 1, TMP + 24, VAW)
        L("L_pro_gemv")
        A("s_waitcnt lgkmcnt(0)")
        self.a_frags_from_stage(VAR, AF)
        A("s_waitcnt lgkmcnt(0)")
        self.mfmas(AF, BF, DT, 4, 4)
        self.d_to_lds(DT, 4, TMP, TMP + 1, VDW)
        A(f"v_mov_b32 v{TMP+2}, {L_CNT}")
        A(f"v_mov_b32 v{TMP+3}, 1")
        A("s_mov_b64 exec, 1")
        A(f"ds_add_rtn_u32 v{TMP+4}, v{TMP+2}, v{TMP+3}")
        A("s_mov_b64 exec, -1")
        A("s_waitcnt lgkmcnt(0)")
        A(f"v_readfirstlane_b32 s54, v{TMP+4}")
        A("s_cmp_eq_u32 s54, 3")
        A("s_cbranch_scc0 L_qgather")
        self.d_sum(G, TT, TMP)
        A(f"v_cvt_pk_bf16_f32 v{TMP+8}, v{TMP+4}, v{TMP+5}")
        A(f"v_mov_b32 v{TMP+9}, s80")
        A(f"v_cvt_pk_bf16_f32 v{TMP+10}, v{TMP+6}, v{TMP+7}")
        A(f"v_mov_b32 v{TMP+11}, s80")
        A(f"v_mul_lo_u32 v{TMP}, v{G}, s61")
        A(f"v_lshl_add_u32 v{TMP}, v{TT}, 4, v{TMP}")
        A("s_mov_b32 exec_hi, 0")
        A(f"buffer_store_dwordx4 v[{TMP+8}:{TMP+11}], v{TMP}, s[84:87], s60 offen sc1")
        A("s_mov_b64 exec, -1")
        self.stamp(4)
        L("L_qgather")
        A("s_cmp_eq_u32 s3, 3")
        A("s_cbranch_scc0 L_qg2")
        A("s_lshl_b32 s65, s40, 7")
        A(f"s_add_u32 s65, s65, {CNT_OFF}")
        pl = self.poll_head()
        A(f"buffer_load_dword v{TMP}, off, s[84:87], s65 offset:64 sc1")
        A("s_waitcnt vmcnt(0)")
        A(f"v_cmp_ne_u32 vcc, s80, v{TMP}")
        self.poll_tail(pl, sleep=8)
        if self.flagq:
            A(f"v_mov_b32 v{TMP}, 0")
            A(f"v_mov_b32 v{TMP+1}, 1")
            A(f"ds_write_b32 v{TMP}, v{TMP+1} offset:{L_QF+4}")
        L("L_qg2")
        A("s_cmp_eq_u32 s3, 0")
        A("s_cbranch_scc0 L_b2")
        A("s_lshl_b32 s54, s40, 9")
        A(f"s_add_u32 s54, s54, {Q_OFF}")
        A(f"v_lshlrev_b32 v{TMP}, 3, v2")
        pl = self.poll_head()
        A(f"buffer_load_dwordx2 v[{TMP+2}:{TMP+3}], v{TMP}, s[84:87], s54 offen sc1")
        A("s_waitcnt vmcnt(0)")
        A(f"v_cmp_ne_u32 vcc, s80, v{TMP+3}")
        self.poll_tail(pl, sleep=self.ps2)
        A(f"v_lshlrev_b32 v{TMP}, 2, v2")
        A(f"ds_write_b32 v{TMP}, v{TMP+2} offset:{L_Q}")
        if self.flagq:
            A(f"v_mov_b32 v{TMP}, 0")
            A(f"v_mov_b32 v{TMP+1}, 1")
            A(f"ds_write_b32 v{TMP}, v{TMP+1} offset:{L_QF}")
        A("s_waitcnt lgkmcnt(0)")
        self.stamp(5)
        L("L_b2")
        if not self.flagq:
            A("s_barrier")
        else:
            A(f"v_mov_b32 v{TMP}, 0")
            pl = self.poll_head()
            A(f"ds_read_b32 v{TMP+1}, v{TMP} offset:{L_QF}")
            A("s_waitcnt lgkmcnt(0)")
            A(f"v_cmp_eq_u32 vcc, 0, v{TMP+1}")
            self.poll_tail(pl, sleep=4)
        A(f"s_cmp_lt_u32 s89, {R_WO0}")
        A("s_cbranch_scc1 L_b3")
        A(f"s_cmp_lt_u32 s89, {R_WO1}")
        A("s_cbranch_scc1 L_prep_wo")
        A(f"s_cmp_ge_u32 s89, {R_DN0}")
        A("s_cbranch_scc1 L_prep_dn")
        A(f"s_cmp_lt_u32 s89, {R_UP0}")
        A("s_cbranch_scc1 L_b3")
        A(f"s_cmp_lt_u32 s89, {R_UP1}")
        A("s_cbranch_scc1 L_prep_up")
        A("s_branch L_b3")

        def narrow_voff(rowbytes, rows_per_wave, colbyte_s):
            A(f"s_mul_i32 s54, s3, {rows_per_wave}")
            A("v_lshrrev_b32 v11, 2, v2")
            A("v_add_u32 v11, s54, v11")
            A(f"s_mov_b32 s55, {rowbytes}")
            A("v_mul_lo_u32 v11, v11, s55")
            A(f"v_and_b32 v{VTR}, 3, v2")
            A(f"v_lshl_add_u32 v11, v{VTR}, 4, v11")
            A(f"v_add_u32 v11, s{colbyte_s}, v11")

        def narrow_tr_base(rows_per_wave):
            A(f"v_lshrrev_b32 v{VTR}, 2, v{TT}")
            A(f"v_lshl_add_u32 v{VTR}, v{G}, 3, v{VTR}")
            A(f"v_lshlrev_b32 v{VTR}, 6, v{VTR}")
            A(f"v_and_b32 v12, 3, v{TT}")
            A(f"v_lshl_add_u32 v{VTR}, v12, 3, v{VTR}")
            A(f"s_mul_i32 s54, s3, {rows_per_wave*64}")
            A(f"s_add_u32 s54, s54, {L_W}")
            A(f"v_add_u32 v{VTR}, s54, v{VTR}")

        def wait_cleared(t):
            pl = self.poll_head()
            A(f"buffer_load_dwordx4 v[{t}:{t+3}], off, s[76:79], 0 offset:128 sc1")
            A("s_waitcnt vmcnt(0)")
            A(f"v_add_u32 v{t}, v{t}, v{t+1}")
            A(f"v_add3_u32 v{t}, v{t}, v{t+2}, v{t+3}")
            A(f"v_cmp_gt_u32 vcc, 256, v{t}")
            self.poll_tail(pl, sleep=16)

        self.intail = True
        L("L_prep_wo")
        self.slice_of(59, R_WO0, 64)
        self.srd(8, 30, 4096 * 1024)
        A("s_lshr_b32 s56, s59, 3")
        A("s_lshl_b32 s56, s56, 19")
        A("s_and_b32 s57, s59, 7")
        A("s_lshl_b32 s57, s57, 7")
        A("s_add_u32 s56, s56, s57")
        wide_voff(1024, 56)
        A("s_lshl_b32 s57, s3, 14")
        self.dma_weights(8, 16, 11, 8 * 1024, 57, skip='nowo')
        wide_tr_base()
        wait_cleared(TMP)
        self.tr_reads(VTR, BF, 4, [0, 32, 64, 96], 128)
        A(f"v_lshlrev_b32 v11, 17, v{HB}")
        A(f"v_lshl_add_u32 v12, v{HI}, 4, v11")
        A("s_lshr_b32 s56, s59, 3")
        A("s_lshl_b32 s60, s56, 12")
        A("s_lshl_b32 s56, s56, 2")
        A("s_add_u32 s56, s56, s3")
        A("s_lshl_b32 s56, s56, 12")
        A(f"s_add_u32 s56, s56, {PART_OFF}")
        A("s_and_b32 s57, s59, 7")
        A("s_lshl_b32 s57, s57, 8")
        A("s_add_u32 s60, s60, s57")
        A(f"s_add_u32 s60, s60, {ATT_OFF}")
        A("s_waitcnt lgkmcnt(0)")
        A("s_branch L_b3")

        XV, GAV, T4U, SBV = TMP + 28, TMP + 32, TMP + 36, TMP + 40
        L("L_prep_up")
        self.slice_of(59, R_UP0, 43)
        self.srd(8, 32, 512 * 2752)
        self.srd(12, 34, 512 * 2752)
        A("s_lshl_b32 s56, s59, 6")
        narrow_voff(2752, 128, 56)
        A("s_lshl_b32 s57, s3, 13")
        self.dma_weights(8, 8, 11, 16 * 2752, 57, skip='noup')
        A("s_add_u32 s57, s57, 32768")
        self.dma_weights(12, 8, 11, 16 * 2752, 57, skip='noup')
        narrow_tr_base(128)
        A(f"v_lshlrev_b32 v{TMP}, 10, v{HB}")
        A(f"v_lshl_add_u32 v{TMP}, v{HI}, 3, v{TMP}")
        A("s_lshl_b32 s54, s3, 8")
        A(f"buffer_load_dwordx2 v[{TMP+2}:{TMP+3}], v{TMP}, s[20:23], s54 offen")
        A(f"v_lshlrev_b32 v{TMP}, 11, v{HB}")
        A(f"v_lshl_add_u32 v{TMP}, v{HI}, 4, v{TMP}")
        A("s_lshl_b32 s54, s3, 9")
        A(f"s_add_u32 s54, s54, {MOD_OFF + 2*4096}")
        A(f"s_add_u32 s55, s54, 4096")
        A(f"s_add_u32 s56, s54, 8192")
        GA = TMP + 4
        pl = self.poll_head()
        A(f"buffer_load_dwordx4 v[{GA}:{GA+3}], v{TMP}, s[84:87], s54 offen sc1")
        A(f"buffer_load_dwordx4 v[{GA+4}:{GA+7}], v{TMP}, s[84:87], s55 offen sc1")
        A(f"buffer_load_dwordx4 v[{GA+8}:{GA+11}], v{TMP}, s[84:87], s56 offen sc1")
        A("s_waitcnt vmcnt(0)")
        self.check_tags([GA + 1, GA + 3, GA + 5, GA + 7, GA + 9, GA + 11], TMP + 16)
        self.poll_tail(pl)
        self.unpack2(TMP + 2, XV, XV + 1)
        self.unpack2(TMP + 3, XV + 2, XV + 3)
        self.unpack2(GA, GAV, GAV + 1)
        self.unpack2(GA + 2, GAV + 2, GAV + 3)
        A(f"v_mov_b32 v{SBV}, v{GA+4}")
        A(f"v_mov_b32 v{SBV+1}, v{GA+6}")
        self.unpack2(GA + 8, T4U, T4U + 1)
        self.unpack2(GA + 10, T4U + 2, T4U + 3)
        for k in range(4):
            A(f"v_add_f32 v{T4U+k}, 1.0, v{T4U+k}")
        self.rnd2(T4U, T4U + 1, TMP + 1)
        self.rnd2(T4U + 2, T4U + 3, TMP + 1)
        wait_cleared(TMP)
        self.tr_reads(VTR, BF, 4, [0, 32, 32768, 32768 + 32], 64)
        A(f"v_lshlrev_b32 v12, 11, v{HB}")
        A(f"v_lshl_add_u32 v12, v{HI}, 4, v12")
        A("s_lshl_b32 s56, s3, 9")
        A(f"s_add_u32 s56, s56, {ATT_OFF}")
        A("s_lshl_b32 s60, s59, 7")
        A(f"s_add_u32 s60, s60, {HH_OFF}")
        A("s_waitcnt lgkmcnt(0)")
        A("s_branch L_b3")

        DBF, DAF, DDT = 32, 120, 24
        L("L_prep_dn")
        self.slice_of(59, R_DN0, 16)
        self.srd(8, 36, 1376 * 1024)
        A("s_lshl_b32 s56, s59, 6")
        narrow_voff(1024, 352, 56)
        A(f"s_mul_i32 s57, s3, {352*64}")
        self.dma_weights(8, 22, 11, 16 * 1024, 57, skip='nodn')
        narrow_tr_base(352)
        A("v_lshrrev_b32 v13, 3, v2")
        A("v_and_b32 v13, 1, v13")
        A("v_and_b32 v14, 7, v2")
        A("v_lshlrev_b32 v15, 10, v13")
        A("v_lshl_add_u32 v15, v14, 3, v15")
        A("buffer_load_dwordx2 v[16:17], v15, s[20:23], s56 offen")
        A("v_lshlrev_b32 v15, 11, v13")
        A("v_lshl_add_u32 v15, v14, 4, v15")
        A("s_lshl_b32 s54, s59, 7")
        A(f"s_add_u32 s55, s54, {MOD_OFF + 5*4096}")
        A(f"s_add_u32 s54, s54, {MOD_OFF + 2*4096}")
        pl = self.poll_head()
        A(f"buffer_load_dwordx4 v[{DAF}:{DAF+3}], v15, s[84:87], s54 offen sc1")
        A(f"buffer_load_dwordx4 v[{DAF+4}:{DAF+7}], v15, s[84:87], s55 offen sc1")
        A("s_waitcnt vmcnt(0)")
        self.check_tags([DAF + 1, DAF + 3, DAF + 5, DAF + 7], DAF + 8)
        self.poll_tail(pl)
        A(f"v_mov_b32 v18, v{DAF}")
        A(f"v_mov_b32 v19, v{DAF+2}")
        A(f"v_mov_b32 v20, v{DAF+4}")
        A(f"v_mov_b32 v21, v{DAF+6}")
        wait_cleared(DAF)
        self.tr_reads(VTR, DBF, 11, [0, 32], 64)
        A("s_lshl_b32 s56, s59, 7")
        A(f"s_add_u32 s56, s56, {ATT_OFF}")
        A("v_and_b32 v12, 1, v2")
        A("v_lshlrev_b32 v12, 6, v12")
        A(f"v_lshl_add_u32 v12, v{G}, 4, v12")
        A(f"s_mul_i32 s57, s3, {11*128}")
        A("s_waitcnt lgkmcnt(0)")
        L("L_b3")
        A("s_barrier")
        self.stamp(6)
        A("s_cmp_eq_u32 s3, 0")
        A("s_cbranch_scc0 L_tail")
        C = 120
        A(f"v_and_b32 v{C}, 7, v2")
        A(f"v_lshlrev_b32 v{C}, 3, v{C}")
        A(f"ds_read_b64 v[{C+2}:{C+3}], v{C} offset:{L_ML}")
        A(f"v_lshlrev_b32 v{C+1}, 3, v2")
        for w in range(8):
            A(f"ds_read_b64 v[{C+8+2*w}:{C+9+2*w}], v{C+1} offset:{L_P + w*1024}")
        A("s_waitcnt lgkmcnt(8)")
        A(f"v_max_f32_dpp v{C+4}, v{C+2}, v{C+2} row_ror:1 row_mask:0xf bank_mask:0xf")
        self.nop(2)
        A(f"v_max_f32_dpp v{C+4}, v{C+4}, v{C+4} row_ror:2 row_mask:0xf bank_mask:0xf")
        self.nop(2)
        A(f"v_max_f32_dpp v{C+4}, v{C+4}, v{C+4} row_ror:4 row_mask:0xf bank_mask:0xf")
        A(f"s_mov_b32 s58, {f32(LOG2E)}")
        A(f"v_sub_f32 v{C+6}, v{C+2}, v{C+4}")
        A(f"v_mul_f32 v{C+6}, s58, v{C+6}")
        A(f"v_exp_f32 v{C+6}, v{C+6}")
        self.nop(1)
        A(f"v_mul_f32 v{C+5}, v{C+6}, v{C+3}")
        self.nop(2)
        A(f"v_add_f32_dpp v{C+5}, v{C+5}, v{C+5} row_ror:1 row_mask:0xf bank_mask:0xf")
        self.nop(2)
        A(f"v_add_f32_dpp v{C+5}, v{C+5}, v{C+5} row_ror:2 row_mask:0xf bank_mask:0xf")
        self.nop(2)
        A(f"v_add_f32_dpp v{C+5}, v{C+5}, v{C+5} row_ror:4 row_mask:0xf bank_mask:0xf")
        A("s_waitcnt lgkmcnt(0)")
        A(f"v_mul_f32_dpp v{C+24}, v{C+6}, v{C+8} row_newbcast:0 row_mask:0xf bank_mask:0xf")
        A(f"v_mul_f32_dpp v{C+25}, v{C+6}, v{C+9} row_newbcast:0 row_mask:0xf bank_mask:0xf")
        for w in range(1, 8):
            A(f"v_fmac_f32_dpp v{C+24}, v{C+6}, v{C+8+2*w} row_newbcast:{w} row_mask:0xf bank_mask:0xf")
            A(f"v_fmac_f32_dpp v{C+25}, v{C+6}, v{C+9+2*w} row_newbcast:{w} row_mask:0xf bank_mask:0xf")
        for r in (C + 24, C + 25, C + 4, C + 5):
            A(f"v_min_u32 v{r}, -2, v{r}")
        A("s_lshl_b32 s63, s40, 2")
        A("s_add_u32 s63, s63, s41")
        A("s_lshl_b32 s63, s63, 10")
        A(f"s_add_u32 s63, s63, {PART_OFF}")
        A(f"buffer_store_dwordx2 v[{C+24}:{C+25}], v{C+1}, s[84:87], s63 offen sc1")
        A("s_mov_b64 exec, 1")
        A(f"buffer_store_dwordx2 v[{C+4}:{C+5}], off, s[84:87], s63 offset:512 sc1")
        A("s_mov_b64 exec, -1")
        self.stamp(7)
        L("L_tail")
        A(f"s_cmp_lt_u32 s89, {R_WO0}")
        A("s_cbranch_scc1 L_end")
        A(f"s_cmp_lt_u32 s89, {R_WO1}")
        A("s_cbranch_scc1 L_tail_wo")
        A(f"s_cmp_ge_u32 s89, {R_DN0}")
        A("s_cbranch_scc1 L_tail_dn")
        A(f"s_cmp_lt_u32 s89, {R_UP0}")
        A("s_cbranch_scc1 L_end")
        A(f"s_cmp_lt_u32 s89, {R_UP1}")
        A("s_cbranch_scc1 L_tail_up")
        A("s_branch L_end")

        L("L_tail_wo")
        O = TMP
        pl = self.poll_head()
        for s in range(4):
            A(f"buffer_load_dwordx4 v[{O+4*s}:{O+4*s+3}], v12, s[84:87], s56 offen offset:{s*1024} sc1")
            A(f"buffer_load_dwordx2 v[{O+16+2*s}:{O+17+2*s}], v11, s[84:87], s56 offen offset:{s*1024+512} sc1")
        A("s_waitcnt vmcnt(0)")
        self.check_sent(range(O, O + 24), O + 24)
        self.poll_tail(pl)
        self.stamp(8)
        MM, LL = O + 24, O + 25
        A(f"v_max3_f32 v{MM}, v{O+16}, v{O+18}, v{O+20}")
        A(f"v_max_f32 v{MM}, v{MM}, v{O+22}")
        A(f"s_mov_b32 s58, {f32(LOG2E)}")
        for s in range(4):
            A(f"v_sub_f32 v{O+16+2*s}, v{O+16+2*s}, v{MM}")
        for s in range(4):
            A(f"v_mul_f32 v{O+16+2*s}, s58, v{O+16+2*s}")
        for s in range(4):
            A(f"v_exp_f32 v{O+16+2*s}, v{O+16+2*s}")
        self.nop(1)
        A(f"v_mul_f32 v{LL}, v{O+16}, v{O+17}")
        for s in range(1, 4):
            A(f"v_fmac_f32 v{LL}, v{O+16+2*s}, v{O+17+2*s}")
        A(f"v_rcp_f32 v{LL}, v{LL}")
        for k in range(4):
            A(f"v_mul_f32 v{O+k}, v{O+16}, v{O+k}")
        for s in range(1, 4):
            for k in range(4):
                A(f"v_fmac_f32 v{O+k}, v{O+16+2*s}, v{O+4*s+k}")
        for k in range(4):
            A(f"v_mul_f32 v{O+k}, v{LL}, v{O+k}")
        A(f"v_cvt_pk_bf16_f32 v{O+4}, v{O}, v{O+1}")
        A(f"v_cvt_pk_bf16_f32 v{O+5}, v{O+2}, v{O+3}")
        A(f"ds_write_b64 v{VAW}, v[{O+4}:{O+5}]")
        A("s_waitcnt lgkmcnt(0)")
        self.a_frags_from_stage(VAR, AF)
        A("s_waitcnt lgkmcnt(0)")
        self.mfmas(AF, BF, DT, 4, 4)
        self.d_to_lds(DT, 4, TMP, TMP + 1, VDW)
        A("s_waitcnt lgkmcnt(0)")
        A("s_barrier")
        A("s_cmp_eq_u32 s3, 0")
        A("s_cbranch_scc0 L_end")
        self.d_sum(G, TT, TMP)
        for k in range(4):
            A(f"v_min_u32 v{TMP+4+k}, -2, v{TMP+4+k}")
        A(f"v_lshlrev_b32 v{TMP}, 11, v{G}")
        A(f"v_lshl_add_u32 v{TMP}, v{TT}, 4, v{TMP}")
        A("s_mov_b32 exec_hi, 0")
        A(f"buffer_store_dwordx4 v[{TMP+4}:{TMP+7}], v{TMP}, s[84:87], s60 offen sc1")
        self.stamp(9)
        A("s_endpgm")

        L("L_tail_up")
        P = 12
        P = DT
        regs = [AF + 4 * i for i in range(4)] + [DT + 4 * i for i in range(4)]
        pl = self.poll_head()
        for hg in range(8):
            if hg:
                A(f"s_add_u32 s57, s56, {hg*4096}")
                A(f"buffer_load_dwordx4 v[{regs[hg]}:{regs[hg]+3}], v12, s[84:87], s57 offen sc1")
            else:
                A(f"buffer_load_dwordx4 v[{regs[hg]}:{regs[hg]+3}], v12, s[84:87], s56 offen sc1")
        A("s_waitcnt vmcnt(0)")
        self.check_sent([r + k for r in regs for k in range(4)], TMP)
        self.poll_tail(pl)
        self.stamp(8)
        X1 = TMP + 4
        self.sum8_x1(regs, X1, XV, GAV, TMP)
        S1, S2, U0, U1 = TMP + 8, TMP + 9, TMP + 10, TMP + 11
        A(f"v_add_f32 v{S1}, v{X1}, v{X1+1}")
        A(f"v_mul_f32 v{S2}, v{X1}, v{X1}")
        A(f"v_add_f32 v{U0}, v{X1+2}, v{X1+3}")
        A(f"v_fmac_f32 v{S2}, v{X1+1}, v{X1+1}")
        A(f"v_add_f32 v{S1}, v{S1}, v{U0}")
        A(f"v_fmac_f32 v{S2}, v{X1+2}, v{X1+2}")
        A(f"v_fmac_f32 v{S2}, v{X1+3}, v{X1+3}")
        self.allred32([S1, S2], [U0, U1])
        A(f"v_lshlrev_b32 v{U0}, 5, v{HB}")
        A("s_lshl_b32 s54, s3, 3")
        A(f"v_add_u32 v{U1}, s54, v{U0}")
        A(f"ds_write_b64 v{U1}, v[{S1}:{S2}] offset:{L_ST}")
        A("s_waitcnt lgkmcnt(0)")
        A("s_barrier")
        Q8 = TMP + 12
        A(f"ds_read_b128 v[{Q8}:{Q8+3}], v{U0} offset:{L_ST}")
        A(f"ds_read_b128 v[{Q8+4}:{Q8+7}], v{U0} offset:{L_ST+16}")
        A("s_waitcnt lgkmcnt(0)")
        A(f"v_add_f32 v{S1}, v{Q8}, v{Q8+2}")
        A(f"v_add_f32 v{S2}, v{Q8+1}, v{Q8+3}")
        A(f"v_add_f32 v{U0}, v{Q8+4}, v{Q8+6}")
        A(f"v_add_f32 v{U1}, v{Q8+5}, v{Q8+7}")
        A(f"v_add_f32 v{S1}, v{S1}, v{U0}")
        A(f"v_add_f32 v{S2}, v{S2}, v{U1}")
        self.ln_norm(S1, S2, X1, U0, U1)
        self.modulate(X1, T4U, SBV, SBV + 1, TMP, TMP + 12, VAW)
        A("s_waitcnt lgkmcnt(0)")
        self.a_frags_from_stage(VAR, AF)
        A("s_waitcnt lgkmcnt(0)")
        self.mfmas(AF, BF, DT, 4, 4)
        self.d_to_lds(DT, 4, TMP, TMP + 1, VDW)
        A("s_waitcnt lgkmcnt(0)")
        A("s_barrier")
        A("s_cmp_eq_u32 s3, 0")
        A("s_cbranch_scc0 L_end")
        A(f"v_lshrrev_b32 v{TMP}, 3, v2")
        A(f"v_and_b32 v{TMP}, 1, v{TMP}")
        A(f"v_and_b32 v{TMP+1}, 7, v2")
        A(f"v_lshlrev_b32 v{TMP+2}, 8, v{TMP}")
        A(f"v_lshl_add_u32 v{TMP+2}, v{TMP+1}, 4, v{TMP+2}")
        GT = AF
        for j in range(4):
            A(f"ds_read_b128 v[{AF+4*j}:{AF+4*j+3}], v{TMP+2} offset:{L_D + j*512}")
            A(f"ds_read_b128 v[{DT+4*j}:{DT+4*j+3}], v{TMP+2} offset:{L_D + j*512 + 128}")
        A(f"v_lshlrev_b32 v{TMP+3}, 6, v{TMP}")
        A(f"v_lshl_add_u32 v{TMP+3}, v{TMP+1}, 3, v{TMP+3}")
        A("s_waitcnt lgkmcnt(0)")
        for base in (AF, DT):
            for k in range(4):
                A(f"v_add_f32 v{base+k}, v{base+k}, v{base+4+k}")
                A(f"v_add_f32 v{base+8+k}, v{base+8+k}, v{base+12+k}")
            for k in range(4):
                A(f"v_add_f32 v{base+k}, v{base+k}, v{base+8+k}")
            self.rnd2(base, base + 1, base + 4)
            self.rnd2(base + 2, base + 3, base + 5)
        A(f"s_mov_b32 s58, {f32(-LOG2E)}")
        for k in range(4):
            A(f"v_mul_f32 v{AF+4+k}, s58, v{AF+k}")
        for k in range(4):
            A(f"v_exp_f32 v{AF+4+k}, v{AF+4+k}")
        self.nop(1)
        for k in range(4):
            A(f"v_add_f32 v{AF+4+k}, 1.0, v{AF+4+k}")
        for k in range(4):
            A(f"v_rcp_f32 v{AF+4+k}, v{AF+4+k}")
        self.nop(1)
        for k in range(4):
            A(f"v_mul_f32 v{AF+k}, v{AF+k}, v{AF+4+k}")
        self.rnd2(AF, AF + 1, AF + 4)
        self.rnd2(AF + 2, AF + 3, AF + 5)
        for k in range(4):
            A(f"v_mul_f32 v{AF+k}, v{AF+k}, v{DT+k}")
        A(f"v_cvt_pk_bf16_f32 v{AF+8}, v{AF}, v{AF+1}")
        A(f"v_cvt_pk_bf16_f32 v{AF+9}, v{AF+2}, v{AF+3}")
        A(f"v_min_u32 v{AF+8}, -2, v{AF+8}")
        A(f"v_min_u32 v{AF+9}, -2, v{AF+9}")
        A("s_mov_b64 exec, 0xffff")
        A(f"buffer_store_dwordx2 v[{AF+8}:{AF+9}], v{TMP+3}, s[84:87], s60 offen sc1")
        self.stamp(9)
        A("s_endpgm")

        L("L_tail_dn")
        A("s_cmp_eq_u32 s3, 0")
        A("s_cbranch_scc0 L_dn_hh")
        regs = [DAF + 4 * i for i in range(8)]
        pl = self.poll_head()
        for hg in range(8):
            if hg:
                A(f"s_add_u32 s54, s56, {hg*4096}")
                A(f"buffer_load_dwordx4 v[{regs[hg]}:{regs[hg]+3}], v15, s[84:87], s54 offen sc1")
            else:
                A(f"buffer_load_dwordx4 v[{regs[hg]}:{regs[hg]+3}], v15, s[84:87], s56 offen sc1")
        A("s_waitcnt vmcnt(0)")
        self.check_sent([r + k for r in regs for k in range(4)], DAF + 32)
        self.poll_tail(pl)
        self.unpack2(16, DAF + 32, DAF + 33)
        self.unpack2(17, DAF + 34, DAF + 35)
        self.unpack2(18, DAF + 36, DAF + 37)
        self.unpack2(19, DAF + 38, DAF + 39)
        self.sum8_x1(regs, DAF + 40, DAF + 32, DAF + 36, 22)
        A(f"v_cvt_pk_bf16_f32 v16, v{DAF+40}, v{DAF+41}")
        A(f"v_cvt_pk_bf16_f32 v17, v{DAF+42}, v{DAF+43}")
        L("L_dn_hh")
        pl = self.poll_head()
        for t in range(11):
            A(f"buffer_load_dwordx4 v[{DAF+4*t}:{DAF+4*t+3}], v12, s[16:19], s57 offen offset:{t*128} sc1")
        A("s_waitcnt vmcnt(0)")
        self.check_sent(range(DAF, DAF + 44), 22)
        self.poll_tail(pl)
        self.stamp(8)
        self.mfmas(DAF, DBF, DDT, 11, 2)
        self.d_to_lds(DDT, 2, 22, 23, VDW)
        A("s_waitcnt lgkmcnt(0)")
        A("s_barrier")
        A("s_cmp_eq_u32 s3, 0")
        A("s_cbranch_scc0 L_end")
        A("v_lshlrev_b32 v22, 8, v13")
        A("v_lshl_add_u32 v22, v14, 4, v22")
        F = DAF
        for j in range(4):
            A(f"ds_read_b128 v[{F+4*j}:{F+4*j+3}], v22 offset:{L_D + j*512}")
        self.unpack2(20, F + 16, F + 17)
        self.unpack2(21, F + 18, F + 19)
        self.unpack2(16, F + 20, F + 21)
        self.unpack2(17, F + 22, F + 23)
        A("v_lshlrev_b32 v23, 10, v13")
        A("v_lshl_add_u32 v23, v14, 3, v23")
        A("s_lshl_b32 s54, s59, 6")
        A("s_waitcnt lgkmcnt(0)")
        for k in range(4):
            A(f"v_add_f32 v{F+k}, v{F+k}, v{F+4+k}")
            A(f"v_add_f32 v{F+8+k}, v{F+8+k}, v{F+12+k}")
        for k in range(4):
            A(f"v_add_f32 v{F+k}, v{F+k}, v{F+8+k}")
        self.rnd2(F, F + 1, F + 4)
        self.rnd2(F + 2, F + 3, F + 5)
        for k in range(4):
            A(f"v_mul_f32 v{F+k}, v{F+k}, v{F+16+k}")
        self.rnd2(F, F + 1, F + 4)
        self.rnd2(F + 2, F + 3, F + 5)
        for k in range(4):
            A(f"v_add_f32 v{F+k}, v{F+k}, v{F+20+k}")
        A(f"v_cvt_pk_bf16_f32 v{F+8}, v{F}, v{F+1}")
        A(f"v_cvt_pk_bf16_f32 v{F+9}, v{F+2}, v{F+3}")
        A("s_mov_b64 exec, 0xffff")
        A(f"buffer_store_dwordx2 v[{F+8}:{F+9}], v23, s[72:75], s54 offen")
        self.stamp(9)
        A("s_endpgm")

    def d_sum(self, G, TT, t):
        A = self.A
        A(f"v_and_b32 v{t}, 1, v{G}")
        A(f"v_lshlrev_b32 v{t}, 8, v{t}")
        A(f"v_lshl_add_u32 v{t}, v{TT}, 4, v{t}")
        for j in range(4):
            A(f"ds_read_b128 v[{t+4+4*j}:{t+7+4*j}], v{t} offset:{L_D + j*512}")
        A("s_waitcnt lgkmcnt(0)")
        for k in range(4):
            A(f"v_add_f32 v{t+4+k}, v{t+4+k}, v{t+8+k}")
            A(f"v_add_f32 v{t+12+k}, v{t+12+k}, v{t+16+k}")
        for k in range(4):
            A(f"v_add_f32 v{t+4+k}, v{t+4+k}, v{t+12+k}")

    def sum8_x1(self, regs, X1, XV, GAV, t):
        A = self.A
        for a, b in ((0, 1), (2, 3), (4, 5), (6, 7), (0, 2), (4, 6)):
            for k in range(4):
                A(f"v_add_f32 v{regs[a]+k}, v{regs[a]+k}, v{regs[b]+k}")
        for k in range(4):
            A(f"v_add_f32 v{X1+k}, v{regs[0]+k}, v{regs[4]+k}")
        self.rnd2(X1, X1 + 1, t)
        self.rnd2(X1 + 2, X1 + 3, t + 1)
        for k in range(4):
            A(f"v_mul_f32 v{X1+k}, v{X1+k}, v{GAV+k}")
        self.rnd2(X1, X1 + 1, t)
        self.rnd2(X1 + 2, X1 + 3, t + 1)
        for k in range(4):
            A(f"v_add_f32 v{X1+k}, v{X1+k}, v{XV+k}")
        self.rnd2(X1, X1 + 1, t)
        self.rnd2(X1 + 2, X1 + 3, t + 1)

    def ln_norm(self, S1, S2, X, U0, U1):
        A = self.A
        A(f"s_mov_b32 s58, {f32(1.0/512)}")
        A(f"v_mul_f32 v{S1}, s58, v{S1}")
        A(f"v_mul_f32 v{S2}, s58, v{S2}")
        A(f"v_fma_f32 v{S2}, -v{S1}, v{S1}, v{S2}")
        A(f"v_max_f32 v{S2}, 0, v{S2}")
        self.rnd2(S1, S2, U0)
        A(f"v_add_f32 v{S2}, {f32(1e-5)}, v{S2}")
        self.rnd1(S2)
        A(f"v_sqrt_f32 v{S2}, v{S2}")
        for k in range(4):
            A(f"v_sub_f32 v{X+k}, v{X+k}, v{S1}")
        self.rnd1(S2)
        A(f"v_rcp_f32 v{S2}, v{S2}")
        self.rnd2(X, X + 1, U0)
        self.rnd2(X + 2, X + 3, U1)
        for k in range(4):
            A(f"v_mul_f32 v{X+k}, v{X+k}, v{S2}")
        self.rnd2(X, X + 1, U0)
        self.rnd2(X + 2, X + 3, U1)

    def modulate(self, N, T4, sp0, sp1, t0, w, VAW):
        A = self.A
        for k in range(4):
            A(f"v_mul_f32 v{N+k}, v{N+k}, v{T4+k}")
        self.rnd2(N, N + 1, t0)
        self.rnd2(N + 2, N + 3, t0 + 1)
        self.unpack2(sp0, w, w + 1)
        self.unpack2(sp1, w + 2, w + 3)
        for k in range(4):
            A(f"v_add_f32 v{N+k}, v{N+k}, v{w+k}")
        A(f"v_cvt_pk_bf16_f32 v{w+4}, v{N}, v{N+1}")
        A(f"v_cvt_pk_bf16_f32 v{w+5}, v{N+2}, v{N+3}")
        A(f"ds_write_b64 v{VAW}, v[{w+4}:{w+5}]")


HEADER = open("cdna_kernels/%s.s.ref" % NAME).read().split("; Override launch geometry")[0] if True else ""

if __name__ == "__main__":
    import argparse
    ap = argparse.ArgumentParser()
    ap.add_argument("-o", default="k.s")
    ap.add_argument("--R", type=int, default=3)
    ap.add_argument("--B", type=int, default=32)
    ap.add_argument("--stamps", action="store_true")
    ap.add_argument("--sleep", type=int, default=1)
    ap.add_argument("--NS", type=int, default=12)
    ap.add_argument("--R0", type=int, default=3)
    ap.add_argument("--grp", default="iod")
    ap.add_argument("--CP", type=int, default=0)
    ap.add_argument("--dbg", default="")
    ap.add_argument("--pace", type=int, default=0)
    ap.add_argument("--tpol", default="nt")
    ap.add_argument("--xmap", action="store_true")
    ap.add_argument("--flagq", action="store_true")
    ap.add_argument("--TH", type=int, default=480)
    ap.add_argument("--ps1", type=int, default=1)
    ap.add_argument("--ps2", type=int, default=1)
    a = ap.parse_args()
    B = a.B
    if a.stamps and B > 32:
        B = 32
    g = Gen(R=a.R, B=B, stamps=a.stamps, sleep=a.sleep, NS=a.NS, R0=a.R0, grp=a.grp, CP=a.CP, dbg=a.dbg, pace=a.pace, tpol=a.tpol, xmap=a.xmap, flagq=a.flagq, ps1=a.ps1, ps2=a.ps2, TH=a.TH)
    open(a.o, "w").write(HEADER + g.build())
```

```python
import sys, struct

NAME = "adaLN_cond__mha_block_cached__glu_gated_swiglu__decode"

def f32(x):
    return "0x%08x" % struct.unpack("<I", struct.pack("<f", x))[0]

LOG2E = 1.4426950408889634
SCALE = 128 ** -0.5

MOD_OFF = 0x0000
Q_OFF = 0x8000
PART_OFF = 0x10000
ATT_OFF = 0x50000
HH_OFF = 0x58000
CNT_OFF = 0x5A000
WS_USED = 0x5C080
STAMP_OFF = 0x10000000
L_A = 0
L_D = L_A + 2048
L_ST = L_D + 2048
L_Q = L_ST + 64
L_CNT = L_Q + 256
L_QF = L_CNT + 16
L_ML = L_QF + 16
L_P = 4608
L_W = L_P + 8192
LDS_BYTES = L_W + 90112

R_MOD0, R_Q0, R_WO0, R_WO1, R_UP0, R_UP1, R_DN0 = 0, 48, 112, 176, 192, 235, 240
SENT = 0xFFFFFFFF


class Gen:
    def __init__(self, R=3, B=32, stamps=False, NS=12, sleep=1, R0=3, grp='iod', CP=0, dbg='', pace=0, tpol='nt', xmap=False, flagq=False, ps1=1, ps2=1, TH=480, kvpol='nt'):
        self.o = []
        self.R, self.B, self.stamps, self.NS, self.sleep, self.R0, self.grp = R, B, stamps, NS, sleep, R0, grp
        self.uid = 0
        self.CP = CP
        self.dbg = dbg
        self.kvpol = kvpol
        self.TH = TH
        self.ps1, self.ps2 = ps1, ps2
        self.pace, self.tpol, self.xmap, self.flagq = pace, tpol, xmap, flagq

    def A(self, s):
        self.o.append("    " + s)

    def L(self, s):
        self.o.append(s + ":")

    def lab(self, p):
        self.uid += 1
        return f"L_{p}_{self.uid}"

    def nop(self, n):
        while n > 0:
            k = min(n, 16)
            self.A(f"s_nop {k-1}")
            n -= k

    def srd(self, d, b, nbytes):
        self.A(f"s_mov_b32 s{d}, s{b}")
        self.A(f"s_mov_b32 s{d+1}, s{b+1}")
        self.A(f"s_mov_b32 s{d+2}, {nbytes}")
        self.A(f"s_mov_b32 s{d+3}, 0x20000")

    def stamp(self, idx, src=None, wave=False):
        if not self.stamps:
            return
        A = self.A
        if src is None:
            A("s_memrealtime s[90:91]")
        else:
            A(f"s_mov_b64 s[90:91], {src}")
        A("s_mov_b64 s[92:93], exec")
        A("s_mov_b64 exec, 1")
        A("s_lshl_b32 s94, s2, 9")
        if wave:
            A("s_lshl_b32 s95, s3, 5")
            A("s_add_u32 s94, s94, s95")
        A(f"s_add_u32 s94, s94, {STAMP_OFF + idx*8}")
        A("s_waitcnt lgkmcnt(0)")
        A("v_mov_b32 v166, s90")
        A("v_mov_b32 v167, s91")
        A("buffer_store_dwordx2 v[166:167], off, s[84:87], s94")
        A("s_mov_b64 exec, s[92:93]")

    def rnd2(self, a, b, t):
        self.A(f"v_cvt_pk_bf16_f32 v{t}, v{a}, v{b}")
        self.A(f"v_lshlrev_b32 v{a}, 16, v{t}")
        self.A(f"v_and_b32 v{b}, 0xffff0000, v{t}")

    def rnd1(self, a):
        self.A(f"v_cvt_pk_bf16_f32 v{a}, v{a}, v{a}")
        self.A(f"v_and_b32 v{a}, 0xffff0000, v{a}")

    def unpack2(self, src, lo, hi):
        self.A(f"v_lshlrev_b32 v{lo}, 16, v{src}")
        self.A(f"v_and_b32 v{hi}, 0xffff0000, v{src}")

    def allred32(self, regs, tmps):
        A = self.A
        for rot in (8, 4, 2, 1):
            self.nop(2 if len(regs) < 2 else max(0, 2 - (len(regs) - 1)))
            for r in regs:
                A(f"v_add_f32_dpp v{r}, v{r}, v{r} row_ror:{rot} row_mask:0xf bank_mask:0xf")
        for r, t in zip(regs, tmps):
            A(f"v_mov_b32 v{t}, v{r}")
        self.nop(2)
        for r, t in zip(regs, tmps):
            A(f"v_permlane16_swap_b32 v{r}, v{t}")
        self.nop(1)
        for r, t in zip(regs, tmps):
            A(f"v_add_f32 v{r}, v{r}, v{t}")

    def slice_of(self, dst, r0, n):
        A = self.A
        A(f"s_sub_u32 s{dst}, s89, {r0}")
        if not self.xmap:
            return
        q, rem = divmod(n, 8)
        A(f"s_and_b32 s68, s{dst}, 7")
        A(f"s_lshr_b32 s{dst}, s{dst}, 3")
        A(f"s_min_u32 s69, s68, {rem}")
        A(f"s_mul_i32 s68, s68, {q}")
        A(f"s_add_u32 s{dst}, s{dst}, s68")
        A(f"s_add_u32 s{dst}, s{dst}, s69")

    def poll_head(self):
        l = self.lab("poll")
        self.L(l)
        return l

    def poll_tail(self, l, sleep=None):
        A = self.A
        d = self.lab("pdone")
        A(f"s_cbranch_vccz {d}")
        A("s_cmp_eq_u32 s88, 0")
        A(f"s_cbranch_scc1 {d}")
        A("s_sub_u32 s88, s88, 1")
        A(f"s_sleep {self.sleep if sleep is None else sleep}")
        A(f"s_branch {l}")
        self.L(d)

    def check_sent(self, regs, t):
        A = self.A
        regs = list(regs)
        A(f"v_max_u32 v{t}, v{regs[0]}, v{regs[1]}")
        regs = regs[2:]
        while len(regs) >= 2:
            A(f"v_max3_u32 v{t}, v{t}, v{regs[0]}, v{regs[1]}")
            regs = regs[2:]
        if regs:
            A(f"v_max_u32 v{t}, v{t}, v{regs[0]}")
        A(f"v_cmp_eq_u32 vcc, -1, v{t}")

    def check_tags(self, regs, t):
        A = self.A
        A(f"v_xor_b32 v{t}, s80, v{regs[0]}")
        for r in regs[1:]:
            A(f"v_xor_b32 v{t+1}, s80, v{r}")
            A(f"v_or_b32 v{t}, v{t}, v{t+1}")
        A(f"v_cmp_ne_u32 vcc, 0, v{t}")

    def dma_weights(self, srd, nins, voff, row_step_bytes, lds_base_s, soff0=0, pol="nt", skip=""):
        A = self.A
        if "notaildma" in self.dbg and getattr(self, "intail", False):
            return
        if "noprodma" in self.dbg and not getattr(self, "intail", False):
            nins = 16
            A(f"s_mov_b32 s{srd+2}, 0")
        A(f"s_mov_b32 s70, {soff0}")
        A(f"s_add_u32 s71, s{lds_base_s}, {L_W}")
        intail = getattr(self, "intail", False)
        if intail:
            pol = self.tpol
            if skip and skip in self.dbg:
                return
        for i in range(nins):
            if intail and self.pace and i >= self.pace:
                A(f"s_waitcnt vmcnt({self.pace-1})")
            A("s_mov_b32 m0, s71")
            A(f"s_add_u32 s71, s71, 1024")
            A(f"buffer_load_dwordx4 v{voff}, s[{srd}:{srd+3}], s70 offen {pol} lds")
            A(f"s_add_u32 s70, s70, {row_step_bytes}")

    def tr_reads(self, vaddr, breg, nk, cgs, rowb):
        for t in range(nk):
            for ci, cgoff in enumerate(cgs):
                r = breg + (t * len(cgs) + ci) * 4
                off = t * 32 * rowb + cgoff
                self.A(f"ds_read_b64_tr_b16 v[{r}:{r+1}], v{vaddr} offset:{off}")
                self.A(f"ds_read_b64_tr_b16 v[{r+2}:{r+3}], v{vaddr} offset:{off + 4*rowb}")

    def mfmas(self, areg, breg, dreg, nk, ncg):
        for t in range(nk):
            for c in range(ncg):
                a = areg + 4 * t
                b = breg + (t * ncg + c) * 4
                d = dreg + 4 * c
                src = "0" if t == 0 else f"v[{d}:{d+3}]"
                self.A(f"v_mfma_f32_16x16x32_bf16 v[{d}:{d+3}], v[{a}:{a+3}], v[{b}:{b+3}], {src}")

    def d_to_lds(self, dreg, ncg, x0, x1, vaddr):
        A = self.A
        self.nop(8)
        for c in range(ncg):
            A(f"v_mov_b32_dpp v{x0}, v{dreg+4*c} quad_perm:[0,1,2,3] row_mask:{1<<c:#x} bank_mask:0xf")
            A(f"v_mov_b32_dpp v{x1}, v{dreg+4*c+1} quad_perm:[0,1,2,3] row_mask:{1<<c:#x} bank_mask:0xf")
        A(f"ds_write_b32 v{vaddr}, v{x0}")
        A(f"ds_write_b32 v{vaddr}, v{x1} offset:256")

    def a_frags_from_stage(self, vaddr, areg):
        for t in range(4):
            self.A(f"ds_read_b128 v[{areg+4*t}:{areg+4*t+3}], v{vaddr} offset:{t*64}")

    def build(self):
        A, L = self.A, self.L
        o = self.o
        o.append(f"; @launch grid=(256,1,1) block=(768,1,1) lds={LDS_BYTES}")
        o.append('.amdgcn_target "amdgcn-amd-amdhsa--gfx950"')
        o.append(".text")
        o.append(f".globl {NAME}_kernel")
        o.append(".p2align 8")
        o.append(f".type {NAME}_kernel,@function")
        L(f"{NAME}_kernel")
        if self.stamps:
            A("s_memrealtime s[100:101]")
        A("s_cmp_ge_u32 s2, 256")
        A("s_cbranch_scc1 L_end")
        A("s_load_dwordx4 s[4:7], s[0:1], 8")
        A("s_load_dwordx4 s[96:99], s[0:1], 96")
        A("v_lshrrev_b32 v1, 6, v0")
        A("v_and_b32 v2, 63, v0")
        A("v_readfirstlane_b32 s3, v1")
        if self.grp == "pair":
            A("s_and_b32 s40, s2, 7")
            A("s_lshr_b32 s40, s40, 1")
            A("s_lshr_b32 s43, s2, 4")
            A("s_lshl_b32 s43, s43, 2")
            A("s_add_u32 s40, s40, s43")
            A("s_and_b32 s41, s2, 1")
            A("s_lshr_b32 s43, s2, 3")
            A("s_and_b32 s43, s43, 1")
            A("s_lshl_b32 s43, s43, 1")
            A("s_add_u32 s41, s41, s43")
        else:
            A("s_lshr_b32 s41, s2, 1")
            A("s_xor_b32 s40, s41, s2")
            A("s_and_b32 s40, s40, 1")
            A("s_and_b32 s41, s41, 3")
            A("s_lshr_b32 s43, s2, 3")
            A("s_lshl_b32 s43, s43, 1")
            A("s_add_u32 s40, s40, s43")
        A("s_lshr_b32 s89, s40, 1")
        A("s_add_u32 s89, s89, s41")
        A("s_and_b32 s89, s89, 3")
        A("s_lshl_b32 s89, s89, 6")
        A("s_add_u32 s89, s89, s40")
        A("s_cmp_ge_u32 s3, 8")
        A("s_cbranch_scc1 L_helper")
        self.streamer()
        L("L_helper")
        self.helper()
        L("L_end")
        A("s_endpgm")
        o.append('.section .rodata,"a"')
        o.append(".p2align 6")
        o.append(f".amdhsa_kernel {NAME}_kernel")
        o.append("  .amdhsa_next_free_vgpr 168")
        o.append("  .amdhsa_next_free_sgpr 102")
        o.append("  .amdhsa_accum_offset 168")
        o.append("  .amdhsa_group_segment_fixed_size 0")
        o.append("  .amdhsa_kernarg_size 112")
        o.append("  .amdhsa_user_sgpr_count 2")
        o.append("  .amdhsa_user_sgpr_kernarg_segment_ptr 1")
        o.append("  .amdhsa_system_sgpr_workgroup_id_x 1")
        o.append(".end_amdhsa_kernel")
        return "\n".join(o) + "\n"

    def streamer(self):
        A, L = self.A, self.L
        R, B, NS, R0 = self.R, self.B, self.NS, self.R0
        VOFF, QF, MK, D, M, MN, LS = 1, 2, 6, 10, 14, 15, 16
        AC, T0, T1, S, PP = 17, 21, 22, 23, 24
        AS = 26
        LANE = 34
        EP, CLM = 35, 25
        RING = 168 - 4 * B - (2 if self.stamps else 0)
        RING -= RING % 2
        assert RING >= 36
        A(f"v_mov_b32 v{LANE}, v2")
        A("s_lshl_b32 s44, s41, 3")
        A("s_add_u32 s44, s44, s3")
        A("s_lshl_b32 s44, s44, 12")
        A("s_lshl_b32 s45, s40, 21")
        A(f"v_lshlrev_b32 v{VOFF}, 4, v2")
        A(f"v_add_u32 v{VOFF}, s45, v{VOFF}")
        A("s_waitcnt lgkmcnt(0)")
        self.srd(8, 4, 0x8000000)
        self.srd(12, 6, 0x8000000)
        N = (NS - 1) * 8 + R
        NC = (NS - 1) * 8

        def issue(p):
            i, j = divmod(p, 8)
            t, j = divmod(j, 4)
            r = RING + 4 * (p % B)
            srd = "s[8:11]" if t == 0 else "s[12:15]"
            if j == 0 and t == 0:
                A(f"s_add_u32 s16, s44, {i * 32 * 4096}")
                if self.stamps and i < 12:
                    A(f"s_memrealtime s[{48+2*i}:{49+2*i}]")
            A(f"buffer_load_dwordx4 v[{r}:{r+3}], v{VOFF}, {srd}, s16 offen offset:{j*1024} {self.kvpol}")

        for p in range(R0):
            issue(p)
        if self.stamps:
            A("s_memrealtime s[30:31]")
        self.srd(84, 98, 0x20000000)
        A("s_barrier")
        A("s_lshl_b32 s45, s40, 7")
        A(f"s_add_u32 s45, s45, {CNT_OFF}")
        A("s_lshl_b32 s42, s3, 2")
        A("s_add_u32 s45, s45, s42")
        A("s_lshl_b32 s42, s3, 12")
        A("s_add_u32 s26, s98, s45")
        A("s_addc_u32 s27, s99, 0")
        A(f"v_and_b32 v{T0}, 15, v{LANE}")
        A(f"v_and_b32 v{T1}, 1, v{LANE}")
        A(f"v_lshlrev_b32 v{T1}, 4, v{T1}")
        A(f"s_mov_b32 s17, 0xffff")
        A(f"v_mov_b32 v{S}, s17")
        A(f"v_lshlrev_b32 v{T1}, v{T1}, v{S}")
        A(f"v_lshrrev_b32 v{T0}, 1, v{T0}")
        for k in range(4):
            A(f"v_cmp_eq_u32 vcc, {k}, v{T0}")
            self.nop(2)
            A(f"v_cndmask_b32 v{MK+k}, 0, v{T1}, vcc")
        for k in range(4):
            A(f"v_mov_b32 v{D+k}, 0")
        A(f"v_mov_b32 v{M}, {f32(-3.0e38)}")
        A(f"v_mov_b32 v{MN}, 0")
        A(f"v_mov_b32 v{LS}, 0")
        A(f"s_mov_b32 s18, {f32(SCALE)}")
        A(f"s_mov_b32 s19, {f32(LOG2E)}")
        for p in range(R0, B):
            A(f"s_waitcnt vmcnt({R0-1 if p < 8 else R-1})")
            issue(p)
        self.stamp(1)
        self.stamp(11, "s[100:101]")
        self.stamp(12, "s[30:31]")
        A(f"v_and_b32 v{T0}, 15, v{LANE}")
        A(f"v_lshlrev_b32 v{T0}, 4, v{T0}")
        if not self.flagq:
            A("s_barrier")
            A(f"ds_read_b128 v[{QF}:{QF+3}], v{T0} offset:{L_Q}")
            A("s_waitcnt lgkmcnt(0)")
        else:
            A(f"v_mov_b32 v{T1}, 0")
            A("s_mov_b32 s88, 0x400000")
            pl = self.poll_head()
            A(f"ds_read_b64 v[{AS}:{AS+1}], v{T1} offset:{L_QF}")
            A(f"ds_read_b128 v[{QF}:{QF+3}], v{T0} offset:{L_Q}")
            A("s_waitcnt lgkmcnt(0)")
            A(f"v_and_b32 v{AS}, v{AS}, v{AS+1}")
            A(f"v_cmp_eq_u32 vcc, 0, v{AS}")
            self.poll_tail(pl, sleep=1)
        if self.stamps:
            A("s_waitcnt vmcnt(0)")
        beta = [0, 2, 1, 3]
        st = {"I": B, "landed": (B if self.stamps else B - R)}

        def need(c):
            if c >= st["landed"]:
                A(f"s_waitcnt vmcnt({st['I'] - 1 - c})")
                st["landed"] = c + 1

        def paced_issue():
            I = st["I"]
            if I >= N:
                return
            if I - st["landed"] >= R:
                A(f"s_waitcnt vmcnt({R-1})")
                st["landed"] = I - (R - 1)
            issue(I)
            st["I"] = I + 1

        def consume(c):
            i, j = divmod(c, 8)
            t, j = divmod(j, 4)
            r = RING + 4 * (c % B)
            need(c)
            if "nocomp" in self.dbg:
                A(f"v_xor_b32 v{AC}, v{AC}, v{r}")
            elif t == 0:
                A(f"v_dot2_f32_bf16 v{AC+j}, v{r}, v{QF}, 0")
                for k in range(1, 4):
                    A(f"v_dot2_f32_bf16 v{AC+j}, v{r+k}, v{QF+k}, v{AC+j}")
            else:
                a = AS + 4 * (j & 1)
                for k in range(4):
                    A(f"v_and_b32_dpp v{a+k}, v{PP}, v{MK+k} row_newbcast:{4*beta[j]} row_mask:0xf bank_mask:0xf")
                self.nop(2)
                A(f"v_mfma_f32_16x16x32_bf16 v[{D}:{D+3}], v[{a}:{a+3}], v[{r}:{r+3}], v[{D}:{D+3}]")

        def softmax():
            if "nocomp" in self.dbg:
                return
            self.nop(3)
            A(f"v_add_f32_dpp v{T0}, v{AC}, v{AC} row_ror:8 row_mask:0xf bank_mask:0x3")
            A(f"v_add_f32_dpp v{T1}, v{AC+2}, v{AC+2} row_ror:8 row_mask:0xf bank_mask:0x3")
            A(f"v_add_f32_dpp v{T0}, v{AC+1}, v{AC+1} row_ror:8 row_mask:0xf bank_mask:0xc")
            A(f"v_add_f32_dpp v{T1}, v{AC+3}, v{AC+3} row_ror:8 row_mask:0xf bank_mask:0xc")
            self.nop(1)
            A(f"v_add_f32_dpp v{S}, v{T0}, v{T0} row_shl:4 row_mask:0xf bank_mask:0x5")
            A(f"v_add_f32_dpp v{S}, v{T1}, v{T1} row_shr:4 row_mask:0xf bank_mask:0xa")
            self.nop(2)
            A(f"v_add_f32_dpp v{S}, v{S}, v{S} quad_perm:[2,3,0,1] row_mask:0xf bank_mask:0xf")
            self.nop(2)
            A(f"v_add_f32_dpp v{S}, v{S}, v{S} quad_perm:[1,0,3,2] row_mask:0xf bank_mask:0xf")
            self.rnd1(S)
            A(f"v_mul_f32 v{S}, s18, v{S}")
            self.rnd1(S)
            A(f"v_cmp_gt_f32 vcc, v{S}, v{M}")
            bk = self.lab("back")
            A(f"s_cbranch_vccz {bk}")
            A("s_call_b64 s[46:47], L_rare")
            L(bk)
            A(f"v_fma_f32 v{T0}, v{S}, s19, v{MN}")
            A(f"v_exp_f32 v{T0}, v{T0}")
            self.nop(1)
            A(f"v_add_f32 v{LS}, v{LS}, v{T0}")
            A(f"v_cvt_pk_bf16_f32 v{PP}, v{T0}, v{T0}")
            self.nop(2)

        c = 0
        while c < NC:
            lag = st["I"] - c
            ncons = 2 if lag > R + 1 else 1
            if st["I"] < N and st["I"] - B < c and lag <= R:
                paced_issue()
            for _ in range(ncons):
                if c >= NC:
                    break
                consume(c)
                c += 1
                if c % 8 == 4:
                    softmax()
            if st["I"] < N and st["I"] - B < c and (st["I"] - c) > R:
                paced_issue()
        assert st["I"] == N, (st, N)
        base = (NS - 1) * 8
        alt = (base + 8) % B
        st["landed"] = 1 << 30

        def ld(pos, sl, soff):
            t, jl = divmod(pos, 4)
            r = RING + 4 * (sl % B)
            srd = "s[8:11]" if t == 0 else "s[12:15]"
            A(f"buffer_load_dwordx4 v[{r}:{r+3}], v{VOFF}, {srd}, {soff} offen offset:{jl*1024} {self.kvpol}")

        CP = self.CP

        def claim():
            A("s_mov_b32 s24, 1")
            A("s_atomic_add s24, s[26:27], 0 glc")

        def eat(sl, j_from, younger):
            for j in range(j_from, 8):
                A(f"s_waitcnt vmcnt({younger + 7 - j})")
                consume(sl + j)
                if j == 3:
                    softmax()

        if self.stamps:
            A("s_mov_b32 s78, 0")
            A("s_mov_b32 s79, 0")
        j0 = 8 - R
        assert CP < j0
        L("L_dyn")
        if self.stamps:
            A("s_add_u32 s78, s78, 1")
        for j in range(8):
            if j == CP:
                claim()
            if j == j0:
                A("s_waitcnt lgkmcnt(0)")
                A(f"s_cmp_ge_u32 s24, {self.TH // 8}")
                A("s_cbranch_scc1 L_fin")
                A("s_lshl_b32 s16, s24, 15")
                A("s_add_u32 s16, s16, s42")
            A(f"s_waitcnt vmcnt({R-1})")
            jj = j + R
            ld(jj % 8, base + jj % 8, "s16")
            consume(base + j)
            if j == 3:
                softmax()
        A("s_branch L_dyn")
        L("L_fin")
        if self.stamps:
            A("s_memrealtime s[76:77]")
        A("s_cmp_ge_u32 s24, 64")
        A("s_cbranch_scc1 L_fin_last")
        A("s_lshl_b32 s25, s24, 15")
        A("s_add_u32 s25, s25, s42")
        claim()
        for jj in range(8):
            ld(jj, alt + jj, "s25")
        eat(base, j0, 8)
        for (P, Q, me, other) in ((alt, base, "A", "B"), (base, alt, "B", "A")):
            L(f"L_eg{me}")
            A("s_waitcnt lgkmcnt(0)")
            A("s_cmp_ge_u32 s24, 64")
            A(f"s_cbranch_scc1 L_drain{me}")
            A("s_lshl_b32 s25, s24, 15")
            A("s_add_u32 s25, s25, s42")
            claim()
            for jj in range(8):
                ld(jj, Q + jj, "s25")
            eat(P, 0, 8)
            if me == "B":
                A("s_branch L_egA")
        L("L_drainA")
        eat(alt, 0, 0)
        A("s_branch L_done")
        L("L_drainB")
        eat(base, 0, 0)
        A("s_branch L_done")
        L("L_fin_last")
        eat(base, j0, 0)
        L("L_done")
        self.stamp(2)
        self.stamp(32, wave=True)
        self.stamp(33, "s[76:77]", wave=True)
        self.stamp(34, "s[78:79]", wave=True)
        if self.stamps:
            A("s_cmp_eq_u32 s3, 0")
            A("s_cbranch_scc0 L_noprof")
            for i in range(min(NS, 12)):
                self.stamp(16 + i, f"s[{48+2*i}:{49+2*i}]")
            self.stamp(16 + 14)
            L("L_noprof")
        A(f"v_add_f32_dpp v{LS}, v{LS}, v{LS} row_ror:4 row_mask:0xf bank_mask:0xf")
        self.nop(2)
        A(f"v_add_f32_dpp v{LS}, v{LS}, v{LS} row_ror:8 row_mask:0xf bank_mask:0xf")
        self.nop(2)
        A(f"v_add_f32_dpp v{LS}, v{LS}, v{LS} row_bcast:15 row_mask:0xa bank_mask:0xf")
        self.nop(2)
        A(f"v_add_f32_dpp v{LS}, v{LS}, v{LS} row_bcast:31 row_mask:0xc bank_mask:0xf")
        A(f"v_and_b32 v{T0}, 15, v{LANE}")
        A(f"v_lshlrev_b32 v{T0}, 5, v{T0}")
        A(f"v_lshrrev_b32 v{T1}, 4, v{LANE}")
        A(f"v_and_b32 v{S}, 1, v{T1}")
        A(f"v_lshl_add_u32 v{T0}, v{S}, 4, v{T0}")
        A(f"v_lshrrev_b32 v{T1}, 1, v{T1}")
        A(f"v_lshl_add_u32 v{T0}, v{T1}, 9, v{T0}")
        A("s_lshl_b32 s20, s3, 10")
        A(f"v_add_u32 v{T0}, s20, v{T0}")
        A(f"ds_write_b128 v{T0}, v[{D}:{D+3}] offset:{L_P}")
        A(f"v_mov_b32 v{MN}, v{LS}")
        A("s_lshl_b32 s20, s3, 3")
        A(f"v_mov_b32 v{T1}, s20")
        A("s_mov_b32 exec_lo, 0")
        A("s_mov_b32 exec_hi, 0x80000000")
        A(f"ds_write_b64 v{T1}, v[{M}:{M+1}] offset:{L_ML}")
        A("s_waitcnt lgkmcnt(0)")
        A("s_barrier")
        A("s_endpgm")
        L("L_rare")
        A(f"v_max_f32_dpp v{T0}, v{S}, v{S} row_ror:4 row_mask:0xf bank_mask:0xf")
        self.nop(2)
        A(f"v_max_f32_dpp v{T0}, v{T0}, v{T0} row_ror:8 row_mask:0xf bank_mask:0xf")
        self.nop(1)
        A(f"v_readlane_b32 s20, v{T0}, 0")
        A(f"v_readlane_b32 s21, v{T0}, 16")
        A(f"v_readlane_b32 s22, v{T0}, 32")
        A(f"v_readlane_b32 s23, v{T0}, 48")
        A(f"v_max_f32 v{T1}, s20, v{M}")
        A(f"v_max_f32 v{T1}, s21, v{T1}")
        A(f"v_max_f32 v{T1}, s22, v{T1}")
        A(f"v_max_f32 v{T1}, s23, v{T1}")
        A(f"v_sub_f32 v{T0}, v{M}, v{T1}")
        A(f"v_mul_f32 v{T0}, s19, v{T0}")
        A(f"v_exp_f32 v{T0}, v{T0}")
        A(f"v_mov_b32 v{M}, v{T1}")
        A(f"v_mul_f32 v{MN}, s19, v{T1}")
        A(f"v_sub_f32 v{MN}, 0, v{MN}")
        for k in range(4):
            A(f"v_mul_f32 v{D+k}, v{D+k}, v{T0}")
        A(f"v_mul_f32 v{LS}, v{LS}, v{T0}")
        A("s_setpc_b64 s[46:47]")

    def helper(self):
        A, L = self.A, self.L
        A("s_setprio 2")
        A("s_sub_u32 s3, s3, 8")
        A("s_load_dwordx2 s[24:25], s[0:1], 0")
        A("s_load_dwordx4 s[28:31], s[0:1], 24")
        A("s_load_dwordx4 s[32:35], s[0:1], 48")
        A("s_load_dwordx4 s[36:39], s[0:1], 64")
        A("s_load_dwordx4 s[48:51], s[0:1], 80")
        A("s_memrealtime s[66:67]")
        A("s_mov_b32 s88, 0x40000")
        A("v_mov_b32 v12, 0")
        A("v_mov_b32 v13, 0")
        A("v_mov_b32 v14, 0")
        A("v_mov_b32 v15, 0")
        A(f"ds_write_b128 v12, v[12:15] offset:{L_CNT}")
        A(f"ds_write_b64 v12, v[12:13] offset:{L_QF}")
        HB, HI, G, TT = 3, 4, 5, 6
        A(f"v_lshrrev_b32 v{HB}, 5, v2")
        A(f"v_and_b32 v{HI}, 31, v2")
        A(f"v_lshrrev_b32 v{G}, 4, v2")
        A(f"v_and_b32 v{TT}, 15, v2")
        VAW, VAR, VDW, VTR = 7, 8, 9, 10
        A("s_lshl_b32 s52, s3, 9")
        A(f"v_lshlrev_b32 v{VAW}, 8, v{HB}")
        A(f"v_lshl_add_u32 v{VAW}, v{HI}, 3, v{VAW}")
        A(f"s_add_u32 s53, s52, {L_A}")
        A(f"v_add_u32 v{VAW}, s53, v{VAW}")
        A(f"v_and_b32 v{VAR}, 1, v2")
        A(f"v_lshlrev_b32 v{VAR}, 8, v{VAR}")
        A(f"v_lshl_add_u32 v{VAR}, v{G}, 4, v{VAR}")
        A(f"v_add_u32 v{VAR}, s53, v{VAR}")
        A(f"s_add_u32 s53, s52, {L_D}")
        A(f"v_lshlrev_b32 v{VDW}, 2, v2")
        A(f"v_add_u32 v{VDW}, s53, v{VDW}")
        A("s_waitcnt lgkmcnt(0)")
        self.srd(84, 98, 0x20000000)
        self.srd(76, 96, 256)
        A("s_or_b32 s54, s2, s3")
        A("s_cmp_eq_u32 s54, 0")
        A("s_cbranch_scc0 L_notagw")
        A("s_or_b32 s66, s66, 1")
        A("v_mov_b32 v12, s66")
        A("s_mov_b64 exec, 1")
        A("buffer_store_dword v12, off, s[76:79], 0 sc1")
        A("s_mov_b64 exec, -1")
        L("L_notagw")
        self.srd(20, 24, 2048)
        A(f"s_add_u32 s16, s98, {HH_OFF}")
        A("s_addc_u32 s17, s99, 0")
        A(f"s_mov_b32 s18, {43*128}")
        A("s_mov_b32 s19, 0x20000")
        self.srd(72, 50, 2048)
        for r in range(10, 24):
            A(f"v_mov_b32 v{r}, 0")
        for r in (54, 55, 56, 57, 59, 60, 61, 62):
            A(f"s_mov_b32 s{r}, 0")
        self.stamp(0)
        A(f"s_cmp_lt_u32 s89, {R_Q0}")
        A("s_cbranch_scc1 L_pro_mod")
        A(f"s_cmp_lt_u32 s89, {R_WO0}")
        A("s_cbranch_scc1 L_pro_q")
        A("s_barrier")
        A("s_branch L_common1")

        BF, AF, DT = 40, 24, 12
        DT = 104
        TMP = 120

        def wide_voff(rowbytes, colbyte_s):
            A("s_lshl_b32 s54, s3, 7")
            A("v_lshrrev_b32 v11, 3, v2")
            A("v_add_u32 v11, s54, v11")
            A(f"s_mov_b32 s55, {rowbytes}")
            A("v_mul_lo_u32 v11, v11, s55")
            A(f"v_and_b32 v{TMP}, 7, v2")
            A(f"v_lshl_add_u32 v11, v{TMP}, 4, v11")
            A(f"v_add_u32 v11, s{colbyte_s}, v11")

        def wide_tr_base():
            A(f"v_lshrrev_b32 v{VTR}, 2, v{TT}")
            A(f"v_lshl_add_u32 v{VTR}, v{G}, 3, v{VTR}")
            A(f"v_lshlrev_b32 v{VTR}, 7, v{VTR}")
            A(f"v_and_b32 v{TMP}, 3, v{TT}")
            A(f"v_lshl_add_u32 v{VTR}, v{TMP}, 3, v{VTR}")
            A("s_lshl_b32 s54, s3, 14")
            A(f"s_add_u32 s54, s54, {L_W}")
            A(f"v_add_u32 v{VTR}, s54, v{VTR}")

        L("L_pro_mod")
        self.srd(12, 38, 2048)
        A(f"v_lshlrev_b32 v{TMP}, 10, v{HB}")
        A(f"v_lshl_add_u32 v{TMP}, v{HI}, 3, v{TMP}")
        A("s_lshl_b32 s54, s3, 8")
        A(f"buffer_load_dwordx2 v[{TMP+2}:{TMP+3}], v{TMP}, s[12:15], s54 offen")
        self.srd(8, 48, 512 * 6144)
        A("s_lshl_b32 s56, s89, 7")
        wide_voff(6144, 56)
        A("s_lshl_b32 s57, s3, 14")
        self.dma_weights(8, 16, 11, 8 * 6144, 57)
        A("s_barrier")
        wide_tr_base()
        A("s_waitcnt vmcnt(16)")
        X = TMP + 4
        self.unpack2(TMP + 2, X, X + 1)
        self.unpack2(TMP + 3, X + 2, X + 3)
        A(f"s_mov_b32 s58, {f32(-LOG2E)}")
        for k in range(4):
            A(f"v_mul_f32 v{X+4+k}, s58, v{X+k}")
        for k in range(4):
            A(f"v_exp_f32 v{X+4+k}, v{X+4+k}")
        self.nop(1)
        for k in range(4):
            A(f"v_add_f32 v{X+4+k}, 1.0, v{X+4+k}")
        for k in range(4):
            A(f"v_rcp_f32 v{X+4+k}, v{X+4+k}")
        self.nop(1)
        for k in range(4):
            A(f"v_mul_f32 v{X+k}, v{X+k}, v{X+4+k}")
        A(f"v_cvt_pk_bf16_f32 v{X+8}, v{X}, v{X+1}")
        A(f"v_cvt_pk_bf16_f32 v{X+9}, v{X+2}, v{X+3}")
        A(f"ds_write_b64 v{VAW}, v[{X+8}:{X+9}]")
        A("s_lshr_b32 s60, s89, 3")
        A("s_lshl_b32 s60, s60, 12")
        A("s_and_b32 s61, s89, 7")
        A("s_lshl_b32 s61, s61, 8")
        A("s_add_u32 s60, s60, s61")
        A(f"s_add_u32 s60, s60, {MOD_OFF}")
        A("s_mov_b32 s61, 2048")
        A("s_mov_b32 s62, 0")
        A("s_branch L_common1")

        L("L_pro_q")
        A(f"v_lshlrev_b32 v{TMP}, 10, v{HB}")
        A(f"v_lshl_add_u32 v{TMP+1}, v{HI}, 5, v{TMP}")
        A(f"buffer_load_dwordx4 v[{TMP+4}:{TMP+7}], v{TMP+1}, s[20:23], 0 offen")
        A(f"buffer_load_dwordx4 v[{TMP+8}:{TMP+11}], v{TMP+1}, s[20:23], 0 offen offset:16")
        A(f"v_lshl_add_u32 v{TMP}, v{HI}, 3, v{TMP}")
        A("s_lshl_b32 s54, s3, 8")
        A(f"buffer_load_dwordx2 v[{TMP+2}:{TMP+3}], v{TMP}, s[20:23], s54 offen")
        self.srd(8, 28, 512 * 8192)
        A(f"s_sub_u32 s59, s89, {R_Q0}")
        A("s_lshl_b32 s56, s59, 7")
        wide_voff(8192, 56)
        A("s_lshl_b32 s57, s3, 14")
        self.dma_weights(8, 16, 11, 8 * 8192, 57)
        A("s_barrier")
        wide_tr_base()
        A("s_waitcnt vmcnt(16)")
        S1, S2, U0, U1 = TMP + 12, TMP + 13, TMP + 14, TMP + 15
        A(f"v_mov_b32 v{S1}, 0")
        A(f"v_mov_b32 v{S2}, 0")
        for k in range(8):
            self.unpack2(TMP + 4 + k, U0, U1)
            A(f"v_add_f32 v{S1}, v{S1}, v{U0}")
            A(f"v_fmac_f32 v{S2}, v{U0}, v{U0}")
            A(f"v_add_f32 v{S1}, v{S1}, v{U1}")
            A(f"v_fmac_f32 v{S2}, v{U1}, v{U1}")
        self.allred32([S1, S2], [U0, U1])
        NX = TMP + 16
        self.unpack2(TMP + 2, NX, NX + 1)
        self.unpack2(TMP + 3, NX + 2, NX + 3)
        self.ln_norm(S1, S2, NX, U0, U1)
        A("s_lshl_b32 s60, s59, 8")
        A(f"s_add_u32 s60, s60, {Q_OFF}")
        A("s_mov_b32 s61, 16384")
        A("s_mov_b32 s62, 1")
        L("L_common1")
        A("buffer_load_dword v165, off, s[76:79], 0 sc1")
        CL = TMP + 24
        for k in range(4):
            A(f"v_mov_b32 v{CL+k}, -1")
        A("s_cmp_eq_u32 s3, 3")
        A("s_cbranch_scc0 L_noclear")
        A("s_lshl_b32 s63, s40, 2")
        A("s_add_u32 s63, s63, s41")
        A("s_lshl_b32 s63, s63, 10")
        A(f"s_add_u32 s63, s63, {PART_OFF}")
        A(f"v_lshlrev_b32 v{CL+4}, 4, v2")
        A("s_mov_b32 exec_lo, -1")
        A("s_mov_b32 exec_hi, 1")
        A(f"buffer_store_dwordx4 v[{CL}:{CL+3}], v{CL+4}, s[84:87], s63 offen sc1")
        A("s_mov_b64 exec, -1")
        A(f"s_sub_u32 s64, s89, {R_WO0}")
        A("s_cmp_lt_u32 s64, 64")
        A("s_cbranch_scc0 L_noclr_wo")
        self.slice_of(64, R_WO0, 64)
        A("s_lshr_b32 s65, s64, 3")
        A("s_lshl_b32 s65, s65, 12")
        A("s_and_b32 s66, s64, 7")
        A("s_lshl_b32 s66, s66, 8")
        A("s_add_u32 s65, s65, s66")
        A(f"s_add_u32 s65, s65, {ATT_OFF}")
        A(f"v_lshlrev_b32 v{CL+4}, 11, v{G}")
        A(f"v_lshl_add_u32 v{CL+4}, v{TT}, 4, v{CL+4}")
        A("s_mov_b32 exec_hi, 0")
        A(f"buffer_store_dwordx4 v[{CL}:{CL+3}], v{CL+4}, s[84:87], s65 offen sc1")
        A("s_mov_b64 exec, -1")
        L("L_noclr_wo")
        A(f"s_sub_u32 s64, s89, {R_UP0}")
        A("s_cmp_lt_u32 s64, 43")
        A("s_cbranch_scc0 L_noclr_up")
        self.slice_of(64, R_UP0, 43)
        A("s_lshl_b32 s65, s64, 7")
        A(f"s_add_u32 s65, s65, {HH_OFF}")
        A(f"v_lshlrev_b32 v{CL+4}, 4, v2")
        A("s_mov_b64 exec, 0xff")
        A(f"buffer_store_dwordx4 v[{CL}:{CL+3}], v{CL+4}, s[84:87], s65 offen sc1")
        A("s_mov_b64 exec, -1")
        L("L_noclr_up")
        A("s_cmp_eq_u32 s41, 0")
        A("s_cbranch_scc0 L_noclr_cnt")
        A("s_lshl_b32 s65, s40, 7")
        A(f"s_add_u32 s65, s65, {CNT_OFF}")
        A(f"v_mov_b32 v{CL+4}, {self.NS*4}")
        A(f"v_lshlrev_b32 v{CL+5}, 2, v2")
        A("s_mov_b64 exec, 0xff")
        A(f"buffer_store_dword v{CL+4}, v{CL+5}, s[84:87], s65 offen sc1")
        A("s_mov_b64 exec, -1")
        L("L_noclr_cnt")
        L("L_noclear")
        A("s_waitcnt vmcnt(0)")
        A("v_cmp_eq_u32 vcc, 0, v165")
        A("s_cbranch_vccz L_gottag")
        pl = self.poll_head()
        A("buffer_load_dword v165, off, s[76:79], 0 sc1")
        A("s_waitcnt vmcnt(0)")
        A("v_cmp_eq_u32 vcc, 0, v165")
        self.poll_tail(pl, sleep=2)
        L("L_gottag")
        A("v_readfirstlane_b32 s80, v165")
        self.stamp(10)
        A("s_cmp_eq_u32 s3, 3")
        A("s_cbranch_scc0 L_nocount")
        A("s_and_b32 s63, s2, 3")
        A("s_lshl_b32 s63, s63, 2")
        A("s_add_u32 s63, s63, 128")
        A(f"v_mov_b32 v{CL+5}, 1")
        A("s_mov_b64 exec, 1")
        A(f"buffer_atomic_add v{CL+5}, off, s[76:79], s63 sc1")
        A("s_cmp_eq_u32 s41, 0")
        A("s_cbranch_scc0 L_nocnttag")
        A(f"v_mov_b32 v{CL+4}, s80")
        A(f"buffer_store_dword v{CL+4}, off, s[84:87], s65 offset:64 sc1")
        L("L_nocnttag")
        A("s_mov_b64 exec, -1")
        L("L_nocount")
        A(f"s_cmp_lt_u32 s89, {R_WO0}")
        A("s_cbranch_scc0 L_qgather")
        self.tr_reads(VTR, BF, 4, [0, 32, 64, 96], 128)
        A("s_cmp_eq_u32 s62, 0")
        A("s_cbranch_scc1 L_pro_gemv")
        GA = TMP + 4
        A(f"v_lshlrev_b32 v{TMP}, 11, v{HB}")
        A(f"v_lshl_add_u32 v{TMP}, v{HI}, 4, v{TMP}")
        A("s_lshl_b32 s54, s3, 9")
        A(f"s_add_u32 s54, s54, {MOD_OFF}")
        A(f"s_add_u32 s55, s54, 4096")
        pl = self.poll_head()
        A(f"buffer_load_dwordx4 v[{GA}:{GA+3}], v{TMP}, s[84:87], s55 offen sc1")
        A(f"buffer_load_dwordx4 v[{GA+4}:{GA+7}], v{TMP}, s[84:87], s54 offen sc1")
        A("s_waitcnt vmcnt(0)")
        self.check_tags([GA + 1, GA + 3, GA + 5, GA + 7], TMP + 1)
        self.poll_tail(pl, sleep=self.ps1)
        self.stamp(3)
        T4 = TMP + 20
        self.unpack2(GA, T4, T4 + 1)
        self.unpack2(GA + 2, T4 + 2, T4 + 3)
        for k in range(4):
            A(f"v_add_f32 v{T4+k}, 1.0, v{T4+k}")
        self.rnd2(T4, T4 + 1, TMP + 1)
        self.rnd2(T4 + 2, T4 + 3, TMP + 2)
        self.modulate(NX, T4, GA + 4, GA + 6, TMP + 1, TMP + 24, VAW)
        L("L_pro_gemv")
        A("s_waitcnt lgkmcnt(0)")
        self.a_frags_from_stage(VAR, AF)
        A("s_waitcnt lgkmcnt(0)")
        self.mfmas(AF, BF, DT, 4, 4)
        self.d_to_lds(DT, 4, TMP, TMP + 1, VDW)
        A(f"v_mov_b32 v{TMP+2}, {L_CNT}")
        A(f"v_mov_b32 v{TMP+3}, 1")
        A("s_mov_b64 exec, 1")
        A(f"ds_add_rtn_u32 v{TMP+4}, v{TMP+2}, v{TMP+3}")
        A("s_mov_b64 exec, -1")
        A("s_waitcnt lgkmcnt(0)")
        A(f"v_readfirstlane_b32 s54, v{TMP+4}")
        A("s_cmp_eq_u32 s54, 3")
        A("s_cbranch_scc0 L_qgather")
        self.d_sum(G, TT, TMP)
        A(f"v_cvt_pk_bf16_f32 v{TMP+8}, v{TMP+4}, v{TMP+5}")
        A(f"v_mov_b32 v{TMP+9}, s80")
        A(f"v_cvt_pk_bf16_f32 v{TMP+10}, v{TMP+6}, v{TMP+7}")
        A(f"v_mov_b32 v{TMP+11}, s80")
        A(f"v_mul_lo_u32 v{TMP}, v{G}, s61")
        A(f"v_lshl_add_u32 v{TMP}, v{TT}, 4, v{TMP}")
        A("s_mov_b32 exec_hi, 0")
        A(f"buffer_store_dwordx4 v[{TMP+8}:{TMP+11}], v{TMP}, s[84:87], s60 offen sc1")
        A("s_mov_b64 exec, -1")
        self.stamp(4)
        L("L_qgather")
        A("s_cmp_eq_u32 s3, 3")
        A("s_cbranch_scc0 L_qg2")
        A("s_lshl_b32 s65, s40, 7")
        A(f"s_add_u32 s65, s65, {CNT_OFF}")
        pl = self.poll_head()
        A(f"buffer_load_dword v{TMP}, off, s[84:87], s65 offset:64 sc1")
        A("s_waitcnt vmcnt(0)")
        A(f"v_cmp_ne_u32 vcc, s80, v{TMP}")
        self.poll_tail(pl, sleep=8)
        if self.flagq:
            A(f"v_mov_b32 v{TMP}, 0")
            A(f"v_mov_b32 v{TMP+1}, 1")
            A(f"ds_write_b32 v{TMP}, v{TMP+1} offset:{L_QF+4}")
        L("L_qg2")
        A("s_cmp_eq_u32 s3, 0")
        A("s_cbranch_scc0 L_b2")
        A("s_lshl_b32 s54, s40, 9")
        A(f"s_add_u32 s54, s54, {Q_OFF}")
        A(f"v_lshlrev_b32 v{TMP}, 3, v2")
        pl = self.poll_head()
        A(f"buffer_load_dwordx2 v[{TMP+2}:{TMP+3}], v{TMP}, s[84:87], s54 offen sc1")
        A("s_waitcnt vmcnt(0)")
        A(f"v_cmp_ne_u32 vcc, s80, v{TMP+3}")
        self.poll_tail(pl, sleep=self.ps2)
        A(f"v_lshlrev_b32 v{TMP}, 2, v2")
        A(f"ds_write_b32 v{TMP}, v{TMP+2} offset:{L_Q}")
        if self.flagq:
            A(f"v_mov_b32 v{TMP}, 0")
            A(f"v_mov_b32 v{TMP+1}, 1")
            A(f"ds_write_b32 v{TMP}, v{TMP+1} offset:{L_QF}")
        A("s_waitcnt lgkmcnt(0)")
        self.stamp(5)
        L("L_b2")
        if not self.flagq:
            A("s_barrier")
        else:
            A(f"v_mov_b32 v{TMP}, 0")
            pl = self.poll_head()
            A(f"ds_read_b32 v{TMP+1}, v{TMP} offset:{L_QF}")
            A("s_waitcnt lgkmcnt(0)")
            A(f"v_cmp_eq_u32 vcc, 0, v{TMP+1}")
            self.poll_tail(pl, sleep=4)
        A(f"s_cmp_lt_u32 s89, {R_WO0}")
        A("s_cbranch_scc1 L_b3")
        A(f"s_cmp_lt_u32 s89, {R_WO1}")
        A("s_cbranch_scc1 L_prep_wo")
        A(f"s_cmp_ge_u32 s89, {R_DN0}")
        A("s_cbranch_scc1 L_prep_dn")
        A(f"s_cmp_lt_u32 s89, {R_UP0}")
        A("s_cbranch_scc1 L_b3")
        A(f"s_cmp_lt_u32 s89, {R_UP1}")
        A("s_cbranch_scc1 L_prep_up")
        A("s_branch L_b3")

        def narrow_voff(rowbytes, rows_per_wave, colbyte_s):
            A(f"s_mul_i32 s54, s3, {rows_per_wave}")
            A("v_lshrrev_b32 v11, 2, v2")
            A("v_add_u32 v11, s54, v11")
            A(f"s_mov_b32 s55, {rowbytes}")
            A("v_mul_lo_u32 v11, v11, s55")
            A(f"v_and_b32 v{VTR}, 3, v2")
            A(f"v_lshl_add_u32 v11, v{VTR}, 4, v11")
            A(f"v_add_u32 v11, s{colbyte_s}, v11")

        def narrow_tr_base(rows_per_wave):
            A(f"v_lshrrev_b32 v{VTR}, 2, v{TT}")
            A(f"v_lshl_add_u32 v{VTR}, v{G}, 3, v{VTR}")
            A(f"v_lshlrev_b32 v{VTR}, 6, v{VTR}")
            A(f"v_and_b32 v12, 3, v{TT}")
            A(f"v_lshl_add_u32 v{VTR}, v12, 3, v{VTR}")
            A(f"s_mul_i32 s54, s3, {rows_per_wave*64}")
            A(f"s_add_u32 s54, s54, {L_W}")
            A(f"v_add_u32 v{VTR}, s54, v{VTR}")

        def wait_cleared(t):
            pl = self.poll_head()
            A(f"buffer_load_dwordx4 v[{t}:{t+3}], off, s[76:79], 0 offset:128 sc1")
            A("s_waitcnt vmcnt(0)")
            A(f"v_add_u32 v{t}, v{t}, v{t+1}")
            A(f"v_add3_u32 v{t}, v{t}, v{t+2}, v{t+3}")
            A(f"v_cmp_gt_u32 vcc, 256, v{t}")
            self.poll_tail(pl, sleep=16)

        self.intail = True
        L("L_prep_wo")
        self.slice_of(59, R_WO0, 64)
        self.srd(8, 30, 4096 * 1024)
        A("s_lshr_b32 s56, s59, 3")
        A("s_lshl_b32 s56, s56, 19")
        A("s_and_b32 s57, s59, 7")
        A("s_lshl_b32 s57, s57, 7")
        A("s_add_u32 s56, s56, s57")
        wide_voff(1024, 56)
        A("s_lshl_b32 s57, s3, 14")
        self.dma_weights(8, 16, 11, 8 * 1024, 57, skip='nowo')
        wide_tr_base()
        wait_cleared(TMP)
        self.tr_reads(VTR, BF, 4, [0, 32, 64, 96], 128)
        A(f"v_lshlrev_b32 v11, 17, v{HB}")
        A(f"v_lshl_add_u32 v12, v{HI}, 4, v11")
        A("s_lshr_b32 s56, s59, 3")
        A("s_lshl_b32 s60, s56, 12")
        A("s_lshl_b32 s56, s56, 2")
        A("s_add_u32 s56, s56, s3")
        A("s_lshl_b32 s56, s56, 12")
        A(f"s_add_u32 s56, s56, {PART_OFF}")
        A("s_and_b32 s57, s59, 7")
        A("s_lshl_b32 s57, s57, 8")
        A("s_add_u32 s60, s60, s57")
        A(f"s_add_u32 s60, s60, {ATT_OFF}")
        A("s_waitcnt lgkmcnt(0)")
        A("s_branch L_b3")

        XV, GAV, T4U, SBV = TMP + 28, TMP + 32, TMP + 36, TMP + 40
        L("L_prep_up")
        self.slice_of(59, R_UP0, 43)
        self.srd(8, 32, 512 * 2752)
        self.srd(12, 34, 512 * 2752)
        A("s_lshl_b32 s56, s59, 6")
        narrow_voff(2752, 128, 56)
        A("s_lshl_b32 s57, s3, 13")
        self.dma_weights(8, 8, 11, 16 * 2752, 57, skip='noup')
        A("s_add_u32 s57, s57, 32768")
        self.dma_weights(12, 8, 11, 16 * 2752, 57, skip='noup')
        narrow_tr_base(128)
        A(f"v_lshlrev_b32 v{TMP}, 10, v{HB}")
        A(f"v_lshl_add_u32 v{TMP}, v{HI}, 3, v{TMP}")
        A("s_lshl_b32 s54, s3, 8")
        A(f"buffer_load_dwordx2 v[{TMP+2}:{TMP+3}], v{TMP}, s[20:23], s54 offen")
        A(f"v_lshlrev_b32 v{TMP}, 11, v{HB}")
        A(f"v_lshl_add_u32 v{TMP}, v{HI}, 4, v{TMP}")
        A("s_lshl_b32 s54, s3, 9")
        A(f"s_add_u32 s54, s54, {MOD_OFF + 2*4096}")
        A(f"s_add_u32 s55, s54, 4096")
        A(f"s_add_u32 s56, s54, 8192")
        GA = TMP + 4
        pl = self.poll_head()
        A(f"buffer_load_dwordx4 v[{GA}:{GA+3}], v{TMP}, s[84:87], s54 offen sc1")
        A(f"buffer_load_dwordx4 v[{GA+4}:{GA+7}], v{TMP}, s[84:87], s55 offen sc1")
        A(f"buffer_load_dwordx4 v[{GA+8}:{GA+11}], v{TMP}, s[84:87], s56 offen sc1")
        A("s_waitcnt vmcnt(0)")
        self.check_tags([GA + 1, GA + 3, GA + 5, GA + 7, GA + 9, GA + 11], TMP + 16)
        self.poll_tail(pl)
        self.unpack2(TMP + 2, XV, XV + 1)
        self.unpack2(TMP + 3, XV + 2, XV + 3)
        self.unpack2(GA, GAV, GAV + 1)
        self.unpack2(GA + 2, GAV + 2, GAV + 3)
        A(f"v_mov_b32 v{SBV}, v{GA+4}")
        A(f"v_mov_b32 v{SBV+1}, v{GA+6}")
        self.unpack2(GA + 8, T4U, T4U + 1)
        self.unpack2(GA + 10, T4U + 2, T4U + 3)
        for k in range(4):
            A(f"v_add_f32 v{T4U+k}, 1.0, v{T4U+k}")
        self.rnd2(T4U, T4U + 1, TMP + 1)
        self.rnd2(T4U + 2, T4U + 3, TMP + 1)
        wait_cleared(TMP)
        self.tr_reads(VTR, BF, 4, [0, 32, 32768, 32768 + 32], 64)
        A(f"v_lshlrev_b32 v12, 11, v{HB}")
        A(f"v_lshl_add_u32 v12, v{HI}, 4, v12")
        A("s_lshl_b32 s56, s3, 9")
        A(f"s_add_u32 s56, s56, {ATT_OFF}")
        A("s_lshl_b32 s60, s59, 7")
        A(f"s_add_u32 s60, s60, {HH_OFF}")
        A("s_waitcnt lgkmcnt(0)")
        A("s_branch L_b3")

        DBF, DAF, DDT = 32, 120, 24
        L("L_prep_dn")
        self.slice_of(59, R_DN0, 16)
        self.srd(8, 36, 1376 * 1024)
        A("s_lshl_b32 s56, s59, 6")
        narrow_voff(1024, 352, 56)
        A(f"s_mul_i32 s57, s3, {352*64}")
        self.dma_weights(8, 22, 11, 16 * 1024, 57, skip='nodn')
        narrow_tr_base(352)
        A("v_lshrrev_b32 v13, 3, v2")
        A("v_and_b32 v13, 1, v13")
        A("v_and_b32 v14, 7, v2")
        A("v_lshlrev_b32 v15, 10, v13")
        A("v_lshl_add_u32 v15, v14, 3, v15")
        A("buffer_load_dwordx2 v[16:17], v15, s[20:23], s56 offen")
        A("v_lshlrev_b32 v15, 11, v13")
        A("v_lshl_add_u32 v15, v14, 4, v15")
        A("s_lshl_b32 s54, s59, 7")
        A(f"s_add_u32 s55, s54, {MOD_OFF + 5*4096}")
        A(f"s_add_u32 s54, s54, {MOD_OFF + 2*4096}")
        pl = self.poll_head()
        A(f"buffer_load_dwordx4 v[{DAF}:{DAF+3}], v15, s[84:87], s54 offen sc1")
        A(f"buffer_load_dwordx4 v[{DAF+4}:{DAF+7}], v15, s[84:87], s55 offen sc1")
        A("s_waitcnt vmcnt(0)")
        self.check_tags([DAF + 1, DAF + 3, DAF + 5, DAF + 7], DAF + 8)
        self.poll_tail(pl)
        A(f"v_mov_b32 v18, v{DAF}")
        A(f"v_mov_b32 v19, v{DAF+2}")
        A(f"v_mov_b32 v20, v{DAF+4}")
        A(f"v_mov_b32 v21, v{DAF+6}")
        wait_cleared(DAF)
        self.tr_reads(VTR, DBF, 11, [0, 32], 64)
        A("s_lshl_b32 s56, s59, 7")
        A(f"s_add_u32 s56, s56, {ATT_OFF}")
        A("v_and_b32 v12, 1, v2")
        A("v_lshlrev_b32 v12, 6, v12")
        A(f"v_lshl_add_u32 v12, v{G}, 4, v12")
        A(f"s_mul_i32 s57, s3, {11*128}")
        A("s_waitcnt lgkmcnt(0)")
        L("L_b3")
        A("s_barrier")
        self.stamp(6)
        A("s_cmp_eq_u32 s3, 0")
        A("s_cbranch_scc0 L_tail")
        C = 120
        A(f"v_and_b32 v{C}, 7, v2")
        A(f"v_lshlrev_b32 v{C}, 3, v{C}")
        A(f"ds_read_b64 v[{C+2}:{C+3}], v{C} offset:{L_ML}")
        A(f"v_lshlrev_b32 v{C+1}, 3, v2")
        for w in range(8):
            A(f"ds_read_b64 v[{C+8+2*w}:{C+9+2*w}], v{C+1} offset:{L_P + w*1024}")
        A("s_waitcnt lgkmcnt(8)")
        A(f"v_max_f32_dpp v{C+4}, v{C+2}, v{C+2} row_ror:1 row_mask:0xf bank_mask:0xf")
        self.nop(2)
        A(f"v_max_f32_dpp v{C+4}, v{C+4}, v{C+4} row_ror:2 row_mask:0xf bank_mask:0xf")
        self.nop(2)
        A(f"v_max_f32_dpp v{C+4}, v{C+4}, v{C+4} row_ror:4 row_mask:0xf bank_mask:0xf")
        A(f"s_mov_b32 s58, {f32(LOG2E)}")
        A(f"v_sub_f32 v{C+6}, v{C+2}, v{C+4}")
        A(f"v_mul_f32 v{C+6}, s58, v{C+6}")
        A(f"v_exp_f32 v{C+6}, v{C+6}")
        self.nop(1)
        A(f"v_mul_f32 v{C+5}, v{C+6}, v{C+3}")
        self.nop(2)
        A(f"v_add_f32_dpp v{C+5}, v{C+5}, v{C+5} row_ror:1 row_mask:0xf bank_mask:0xf")
        self.nop(2)
        A(f"v_add_f32_dpp v{C+5}, v{C+5}, v{C+5} row_ror:2 row_mask:0xf bank_mask:0xf")
        self.nop(2)
        A(f"v_add_f32_dpp v{C+5}, v{C+5}, v{C+5} row_ror:4 row_mask:0xf bank_mask:0xf")
        A("s_waitcnt lgkmcnt(0)")
        A(f"v_mul_f32_dpp v{C+24}, v{C+6}, v{C+8} row_newbcast:0 row_mask:0xf bank_mask:0xf")
        A(f"v_mul_f32_dpp v{C+25}, v{C+6}, v{C+9} row_newbcast:0 row_mask:0xf bank_mask:0xf")
        for w in range(1, 8):
            A(f"v_fmac_f32_dpp v{C+24}, v{C+6}, v{C+8+2*w} row_newbcast:{w} row_mask:0xf bank_mask:0xf")
            A(f"v_fmac_f32_dpp v{C+25}, v{C+6}, v{C+9+2*w} row_newbcast:{w} row_mask:0xf bank_mask:0xf")
        for r in (C + 24, C + 25, C + 4, C + 5):
            A(f"v_min_u32 v{r}, -2, v{r}")
        A("s_lshl_b32 s63, s40, 2")
        A("s_add_u32 s63, s63, s41")
        A("s_lshl_b32 s63, s63, 10")
        A(f"s_add_u32 s63, s63, {PART_OFF}")
        A(f"buffer_store_dwordx2 v[{C+24}:{C+25}], v{C+1}, s[84:87], s63 offen sc1")
        A("s_mov_b64 exec, 1")
        A(f"buffer_store_dwordx2 v[{C+4}:{C+5}], off, s[84:87], s63 offset:512 sc1")
        A("s_mov_b64 exec, -1")
        self.stamp(7)
        L("L_tail")
        A(f"s_cmp_lt_u32 s89, {R_WO0}")
        A("s_cbranch_scc1 L_end")
        A(f"s_cmp_lt_u32 s89, {R_WO1}")
        A("s_cbranch_scc1 L_tail_wo")
        A(f"s_cmp_ge_u32 s89, {R_DN0}")
        A("s_cbranch_scc1 L_tail_dn")
        A(f"s_cmp_lt_u32 s89, {R_UP0}")
        A("s_cbranch_scc1 L_end")
        A(f"s_cmp_lt_u32 s89, {R_UP1}")
        A("s_cbranch_scc1 L_tail_up")
        A("s_branch L_end")

        L("L_tail_wo")
        O = TMP
        pl = self.poll_head()
        for s in range(4):
            A(f"buffer_load_dwordx4 v[{O+4*s}:{O+4*s+3}], v12, s[84:87], s56 offen offset:{s*1024} sc1")
            A(f"buffer_load_dwordx2 v[{O+16+2*s}:{O+17+2*s}], v11, s[84:87], s56 offen offset:{s*1024+512} sc1")
        A("s_waitcnt vmcnt(0)")
        self.check_sent(range(O, O + 24), O + 24)
        self.poll_tail(pl)
        self.stamp(8)
        MM, LL = O + 24, O + 25
        A(f"v_max3_f32 v{MM}, v{O+16}, v{O+18}, v{O+20}")
        A(f"v_max_f32 v{MM}, v{MM}, v{O+22}")
        A(f"s_mov_b32 s58, {f32(LOG2E)}")
        for s in range(4):
            A(f"v_sub_f32 v{O+16+2*s}, v{O+16+2*s}, v{MM}")
        for s in range(4):
            A(f"v_mul_f32 v{O+16+2*s}, s58, v{O+16+2*s}")
        for s in range(4):
            A(f"v_exp_f32 v{O+16+2*s}, v{O+16+2*s}")
        self.nop(1)
        A(f"v_mul_f32 v{LL}, v{O+16}, v{O+17}")
        for s in range(1, 4):
            A(f"v_fmac_f32 v{LL}, v{O+16+2*s}, v{O+17+2*s}")
        A(f"v_rcp_f32 v{LL}, v{LL}")
        for k in range(4):
            A(f"v_mul_f32 v{O+k}, v{O+16}, v{O+k}")
        for s in range(1, 4):
            for k in range(4):
                A(f"v_fmac_f32 v{O+k}, v{O+16+2*s}, v{O+4*s+k}")
        for k in range(4):
            A(f"v_mul_f32 v{O+k}, v{LL}, v{O+k}")
        A(f"v_cvt_pk_bf16_f32 v{O+4}, v{O}, v{O+1}")
        A(f"v_cvt_pk_bf16_f32 v{O+5}, v{O+2}, v{O+3}")
        A(f"ds_write_b64 v{VAW}, v[{O+4}:{O+5}]")
        A("s_waitcnt lgkmcnt(0)")
        self.a_frags_from_stage(VAR, AF)
        A("s_waitcnt lgkmcnt(0)")
        self.mfmas(AF, BF, DT, 4, 4)
        self.d_to_lds(DT, 4, TMP, TMP + 1, VDW)
        A("s_waitcnt lgkmcnt(0)")
        A("s_barrier")
        A("s_cmp_eq_u32 s3, 0")
        A("s_cbranch_scc0 L_end")
        self.d_sum(G, TT, TMP)
        for k in range(4):
            A(f"v_min_u32 v{TMP+4+k}, -2, v{TMP+4+k}")
        A(f"v_lshlrev_b32 v{TMP}, 11, v{G}")
        A(f"v_lshl_add_u32 v{TMP}, v{TT}, 4, v{TMP}")
        A("s_mov_b32 exec_hi, 0")
        A(f"buffer_store_dwordx4 v[{TMP+4}:{TMP+7}], v{TMP}, s[84:87], s60 offen sc1")
        self.stamp(9)
        A("s_endpgm")

        L("L_tail_up")
        P = 12
        P = DT
        regs = [AF + 4 * i for i in range(4)] + [DT + 4 * i for i in range(4)]
        pl = self.poll_head()
        for hg in range(8):
            if hg:
                A(f"s_add_u32 s57, s56, {hg*4096}")
                A(f"buffer_load_dwordx4 v[{regs[hg]}:{regs[hg]+3}], v12, s[84:87], s57 offen sc1")
            else:
                A(f"buffer_load_dwordx4 v[{regs[hg]}:{regs[hg]+3}], v12, s[84:87], s56 offen sc1")
        A("s_waitcnt vmcnt(0)")
        self.check_sent([r + k for r in regs for k in range(4)], TMP)
        self.poll_tail(pl)
        self.stamp(8)
        X1 = TMP + 4
        self.sum8_x1(regs, X1, XV, GAV, TMP)
        S1, S2, U0, U1 = TMP + 8, TMP + 9, TMP + 10, TMP + 11
        A(f"v_add_f32 v{S1}, v{X1}, v{X1+1}")
        A(f"v_mul_f32 v{S2}, v{X1}, v{X1}")
        A(f"v_add_f32 v{U0}, v{X1+2}, v{X1+3}")
        A(f"v_fmac_f32 v{S2}, v{X1+1}, v{X1+1}")
        A(f"v_add_f32 v{S1}, v{S1}, v{U0}")
        A(f"v_fmac_f32 v{S2}, v{X1+2}, v{X1+2}")
        A(f"v_fmac_f32 v{S2}, v{X1+3}, v{X1+3}")
        self.allred32([S1, S2], [U0, U1])
        A(f"v_lshlrev_b32 v{U0}, 5, v{HB}")
        A("s_lshl_b32 s54, s3, 3")
        A(f"v_add_u32 v{U1}, s54, v{U0}")
        A(f"ds_write_b64 v{U1}, v[{S1}:{S2}] offset:{L_ST}")
        A("s_waitcnt lgkmcnt(0)")
        A("s_barrier")
        Q8 = TMP + 12
        A(f"ds_read_b128 v[{Q8}:{Q8+3}], v{U0} offset:{L_ST}")
        A(f"ds_read_b128 v[{Q8+4}:{Q8+7}], v{U0} offset:{L_ST+16}")
        A("s_waitcnt lgkmcnt(0)")
        A(f"v_add_f32 v{S1}, v{Q8}, v{Q8+2}")
        A(f"v_add_f32 v{S2}, v{Q8+1}, v{Q8+3}")
        A(f"v_add_f32 v{U0}, v{Q8+4}, v{Q8+6}")
        A(f"v_add_f32 v{U1}, v{Q8+5}, v{Q8+7}")
        A(f"v_add_f32 v{S1}, v{S1}, v{U0}")
        A(f"v_add_f32 v{S2}, v{S2}, v{U1}")
        self.ln_norm(S1, S2, X1, U0, U1)
        self.modulate(X1, T4U, SBV, SBV + 1, TMP, TMP + 12, VAW)
        A("s_waitcnt lgkmcnt(0)")
        self.a_frags_from_stage(VAR, AF)
        A("s_waitcnt lgkmcnt(0)")
        self.mfmas(AF, BF, DT, 4, 4)
        self.d_to_lds(DT, 4, TMP, TMP + 1, VDW)
        A("s_waitcnt lgkmcnt(0)")
        A("s_barrier")
        A("s_cmp_eq_u32 s3, 0")
        A("s_cbranch_scc0 L_end")
        A(f"v_lshrrev_b32 v{TMP}, 3, v2")
        A(f"v_and_b32 v{TMP}, 1, v{TMP}")
        A(f"v_and_b32 v{TMP+1}, 7, v2")
        A(f"v_lshlrev_b32 v{TMP+2}, 8, v{TMP}")
        A(f"v_lshl_add_u32 v{TMP+2}, v{TMP+1}, 4, v{TMP+2}")
        GT = AF
        for j in range(4):
            A(f"ds_read_b128 v[{AF+4*j}:{AF+4*j+3}], v{TMP+2} offset:{L_D + j*512}")
            A(f"ds_read_b128 v[{DT+4*j}:{DT+4*j+3}], v{TMP+2} offset:{L_D + j*512 + 128}")
        A(f"v_lshlrev_b32 v{TMP+3}, 6, v{TMP}")
        A(f"v_lshl_add_u32 v{TMP+3}, v{TMP+1}, 3, v{TMP+3}")
        A("s_waitcnt lgkmcnt(0)")
        for base in (AF, DT):
            for k in range(4):
                A(f"v_add_f32 v{base+k}, v{base+k}, v{base+4+k}")
                A(f"v_add_f32 v{base+8+k}, v{base+8+k}, v{base+12+k}")
            for k in range(4):
                A(f"v_add_f32 v{base+k}, v{base+k}, v{base+8+k}")
            self.rnd2(base, base + 1, base + 4)
            self.rnd2(base + 2, base + 3, base + 5)
        A(f"s_mov_b32 s58, {f32(-LOG2E)}")
        for k in range(4):
            A(f"v_mul_f32 v{AF+4+k}, s58, v{AF+k}")
        for k in range(4):
            A(f"v_exp_f32 v{AF+4+k}, v{AF+4+k}")
        self.nop(1)
        for k in range(4):
            A(f"v_add_f32 v{AF+4+k}, 1.0, v{AF+4+k}")
        for k in range(4):
            A(f"v_rcp_f32 v{AF+4+k}, v{AF+4+k}")
        self.nop(1)
        for k in range(4):
            A(f"v_mul_f32 v{AF+k}, v{AF+k}, v{AF+4+k}")
        self.rnd2(AF, AF + 1, AF + 4)
        self.rnd2(AF + 2, AF + 3, AF + 5)
        for k in range(4):
            A(f"v_mul_f32 v{AF+k}, v{AF+k}, v{DT+k}")
        A(f"v_cvt_pk_bf16_f32 v{AF+8}, v{AF}, v{AF+1}")
        A(f"v_cvt_pk_bf16_f32 v{AF+9}, v{AF+2}, v{AF+3}")
        A(f"v_min_u32 v{AF+8}, -2, v{AF+8}")
        A(f"v_min_u32 v{AF+9}, -2, v{AF+9}")
        A("s_mov_b64 exec, 0xffff")
        A(f"buffer_store_dwordx2 v[{AF+8}:{AF+9}], v{TMP+3}, s[84:87], s60 offen sc1")
        self.stamp(9)
        A("s_endpgm")

        L("L_tail_dn")
        A("s_cmp_eq_u32 s3, 0")
        A("s_cbranch_scc0 L_dn_hh")
        regs = [DAF + 4 * i for i in range(8)]
        pl = self.poll_head()
        for hg in range(8):
            if hg:
                A(f"s_add_u32 s54, s56, {hg*4096}")
                A(f"buffer_load_dwordx4 v[{regs[hg]}:{regs[hg]+3}], v15, s[84:87], s54 offen sc1")
            else:
                A(f"buffer_load_dwordx4 v[{regs[hg]}:{regs[hg]+3}], v15, s[84:87], s56 offen sc1")
        A("s_waitcnt vmcnt(0)")
        self.check_sent([r + k for r in regs for k in range(4)], DAF + 32)
        self.poll_tail(pl)
        self.unpack2(16, DAF + 32, DAF + 33)
        self.unpack2(17, DAF + 34, DAF + 35)
        self.unpack2(18, DAF + 36, DAF + 37)
        self.unpack2(19, DAF + 38, DAF + 39)
        self.sum8_x1(regs, DAF + 40, DAF + 32, DAF + 36, 22)
        A(f"v_cvt_pk_bf16_f32 v16, v{DAF+40}, v{DAF+41}")
        A(f"v_cvt_pk_bf16_f32 v17, v{DAF+42}, v{DAF+43}")
        L("L_dn_hh")
        pl = self.poll_head()
        for t in range(11):
            A(f"buffer_load_dwordx4 v[{DAF+4*t}:{DAF+4*t+3}], v12, s[16:19], s57 offen offset:{t*128} sc1")
        A("s_waitcnt vmcnt(0)")
        self.check_sent(range(DAF, DAF + 44), 22)
        self.poll_tail(pl)
        self.stamp(8)
        self.mfmas(DAF, DBF, DDT, 11, 2)
        self.d_to_lds(DDT, 2, 22, 23, VDW)
        A("s_waitcnt lgkmcnt(0)")
        A("s_barrier")
        A("s_cmp_eq_u32 s3, 0")
        A("s_cbranch_scc0 L_end")
        A("v_lshlrev_b32 v22, 8, v13")
        A("v_lshl_add_u32 v22, v14, 4, v22")
        F = DAF
        for j in range(4):
            A(f"ds_read_b128 v[{F+4*j}:{F+4*j+3}], v22 offset:{L_D + j*512}")
        self.unpack2(20, F + 16, F + 17)
        self.unpack2(21, F + 18, F + 19)
        self.unpack2(16, F + 20, F + 21)
        self.unpack2(17, F + 22, F + 23)
        A("v_lshlrev_b32 v23, 10, v13")
        A("v_lshl_add_u32 v23, v14, 3, v23")
        A("s_lshl_b32 s54, s59, 6")
        A("s_waitcnt lgkmcnt(0)")
        for k in range(4):
            A(f"v_add_f32 v{F+k}, v{F+k}, v{F+4+k}")
            A(f"v_add_f32 v{F+8+k}, v{F+8+k}, v{F+12+k}")
        for k in range(4):
            A(f"v_add_f32 v{F+k}, v{F+k}, v{F+8+k}")
        self.rnd2(F, F + 1, F + 4)
        self.rnd2(F + 2, F + 3, F + 5)
        for k in range(4):
            A(f"v_mul_f32 v{F+k}, v{F+k}, v{F+16+k}")
        self.rnd2(F, F + 1, F + 4)
        self.rnd2(F + 2, F + 3, F + 5)
        for k in range(4):
            A(f"v_add_f32 v{F+k}, v{F+k}, v{F+20+k}")
        A(f"v_cvt_pk_bf16_f32 v{F+8}, v{F}, v{F+1}")
        A(f"v_cvt_pk_bf16_f32 v{F+9}, v{F+2}, v{F+3}")
        A("s_mov_b64 exec, 0xffff")
        A(f"buffer_store_dwordx2 v[{F+8}:{F+9}], v23, s[72:75], s54 offen")
        self.stamp(9)
        A("s_endpgm")

    def d_sum(self, G, TT, t):
        A = self.A
        A(f"v_and_b32 v{t}, 1, v{G}")
        A(f"v_lshlrev_b32 v{t}, 8, v{t}")
        A(f"v_lshl_add_u32 v{t}, v{TT}, 4, v{t}")
        for j in range(4):
            A(f"ds_read_b128 v[{t+4+4*j}:{t+7+4*j}], v{t} offset:{L_D + j*512}")
        A("s_waitcnt lgkmcnt(0)")
        for k in range(4):
            A(f"v_add_f32 v{t+4+k}, v{t+4+k}, v{t+8+k}")
            A(f"v_add_f32 v{t+12+k}, v{t+12+k}, v{t+16+k}")
        for k in range(4):
            A(f"v_add_f32 v{t+4+k}, v{t+4+k}, v{t+12+k}")

    def sum8_x1(self, regs, X1, XV, GAV, t):
        A = self.A
        for a, b in ((0, 1), (2, 3), (4, 5), (6, 7), (0, 2), (4, 6)):
            for k in range(4):
                A(f"v_add_f32 v{regs[a]+k}, v{regs[a]+k}, v{regs[b]+k}")
        for k in range(4):
            A(f"v_add_f32 v{X1+k}, v{regs[0]+k}, v{regs[4]+k}")
        self.rnd2(X1, X1 + 1, t)
        self.rnd2(X1 + 2, X1 + 3, t + 1)
        for k in range(4):
            A(f"v_mul_f32 v{X1+k}, v{X1+k}, v{GAV+k}")
        self.rnd2(X1, X1 + 1, t)
        self.rnd2(X1 + 2, X1 + 3, t + 1)
        for k in range(4):
            A(f"v_add_f32 v{X1+k}, v{X1+k}, v{XV+k}")
        self.rnd2(X1, X1 + 1, t)
        self.rnd2(X1 + 2, X1 + 3, t + 1)

    def ln_norm(self, S1, S2, X, U0, U1):
        A = self.A
        A(f"s_mov_b32 s58, {f32(1.0/512)}")
        A(f"v_mul_f32 v{S1}, s58, v{S1}")
        A(f"v_mul_f32 v{S2}, s58, v{S2}")
        A(f"v_fma_f32 v{S2}, -v{S1}, v{S1}, v{S2}")
        A(f"v_max_f32 v{S2}, 0, v{S2}")
        self.rnd2(S1, S2, U0)
        A(f"v_add_f32 v{S2}, {f32(1e-5)}, v{S2}")
        self.rnd1(S2)
        A(f"v_sqrt_f32 v{S2}, v{S2}")
        for k in range(4):
            A(f"v_sub_f32 v{X+k}, v{X+k}, v{S1}")
        self.rnd1(S2)
        A(f"v_rcp_f32 v{S2}, v{S2}")
        self.rnd2(X, X + 1, U0)
        self.rnd2(X + 2, X + 3, U1)
        for k in range(4):
            A(f"v_mul_f32 v{X+k}, v{X+k}, v{S2}")
        self.rnd2(X, X + 1, U0)
        self.rnd2(X + 2, X + 3, U1)

    def modulate(self, N, T4, sp0, sp1, t0, w, VAW):
        A = self.A
        for k in range(4):
            A(f"v_mul_f32 v{N+k}, v{N+k}, v{T4+k}")
        self.rnd2(N, N + 1, t0)
        self.rnd2(N + 2, N + 3, t0 + 1)
        self.unpack2(sp0, w, w + 1)
        self.unpack2(sp1, w + 2, w + 3)
        for k in range(4):
            A(f"v_add_f32 v{N+k}, v{N+k}, v{w+k}")
        A(f"v_cvt_pk_bf16_f32 v{w+4}, v{N}, v{N+1}")
        A(f"v_cvt_pk_bf16_f32 v{w+5}, v{N+2}, v{N+3}")
        A(f"ds_write_b64 v{VAW}, v[{w+4}:{w+5}]")


HEADER = open("cdna_kernels/%s.s.ref" % NAME).read().split("; Override launch geometry")[0] if True else ""

if __name__ == "__main__":
    import argparse
    ap = argparse.ArgumentParser()
    ap.add_argument("-o", default="k.s")
    ap.add_argument("--R", type=int, default=3)
    ap.add_argument("--B", type=int, default=32)
    ap.add_argument("--stamps", action="store_true")
    ap.add_argument("--sleep", type=int, default=1)
    ap.add_argument("--NS", type=int, default=12)
    ap.add_argument("--R0", type=int, default=3)
    ap.add_argument("--grp", default="iod")
    ap.add_argument("--CP", type=int, default=0)
    ap.add_argument("--dbg", default="")
    ap.add_argument("--pace", type=int, default=0)
    ap.add_argument("--tpol", default="nt")
    ap.add_argument("--xmap", action="store_true")
    ap.add_argument("--flagq", action="store_true")
    ap.add_argument("--TH", type=int, default=480)
    ap.add_argument("--kvpol", default="nt")
    ap.add_argument("--ps1", type=int, default=1)
    ap.add_argument("--ps2", type=int, default=1)
    a = ap.parse_args()
    B = a.B
    if a.stamps and B > 32:
        B = 32
    g = Gen(R=a.R, B=B, stamps=a.stamps, sleep=a.sleep, NS=a.NS, R0=a.R0, grp=a.grp, CP=a.CP, dbg=a.dbg, pace=a.pace, tpol=a.tpol, xmap=a.xmap, flagq=a.flagq, ps1=a.ps1, ps2=a.ps2, TH=a.TH, kvpol=a.kvpol)
    open(a.o, "w").write(HEADER + g.build())
```

```python
import sys, struct

NAME = "adaLN_cond__mha_block_cached__glu_gated_swiglu__decode"

def f32(x):
    return "0x%08x" % struct.unpack("<I", struct.pack("<f", x))[0]

LOG2E = 1.4426950408889634
SCALE = 128 ** -0.5

MOD_OFF = 0x0000
Q_OFF = 0x8000
PART_OFF = 0x10000
ATT_OFF = 0x50000
HH_OFF = 0x58000
CNT_OFF = 0x5A000
WS_USED = 0x5C080
STAMP_OFF = 0x10000000
L_A = 0
L_D = L_A + 2048
L_ST = L_D + 2048
L_Q = L_ST + 64
L_CNT = L_Q + 256
L_QF = L_CNT + 16
L_ML = L_QF + 16
L_P = 4608
L_W = L_P + 8192
LDS_BYTES = L_W + 90112

R_MOD0, R_Q0, R_WO0, R_WO1, R_UP0, R_UP1, R_DN0 = 0, 48, 112, 176, 192, 235, 240
SENT = 0xFFFFFFFF


class Gen:
    def __init__(self, R=3, B=32, stamps=False, NS=12, sleep=1, R0=3, grp='iod', CP=0, dbg='', pace=0, tpol='nt', xmap=False, flagq=False, ps1=1, ps2=1, TH=480, kvpol='nt', rot=0):
        self.o = []
        self.R, self.B, self.stamps, self.NS, self.sleep, self.R0, self.grp = R, B, stamps, NS, sleep, R0, grp
        self.uid = 0
        self.CP = CP
        self.dbg = dbg
        self.rot = rot
        self.kvpol = kvpol
        self.TH = TH
        self.ps1, self.ps2 = ps1, ps2
        self.pace, self.tpol, self.xmap, self.flagq = pace, tpol, xmap, flagq

    def A(self, s):
        self.o.append("    " + s)

    def L(self, s):
        self.o.append(s + ":")

    def lab(self, p):
        self.uid += 1
        return f"L_{p}_{self.uid}"

    def nop(self, n):
        while n > 0:
            k = min(n, 16)
            self.A(f"s_nop {k-1}")
            n -= k

    def srd(self, d, b, nbytes):
        self.A(f"s_mov_b32 s{d}, s{b}")
        self.A(f"s_mov_b32 s{d+1}, s{b+1}")
        self.A(f"s_mov_b32 s{d+2}, {nbytes}")
        self.A(f"s_mov_b32 s{d+3}, 0x20000")

    def stamp(self, idx, src=None, wave=False):
        if not self.stamps:
            return
        A = self.A
        if src is None:
            A("s_memrealtime s[90:91]")
        else:
            A(f"s_mov_b64 s[90:91], {src}")
        A("s_mov_b64 s[92:93], exec")
        A("s_mov_b64 exec, 1")
        A("s_lshl_b32 s94, s2, 9")
        if wave:
            A("s_lshl_b32 s95, s3, 5")
            A("s_add_u32 s94, s94, s95")
        A(f"s_add_u32 s94, s94, {STAMP_OFF + idx*8}")
        A("s_waitcnt lgkmcnt(0)")
        A("v_mov_b32 v166, s90")
        A("v_mov_b32 v167, s91")
        A("buffer_store_dwordx2 v[166:167], off, s[84:87], s94")
        A("s_mov_b64 exec, s[92:93]")

    def rnd2(self, a, b, t):
        self.A(f"v_cvt_pk_bf16_f32 v{t}, v{a}, v{b}")
        self.A(f"v_lshlrev_b32 v{a}, 16, v{t}")
        self.A(f"v_and_b32 v{b}, 0xffff0000, v{t}")

    def rnd1(self, a):
        self.A(f"v_cvt_pk_bf16_f32 v{a}, v{a}, v{a}")
        self.A(f"v_and_b32 v{a}, 0xffff0000, v{a}")

    def unpack2(self, src, lo, hi):
        self.A(f"v_lshlrev_b32 v{lo}, 16, v{src}")
        self.A(f"v_and_b32 v{hi}, 0xffff0000, v{src}")

    def allred32(self, regs, tmps):
        A = self.A
        for rot in (8, 4, 2, 1):
            self.nop(2 if len(regs) < 2 else max(0, 2 - (len(regs) - 1)))
            for r in regs:
                A(f"v_add_f32_dpp v{r}, v{r}, v{r} row_ror:{rot} row_mask:0xf bank_mask:0xf")
        for r, t in zip(regs, tmps):
            A(f"v_mov_b32 v{t}, v{r}")
        self.nop(2)
        for r, t in zip(regs, tmps):
            A(f"v_permlane16_swap_b32 v{r}, v{t}")
        self.nop(1)
        for r, t in zip(regs, tmps):
            A(f"v_add_f32 v{r}, v{r}, v{t}")

    def slice_of(self, dst, r0, n):
        A = self.A
        A(f"s_sub_u32 s{dst}, s89, {r0}")
        if not self.xmap:
            return
        q, rem = divmod(n, 8)
        A(f"s_and_b32 s68, s{dst}, 7")
        A(f"s_lshr_b32 s{dst}, s{dst}, 3")
        A(f"s_min_u32 s69, s68, {rem}")
        A(f"s_mul_i32 s68, s68, {q}")
        A(f"s_add_u32 s{dst}, s{dst}, s68")
        A(f"s_add_u32 s{dst}, s{dst}, s69")

    def poll_head(self):
        l = self.lab("poll")
        self.L(l)
        return l

    def poll_tail(self, l, sleep=None):
        A = self.A
        d = self.lab("pdone")
        A(f"s_cbranch_vccz {d}")
        A("s_cmp_eq_u32 s88, 0")
        A(f"s_cbranch_scc1 {d}")
        A("s_sub_u32 s88, s88, 1")
        A(f"s_sleep {self.sleep if sleep is None else sleep}")
        A(f"s_branch {l}")
        self.L(d)

    def check_sent(self, regs, t):
        A = self.A
        regs = list(regs)
        A(f"v_max_u32 v{t}, v{regs[0]}, v{regs[1]}")
        regs = regs[2:]
        while len(regs) >= 2:
            A(f"v_max3_u32 v{t}, v{t}, v{regs[0]}, v{regs[1]}")
            regs = regs[2:]
        if regs:
            A(f"v_max_u32 v{t}, v{t}, v{regs[0]}")
        A(f"v_cmp_eq_u32 vcc, -1, v{t}")

    def check_tags(self, regs, t):
        A = self.A
        A(f"v_xor_b32 v{t}, s80, v{regs[0]}")
        for r in regs[1:]:
            A(f"v_xor_b32 v{t+1}, s80, v{r}")
            A(f"v_or_b32 v{t}, v{t}, v{t+1}")
        A(f"v_cmp_ne_u32 vcc, 0, v{t}")

    def dma_weights(self, srd, nins, voff, row_step_bytes, lds_base_s, soff0=0, pol="nt", skip=""):
        A = self.A
        if "notaildma" in self.dbg and getattr(self, "intail", False):
            return
        if "noprodma" in self.dbg and not getattr(self, "intail", False):
            nins = 16
            A(f"s_mov_b32 s{srd+2}, 0")
        A(f"s_mov_b32 s70, {soff0}")
        A(f"s_add_u32 s71, s{lds_base_s}, {L_W}")
        intail = getattr(self, "intail", False)
        if intail:
            pol = self.tpol
            if skip and skip in self.dbg:
                return
        for i in range(nins):
            if intail and self.pace and i >= self.pace:
                A(f"s_waitcnt vmcnt({self.pace-1})")
            A("s_mov_b32 m0, s71")
            A(f"s_add_u32 s71, s71, 1024")
            A(f"buffer_load_dwordx4 v{voff}, s[{srd}:{srd+3}], s70 offen {pol} lds")
            A(f"s_add_u32 s70, s70, {row_step_bytes}")

    def tr_reads(self, vaddr, breg, nk, cgs, rowb):
        for t in range(nk):
            for ci, cgoff in enumerate(cgs):
                r = breg + (t * len(cgs) + ci) * 4
                off = t * 32 * rowb + cgoff
                self.A(f"ds_read_b64_tr_b16 v[{r}:{r+1}], v{vaddr} offset:{off}")
                self.A(f"ds_read_b64_tr_b16 v[{r+2}:{r+3}], v{vaddr} offset:{off + 4*rowb}")

    def mfmas(self, areg, breg, dreg, nk, ncg):
        for t in range(nk):
            for c in range(ncg):
                a = areg + 4 * t
                b = breg + (t * ncg + c) * 4
                d = dreg + 4 * c
                src = "0" if t == 0 else f"v[{d}:{d+3}]"
                self.A(f"v_mfma_f32_16x16x32_bf16 v[{d}:{d+3}], v[{a}:{a+3}], v[{b}:{b+3}], {src}")

    def d_to_lds(self, dreg, ncg, x0, x1, vaddr):
        A = self.A
        self.nop(8)
        for c in range(ncg):
            A(f"v_mov_b32_dpp v{x0}, v{dreg+4*c} quad_perm:[0,1,2,3] row_mask:{1<<c:#x} bank_mask:0xf")
            A(f"v_mov_b32_dpp v{x1}, v{dreg+4*c+1} quad_perm:[0,1,2,3] row_mask:{1<<c:#x} bank_mask:0xf")
        A(f"ds_write_b32 v{vaddr}, v{x0}")
        A(f"ds_write_b32 v{vaddr}, v{x1} offset:256")

    def a_frags_from_stage(self, vaddr, areg):
        for t in range(4):
            self.A(f"ds_read_b128 v[{areg+4*t}:{areg+4*t+3}], v{vaddr} offset:{t*64}")

    def build(self):
        A, L = self.A, self.L
        o = self.o
        o.append(f"; @launch grid=(256,1,1) block=(768,1,1) lds={LDS_BYTES}")
        o.append('.amdgcn_target "amdgcn-amd-amdhsa--gfx950"')
        o.append(".text")
        o.append(f".globl {NAME}_kernel")
        o.append(".p2align 8")
        o.append(f".type {NAME}_kernel,@function")
        L(f"{NAME}_kernel")
        if self.stamps:
            A("s_memrealtime s[100:101]")
        A("s_cmp_ge_u32 s2, 256")
        A("s_cbranch_scc1 L_end")
        A("s_load_dwordx4 s[4:7], s[0:1], 8")
        A("s_load_dwordx4 s[96:99], s[0:1], 96")
        A("v_lshrrev_b32 v1, 6, v0")
        A("v_and_b32 v2, 63, v0")
        A("v_readfirstlane_b32 s3, v1")
        if self.grp == "pair":
            A("s_and_b32 s40, s2, 7")
            A("s_lshr_b32 s40, s40, 1")
            A("s_lshr_b32 s43, s2, 4")
            A("s_lshl_b32 s43, s43, 2")
            A("s_add_u32 s40, s40, s43")
            A("s_and_b32 s41, s2, 1")
            A("s_lshr_b32 s43, s2, 3")
            A("s_and_b32 s43, s43, 1")
            A("s_lshl_b32 s43, s43, 1")
            A("s_add_u32 s41, s41, s43")
        else:
            A("s_lshr_b32 s41, s2, 1")
            A("s_xor_b32 s40, s41, s2")
            A("s_and_b32 s40, s40, 1")
            A("s_and_b32 s41, s41, 3")
            A("s_lshr_b32 s43, s2, 3")
            A("s_lshl_b32 s43, s43, 1")
            A("s_add_u32 s40, s40, s43")
        A("s_lshr_b32 s89, s40, 1")
        A("s_add_u32 s89, s89, s41")
        A("s_and_b32 s89, s89, 3")
        A("s_lshl_b32 s89, s89, 6")
        A("s_add_u32 s89, s89, s40")
        A("s_cmp_ge_u32 s3, 8")
        A("s_cbranch_scc1 L_helper")
        self.streamer()
        L("L_helper")
        self.helper()
        L("L_end")
        A("s_endpgm")
        o.append('.section .rodata,"a"')
        o.append(".p2align 6")
        o.append(f".amdhsa_kernel {NAME}_kernel")
        o.append("  .amdhsa_next_free_vgpr 168")
        o.append("  .amdhsa_next_free_sgpr 102")
        o.append("  .amdhsa_accum_offset 168")
        o.append("  .amdhsa_group_segment_fixed_size 0")
        o.append("  .amdhsa_kernarg_size 112")
        o.append("  .amdhsa_user_sgpr_count 2")
        o.append("  .amdhsa_user_sgpr_kernarg_segment_ptr 1")
        o.append("  .amdhsa_system_sgpr_workgroup_id_x 1")
        o.append(".end_amdhsa_kernel")
        return "\n".join(o) + "\n"

    def streamer(self):
        A, L = self.A, self.L
        R, B, NS, R0 = self.R, self.B, self.NS, self.R0
        VOFF, QF, MK, D, M, MN, LS = 1, 2, 6, 10, 14, 15, 16
        AC, T0, T1, S, PP = 17, 21, 22, 23, 24
        AS = 26
        LANE = 34
        EP, CLM = 35, 25
        RING = 168 - 4 * B - (2 if self.stamps else 0)
        RING -= RING % 2
        assert RING >= 36
        A(f"v_mov_b32 v{LANE}, v2")
        A("s_lshl_b32 s44, s41, 3")
        A("s_add_u32 s44, s44, s3")
        A("s_lshl_b32 s44, s44, 12")
        A(f"s_mul_i32 s38, s40, {self.rot}")
        A("s_lshl_b32 s38, s38, 15")
        A("s_add_u32 s44, s44, s38")
        A("s_lshl_b32 s45, s40, 21")
        A(f"v_lshlrev_b32 v{VOFF}, 4, v2")
        A(f"v_add_u32 v{VOFF}, s45, v{VOFF}")
        A("s_waitcnt lgkmcnt(0)")
        self.srd(8, 4, 0x8000000)
        self.srd(12, 6, 0x8000000)
        N = (NS - 1) * 8 + R
        NC = (NS - 1) * 8

        def issue(p):
            i, j = divmod(p, 8)
            t, j = divmod(j, 4)
            r = RING + 4 * (p % B)
            srd = "s[8:11]" if t == 0 else "s[12:15]"
            if j == 0 and t == 0:
                A(f"s_add_u32 s16, s44, {i * 32 * 4096}")
                A("s_and_b32 s16, s16, 0x1fffff")
                if self.stamps and i < 12:
                    A(f"s_memrealtime s[{48+2*i}:{49+2*i}]")
            A(f"buffer_load_dwordx4 v[{r}:{r+3}], v{VOFF}, {srd}, s16 offen offset:{j*1024} {self.kvpol}")

        for p in range(R0):
            issue(p)
        if self.stamps:
            A("s_memrealtime s[30:31]")
        self.srd(84, 98, 0x20000000)
        A("s_barrier")
        A("s_lshl_b32 s45, s40, 7")
        A(f"s_add_u32 s45, s45, {CNT_OFF}")
        A("s_lshl_b32 s42, s3, 2")
        A("s_add_u32 s45, s45, s42")
        A("s_lshl_b32 s42, s3, 12")
        A("s_add_u32 s42, s42, s38")
        A("s_add_u32 s26, s98, s45")
        A("s_addc_u32 s27, s99, 0")
        A(f"v_and_b32 v{T0}, 15, v{LANE}")
        A(f"v_and_b32 v{T1}, 1, v{LANE}")
        A(f"v_lshlrev_b32 v{T1}, 4, v{T1}")
        A(f"s_mov_b32 s17, 0xffff")
        A(f"v_mov_b32 v{S}, s17")
        A(f"v_lshlrev_b32 v{T1}, v{T1}, v{S}")
        A(f"v_lshrrev_b32 v{T0}, 1, v{T0}")
        for k in range(4):
            A(f"v_cmp_eq_u32 vcc, {k}, v{T0}")
            self.nop(2)
            A(f"v_cndmask_b32 v{MK+k}, 0, v{T1}, vcc")
        for k in range(4):
            A(f"v_mov_b32 v{D+k}, 0")
        A(f"v_mov_b32 v{M}, {f32(-3.0e38)}")
        A(f"v_mov_b32 v{MN}, 0")
        A(f"v_mov_b32 v{LS}, 0")
        A(f"s_mov_b32 s18, {f32(SCALE)}")
        A(f"s_mov_b32 s19, {f32(LOG2E)}")
        for p in range(R0, B):
            A(f"s_waitcnt vmcnt({R0-1 if p < 8 else R-1})")
            issue(p)
        self.stamp(1)
        self.stamp(11, "s[100:101]")
        self.stamp(12, "s[30:31]")
        A(f"v_and_b32 v{T0}, 15, v{LANE}")
        A(f"v_lshlrev_b32 v{T0}, 4, v{T0}")
        if not self.flagq:
            A("s_barrier")
            A(f"ds_read_b128 v[{QF}:{QF+3}], v{T0} offset:{L_Q}")
            A("s_waitcnt lgkmcnt(0)")
        else:
            A(f"v_mov_b32 v{T1}, 0")
            A("s_mov_b32 s88, 0x400000")
            pl = self.poll_head()
            A(f"ds_read_b64 v[{AS}:{AS+1}], v{T1} offset:{L_QF}")
            A(f"ds_read_b128 v[{QF}:{QF+3}], v{T0} offset:{L_Q}")
            A("s_waitcnt lgkmcnt(0)")
            A(f"v_and_b32 v{AS}, v{AS}, v{AS+1}")
            A(f"v_cmp_eq_u32 vcc, 0, v{AS}")
            self.poll_tail(pl, sleep=1)
        if self.stamps:
            A("s_waitcnt vmcnt(0)")
        beta = [0, 2, 1, 3]
        st = {"I": B, "landed": (B if self.stamps else B - R)}

        def need(c):
            if c >= st["landed"]:
                A(f"s_waitcnt vmcnt({st['I'] - 1 - c})")
                st["landed"] = c + 1

        def paced_issue():
            I = st["I"]
            if I >= N:
                return
            if I - st["landed"] >= R:
                A(f"s_waitcnt vmcnt({R-1})")
                st["landed"] = I - (R - 1)
            issue(I)
            st["I"] = I + 1

        def consume(c):
            i, j = divmod(c, 8)
            t, j = divmod(j, 4)
            r = RING + 4 * (c % B)
            need(c)
            if "nocomp" in self.dbg:
                A(f"v_xor_b32 v{AC}, v{AC}, v{r}")
            elif t == 0:
                A(f"v_dot2_f32_bf16 v{AC+j}, v{r}, v{QF}, 0")
                for k in range(1, 4):
                    A(f"v_dot2_f32_bf16 v{AC+j}, v{r+k}, v{QF+k}, v{AC+j}")
            else:
                a = AS + 4 * (j & 1)
                for k in range(4):
                    A(f"v_and_b32_dpp v{a+k}, v{PP}, v{MK+k} row_newbcast:{4*beta[j]} row_mask:0xf bank_mask:0xf")
                self.nop(2)
                A(f"v_mfma_f32_16x16x32_bf16 v[{D}:{D+3}], v[{a}:{a+3}], v[{r}:{r+3}], v[{D}:{D+3}]")

        def softmax():
            if "nocomp" in self.dbg:
                return
            self.nop(3)
            A(f"v_add_f32_dpp v{T0}, v{AC}, v{AC} row_ror:8 row_mask:0xf bank_mask:0x3")
            A(f"v_add_f32_dpp v{T1}, v{AC+2}, v{AC+2} row_ror:8 row_mask:0xf bank_mask:0x3")
            A(f"v_add_f32_dpp v{T0}, v{AC+1}, v{AC+1} row_ror:8 row_mask:0xf bank_mask:0xc")
            A(f"v_add_f32_dpp v{T1}, v{AC+3}, v{AC+3} row_ror:8 row_mask:0xf bank_mask:0xc")
            self.nop(1)
            A(f"v_add_f32_dpp v{S}, v{T0}, v{T0} row_shl:4 row_mask:0xf bank_mask:0x5")
            A(f"v_add_f32_dpp v{S}, v{T1}, v{T1} row_shr:4 row_mask:0xf bank_mask:0xa")
            self.nop(2)
            A(f"v_add_f32_dpp v{S}, v{S}, v{S} quad_perm:[2,3,0,1] row_mask:0xf bank_mask:0xf")
            self.nop(2)
            A(f"v_add_f32_dpp v{S}, v{S}, v{S} quad_perm:[1,0,3,2] row_mask:0xf bank_mask:0xf")
            self.rnd1(S)
            A(f"v_mul_f32 v{S}, s18, v{S}")
            self.rnd1(S)
            A(f"v_cmp_gt_f32 vcc, v{S}, v{M}")
            bk = self.lab("back")
            A(f"s_cbranch_vccz {bk}")
            A("s_call_b64 s[46:47], L_rare")
            L(bk)
            A(f"v_fma_f32 v{T0}, v{S}, s19, v{MN}")
            A(f"v_exp_f32 v{T0}, v{T0}")
            self.nop(1)
            A(f"v_add_f32 v{LS}, v{LS}, v{T0}")
            A(f"v_cvt_pk_bf16_f32 v{PP}, v{T0}, v{T0}")
            self.nop(2)

        c = 0
        while c < NC:
            lag = st["I"] - c
            ncons = 2 if lag > R + 1 else 1
            if st["I"] < N and st["I"] - B < c and lag <= R:
                paced_issue()
            for _ in range(ncons):
                if c >= NC:
                    break
                consume(c)
                c += 1
                if c % 8 == 4:
                    softmax()
            if st["I"] < N and st["I"] - B < c and (st["I"] - c) > R:
                paced_issue()
        assert st["I"] == N, (st, N)
        base = (NS - 1) * 8
        alt = (base + 8) % B
        st["landed"] = 1 << 30

        def ld(pos, sl, soff):
            t, jl = divmod(pos, 4)
            r = RING + 4 * (sl % B)
            srd = "s[8:11]" if t == 0 else "s[12:15]"
            A(f"buffer_load_dwordx4 v[{r}:{r+3}], v{VOFF}, {srd}, {soff} offen offset:{jl*1024} {self.kvpol}")

        CP = self.CP

        def claim():
            A("s_mov_b32 s24, 1")
            A("s_atomic_add s24, s[26:27], 0 glc")

        def eat(sl, j_from, younger):
            for j in range(j_from, 8):
                A(f"s_waitcnt vmcnt({younger + 7 - j})")
                consume(sl + j)
                if j == 3:
                    softmax()

        if self.stamps:
            A("s_mov_b32 s78, 0")
            A("s_mov_b32 s79, 0")
        j0 = 8 - R
        assert CP < j0
        L("L_dyn")
        if self.stamps:
            A("s_add_u32 s78, s78, 1")
        for j in range(8):
            if j == CP:
                claim()
            if j == j0:
                A("s_waitcnt lgkmcnt(0)")
                A(f"s_cmp_ge_u32 s24, {self.TH // 8}")
                A("s_cbranch_scc1 L_fin")
                A("s_lshl_b32 s16, s24, 15")
                A("s_add_u32 s16, s16, s42"); A("s_and_b32 s16, s16, 0x1fffff")
            A(f"s_waitcnt vmcnt({R-1})")
            jj = j + R
            ld(jj % 8, base + jj % 8, "s16")
            consume(base + j)
            if j == 3:
                softmax()
        A("s_branch L_dyn")
        L("L_fin")
        if self.stamps:
            A("s_memrealtime s[76:77]")
        A("s_cmp_ge_u32 s24, 64")
        A("s_cbranch_scc1 L_fin_last")
        A("s_lshl_b32 s25, s24, 15")
        A("s_add_u32 s25, s25, s42"); A("s_and_b32 s25, s25, 0x1fffff")
        claim()
        for jj in range(8):
            ld(jj, alt + jj, "s25")
        eat(base, j0, 8)
        for (P, Q, me, other) in ((alt, base, "A", "B"), (base, alt, "B", "A")):
            L(f"L_eg{me}")
            A("s_waitcnt lgkmcnt(0)")
            A("s_cmp_ge_u32 s24, 64")
            A(f"s_cbranch_scc1 L_drain{me}")
            A("s_lshl_b32 s25, s24, 15")
            A("s_add_u32 s25, s25, s42"); A("s_and_b32 s25, s25, 0x1fffff")
            claim()
            for jj in range(8):
                ld(jj, Q + jj, "s25")
            eat(P, 0, 8)
            if me == "B":
                A("s_branch L_egA")
        L("L_drainA")
        eat(alt, 0, 0)
        A("s_branch L_done")
        L("L_drainB")
        eat(base, 0, 0)
        A("s_branch L_done")
        L("L_fin_last")
        eat(base, j0, 0)
        L("L_done")
        self.stamp(2)
        self.stamp(32, wave=True)
        self.stamp(33, "s[76:77]", wave=True)
        self.stamp(34, "s[78:79]", wave=True)
        if self.stamps:
            A("s_cmp_eq_u32 s3, 0")
            A("s_cbranch_scc0 L_noprof")
            for i in range(min(NS, 12)):
                self.stamp(16 + i, f"s[{48+2*i}:{49+2*i}]")
            self.stamp(16 + 14)
            L("L_noprof")
        A(f"v_add_f32_dpp v{LS}, v{LS}, v{LS} row_ror:4 row_mask:0xf bank_mask:0xf")
        self.nop(2)
        A(f"v_add_f32_dpp v{LS}, v{LS}, v{LS} row_ror:8 row_mask:0xf bank_mask:0xf")
        self.nop(2)
        A(f"v_add_f32_dpp v{LS}, v{LS}, v{LS} row_bcast:15 row_mask:0xa bank_mask:0xf")
        self.nop(2)
        A(f"v_add_f32_dpp v{LS}, v{LS}, v{LS} row_bcast:31 row_mask:0xc bank_mask:0xf")
        A(f"v_and_b32 v{T0}, 15, v{LANE}")
        A(f"v_lshlrev_b32 v{T0}, 5, v{T0}")
        A(f"v_lshrrev_b32 v{T1}, 4, v{LANE}")
        A(f"v_and_b32 v{S}, 1, v{T1}")
        A(f"v_lshl_add_u32 v{T0}, v{S}, 4, v{T0}")
        A(f"v_lshrrev_b32 v{T1}, 1, v{T1}")
        A(f"v_lshl_add_u32 v{T0}, v{T1}, 9, v{T0}")
        A("s_lshl_b32 s20, s3, 10")
        A(f"v_add_u32 v{T0}, s20, v{T0}")
        A(f"ds_write_b128 v{T0}, v[{D}:{D+3}] offset:{L_P}")
        A(f"v_mov_b32 v{MN}, v{LS}")
        A("s_lshl_b32 s20, s3, 3")
        A(f"v_mov_b32 v{T1}, s20")
        A("s_mov_b32 exec_lo, 0")
        A("s_mov_b32 exec_hi, 0x80000000")
        A(f"ds_write_b64 v{T1}, v[{M}:{M+1}] offset:{L_ML}")
        A("s_waitcnt lgkmcnt(0)")
        A("s_barrier")
        A("s_endpgm")
        L("L_rare")
        A(f"v_max_f32_dpp v{T0}, v{S}, v{S} row_ror:4 row_mask:0xf bank_mask:0xf")
        self.nop(2)
        A(f"v_max_f32_dpp v{T0}, v{T0}, v{T0} row_ror:8 row_mask:0xf bank_mask:0xf")
        self.nop(1)
        A(f"v_readlane_b32 s20, v{T0}, 0")
        A(f"v_readlane_b32 s21, v{T0}, 16")
        A(f"v_readlane_b32 s22, v{T0}, 32")
        A(f"v_readlane_b32 s23, v{T0}, 48")
        A(f"v_max_f32 v{T1}, s20, v{M}")
        A(f"v_max_f32 v{T1}, s21, v{T1}")
        A(f"v_max_f32 v{T1}, s22, v{T1}")
        A(f"v_max_f32 v{T1}, s23, v{T1}")
        A(f"v_sub_f32 v{T0}, v{M}, v{T1}")
        A(f"v_mul_f32 v{T0}, s19, v{T0}")
        A(f"v_exp_f32 v{T0}, v{T0}")
        A(f"v_mov_b32 v{M}, v{T1}")
        A(f"v_mul_f32 v{MN}, s19, v{T1}")
        A(f"v_sub_f32 v{MN}, 0, v{MN}")
        for k in range(4):
            A(f"v_mul_f32 v{D+k}, v{D+k}, v{T0}")
        A(f"v_mul_f32 v{LS}, v{LS}, v{T0}")
        A("s_setpc_b64 s[46:47]")

    def helper(self):
        A, L = self.A, self.L
        A("s_setprio 2")
        A("s_sub_u32 s3, s3, 8")
        A("s_load_dwordx2 s[24:25], s[0:1], 0")
        A("s_load_dwordx4 s[28:31], s[0:1], 24")
        A("s_load_dwordx4 s[32:35], s[0:1], 48")
        A("s_load_dwordx4 s[36:39], s[0:1], 64")
        A("s_load_dwordx4 s[48:51], s[0:1], 80")
        A("s_memrealtime s[66:67]")
        A("s_mov_b32 s88, 0x40000")
        A("v_mov_b32 v12, 0")
        A("v_mov_b32 v13, 0")
        A("v_mov_b32 v14, 0")
        A("v_mov_b32 v15, 0")
        A(f"ds_write_b128 v12, v[12:15] offset:{L_CNT}")
        A(f"ds_write_b64 v12, v[12:13] offset:{L_QF}")
        HB, HI, G, TT = 3, 4, 5, 6
        A(f"v_lshrrev_b32 v{HB}, 5, v2")
        A(f"v_and_b32 v{HI}, 31, v2")
        A(f"v_lshrrev_b32 v{G}, 4, v2")
        A(f"v_and_b32 v{TT}, 15, v2")
        VAW, VAR, VDW, VTR = 7, 8, 9, 10
        A("s_lshl_b32 s52, s3, 9")
        A(f"v_lshlrev_b32 v{VAW}, 8, v{HB}")
        A(f"v_lshl_add_u32 v{VAW}, v{HI}, 3, v{VAW}")
        A(f"s_add_u32 s53, s52, {L_A}")
        A(f"v_add_u32 v{VAW}, s53, v{VAW}")
        A(f"v_and_b32 v{VAR}, 1, v2")
        A(f"v_lshlrev_b32 v{VAR}, 8, v{VAR}")
        A(f"v_lshl_add_u32 v{VAR}, v{G}, 4, v{VAR}")
        A(f"v_add_u32 v{VAR}, s53, v{VAR}")
        A(f"s_add_u32 s53, s52, {L_D}")
        A(f"v_lshlrev_b32 v{VDW}, 2, v2")
        A(f"v_add_u32 v{VDW}, s53, v{VDW}")
        A("s_waitcnt lgkmcnt(0)")
        self.srd(84, 98, 0x20000000)
        self.srd(76, 96, 256)
        A("s_or_b32 s54, s2, s3")
        A("s_cmp_eq_u32 s54, 0")
        A("s_cbranch_scc0 L_notagw")
        A("s_or_b32 s66, s66, 1")
        A("v_mov_b32 v12, s66")
        A("s_mov_b64 exec, 1")
        A("buffer_atomic_cmpswap v[12:13], off, s[76:79], 0 sc1")
        A("s_mov_b64 exec, -1")
        L("L_notagw")
        self.srd(20, 24, 2048)
        A(f"s_add_u32 s16, s98, {HH_OFF}")
        A("s_addc_u32 s17, s99, 0")
        A(f"s_mov_b32 s18, {43*128}")
        A("s_mov_b32 s19, 0x20000")
        self.srd(72, 50, 2048)
        for r in range(10, 24):
            A(f"v_mov_b32 v{r}, 0")
        for r in (54, 55, 56, 57, 59, 60, 61, 62):
            A(f"s_mov_b32 s{r}, 0")
        self.stamp(0)
        A(f"s_cmp_lt_u32 s89, {R_Q0}")
        A("s_cbranch_scc1 L_pro_mod")
        A(f"s_cmp_lt_u32 s89, {R_WO0}")
        A("s_cbranch_scc1 L_pro_q")
        A("s_barrier")
        A("s_branch L_common1")

        BF, AF, DT = 40, 24, 12
        DT = 104
        TMP = 120

        def wide_voff(rowbytes, colbyte_s):
            A("s_lshl_b32 s54, s3, 7")
            A("v_lshrrev_b32 v11, 3, v2")
            A("v_add_u32 v11, s54, v11")
            A(f"s_mov_b32 s55, {rowbytes}")
            A("v_mul_lo_u32 v11, v11, s55")
            A(f"v_and_b32 v{TMP}, 7, v2")
            A(f"v_lshl_add_u32 v11, v{TMP}, 4, v11")
            A(f"v_add_u32 v11, s{colbyte_s}, v11")

        def wide_tr_base():
            A(f"v_lshrrev_b32 v{VTR}, 2, v{TT}")
            A(f"v_lshl_add_u32 v{VTR}, v{G}, 3, v{VTR}")
            A(f"v_lshlrev_b32 v{VTR}, 7, v{VTR}")
            A(f"v_and_b32 v{TMP}, 3, v{TT}")
            A(f"v_lshl_add_u32 v{VTR}, v{TMP}, 3, v{VTR}")
            A("s_lshl_b32 s54, s3, 14")
            A(f"s_add_u32 s54, s54, {L_W}")
            A(f"v_add_u32 v{VTR}, s54, v{VTR}")

        L("L_pro_mod")
        self.srd(12, 38, 2048)
        A(f"v_lshlrev_b32 v{TMP}, 10, v{HB}")
        A(f"v_lshl_add_u32 v{TMP}, v{HI}, 3, v{TMP}")
        A("s_lshl_b32 s54, s3, 8")
        A(f"buffer_load_dwordx2 v[{TMP+2}:{TMP+3}], v{TMP}, s[12:15], s54 offen")
        self.srd(8, 48, 512 * 6144)
        A("s_lshl_b32 s56, s89, 7")
        wide_voff(6144, 56)
        A("s_lshl_b32 s57, s3, 14")
        self.dma_weights(8, 16, 11, 8 * 6144, 57)
        A("s_barrier")
        wide_tr_base()
        A("s_waitcnt vmcnt(16)")
        X = TMP + 4
        self.unpack2(TMP + 2, X, X + 1)
        self.unpack2(TMP + 3, X + 2, X + 3)
        A(f"s_mov_b32 s58, {f32(-LOG2E)}")
        for k in range(4):
            A(f"v_mul_f32 v{X+4+k}, s58, v{X+k}")
        for k in range(4):
            A(f"v_exp_f32 v{X+4+k}, v{X+4+k}")
        self.nop(1)
        for k in range(4):
            A(f"v_add_f32 v{X+4+k}, 1.0, v{X+4+k}")
        for k in range(4):
            A(f"v_rcp_f32 v{X+4+k}, v{X+4+k}")
        self.nop(1)
        for k in range(4):
            A(f"v_mul_f32 v{X+k}, v{X+k}, v{X+4+k}")
        A(f"v_cvt_pk_bf16_f32 v{X+8}, v{X}, v{X+1}")
        A(f"v_cvt_pk_bf16_f32 v{X+9}, v{X+2}, v{X+3}")
        A(f"ds_write_b64 v{VAW}, v[{X+8}:{X+9}]")
        A("s_lshr_b32 s60, s89, 3")
        A("s_lshl_b32 s60, s60, 12")
        A("s_and_b32 s61, s89, 7")
        A("s_lshl_b32 s61, s61, 8")
        A("s_add_u32 s60, s60, s61")
        A(f"s_add_u32 s60, s60, {MOD_OFF}")
        A("s_mov_b32 s61, 2048")
        A("s_mov_b32 s62, 0")
        A("s_branch L_common1")

        L("L_pro_q")
        A(f"v_lshlrev_b32 v{TMP}, 10, v{HB}")
        A(f"v_lshl_add_u32 v{TMP+1}, v{HI}, 5, v{TMP}")
        A(f"buffer_load_dwordx4 v[{TMP+4}:{TMP+7}], v{TMP+1}, s[20:23], 0 offen")
        A(f"buffer_load_dwordx4 v[{TMP+8}:{TMP+11}], v{TMP+1}, s[20:23], 0 offen offset:16")
        A(f"v_lshl_add_u32 v{TMP}, v{HI}, 3, v{TMP}")
        A("s_lshl_b32 s54, s3, 8")
        A(f"buffer_load_dwordx2 v[{TMP+2}:{TMP+3}], v{TMP}, s[20:23], s54 offen")
        self.srd(8, 28, 512 * 8192)
        A(f"s_sub_u32 s59, s89, {R_Q0}")
        A("s_lshl_b32 s56, s59, 7")
        wide_voff(8192, 56)
        A("s_lshl_b32 s57, s3, 14")
        self.dma_weights(8, 16, 11, 8 * 8192, 57)
        A("s_barrier")
        wide_tr_base()
        A("s_waitcnt vmcnt(16)")
        S1, S2, U0, U1 = TMP + 12, TMP + 13, TMP + 14, TMP + 15
        A(f"v_mov_b32 v{S1}, 0")
        A(f"v_mov_b32 v{S2}, 0")
        for k in range(8):
            self.unpack2(TMP + 4 + k, U0, U1)
            A(f"v_add_f32 v{S1}, v{S1}, v{U0}")
            A(f"v_fmac_f32 v{S2}, v{U0}, v{U0}")
            A(f"v_add_f32 v{S1}, v{S1}, v{U1}")
            A(f"v_fmac_f32 v{S2}, v{U1}, v{U1}")
        self.allred32([S1, S2], [U0, U1])
        NX = TMP + 16
        self.unpack2(TMP + 2, NX, NX + 1)
        self.unpack2(TMP + 3, NX + 2, NX + 3)
        self.ln_norm(S1, S2, NX, U0, U1)
        A("s_lshl_b32 s60, s59, 8")
        A(f"s_add_u32 s60, s60, {Q_OFF}")
        A("s_mov_b32 s61, 16384")
        A("s_mov_b32 s62, 1")
        L("L_common1")
        A("buffer_load_dword v165, off, s[76:79], 0 sc1")
        CL = TMP + 24
        for k in range(4):
            A(f"v_mov_b32 v{CL+k}, -1")
        A("s_cmp_eq_u32 s3, 3")
        A("s_cbranch_scc0 L_noclear")
        A("s_lshl_b32 s63, s40, 2")
        A("s_add_u32 s63, s63, s41")
        A("s_lshl_b32 s63, s63, 10")
        A(f"s_add_u32 s63, s63, {PART_OFF}")
        A(f"v_lshlrev_b32 v{CL+4}, 4, v2")
        A("s_mov_b32 exec_lo, -1")
        A("s_mov_b32 exec_hi, 1")
        A(f"buffer_store_dwordx4 v[{CL}:{CL+3}], v{CL+4}, s[84:87], s63 offen sc1")
        A("s_mov_b64 exec, -1")
        A(f"s_sub_u32 s64, s89, {R_WO0}")
        A("s_cmp_lt_u32 s64, 64")
        A("s_cbranch_scc0 L_noclr_wo")
        self.slice_of(64, R_WO0, 64)
        A("s_lshr_b32 s65, s64, 3")
        A("s_lshl_b32 s65, s65, 12")
        A("s_and_b32 s66, s64, 7")
        A("s_lshl_b32 s66, s66, 8")
        A("s_add_u32 s65, s65, s66")
        A(f"s_add_u32 s65, s65, {ATT_OFF}")
        A(f"v_lshlrev_b32 v{CL+4}, 11, v{G}")
        A(f"v_lshl_add_u32 v{CL+4}, v{TT}, 4, v{CL+4}")
        A("s_mov_b32 exec_hi, 0")
        A(f"buffer_store_dwordx4 v[{CL}:{CL+3}], v{CL+4}, s[84:87], s65 offen sc1")
        A("s_mov_b64 exec, -1")
        L("L_noclr_wo")
        A(f"s_sub_u32 s64, s89, {R_UP0}")
        A("s_cmp_lt_u32 s64, 43")
        A("s_cbranch_scc0 L_noclr_up")
        self.slice_of(64, R_UP0, 43)
        A("s_lshl_b32 s65, s64, 7")
        A(f"s_add_u32 s65, s65, {HH_OFF}")
        A(f"v_lshlrev_b32 v{CL+4}, 4, v2")
        A("s_mov_b64 exec, 0xff")
        A(f"buffer_store_dwordx4 v[{CL}:{CL+3}], v{CL+4}, s[84:87], s65 offen sc1")
        A("s_mov_b64 exec, -1")
        L("L_noclr_up")
        A("s_cmp_eq_u32 s41, 0")
        A("s_cbranch_scc0 L_noclr_cnt")
        A("s_lshl_b32 s65, s40, 7")
        A(f"s_add_u32 s65, s65, {CNT_OFF}")
        A(f"v_mov_b32 v{CL+4}, {self.NS*4}")
        A(f"v_lshlrev_b32 v{CL+5}, 2, v2")
        A("s_mov_b64 exec, 0xff")
        A(f"buffer_store_dword v{CL+4}, v{CL+5}, s[84:87], s65 offen sc1")
        A("s_mov_b64 exec, -1")
        L("L_noclr_cnt")
        L("L_noclear")
        A("s_waitcnt vmcnt(0)")
        A("v_cmp_eq_u32 vcc, 0, v165")
        A("s_cbranch_vccz L_gottag")
        pl = self.poll_head()
        A("buffer_load_dword v165, off, s[76:79], 0 sc1")
        A("s_waitcnt vmcnt(0)")
        A("v_cmp_eq_u32 vcc, 0, v165")
        self.poll_tail(pl, sleep=2)
        L("L_gottag")
        A("v_readfirstlane_b32 s80, v165")
        self.stamp(10)
        A("s_cmp_eq_u32 s3, 3")
        A("s_cbranch_scc0 L_nocount")
        A("s_and_b32 s63, s2, 3")
        A("s_lshl_b32 s63, s63, 2")
        A("s_add_u32 s63, s63, 128")
        A(f"v_mov_b32 v{CL+5}, 1")
        A("s_mov_b64 exec, 1")
        A(f"buffer_atomic_add v{CL+5}, off, s[76:79], s63 sc1")
        A("s_cmp_eq_u32 s41, 0")
        A("s_cbranch_scc0 L_nocnttag")
        A(f"v_mov_b32 v{CL+4}, s80")
        A(f"buffer_store_dword v{CL+4}, off, s[84:87], s65 offset:64 sc1")
        L("L_nocnttag")
        A("s_mov_b64 exec, -1")
        L("L_nocount")
        A(f"s_cmp_lt_u32 s89, {R_WO0}")
        A("s_cbranch_scc0 L_qgather")
        self.tr_reads(VTR, BF, 4, [0, 32, 64, 96], 128)
        A("s_cmp_eq_u32 s62, 0")
        A("s_cbranch_scc1 L_pro_gemv")
        GA = TMP + 4
        A(f"v_lshlrev_b32 v{TMP}, 11, v{HB}")
        A(f"v_lshl_add_u32 v{TMP}, v{HI}, 4, v{TMP}")
        A("s_lshl_b32 s54, s3, 9")
        A(f"s_add_u32 s54, s54, {MOD_OFF}")
        A(f"s_add_u32 s55, s54, 4096")
        pl = self.poll_head()
        A(f"buffer_load_dwordx4 v[{GA}:{GA+3}], v{TMP}, s[84:87], s55 offen sc1")
        A(f"buffer_load_dwordx4 v[{GA+4}:{GA+7}], v{TMP}, s[84:87], s54 offen sc1")
        A("s_waitcnt vmcnt(0)")
        self.check_tags([GA + 1, GA + 3, GA + 5, GA + 7], TMP + 1)
        self.poll_tail(pl, sleep=self.ps1)
        self.stamp(3)
        T4 = TMP + 20
        self.unpack2(GA, T4, T4 + 1)
        self.unpack2(GA + 2, T4 + 2, T4 + 3)
        for k in range(4):
            A(f"v_add_f32 v{T4+k}, 1.0, v{T4+k}")
        self.rnd2(T4, T4 + 1, TMP + 1)
        self.rnd2(T4 + 2, T4 + 3, TMP + 2)
        self.modulate(NX, T4, GA + 4, GA + 6, TMP + 1, TMP + 24, VAW)
        L("L_pro_gemv")
        A("s_waitcnt lgkmcnt(0)")
        self.a_frags_from_stage(VAR, AF)
        A("s_waitcnt lgkmcnt(0)")
        self.mfmas(AF, BF, DT, 4, 4)
        self.d_to_lds(DT, 4, TMP, TMP + 1, VDW)
        A(f"v_mov_b32 v{TMP+2}, {L_CNT}")
        A(f"v_mov_b32 v{TMP+3}, 1")
        A("s_mov_b64 exec, 1")
        A(f"ds_add_rtn_u32 v{TMP+4}, v{TMP+2}, v{TMP+3}")
        A("s_mov_b64 exec, -1")
        A("s_waitcnt lgkmcnt(0)")
        A(f"v_readfirstlane_b32 s54, v{TMP+4}")
        A("s_cmp_eq_u32 s54, 3")
        A("s_cbranch_scc0 L_qgather")
        self.d_sum(G, TT, TMP)
        A(f"v_cvt_pk_bf16_f32 v{TMP+8}, v{TMP+4}, v{TMP+5}")
        A(f"v_mov_b32 v{TMP+9}, s80")
        A(f"v_cvt_pk_bf16_f32 v{TMP+10}, v{TMP+6}, v{TMP+7}")
        A(f"v_mov_b32 v{TMP+11}, s80")
        A(f"v_mul_lo_u32 v{TMP}, v{G}, s61")
        A(f"v_lshl_add_u32 v{TMP}, v{TT}, 4, v{TMP}")
        A("s_mov_b32 exec_hi, 0")
        A(f"buffer_store_dwordx4 v[{TMP+8}:{TMP+11}], v{TMP}, s[84:87], s60 offen sc1")
        A("s_mov_b64 exec, -1")
        self.stamp(4)
        L("L_qgather")
        A("s_cmp_eq_u32 s3, 3")
        A("s_cbranch_scc0 L_qg2")
        A("s_lshl_b32 s65, s40, 7")
        A(f"s_add_u32 s65, s65, {CNT_OFF}")
        pl = self.poll_head()
        A(f"buffer_load_dword v{TMP}, off, s[84:87], s65 offset:64 sc1")
        A("s_waitcnt vmcnt(0)")
        A(f"v_cmp_ne_u32 vcc, s80, v{TMP}")
        self.poll_tail(pl, sleep=8)
        if self.flagq:
            A(f"v_mov_b32 v{TMP}, 0")
            A(f"v_mov_b32 v{TMP+1}, 1")
            A(f"ds_write_b32 v{TMP}, v{TMP+1} offset:{L_QF+4}")
        L("L_qg2")
        A("s_cmp_eq_u32 s3, 0")
        A("s_cbranch_scc0 L_b2")
        A("s_lshl_b32 s54, s40, 9")
        A(f"s_add_u32 s54, s54, {Q_OFF}")
        A(f"v_lshlrev_b32 v{TMP}, 3, v2")
        pl = self.poll_head()
        A(f"buffer_load_dwordx2 v[{TMP+2}:{TMP+3}], v{TMP}, s[84:87], s54 offen sc1")
        A("s_waitcnt vmcnt(0)")
        A(f"v_cmp_ne_u32 vcc, s80, v{TMP+3}")
        self.poll_tail(pl, sleep=self.ps2)
        A(f"v_lshlrev_b32 v{TMP}, 2, v2")
        A(f"ds_write_b32 v{TMP}, v{TMP+2} offset:{L_Q}")
        if self.flagq:
            A(f"v_mov_b32 v{TMP}, 0")
            A(f"v_mov_b32 v{TMP+1}, 1")
            A(f"ds_write_b32 v{TMP}, v{TMP+1} offset:{L_QF}")
        A("s_waitcnt lgkmcnt(0)")
        self.stamp(5)
        L("L_b2")
        if not self.flagq:
            A("s_barrier")
        else:
            A(f"v_mov_b32 v{TMP}, 0")
            pl = self.poll_head()
            A(f"ds_read_b32 v{TMP+1}, v{TMP} offset:{L_QF}")
            A("s_waitcnt lgkmcnt(0)")
            A(f"v_cmp_eq_u32 vcc, 0, v{TMP+1}")
            self.poll_tail(pl, sleep=4)
        A(f"s_cmp_lt_u32 s89, {R_WO0}")
        A("s_cbranch_scc1 L_b3")
        A(f"s_cmp_lt_u32 s89, {R_WO1}")
        A("s_cbranch_scc1 L_prep_wo")
        A(f"s_cmp_ge_u32 s89, {R_DN0}")
        A("s_cbranch_scc1 L_prep_dn")
        A(f"s_cmp_lt_u32 s89, {R_UP0}")
        A("s_cbranch_scc1 L_b3")
        A(f"s_cmp_lt_u32 s89, {R_UP1}")
        A("s_cbranch_scc1 L_prep_up")
        A("s_branch L_b3")

        def narrow_voff(rowbytes, rows_per_wave, colbyte_s):
            A(f"s_mul_i32 s54, s3, {rows_per_wave}")
            A("v_lshrrev_b32 v11, 2, v2")
            A("v_add_u32 v11, s54, v11")
            A(f"s_mov_b32 s55, {rowbytes}")
            A("v_mul_lo_u32 v11, v11, s55")
            A(f"v_and_b32 v{VTR}, 3, v2")
            A(f"v_lshl_add_u32 v11, v{VTR}, 4, v11")
            A(f"v_add_u32 v11, s{colbyte_s}, v11")

        def narrow_tr_base(rows_per_wave):
            A(f"v_lshrrev_b32 v{VTR}, 2, v{TT}")
            A(f"v_lshl_add_u32 v{VTR}, v{G}, 3, v{VTR}")
            A(f"v_lshlrev_b32 v{VTR}, 6, v{VTR}")
            A(f"v_and_b32 v12, 3, v{TT}")
            A(f"v_lshl_add_u32 v{VTR}, v12, 3, v{VTR}")
            A(f"s_mul_i32 s54, s3, {rows_per_wave*64}")
            A(f"s_add_u32 s54, s54, {L_W}")
            A(f"v_add_u32 v{VTR}, s54, v{VTR}")

        def wait_cleared(t):
            pl = self.poll_head()
            A(f"buffer_load_dwordx4 v[{t}:{t+3}], off, s[76:79], 0 offset:128 sc1")
            A("s_waitcnt vmcnt(0)")
            A(f"v_add_u32 v{t}, v{t}, v{t+1}")
            A(f"v_add3_u32 v{t}, v{t}, v{t+2}, v{t+3}")
            A(f"v_cmp_gt_u32 vcc, 256, v{t}")
            self.poll_tail(pl, sleep=16)

        self.intail = True
        L("L_prep_wo")
        self.slice_of(59, R_WO0, 64)
        self.srd(8, 30, 4096 * 1024)
        A("s_lshr_b32 s56, s59, 3")
        A("s_lshl_b32 s56, s56, 19")
        A("s_and_b32 s57, s59, 7")
        A("s_lshl_b32 s57, s57, 7")
        A("s_add_u32 s56, s56, s57")
        wide_voff(1024, 56)
        A("s_lshl_b32 s57, s3, 14")
        self.dma_weights(8, 16, 11, 8 * 1024, 57, skip='nowo')
        wide_tr_base()
        wait_cleared(TMP)
        self.tr_reads(VTR, BF, 4, [0, 32, 64, 96], 128)
        A(f"v_lshlrev_b32 v11, 17, v{HB}")
        A(f"v_lshl_add_u32 v12, v{HI}, 4, v11")
        A("s_lshr_b32 s56, s59, 3")
        A("s_lshl_b32 s60, s56, 12")
        A("s_lshl_b32 s56, s56, 2")
        A("s_add_u32 s56, s56, s3")
        A("s_lshl_b32 s56, s56, 12")
        A(f"s_add_u32 s56, s56, {PART_OFF}")
        A("s_and_b32 s57, s59, 7")
        A("s_lshl_b32 s57, s57, 8")
        A("s_add_u32 s60, s60, s57")
        A(f"s_add_u32 s60, s60, {ATT_OFF}")
        A("s_waitcnt lgkmcnt(0)")
        A("s_branch L_b3")

        XV, GAV, T4U, SBV = TMP + 28, TMP + 32, TMP + 36, TMP + 40
        L("L_prep_up")
        self.slice_of(59, R_UP0, 43)
        self.srd(8, 32, 512 * 2752)
        self.srd(12, 34, 512 * 2752)
        A("s_lshl_b32 s56, s59, 6")
        narrow_voff(2752, 128, 56)
        A("s_lshl_b32 s57, s3, 13")
        self.dma_weights(8, 8, 11, 16 * 2752, 57, skip='noup')
        A("s_add_u32 s57, s57, 32768")
        self.dma_weights(12, 8, 11, 16 * 2752, 57, skip='noup')
        narrow_tr_base(128)
        A(f"v_lshlrev_b32 v{TMP}, 10, v{HB}")
        A(f"v_lshl_add_u32 v{TMP}, v{HI}, 3, v{TMP}")
        A("s_lshl_b32 s54, s3, 8")
        A(f"buffer_load_dwordx2 v[{TMP+2}:{TMP+3}], v{TMP}, s[20:23], s54 offen")
        A(f"v_lshlrev_b32 v{TMP}, 11, v{HB}")
        A(f"v_lshl_add_u32 v{TMP}, v{HI}, 4, v{TMP}")
        A("s_lshl_b32 s54, s3, 9")
        A(f"s_add_u32 s54, s54, {MOD_OFF + 2*4096}")
        A(f"s_add_u32 s55, s54, 4096")
        A(f"s_add_u32 s56, s54, 8192")
        GA = TMP + 4
        pl = self.poll_head()
        A(f"buffer_load_dwordx4 v[{GA}:{GA+3}], v{TMP}, s[84:87], s54 offen sc1")
        A(f"buffer_load_dwordx4 v[{GA+4}:{GA+7}], v{TMP}, s[84:87], s55 offen sc1")
        A(f"buffer_load_dwordx4 v[{GA+8}:{GA+11}], v{TMP}, s[84:87], s56 offen sc1")
        A("s_waitcnt vmcnt(0)")
        self.check_tags([GA + 1, GA + 3, GA + 5, GA + 7, GA + 9, GA + 11], TMP + 16)
        self.poll_tail(pl)
        self.unpack2(TMP + 2, XV, XV + 1)
        self.unpack2(TMP + 3, XV + 2, XV + 3)
        self.unpack2(GA, GAV, GAV + 1)
        self.unpack2(GA + 2, GAV + 2, GAV + 3)
        A(f"v_mov_b32 v{SBV}, v{GA+4}")
        A(f"v_mov_b32 v{SBV+1}, v{GA+6}")
        self.unpack2(GA + 8, T4U, T4U + 1)
        self.unpack2(GA + 10, T4U + 2, T4U + 3)
        for k in range(4):
            A(f"v_add_f32 v{T4U+k}, 1.0, v{T4U+k}")
        self.rnd2(T4U, T4U + 1, TMP + 1)
        self.rnd2(T4U + 2, T4U + 3, TMP + 1)
        wait_cleared(TMP)
        self.tr_reads(VTR, BF, 4, [0, 32, 32768, 32768 + 32], 64)
        A(f"v_lshlrev_b32 v12, 11, v{HB}")
        A(f"v_lshl_add_u32 v12, v{HI}, 4, v12")
        A("s_lshl_b32 s56, s3, 9")
        A(f"s_add_u32 s56, s56, {ATT_OFF}")
        A("s_lshl_b32 s60, s59, 7")
        A(f"s_add_u32 s60, s60, {HH_OFF}")
        A("s_waitcnt lgkmcnt(0)")
        A("s_branch L_b3")

        DBF, DAF, DDT = 32, 120, 24
        L("L_prep_dn")
        self.slice_of(59, R_DN0, 16)
        self.srd(8, 36, 1376 * 1024)
        A("s_lshl_b32 s56, s59, 6")
        narrow_voff(1024, 352, 56)
        A(f"s_mul_i32 s57, s3, {352*64}")
        self.dma_weights(8, 22, 11, 16 * 1024, 57, skip='nodn')
        narrow_tr_base(352)
        A("v_lshrrev_b32 v13, 3, v2")
        A("v_and_b32 v13, 1, v13")
        A("v_and_b32 v14, 7, v2")
        A("v_lshlrev_b32 v15, 10, v13")
        A("v_lshl_add_u32 v15, v14, 3, v15")
        A("buffer_load_dwordx2 v[16:17], v15, s[20:23], s56 offen")
        A("v_lshlrev_b32 v15, 11, v13")
        A("v_lshl_add_u32 v15, v14, 4, v15")
        A("s_lshl_b32 s54, s59, 7")
        A(f"s_add_u32 s55, s54, {MOD_OFF + 5*4096}")
        A(f"s_add_u32 s54, s54, {MOD_OFF + 2*4096}")
        pl = self.poll_head()
        A(f"buffer_load_dwordx4 v[{DAF}:{DAF+3}], v15, s[84:87], s54 offen sc1")
        A(f"buffer_load_dwordx4 v[{DAF+4}:{DAF+7}], v15, s[84:87], s55 offen sc1")
        A("s_waitcnt vmcnt(0)")
        self.check_tags([DAF + 1, DAF + 3, DAF + 5, DAF + 7], DAF + 8)
        self.poll_tail(pl)
        A(f"v_mov_b32 v18, v{DAF}")
        A(f"v_mov_b32 v19, v{DAF+2}")
        A(f"v_mov_b32 v20, v{DAF+4}")
        A(f"v_mov_b32 v21, v{DAF+6}")
        wait_cleared(DAF)
        self.tr_reads(VTR, DBF, 11, [0, 32], 64)
        A("s_lshl_b32 s56, s59, 7")
        A(f"s_add_u32 s56, s56, {ATT_OFF}")
        A("v_and_b32 v12, 1, v2")
        A("v_lshlrev_b32 v12, 6, v12")
        A(f"v_lshl_add_u32 v12, v{G}, 4, v12")
        A(f"s_mul_i32 s57, s3, {11*128}")
        A("s_waitcnt lgkmcnt(0)")
        L("L_b3")
        A("s_barrier")
        self.stamp(6)
        A("s_cmp_eq_u32 s3, 0")
        A("s_cbranch_scc0 L_tail")
        C = 120
        A(f"v_and_b32 v{C}, 7, v2")
        A(f"v_lshlrev_b32 v{C}, 3, v{C}")
        A(f"ds_read_b64 v[{C+2}:{C+3}], v{C} offset:{L_ML}")
        A(f"v_lshlrev_b32 v{C+1}, 3, v2")
        for w in range(8):
            A(f"ds_read_b64 v[{C+8+2*w}:{C+9+2*w}], v{C+1} offset:{L_P + w*1024}")
        A("s_waitcnt lgkmcnt(8)")
        A(f"v_max_f32_dpp v{C+4}, v{C+2}, v{C+2} row_ror:1 row_mask:0xf bank_mask:0xf")
        self.nop(2)
        A(f"v_max_f32_dpp v{C+4}, v{C+4}, v{C+4} row_ror:2 row_mask:0xf bank_mask:0xf")
        self.nop(2)
        A(f"v_max_f32_dpp v{C+4}, v{C+4}, v{C+4} row_ror:4 row_mask:0xf bank_mask:0xf")
        A(f"s_mov_b32 s58, {f32(LOG2E)}")
        A(f"v_sub_f32 v{C+6}, v{C+2}, v{C+4}")
        A(f"v_mul_f32 v{C+6}, s58, v{C+6}")
        A(f"v_exp_f32 v{C+6}, v{C+6}")
        self.nop(1)
        A(f"v_mul_f32 v{C+5}, v{C+6}, v{C+3}")
        self.nop(2)
        A(f"v_add_f32_dpp v{C+5}, v{C+5}, v{C+5} row_ror:1 row_mask:0xf bank_mask:0xf")
        self.nop(2)
        A(f"v_add_f32_dpp v{C+5}, v{C+5}, v{C+5} row_ror:2 row_mask:0xf bank_mask:0xf")
        self.nop(2)
        A(f"v_add_f32_dpp v{C+5}, v{C+5}, v{C+5} row_ror:4 row_mask:0xf bank_mask:0xf")
        A("s_waitcnt lgkmcnt(0)")
        A(f"v_mul_f32_dpp v{C+24}, v{C+6}, v{C+8} row_newbcast:0 row_mask:0xf bank_mask:0xf")
        A(f"v_mul_f32_dpp v{C+25}, v{C+6}, v{C+9} row_newbcast:0 row_mask:0xf bank_mask:0xf")
        for w in range(1, 8):
            A(f"v_fmac_f32_dpp v{C+24}, v{C+6}, v{C+8+2*w} row_newbcast:{w} row_mask:0xf bank_mask:0xf")
            A(f"v_fmac_f32_dpp v{C+25}, v{C+6}, v{C+9+2*w} row_newbcast:{w} row_mask:0xf bank_mask:0xf")
        for r in (C + 24, C + 25, C + 4, C + 5):
            A(f"v_min_u32 v{r}, -2, v{r}")
        A("s_lshl_b32 s63, s40, 2")
        A("s_add_u32 s63, s63, s41")
        A("s_lshl_b32 s63, s63, 10")
        A(f"s_add_u32 s63, s63, {PART_OFF}")
        A(f"buffer_store_dwordx2 v[{C+24}:{C+25}], v{C+1}, s[84:87], s63 offen sc1")
        A("s_mov_b64 exec, 1")
        A(f"buffer_store_dwordx2 v[{C+4}:{C+5}], off, s[84:87], s63 offset:512 sc1")
        A("s_mov_b64 exec, -1")
        self.stamp(7)
        L("L_tail")
        A(f"s_cmp_lt_u32 s89, {R_WO0}")
        A("s_cbranch_scc1 L_end")
        A(f"s_cmp_lt_u32 s89, {R_WO1}")
        A("s_cbranch_scc1 L_tail_wo")
        A(f"s_cmp_ge_u32 s89, {R_DN0}")
        A("s_cbranch_scc1 L_tail_dn")
        A(f"s_cmp_lt_u32 s89, {R_UP0}")
        A("s_cbranch_scc1 L_end")
        A(f"s_cmp_lt_u32 s89, {R_UP1}")
        A("s_cbranch_scc1 L_tail_up")
        A("s_branch L_end")

        L("L_tail_wo")
        O = TMP
        pl = self.poll_head()
        for s in range(4):
            A(f"buffer_load_dwordx4 v[{O+4*s}:{O+4*s+3}], v12, s[84:87], s56 offen offset:{s*1024} sc1")
            A(f"buffer_load_dwordx2 v[{O+16+2*s}:{O+17+2*s}], v11, s[84:87], s56 offen offset:{s*1024+512} sc1")
        A("s_waitcnt vmcnt(0)")
        self.check_sent(range(O, O + 24), O + 24)
        self.poll_tail(pl)
        self.stamp(8)
        MM, LL = O + 24, O + 25
        A(f"v_max3_f32 v{MM}, v{O+16}, v{O+18}, v{O+20}")
        A(f"v_max_f32 v{MM}, v{MM}, v{O+22}")
        A(f"s_mov_b32 s58, {f32(LOG2E)}")
        for s in range(4):
            A(f"v_sub_f32 v{O+16+2*s}, v{O+16+2*s}, v{MM}")
        for s in range(4):
            A(f"v_mul_f32 v{O+16+2*s}, s58, v{O+16+2*s}")
        for s in range(4):
            A(f"v_exp_f32 v{O+16+2*s}, v{O+16+2*s}")
        self.nop(1)
        A(f"v_mul_f32 v{LL}, v{O+16}, v{O+17}")
        for s in range(1, 4):
            A(f"v_fmac_f32 v{LL}, v{O+16+2*s}, v{O+17+2*s}")
        A(f"v_rcp_f32 v{LL}, v{LL}")
        for k in range(4):
            A(f"v_mul_f32 v{O+k}, v{O+16}, v{O+k}")
        for s in range(1, 4):
            for k in range(4):
                A(f"v_fmac_f32 v{O+k}, v{O+16+2*s}, v{O+4*s+k}")
        for k in range(4):
            A(f"v_mul_f32 v{O+k}, v{LL}, v{O+k}")
        A(f"v_cvt_pk_bf16_f32 v{O+4}, v{O}, v{O+1}")
        A(f"v_cvt_pk_bf16_f32 v{O+5}, v{O+2}, v{O+3}")
        A(f"ds_write_b64 v{VAW}, v[{O+4}:{O+5}]")
        A("s_waitcnt lgkmcnt(0)")
        self.a_frags_from_stage(VAR, AF)
        A("s_waitcnt lgkmcnt(0)")
        self.mfmas(AF, BF, DT, 4, 4)
        self.d_to_lds(DT, 4, TMP, TMP + 1, VDW)
        A("s_waitcnt lgkmcnt(0)")
        A("s_barrier")
        A("s_cmp_eq_u32 s3, 0")
        A("s_cbranch_scc0 L_end")
        self.d_sum(G, TT, TMP)
        for k in range(4):
            A(f"v_min_u32 v{TMP+4+k}, -2, v{TMP+4+k}")
        A(f"v_lshlrev_b32 v{TMP}, 11, v{G}")
        A(f"v_lshl_add_u32 v{TMP}, v{TT}, 4, v{TMP}")
        A("s_mov_b32 exec_hi, 0")
        A(f"buffer_store_dwordx4 v[{TMP+4}:{TMP+7}], v{TMP}, s[84:87], s60 offen sc1")
        self.stamp(9)
        A("s_endpgm")

        L("L_tail_up")
        P = 12
        P = DT
        regs = [AF + 4 * i for i in range(4)] + [DT + 4 * i for i in range(4)]
        pl = self.poll_head()
        for hg in range(8):
            if hg:
                A(f"s_add_u32 s57, s56, {hg*4096}")
                A(f"buffer_load_dwordx4 v[{regs[hg]}:{regs[hg]+3}], v12, s[84:87], s57 offen sc1")
            else:
                A(f"buffer_load_dwordx4 v[{regs[hg]}:{regs[hg]+3}], v12, s[84:87], s56 offen sc1")
        A("s_waitcnt vmcnt(0)")
        self.check_sent([r + k for r in regs for k in range(4)], TMP)
        self.poll_tail(pl)
        self.stamp(8)
        X1 = TMP + 4
        self.sum8_x1(regs, X1, XV, GAV, TMP)
        S1, S2, U0, U1 = TMP + 8, TMP + 9, TMP + 10, TMP + 11
        A(f"v_add_f32 v{S1}, v{X1}, v{X1+1}")
        A(f"v_mul_f32 v{S2}, v{X1}, v{X1}")
        A(f"v_add_f32 v{U0}, v{X1+2}, v{X1+3}")
        A(f"v_fmac_f32 v{S2}, v{X1+1}, v{X1+1}")
        A(f"v_add_f32 v{S1}, v{S1}, v{U0}")
        A(f"v_fmac_f32 v{S2}, v{X1+2}, v{X1+2}")
        A(f"v_fmac_f32 v{S2}, v{X1+3}, v{X1+3}")
        self.allred32([S1, S2], [U0, U1])
        A(f"v_lshlrev_b32 v{U0}, 5, v{HB}")
        A("s_lshl_b32 s54, s3, 3")
        A(f"v_add_u32 v{U1}, s54, v{U0}")
        A(f"ds_write_b64 v{U1}, v[{S1}:{S2}] offset:{L_ST}")
        A("s_waitcnt lgkmcnt(0)")
        A("s_barrier")
        Q8 = TMP + 12
        A(f"ds_read_b128 v[{Q8}:{Q8+3}], v{U0} offset:{L_ST}")
        A(f"ds_read_b128 v[{Q8+4}:{Q8+7}], v{U0} offset:{L_ST+16}")
        A("s_waitcnt lgkmcnt(0)")
        A(f"v_add_f32 v{S1}, v{Q8}, v{Q8+2}")
        A(f"v_add_f32 v{S2}, v{Q8+1}, v{Q8+3}")
        A(f"v_add_f32 v{U0}, v{Q8+4}, v{Q8+6}")
        A(f"v_add_f32 v{U1}, v{Q8+5}, v{Q8+7}")
        A(f"v_add_f32 v{S1}, v{S1}, v{U0}")
        A(f"v_add_f32 v{S2}, v{S2}, v{U1}")
        self.ln_norm(S1, S2, X1, U0, U1)
        self.modulate(X1, T4U, SBV, SBV + 1, TMP, TMP + 12, VAW)
        A("s_waitcnt lgkmcnt(0)")
        self.a_frags_from_stage(VAR, AF)
        A("s_waitcnt lgkmcnt(0)")
        self.mfmas(AF, BF, DT, 4, 4)
        self.d_to_lds(DT, 4, TMP, TMP + 1, VDW)
        A("s_waitcnt lgkmcnt(0)")
        A("s_barrier")
        A("s_cmp_eq_u32 s3, 0")
        A("s_cbranch_scc0 L_end")
        A(f"v_lshrrev_b32 v{TMP}, 3, v2")
        A(f"v_and_b32 v{TMP}, 1, v{TMP}")
        A(f"v_and_b32 v{TMP+1}, 7, v2")
        A(f"v_lshlrev_b32 v{TMP+2}, 8, v{TMP}")
        A(f"v_lshl_add_u32 v{TMP+2}, v{TMP+1}, 4, v{TMP+2}")
        GT = AF
        for j in range(4):
            A(f"ds_read_b128 v[{AF+4*j}:{AF+4*j+3}], v{TMP+2} offset:{L_D + j*512}")
            A(f"ds_read_b128 v[{DT+4*j}:{DT+4*j+3}], v{TMP+2} offset:{L_D + j*512 + 128}")
        A(f"v_lshlrev_b32 v{TMP+3}, 6, v{TMP}")
        A(f"v_lshl_add_u32 v{TMP+3}, v{TMP+1}, 3, v{TMP+3}")
        A("s_waitcnt lgkmcnt(0)")
        for base in (AF, DT):
            for k in range(4):
                A(f"v_add_f32 v{base+k}, v{base+k}, v{base+4+k}")
                A(f"v_add_f32 v{base+8+k}, v{base+8+k}, v{base+12+k}")
            for k in range(4):
                A(f"v_add_f32 v{base+k}, v{base+k}, v{base+8+k}")
            self.rnd2(base, base + 1, base + 4)
            self.rnd2(base + 2, base + 3, base + 5)
        A(f"s_mov_b32 s58, {f32(-LOG2E)}")
        for k in range(4):
            A(f"v_mul_f32 v{AF+4+k}, s58, v{AF+k}")
        for k in range(4):
            A(f"v_exp_f32 v{AF+4+k}, v{AF+4+k}")
        self.nop(1)
        for k in range(4):
            A(f"v_add_f32 v{AF+4+k}, 1.0, v{AF+4+k}")
        for k in range(4):
            A(f"v_rcp_f32 v{AF+4+k}, v{AF+4+k}")
        self.nop(1)
        for k in range(4):
            A(f"v_mul_f32 v{AF+k}, v{AF+k}, v{AF+4+k}")
        self.rnd2(AF, AF + 1, AF + 4)
        self.rnd2(AF + 2, AF + 3, AF + 5)
        for k in range(4):
            A(f"v_mul_f32 v{AF+k}, v{AF+k}, v{DT+k}")
        A(f"v_cvt_pk_bf16_f32 v{AF+8}, v{AF}, v{AF+1}")
        A(f"v_cvt_pk_bf16_f32 v{AF+9}, v{AF+2}, v{AF+3}")
        A(f"v_min_u32 v{AF+8}, -2, v{AF+8}")
        A(f"v_min_u32 v{AF+9}, -2, v{AF+9}")
        A("s_mov_b64 exec, 0xffff")
        A(f"buffer_store_dwordx2 v[{AF+8}:{AF+9}], v{TMP+3}, s[84:87], s60 offen sc1")
        self.stamp(9)
        A("s_endpgm")

        L("L_tail_dn")
        A("s_cmp_eq_u32 s3, 0")
        A("s_cbranch_scc0 L_dn_hh")
        regs = [DAF + 4 * i for i in range(8)]
        pl = self.poll_head()
        for hg in range(8):
            if hg:
                A(f"s_add_u32 s54, s56, {hg*4096}")
                A(f"buffer_load_dwordx4 v[{regs[hg]}:{regs[hg]+3}], v15, s[84:87], s54 offen sc1")
            else:
                A(f"buffer_load_dwordx4 v[{regs[hg]}:{regs[hg]+3}], v15, s[84:87], s56 offen sc1")
        A("s_waitcnt vmcnt(0)")
        self.check_sent([r + k for r in regs for k in range(4)], DAF + 32)
        self.poll_tail(pl)
        self.unpack2(16, DAF + 32, DAF + 33)
        self.unpack2(17, DAF + 34, DAF + 35)
        self.unpack2(18, DAF + 36, DAF + 37)
        self.unpack2(19, DAF + 38, DAF + 39)
        self.sum8_x1(regs, DAF + 40, DAF + 32, DAF + 36, 22)
        A(f"v_cvt_pk_bf16_f32 v16, v{DAF+40}, v{DAF+41}")
        A(f"v_cvt_pk_bf16_f32 v17, v{DAF+42}, v{DAF+43}")
        L("L_dn_hh")
        pl = self.poll_head()
        for t in range(11):
            A(f"buffer_load_dwordx4 v[{DAF+4*t}:{DAF+4*t+3}], v12, s[16:19], s57 offen offset:{t*128} sc1")
        A("s_waitcnt vmcnt(0)")
        self.check_sent(range(DAF, DAF + 44), 22)
        self.poll_tail(pl)
        self.stamp(8)
        self.mfmas(DAF, DBF, DDT, 11, 2)
        self.d_to_lds(DDT, 2, 22, 23, VDW)
        A("s_waitcnt lgkmcnt(0)")
        A("s_barrier")
        A("s_cmp_eq_u32 s3, 0")
        A("s_cbranch_scc0 L_end")
        A("v_lshlrev_b32 v22, 8, v13")
        A("v_lshl_add_u32 v22, v14, 4, v22")
        F = DAF
        for j in range(4):
            A(f"ds_read_b128 v[{F+4*j}:{F+4*j+3}], v22 offset:{L_D + j*512}")
        self.unpack2(20, F + 16, F + 17)
        self.unpack2(21, F + 18, F + 19)
        self.unpack2(16, F + 20, F + 21)
        self.unpack2(17, F + 22, F + 23)
        A("v_lshlrev_b32 v23, 10, v13")
        A("v_lshl_add_u32 v23, v14, 3, v23")
        A("s_lshl_b32 s54, s59, 6")
        A("s_waitcnt lgkmcnt(0)")
        for k in range(4):
            A(f"v_add_f32 v{F+k}, v{F+k}, v{F+4+k}")
            A(f"v_add_f32 v{F+8+k}, v{F+8+k}, v{F+12+k}")
        for k in range(4):
            A(f"v_add_f32 v{F+k}, v{F+k}, v{F+8+k}")
        self.rnd2(F, F + 1, F + 4)
        self.rnd2(F + 2, F + 3, F + 5)
        for k in range(4):
            A(f"v_mul_f32 v{F+k}, v{F+k}, v{F+16+k}")
        self.rnd2(F, F + 1, F + 4)
        self.rnd2(F + 2, F + 3, F + 5)
        for k in range(4):
            A(f"v_add_f32 v{F+k}, v{F+k}, v{F+20+k}")
        A(f"v_cvt_pk_bf16_f32 v{F+8}, v{F}, v{F+1}")
        A(f"v_cvt_pk_bf16_f32 v{F+9}, v{F+2}, v{F+3}")
        A("s_mov_b64 exec, 0xffff")
        A(f"buffer_store_dwordx2 v[{F+8}:{F+9}], v23, s[72:75], s54 offen")
        self.stamp(9)
        A("s_endpgm")

    def d_sum(self, G, TT, t):
        A = self.A
        A(f"v_and_b32 v{t}, 1, v{G}")
        A(f"v_lshlrev_b32 v{t}, 8, v{t}")
        A(f"v_lshl_add_u32 v{t}, v{TT}, 4, v{t}")
        for j in range(4):
            A(f"ds_read_b128 v[{t+4+4*j}:{t+7+4*j}], v{t} offset:{L_D + j*512}")
        A("s_waitcnt lgkmcnt(0)")
        for k in range(4):
            A(f"v_add_f32 v{t+4+k}, v{t+4+k}, v{t+8+k}")
            A(f"v_add_f32 v{t+12+k}, v{t+12+k}, v{t+16+k}")
        for k in range(4):
            A(f"v_add_f32 v{t+4+k}, v{t+4+k}, v{t+12+k}")

    def sum8_x1(self, regs, X1, XV, GAV, t):
        A = self.A
        for a, b in ((0, 1), (2, 3), (4, 5), (6, 7), (0, 2), (4, 6)):
            for k in range(4):
                A(f"v_add_f32 v{regs[a]+k}, v{regs[a]+k}, v{regs[b]+k}")
        for k in range(4):
            A(f"v_add_f32 v{X1+k}, v{regs[0]+k}, v{regs[4]+k}")
        self.rnd2(X1, X1 + 1, t)
        self.rnd2(X1 + 2, X1 + 3, t + 1)
        for k in range(4):
            A(f"v_mul_f32 v{X1+k}, v{X1+k}, v{GAV+k}")
        self.rnd2(X1, X1 + 1, t)
        self.rnd2(X1 + 2, X1 + 3, t + 1)
        for k in range(4):
            A(f"v_add_f32 v{X1+k}, v{X1+k}, v{XV+k}")
        self.rnd2(X1, X1 + 1, t)
        self.rnd2(X1 + 2, X1 + 3, t + 1)

    def ln_norm(self, S1, S2, X, U0, U1):
        A = self.A
        A(f"s_mov_b32 s58, {f32(1.0/512)}")
        A(f"v_mul_f32 v{S1}, s58, v{S1}")
        A(f"v_mul_f32 v{S2}, s58, v{S2}")
        A(f"v_fma_f32 v{S2}, -v{S1}, v{S1}, v{S2}")
        A(f"v_max_f32 v{S2}, 0, v{S2}")
        self.rnd2(S1, S2, U0)
        A(f"v_add_f32 v{S2}, {f32(1e-5)}, v{S2}")
        self.rnd1(S2)
        A(f"v_sqrt_f32 v{S2}, v{S2}")
        for k in range(4):
            A(f"v_sub_f32 v{X+k}, v{X+k}, v{S1}")
        self.rnd1(S2)
        A(f"v_rcp_f32 v{S2}, v{S2}")
        self.rnd2(X, X + 1, U0)
        self.rnd2(X + 2, X + 3, U1)
        for k in range(4):
            A(f"v_mul_f32 v{X+k}, v{X+k}, v{S2}")
        self.rnd2(X, X + 1, U0)
        self.rnd2(X + 2, X + 3, U1)

    def modulate(self, N, T4, sp0, sp1, t0, w, VAW):
        A = self.A
        for k in range(4):
            A(f"v_mul_f32 v{N+k}, v{N+k}, v{T4+k}")
        self.rnd2(N, N + 1, t0)
        self.rnd2(N + 2, N + 3, t0 + 1)
        self.unpack2(sp0, w, w + 1)
        self.unpack2(sp1, w + 2, w + 3)
        for k in range(4):
            A(f"v_add_f32 v{N+k}, v{N+k}, v{w+k}")
        A(f"v_cvt_pk_bf16_f32 v{w+4}, v{N}, v{N+1}")
        A(f"v_cvt_pk_bf16_f32 v{w+5}, v{N+2}, v{N+3}")
        A(f"ds_write_b64 v{VAW}, v[{w+4}:{w+5}]")


HEADER = open("cdna_kernels/%s.s.ref" % NAME).read().split("; Override launch geometry")[0] if True else ""

if __name__ == "__main__":
    import argparse
    ap = argparse.ArgumentParser()
    ap.add_argument("-o", default="k.s")
    ap.add_argument("--R", type=int, default=3)
    ap.add_argument("--B", type=int, default=32)
    ap.add_argument("--stamps", action="store_true")
    ap.add_argument("--sleep", type=int, default=1)
    ap.add_argument("--NS", type=int, default=12)
    ap.add_argument("--R0", type=int, default=3)
    ap.add_argument("--grp", default="iod")
    ap.add_argument("--CP", type=int, default=0)
    ap.add_argument("--dbg", default="")
    ap.add_argument("--pace", type=int, default=0)
    ap.add_argument("--tpol", default="nt")
    ap.add_argument("--xmap", action="store_true")
    ap.add_argument("--flagq", action="store_true")
    ap.add_argument("--TH", type=int, default=480)
    ap.add_argument("--kvpol", default="nt")
    ap.add_argument("--rot", type=int, default=0)
    ap.add_argument("--ps1", type=int, default=1)
    ap.add_argument("--ps2", type=int, default=1)
    a = ap.parse_args()
    B = a.B
    if a.stamps and B > 32:
        B = 32
    g = Gen(R=a.R, B=B, stamps=a.stamps, sleep=a.sleep, NS=a.NS, R0=a.R0, grp=a.grp, CP=a.CP, dbg=a.dbg, pace=a.pace, tpol=a.tpol, xmap=a.xmap, flagq=a.flagq, ps1=a.ps1, ps2=a.ps2, TH=a.TH, kvpol=a.kvpol, rot=a.rot)
    open(a.o, "w").write(HEADER + g.build())
```

```python
import sys, struct

NAME = "adaLN_cond__mha_block_cached__glu_gated_swiglu__decode"

def f32(x):
    return "0x%08x" % struct.unpack("<I", struct.pack("<f", x))[0]

LOG2E = 1.4426950408889634
SCALE = 128 ** -0.5

MOD_OFF = 0x0000
Q_OFF = 0x8000
PART_OFF = 0x10000
ATT_OFF = 0x90000
HH_OFF = 0x98000
CNT_OFF = 0x9A000
CTR_OFF = 0x100000
WS_USED = 0x9C000
STAMP_OFF = 0x10000000
L_A = 0
L_D = L_A + 2048
L_ST = L_D + 2048
L_Q = L_ST + 64
L_Z = L_Q + 512
L_CNT = L_Z
L_QF = L_Z + 16
L_NEED = L_Z + 32
L_RL = L_Z + 256
L_ML = L_Z + 512
L_P = 5376
L_W = L_P + 16384
LDS_BYTES = L_W + 90112
assert L_ML + 128 <= L_P and L_P % 128 == 0

R_MOD0, R_Q0, R_WO0, R_WO1, R_UP0, R_UP1, R_DN0 = 0, 48, 112, 176, 192, 235, 240
SENT = 0xFFFFFFFF


class Gen:
    def __init__(self, R=3, B=32, stamps=False, NS=12, sleep=1, R0=3, grp='iod', CP=0, dbg='', pace=0, tpol='nt', xmap=False, flagq=False, ps1=1, ps2=1, TH=480, kvpol='nt', dry=False, pm=False, rot=0, H=1, cstr=4224, egw=0, px=33):
        self.o = []
        self.R, self.B, self.stamps, self.NS, self.sleep, self.R0, self.grp = R, B, stamps, NS, sleep, R0, grp
        self.uid = 0
        self.CP = CP
        self.dbg = dbg
        self.px = px
        self.egw = egw
        self.cstr = cstr
        self.H = H
        self.rot = rot
        self.pm = pm
        self.dry = dry
        self.kvpol = kvpol
        self.TH = TH
        self.ps1, self.ps2 = ps1, ps2
        self.pace, self.tpol, self.xmap, self.flagq = pace, tpol, xmap, flagq

    def A(self, s):
        self.o.append("    " + s)

    def L(self, s):
        self.o.append(s + ":")

    def lab(self, p):
        self.uid += 1
        return f"L_{p}_{self.uid}"

    def nop(self, n):
        while n > 0:
            k = min(n, 16)
            self.A(f"s_nop {k-1}")
            n -= k

    def srd(self, d, b, nbytes):
        self.A(f"s_mov_b32 s{d}, s{b}")
        self.A(f"s_mov_b32 s{d+1}, s{b+1}")
        self.A(f"s_mov_b32 s{d+2}, {nbytes}")
        self.A(f"s_mov_b32 s{d+3}, 0x20000")

    def stamp(self, idx, src=None, wave=False):
        if not self.stamps:
            return
        A = self.A
        if src is None:
            A("s_memrealtime s[90:91]")
        else:
            A(f"s_mov_b64 s[90:91], {src}")
        A("s_mov_b64 s[92:93], exec")
        A("s_mov_b64 exec, 1")
        A("s_lshl_b32 s94, s2, 9")
        if wave:
            A("s_lshl_b32 s95, s3, 5")
            A("s_add_u32 s94, s94, s95")
        A(f"s_add_u32 s94, s94, {STAMP_OFF + idx*8}")
        A("s_waitcnt lgkmcnt(0)")
        A("v_mov_b32 v166, s90")
        A("v_mov_b32 v167, s91")
        A("buffer_store_dwordx2 v[166:167], off, s[84:87], s94")
        A("s_mov_b64 exec, s[92:93]")

    def rnd2(self, a, b, t):
        self.A(f"v_cvt_pk_bf16_f32 v{t}, v{a}, v{b}")
        self.A(f"v_lshlrev_b32 v{a}, 16, v{t}")
        self.A(f"v_and_b32 v{b}, 0xffff0000, v{t}")

    def rnd1(self, a):
        self.A(f"v_cvt_pk_bf16_f32 v{a}, v{a}, v{a}")
        self.A(f"v_and_b32 v{a}, 0xffff0000, v{a}")

    def unpack2(self, src, lo, hi):
        self.A(f"v_lshlrev_b32 v{lo}, 16, v{src}")
        self.A(f"v_and_b32 v{hi}, 0xffff0000, v{src}")

    def allred32(self, regs, tmps):
        A = self.A
        for rot in (8, 4, 2, 1):
            self.nop(2 if len(regs) < 2 else max(0, 2 - (len(regs) - 1)))
            for r in regs:
                A(f"v_add_f32_dpp v{r}, v{r}, v{r} row_ror:{rot} row_mask:0xf bank_mask:0xf")
        for r, t in zip(regs, tmps):
            A(f"v_mov_b32 v{t}, v{r}")
        self.nop(2)
        for r, t in zip(regs, tmps):
            A(f"v_permlane16_swap_b32 v{r}, v{t}")
        self.nop(1)
        for r, t in zip(regs, tmps):
            A(f"v_add_f32 v{r}, v{r}, v{t}")

    def slice_of(self, dst, r0, n):
        A = self.A
        A(f"s_sub_u32 s{dst}, s89, {r0}")
        if not self.xmap:
            return
        q, rem = divmod(n, 8)
        A(f"s_and_b32 s68, s{dst}, 7")
        A(f"s_lshr_b32 s{dst}, s{dst}, 3")
        A(f"s_min_u32 s69, s68, {rem}")
        A(f"s_mul_i32 s68, s68, {q}")
        A(f"s_add_u32 s{dst}, s{dst}, s68")
        A(f"s_add_u32 s{dst}, s{dst}, s69")

    def bar(self):
        if not self.dry:
            self.A("s_barrier")
            return
        l = self.lab("nb")
        self.A("s_cmp_eq_u32 s69, 0")
        self.A(f"s_cbranch_scc0 {l}")
        self.A("s_barrier")
        self.L(l)

    def poll_head(self):
        l = self.lab("poll")
        self.L(l)
        return l

    def poll_tail(self, l, sleep=None):
        A = self.A
        d = self.lab("pdone")
        A(f"s_cbranch_vccz {d}")
        A("s_cmp_eq_u32 s88, 0")
        A(f"s_cbranch_scc1 {d}")
        A("s_sub_u32 s88, s88, 1")
        if (self.sleep if sleep is None else sleep):
            A(f"s_sleep {self.sleep if sleep is None else sleep}")
        A(f"s_branch {l}")
        self.L(d)

    def poll_multi(self, loads, t):
        A, L = self.A, self.L
        n = len(loads)
        if not self.pm:
            pl = self.poll_head()
            for lines, regs in loads:
                for x in lines:
                    A(x)
            A("s_waitcnt vmcnt(0)")
            self.check_sent([r for lines, regs in loads for r in regs], t)
            self.poll_tail(pl)
            return
        A(f"s_mov_b32 s95, {(1 << n) - 1}")
        first = True
        top = self.lab("mp")
        done = self.lab("mpd")
        for lines, regs in loads:
            for x in lines:
                A(x)
        chk = self.lab("mpc")
        A(f"s_branch {chk}")
        L(top)
        for r, (lines, regs) in enumerate(loads):
            sk = self.lab("mps")
            A(f"s_bitcmp1_b32 s95, {r}")
            A(f"s_cbranch_scc0 {sk}")
            for x in lines:
                A(x)
            L(sk)
        L(chk)
        A("s_waitcnt vmcnt(0)")
        for r, (lines, regs) in enumerate(loads):
            sk = self.lab("mpk")
            A(f"s_bitcmp1_b32 s95, {r}")
            A(f"s_cbranch_scc0 {sk}")
            self.check_sent(regs, t)
            A(f"s_cbranch_vccnz {sk}")
            A(f"s_bitset0_b32 s95, {r}")
            L(sk)
        A("s_cmp_eq_u32 s95, 0")
        A(f"s_cbranch_scc1 {done}")
        A("s_cmp_eq_u32 s88, 0")
        A(f"s_cbranch_scc1 {done}")
        A("s_sub_u32 s88, s88, 1")
        if self.sleep:
            A(f"s_sleep {self.sleep}")
        A(f"s_branch {top}")
        L(done)

    def check_sent(self, regs, t):
        A = self.A
        regs = list(regs)
        if len(regs) >= 3:
            A(f"v_max3_u32 v{t}, v{regs[0]}, v{regs[1]}, v{regs[2]}")
            regs = regs[3:]
        else:
            A(f"v_max_u32 v{t}, v{regs[0]}, v{regs[1]}")
            regs = regs[2:]
        while len(regs) >= 2:
            A(f"v_max3_u32 v{t}, v{t}, v{regs[0]}, v{regs[1]}")
            regs = regs[2:]
        if regs:
            A(f"v_max_u32 v{t}, v{t}, v{regs[0]}")
        A(f"v_cmp_eq_u32 vcc, -1, v{t}")

    def check_tags(self, regs, t):
        A = self.A
        A(f"v_xor_b32 v{t}, s80, v{regs[0]}")
        for r in regs[1:]:
            A(f"v_xor_b32 v{t+1}, s80, v{r}")
            A(f"v_or_b32 v{t}, v{t}, v{t+1}")
        A(f"v_cmp_ne_u32 vcc, 0, v{t}")

    def dma_weights(self, srd, nins, voff, row_step_bytes, lds_base_s, soff0=0, pol="nt", skip=""):
        A = self.A
        if "notaildma" in self.dbg and getattr(self, "intail", False):
            return
        if "noprodma" in self.dbg and not getattr(self, "intail", False):
            nins = 16
            A(f"s_mov_b32 s{srd+2}, 0")
        A(f"s_mov_b32 s70, {soff0}")
        A(f"s_add_u32 s71, s{lds_base_s}, {L_W}")
        intail = getattr(self, "intail", False)
        if intail:
            pol = self.tpol
            if skip and skip in self.dbg:
                return
        for i in range(nins):
            if intail and self.pace and i >= self.pace:
                A(f"s_waitcnt vmcnt({self.pace-1})")
            A("s_mov_b32 m0, s71")
            A(f"s_add_u32 s71, s71, 1024")
            A(f"buffer_load_dwordx4 v{voff}, s[{srd}:{srd+3}], s70 offen {pol} lds")
            A(f"s_add_u32 s70, s70, {row_step_bytes}")

    def tr_reads(self, vaddr, breg, nk, cgs, rowb):
        for t in range(nk):
            for ci, cgoff in enumerate(cgs):
                r = breg + (t * len(cgs) + ci) * 4
                off = t * 32 * rowb + cgoff
                self.A(f"ds_read_b64_tr_b16 v[{r}:{r+1}], v{vaddr} offset:{off}")
                self.A(f"ds_read_b64_tr_b16 v[{r+2}:{r+3}], v{vaddr} offset:{off + 4*rowb}")

    def mfmas(self, areg, breg, dreg, nk, ncg):
        for t in range(nk):
            for c in range(ncg):
                a = areg + 4 * t
                b = breg + (t * ncg + c) * 4
                d = dreg + 4 * c
                src = "0" if t == 0 else f"v[{d}:{d+3}]"
                self.A(f"v_mfma_f32_16x16x32_bf16 v[{d}:{d+3}], v[{a}:{a+3}], v[{b}:{b+3}], {src}")

    def d_to_lds(self, dreg, ncg, x0, x1, vaddr):
        A = self.A
        self.nop(8)
        for c in range(ncg):
            A(f"v_mov_b32_dpp v{x0}, v{dreg+4*c} quad_perm:[0,1,2,3] row_mask:{1<<c:#x} bank_mask:0xf")
            A(f"v_mov_b32_dpp v{x1}, v{dreg+4*c+1} quad_perm:[0,1,2,3] row_mask:{1<<c:#x} bank_mask:0xf")
        A(f"ds_write_b32 v{vaddr}, v{x0}")
        A(f"ds_write_b32 v{vaddr}, v{x1} offset:256")

    def a_frags_from_stage(self, vaddr, areg):
        for t in range(4):
            self.A(f"ds_read_b128 v[{areg+4*t}:{areg+4*t+3}], v{vaddr} offset:{t*64}")

    def build(self):
        A, L = self.A, self.L
        o = self.o
        o.append(f"; @launch grid=(256,1,1) block=(768,1,1) lds={LDS_BYTES}")
        o.append('.amdgcn_target "amdgcn-amd-amdhsa--gfx950"')
        o.append(".text")
        o.append(f".globl {NAME}_kernel")
        o.append(".p2align 8")
        o.append(f".type {NAME}_kernel,@function")
        L(f"{NAME}_kernel")
        if self.stamps:
            A("s_memrealtime s[100:101]")
        A("s_cmp_ge_u32 s2, 256")
        A("s_cbranch_scc1 L_end")
        A("s_load_dwordx4 s[4:7], s[0:1], 8")
        A("s_load_dwordx4 s[96:99], s[0:1], 96")
        A("v_lshrrev_b32 v1, 6, v0")
        A("v_and_b32 v2, 63, v0")
        A("v_readfirstlane_b32 s3, v1")
        if self.grp == "pair":
            A("s_and_b32 s40, s2, 7")
            A("s_lshr_b32 s40, s40, 1")
            A("s_lshr_b32 s43, s2, 4")
            A("s_lshl_b32 s43, s43, 2")
            A("s_add_u32 s40, s40, s43")
            A("s_and_b32 s41, s2, 1")
            A("s_lshr_b32 s43, s2, 3")
            A("s_and_b32 s43, s43, 1")
            A("s_lshl_b32 s43, s43, 1")
            A("s_add_u32 s41, s41, s43")
        else:
            A("s_lshr_b32 s41, s2, 1")
            A("s_xor_b32 s40, s41, s2")
            A("s_and_b32 s40, s40, 1")
            A("s_and_b32 s41, s41, 3")
            A("s_lshr_b32 s43, s2, 3")
            A("s_lshl_b32 s43, s43, 1")
            A("s_add_u32 s40, s40, s43")
        A("s_lshr_b32 s89, s40, 1")
        A("s_add_u32 s89, s89, s41")
        A("s_and_b32 s89, s89, 3")
        A("s_lshl_b32 s89, s89, 6")
        A("s_add_u32 s89, s89, s40")
        A("s_cmp_ge_u32 s3, 8")
        A("s_cbranch_scc1 L_helper")
        self.streamer()
        L("L_helper")
        self.helper()
        L("L_end")
        A("s_endpgm")
        o.append('.section .rodata,"a"')
        o.append(".p2align 6")
        o.append(f".amdhsa_kernel {NAME}_kernel")
        o.append("  .amdhsa_next_free_vgpr 168")
        o.append("  .amdhsa_next_free_sgpr 102")
        o.append("  .amdhsa_accum_offset 168")
        o.append("  .amdhsa_group_segment_fixed_size 0")
        o.append("  .amdhsa_kernarg_size 112")
        o.append("  .amdhsa_user_sgpr_count 2")
        o.append("  .amdhsa_user_sgpr_kernarg_segment_ptr 1")
        o.append("  .amdhsa_system_sgpr_workgroup_id_x 1")
        o.append(".end_amdhsa_kernel")
        return "\n".join(o) + "\n"

    def streamer(self):
        A, L = self.A, self.L
        R, B, NS, R0 = self.R, self.B, self.NS, self.R0
        VOFF, QF, MK, D, M, MN, LS = 1, 2, 6, 10, 14, 15, 16
        AC, T0, T1, S, PP = 17, 21, 22, 23, 24
        AS = 26
        LANE = 34
        EP, CLM = 35, 25
        RING = 168 - 4 * B - (2 if self.stamps else 0)
        RING -= RING % 2
        assert RING >= 36
        A(f"v_mov_b32 v{LANE}, v2")
        A("s_lshl_b32 s44, s41, 3")
        A("s_add_u32 s44, s44, s3")
        A("s_lshl_b32 s44, s44, 12")
        A(f"s_mul_i32 s45, s40, {self.rot}")
        A("s_lshl_b32 s45, s45, 15")
        A("s_add_u32 s44, s44, s45")
        A("s_lshl_b32 s33, s40, 21")
        A(f"v_lshlrev_b32 v{VOFF}, 4, v2")
        A("s_waitcnt lgkmcnt(0)")
        self.srd(8, 4, 0x8000000)
        self.srd(12, 6, 0x8000000)
        N = (NS - 1) * 8 + R
        NC = (NS - 1) * 8

        def issue(p):
            i, j = divmod(p, 8)
            t, j = divmod(j, 4)
            r = RING + 4 * (p % B)
            srd = "s[8:11]" if t == 0 else "s[12:15]"
            if j == 0 and t == 0:
                A(f"s_add_u32 s16, s44, {i * 32 * 4096}")
                A("s_and_b32 s16, s16, 0x1fffff")
                A("s_add_u32 s16, s16, s33")
                if self.stamps and i < 12:
                    A(f"s_memrealtime s[{48+2*i}:{49+2*i}]")
            A(f"buffer_load_dwordx4 v[{r}:{r+3}], v{VOFF}, {srd}, s16 offen offset:{j*1024} {self.kvpol}")

        for p in range(R0):
            issue(p)
        if self.stamps:
            A("s_memrealtime s[30:31]")
        self.srd(84, 98, 0x20000000)
        A("s_barrier")
        if self.H == 2:
            A(f"s_xor_b32 s43, s40, {self.px}")
            A("s_min_u32 s43, s43, s40")
            A(f"s_xor_b32 s39, s43, {self.px}")
            A("s_lshl_b32 s39, s39, 21")
        else:
            A("s_mov_b32 s43, s40")
        A("s_lshl_b32 s45, s43, 3")
        A("s_add_u32 s45, s45, s3")
        A(f"s_mul_i32 s45, s45, {self.cstr}")
        A(f"s_add_u32 s45, s45, {CTR_OFF}")
        A("s_lshl_b32 s42, s3, 12")
        A(f"s_mul_i32 s38, s43, {self.rot}")
        A("s_lshl_b32 s38, s38, 15")
        A("s_add_u32 s42, s42, s38")
        A("s_lshl_b32 s43, s43, 21")
        if self.H == 2:
            A("s_lshr_b32 s32, s40, 5")
        else:
            A("s_mov_b32 s32, 0")
        A("s_mov_b32 s28, s32")
        A("s_mov_b32 s29, s32")
        A("s_add_u32 s26, s98, s45")
        A("s_addc_u32 s27, s99, 0")
        A(f"v_and_b32 v{T0}, 15, v{LANE}")
        A(f"v_and_b32 v{T1}, 1, v{LANE}")
        A(f"v_lshlrev_b32 v{T1}, 4, v{T1}")
        A(f"s_mov_b32 s17, 0xffff")
        A(f"v_mov_b32 v{S}, s17")
        A(f"v_lshlrev_b32 v{T1}, v{T1}, v{S}")
        A(f"v_lshrrev_b32 v{T0}, 1, v{T0}")
        for k in range(4):
            A(f"v_cmp_eq_u32 vcc, {k}, v{T0}")
            self.nop(2)
            A(f"v_cndmask_b32 v{MK+k}, 0, v{T1}, vcc")
        for k in range(4):
            A(f"v_mov_b32 v{D+k}, 0")
        A(f"v_mov_b32 v{M}, {f32(-3.0e38)}")
        A(f"v_mov_b32 v{MN}, 0")
        A(f"v_mov_b32 v{LS}, 0")
        A(f"v_and_b32 v35, 15, v{LANE}")
        A(f"v_lshlrev_b32 v35, 5, v35")
        A(f"v_lshrrev_b32 v{T1}, 4, v{LANE}")
        A(f"v_and_b32 v{S}, 1, v{T1}")
        A(f"v_lshl_add_u32 v35, v{S}, 4, v35")
        A(f"v_lshrrev_b32 v{T1}, 1, v{T1}")
        A(f"v_lshl_add_u32 v35, v{T1}, 9, v35")
        A("s_lshl_b32 s20, s3, 10")
        A(f"v_add_u32 v35, s20, v35")
        A("s_lshl_b32 s20, s3, 3")
        A(f"v_mov_b32 v25, s20")
        A(f"s_mov_b32 s18, {f32(SCALE)}")
        A(f"s_mov_b32 s19, {f32(LOG2E)}")
        for p in range(R0, B):
            A(f"s_waitcnt vmcnt({R0-1 if p < 8 else R-1})")
            issue(p)
        self.stamp(1)
        self.stamp(11, "s[100:101]")
        self.stamp(12, "s[30:31]")
        A(f"v_and_b32 v{T0}, 15, v{LANE}")
        A(f"v_lshlrev_b32 v{T0}, 4, v{T0}")
        A("s_lshl_b32 s20, s32, 8")
        A(f"v_add_u32 v{T0}, s20, v{T0}")
        if not self.flagq:
            A("s_barrier")
            A(f"ds_read_b128 v[{QF}:{QF+3}], v{T0} offset:{L_Q}")
            A("s_waitcnt lgkmcnt(0)")
        else:
            A(f"v_mov_b32 v{T1}, 0")
            A("s_mov_b32 s88, 0x400000")
            pl = self.poll_head()
            A(f"ds_read_b32 v{AS}, v{T1} offset:{L_QF}")
            A(f"ds_read_b128 v[{QF}:{QF+3}], v{T0} offset:{L_Q}")
            A("s_waitcnt lgkmcnt(0)")
            A(f"v_cmp_eq_u32 vcc, 0, v{AS}")
            self.poll_tail(pl, sleep=1)
        if self.stamps:
            A("s_waitcnt vmcnt(0)")
        beta = [0, 2, 1, 3]
        st = {"I": B, "landed": (B if self.stamps else B - R)}

        def need(c):
            if c >= st["landed"]:
                A(f"s_waitcnt vmcnt({st['I'] - 1 - c})")
                st["landed"] = c + 1

        def paced_issue():
            I = st["I"]
            if I >= N:
                return
            if I - st["landed"] >= R:
                A(f"s_waitcnt vmcnt({R-1})")
                st["landed"] = I - (R - 1)
            issue(I)
            st["I"] = I + 1

        def consume(c):
            i, j = divmod(c, 8)
            t, j = divmod(j, 4)
            r = RING + 4 * (c % B)
            need(c)
            if "nocomp" in self.dbg:
                A(f"v_xor_b32 v{AC}, v{AC}, v{r}")
            elif t == 0:
                A(f"v_dot2_f32_bf16 v{AC+j}, v{r}, v{QF}, 0")
                for k in range(1, 4):
                    A(f"v_dot2_f32_bf16 v{AC+j}, v{r+k}, v{QF+k}, v{AC+j}")
            else:
                a = AS + 4 * (j & 1)
                for k in range(4):
                    A(f"v_and_b32_dpp v{a+k}, v{PP}, v{MK+k} row_newbcast:{4*beta[j]} row_mask:0xf bank_mask:0xf")
                self.nop(2)
                A(f"v_mfma_f32_16x16x32_bf16 v[{D}:{D+3}], v[{a}:{a+3}], v[{r}:{r+3}], v[{D}:{D+3}]")

        def softmax():
            if "nocomp" in self.dbg:
                return
            self.nop(3)
            A(f"v_add_f32_dpp v{T0}, v{AC}, v{AC} row_ror:8 row_mask:0xf bank_mask:0x3")
            A(f"v_add_f32_dpp v{T1}, v{AC+2}, v{AC+2} row_ror:8 row_mask:0xf bank_mask:0x3")
            A(f"v_add_f32_dpp v{T0}, v{AC+1}, v{AC+1} row_ror:8 row_mask:0xf bank_mask:0xc")
            A(f"v_add_f32_dpp v{T1}, v{AC+3}, v{AC+3} row_ror:8 row_mask:0xf bank_mask:0xc")
            self.nop(1)
            A(f"v_add_f32_dpp v{S}, v{T0}, v{T0} row_shl:4 row_mask:0xf bank_mask:0x5")
            A(f"v_add_f32_dpp v{S}, v{T1}, v{T1} row_shr:4 row_mask:0xf bank_mask:0xa")
            self.nop(2)
            A(f"v_add_f32_dpp v{S}, v{S}, v{S} quad_perm:[2,3,0,1] row_mask:0xf bank_mask:0xf")
            self.nop(2)
            A(f"v_add_f32_dpp v{S}, v{S}, v{S} quad_perm:[1,0,3,2] row_mask:0xf bank_mask:0xf")
            self.rnd1(S)
            A(f"v_mul_f32 v{S}, s18, v{S}")
            self.rnd1(S)
            A(f"v_cmp_gt_f32 vcc, v{S}, v{M}")
            bk = self.lab("back")
            A(f"s_cbranch_vccz {bk}")
            A("s_call_b64 s[46:47], L_rare")
            L(bk)
            A(f"v_fma_f32 v{T0}, v{S}, s19, v{MN}")
            A(f"v_exp_f32 v{T0}, v{T0}")
            self.nop(1)
            A(f"v_add_f32 v{LS}, v{LS}, v{T0}")
            A(f"v_cvt_pk_bf16_f32 v{PP}, v{T0}, v{T0}")
            self.nop(2)

        c = 0
        while c < NC:
            lag = st["I"] - c
            ncons = 2 if lag > R + 1 else 1
            if st["I"] < N and st["I"] - B < c and lag <= R:
                paced_issue()
            for _ in range(ncons):
                if c >= NC:
                    break
                consume(c)
                c += 1
                if c % 8 == 4:
                    softmax()
            if st["I"] < N and st["I"] - B < c and (st["I"] - c) > R:
                paced_issue()
        assert st["I"] == N, (st, N)
        base = (NS - 1) * 8
        alt = (base + 8) % B
        st["landed"] = 1 << 30

        def ld(pos, sl, soff):
            t, jl = divmod(pos, 4)
            r = RING + 4 * (sl % B)
            srd = "s[8:11]" if t == 0 else "s[12:15]"
            A(f"buffer_load_dwordx4 v[{r}:{r+3}], v{VOFF}, {srd}, {soff} offen offset:{jl*1024} {self.kvpol}")

        CP = self.CP

        def claim():
            if "fake" in self.dbg:
                A("s_add_u32 s39, s39, 4")
                A("s_mov_b32 s24, s39")
                if "fakeld" in self.dbg:
                    A("s_load_dword s38, s[26:27], 0 glc")
                if "fakeat" in self.dbg:
                    A("s_mov_b32 s38, 1")
                    A("s_atomic_add s38, s[26:27], 0 glc")
                return
            A("s_mov_b32 s24, 1")
            A("s_atomic_add s24, s[26:27], 0 glc")

        def eat(sl, j_from, younger):
            for j in range(j_from, 8):
                A(f"s_waitcnt vmcnt({younger + 7 - j})")
                consume(sl + j)
                if j == 3:
                    softmax()

        CX = RING + 4 * ((base + 16) % B)
        ACT = [QF, QF + 1, QF + 2, QF + 3, D, D + 1, D + 2, D + 3, M, MN, LS]
        SAV = [CX + k for k in range(11)]
        self.ctx = (ACT, SAV)
        if self.H == 2:
            A(f"v_and_b32 v{T0}, 15, v{LANE}")
            A(f"v_lshlrev_b32 v{T0}, 4, v{T0}")
            A("s_xor_b32 s20, s32, 1")
            A("s_lshl_b32 s20, s20, 8")
            A(f"v_add_u32 v{T0}, s20, v{T0}")
            A(f"ds_read_b128 v[{CX}:{CX+3}], v{T0} offset:{L_Q}")
            for k in range(4, 8):
                A(f"v_mov_b32 v{CX+k}, 0")
            A(f"v_mov_b32 v{CX+8}, {f32(-3.0e38)}")
            A(f"v_mov_b32 v{CX+9}, 0")
            A(f"v_mov_b32 v{CX+10}, 0")

        def decode(dst, hd, src=24):
            if self.H == 1:
                A(f"s_lshl_b32 s{dst}, s{src}, 15")
                A(f"s_add_u32 s{dst}, s{dst}, s42")
                if self.rot:
                    A(f"s_and_b32 s{dst}, s{dst}, 0x1fffff")
                A(f"s_add_u32 s{dst}, s{dst}, s43")
                return
            A(f"s_and_b32 s{hd}, s{src}, 1")
            A(f"s_lshr_b32 s{dst}, s{src}, 1")
            A(f"s_lshl_b32 s{dst}, s{dst}, 15")
            A(f"s_add_u32 s{dst}, s{dst}, s42")
            A(f"s_mul_i32 s21, s{hd}, {((32 * self.rot) & 63) << 15}")
            A(f"s_add_u32 s{dst}, s{dst}, s21")
            A(f"s_and_b32 s{dst}, s{dst}, 0x1fffff")
            A(f"s_lshl_b32 s21, s{hd}, 26")
            A(f"s_add_u32 s{dst}, s{dst}, s21")
            A(f"s_add_u32 s{dst}, s{dst}, s43")

        def switch(hd):
            if self.H == 1:
                return
            l = self.lab("nosw")
            A(f"s_cmp_eq_u32 s32, s{hd}")
            A(f"s_cbranch_scc1 {l}")
            A("s_call_b64 s[46:47], L_swap")
            L(l)

        if self.stamps:
            A("s_mov_b32 s78, 0")
            A("s_mov_b32 s79, 0")
        j0 = 8 - R
        assert CP < j0
        RLA, RLV, NDV, ZA = CX + 12, CX + 13, CX + 14, CX + 15
        END = 64 * self.H + 1
        A(f"v_mov_b32 v{RLA}, 0")
        A(f"v_mov_b32 v{ZA}, 0")
        A(f"v_mov_b32 v{NDV}, 1")
        A(f"ds_max_u32 v{ZA}, v{NDV} offset:{L_NEED}")
        if self.H == 1:
            A("s_sub_u32 s42, s42, 0x8000")
            A("s_add_u32 s42, s42, s43")
        else:
            A("s_add_u32 s43, s43, s42")
            A("s_add_u32 s39, s39, s42")

        def rl_read():
            A(f"ds_read_b32 v{RLV}, v{RLA} offset:{L_RL}")

        def rl_get():
            got = self.lab("got")
            A("s_waitcnt lgkmcnt(0)")
            A(f"v_readfirstlane_b32 s24, v{RLV}")
            A("s_cmp_lg_u32 s24, 0")
            A(f"s_cbranch_scc1 {got}")
            A("s_call_b64 s[46:47], L_rlspin")
            L(got)

        def rl_next(dst, hd):
            A(f"v_add_u32 v{NDV}, 1, v{NDV}")
            A(f"v_add_u32 v{RLA}, 4, v{RLA}")
            A(f"ds_max_u32 v{ZA}, v{NDV} offset:{L_NEED}")
            if self.H == 1:
                A(f"s_lshl_b32 s{dst}, s24, 15")
                A(f"s_add_u32 s{dst}, s{dst}, s42")
            else:
                A("s_sub_u32 s24, s24, 1")
                A(f"s_and_b32 s{hd}, s24, 1")
                A("s_cselect_b32 s21, s39, s43")
                A(f"s_lshr_b32 s{dst}, s24, 1")
                A(f"s_lshl_b32 s{dst}, s{dst}, 15")
                A(f"s_add_u32 s{dst}, s{dst}, s21")

        L("L_dyn")
        if self.stamps:
            A("s_add_u32 s78, s78, 1")
        switch(28)
        for j in range(8):
            if j == j0 - 1:
                rl_read()
            if j == j0:
                if self.stamps:
                    A("s_memrealtime s[34:35]")
                rl_get()
                if self.stamps:
                    A("s_mov_b32 m0, s78")
                    A("v_writelane_b32 v36, s34, m0")
                    A("s_add_u32 m0, s78, 32")
                    A("s_sub_u32 s35, s24, 1")
                    A("v_writelane_b32 v36, s35, m0")
                A(f"s_cmp_ge_u32 s24, {self.TH * self.H // 8 + 1}")
                A("s_cbranch_scc1 L_fin")
                rl_next(16, 28)
            A(f"s_waitcnt vmcnt({R-1})")
            jj = j + R
            ld(jj % 8, base + jj % 8, "s16")
            consume(base + j)
            if j == 3:
                softmax()
        A("s_branch L_dyn")
        L("L_rlspin")
        pl = self.poll_head()
        rl_read()
        A("s_waitcnt lgkmcnt(0)")
        A(f"v_cmp_eq_u32 vcc, 0, v{RLV}")
        self.poll_tail(pl, sleep=1)
        A(f"v_readfirstlane_b32 s24, v{RLV}")
        A("s_cmp_eq_u32 s24, 0")
        A(f"s_cselect_b32 s24, {END}, s24")
        A("s_setpc_b64 s[46:47]")
        L("L_fin")
        if self.stamps:
            A("s_memrealtime s[76:77]")
        if self.TH < 512:
            A(f"s_cmp_ge_u32 s24, {END}")
            A("s_cbranch_scc1 L_fin_last")
            rl_next(25, 29)
            for jj in range(8):
                ld(jj, alt + jj, "s25")
            eat(base, j0, 8)
            for (P, Q, hp, hq, me) in ((alt, base, 29, 28, "A"), (base, alt, 28, 29, "B")):
                L(f"L_eg{me}")
                if self.egw:
                    A(f"s_waitcnt vmcnt({8 - self.egw})")
                rl_read()
                rl_get()
                A(f"s_cmp_ge_u32 s24, {END}")
                A(f"s_cbranch_scc1 L_drain{me}")
                rl_next(25, hq)
                for jj in range(8):
                    ld(jj, Q + jj, "s25")
                switch(hp)
                eat(P, 0, 8)
                if me == "B":
                    A("s_branch L_egA")
            L("L_drainA")
            switch(29)
            eat(alt, 0, 0)
            A("s_branch L_done")
            L("L_drainB")
            switch(28)
            eat(base, 0, 0)
            A("s_branch L_done")
            L("L_fin_last")
        eat(base, j0, 0)
        L("L_done")
        self.stamp(2)
        if self.stamps:
            A("s_lshl_b32 s36, s2, 11")
            A("s_lshl_b32 s37, s3, 8")
            A("s_add_u32 s36, s36, s37")
            A(f"s_add_u32 s36, s36, {STAMP_OFF + 0x40000}")
            A(f"v_lshlrev_b32 v37, 2, v{LANE}")
            A("buffer_store_dword v36, v37, s[84:87], s36 offen")
        self.stamp(32, wave=True)
        self.stamp(33, "s[76:77]", wave=True)
        self.stamp(34, "s[78:79]", wave=True)
        if self.stamps:
            A("s_cmp_eq_u32 s3, 0")
            A("s_cbranch_scc0 L_noprof")
            for i in range(min(NS, 12)):
                self.stamp(16 + i, f"s[{48+2*i}:{49+2*i}]")
            self.stamp(16 + 14)
            L("L_noprof")
        if self.H == 1:
            for ctl, msk in (("row_ror:4", "0xf"), ("row_ror:8", "0xf"), ("row_bcast:15", "0xa"), ("row_bcast:31", "0xc")):
                A(f"v_add_f32_dpp v{LS}, v{LS}, v{LS} {ctl} row_mask:{msk} bank_mask:0xf")
                self.nop(2)
            A(f"ds_write_b128 v35, v[{D}:{D+3}] offset:{L_P}")
            A(f"v_mov_b32 v{MN}, v{LS}")
            A("s_mov_b32 exec_lo, 0")
            A("s_mov_b32 exec_hi, 0x80000000")
            A(f"ds_write_b64 v25, v[{M}:{M+1}] offset:{L_ML}")
            A("s_waitcnt lgkmcnt(0)")
            A("s_barrier")
            A("s_endpgm")
        else:
            LS2, M2, D2 = CX + 10, CX + 8, CX + 4
            for ctl, msk in (("row_ror:4", "0xf"), ("row_ror:8", "0xf"), ("row_bcast:15", "0xa"), ("row_bcast:31", "0xc")):
                A(f"v_add_f32_dpp v{LS}, v{LS}, v{LS} {ctl} row_mask:{msk} bank_mask:0xf")
                A(f"v_add_f32_dpp v{LS2}, v{LS2}, v{LS2} {ctl} row_mask:{msk} bank_mask:0xf")
                self.nop(1)
            A("s_lshl_b32 s20, s32, 13")
            A("s_xor_b32 s21, s20, 8192")
            A(f"v_add_u32 v{T0}, s20, v35")
            A(f"v_add_u32 v{T1}, s21, v35")
            A(f"ds_write_b128 v{T0}, v[{D}:{D+3}] offset:{L_P}")
            A(f"ds_write_b128 v{T1}, v[{D2}:{D2+3}] offset:{L_P}")
            A(f"v_mov_b32 v{MN}, v{LS}")
            A(f"v_mov_b32 v{M2+1}, v{LS2}")
            A("s_lshl_b32 s20, s32, 6")
            A("s_xor_b32 s21, s20, 64")
            A(f"v_add_u32 v{T0}, s20, v25")
            A(f"v_add_u32 v{T1}, s21, v25")
            A("s_mov_b32 exec_lo, 0")
            A("s_mov_b32 exec_hi, 0x80000000")
            A(f"ds_write_b64 v{T0}, v[{M}:{M+1}] offset:{L_ML}")
            A(f"ds_write_b64 v{T1}, v[{M2}:{M2+1}] offset:{L_ML}")
            A("s_waitcnt lgkmcnt(0)")
            A("s_barrier")
            A("s_endpgm")
            L("L_swap")
            self.nop(8)
            for a, b in zip(ACT, SAV):
                A(f"v_swap_b32 v{a}, v{b}")
            A("s_xor_b32 s32, s32, 1")
            A("s_setpc_b64 s[46:47]")

        L("L_rare")
        A(f"v_max_f32_dpp v{T0}, v{S}, v{S} row_ror:4 row_mask:0xf bank_mask:0xf")
        self.nop(2)
        A(f"v_max_f32_dpp v{T0}, v{T0}, v{T0} row_ror:8 row_mask:0xf bank_mask:0xf")
        self.nop(1)
        A(f"v_readlane_b32 s20, v{T0}, 0")
        A(f"v_readlane_b32 s21, v{T0}, 16")
        A(f"v_readlane_b32 s22, v{T0}, 32")
        A(f"v_readlane_b32 s23, v{T0}, 48")
        A(f"v_max_f32 v{T1}, s20, v{M}")
        A(f"v_max_f32 v{T1}, s21, v{T1}")
        A(f"v_max_f32 v{T1}, s22, v{T1}")
        A(f"v_max_f32 v{T1}, s23, v{T1}")
        A(f"v_sub_f32 v{T0}, v{M}, v{T1}")
        A(f"v_mul_f32 v{T0}, s19, v{T0}")
        A(f"v_exp_f32 v{T0}, v{T0}")
        A(f"v_mov_b32 v{M}, v{T1}")
        A(f"v_mul_f32 v{MN}, s19, v{T1}")
        A(f"v_sub_f32 v{MN}, 0, v{MN}")
        for k in range(4):
            A(f"v_mul_f32 v{D+k}, v{D+k}, v{T0}")
        A(f"v_mul_f32 v{LS}, v{LS}, v{T0}")
        A("s_setpc_b64 s[46:47]")

    def helper(self):
        A, L = self.A, self.L
        A("s_setprio 2")
        A("s_sub_u32 s3, s3, 8")
        A("s_load_dwordx2 s[24:25], s[0:1], 0")
        A("s_load_dwordx4 s[28:31], s[0:1], 24")
        A("s_load_dwordx4 s[32:35], s[0:1], 48")
        A("s_load_dwordx4 s[36:39], s[0:1], 64")
        A("s_load_dwordx4 s[48:51], s[0:1], 80")
        A("s_memrealtime s[66:67]")
        A("s_mov_b32 s88, 0x80000")
        A("v_mov_b32 v12, 0")
        A("v_mov_b32 v13, 0")
        A("v_mov_b32 v14, 0")
        A("v_mov_b32 v15, 0")
        A("v_lshlrev_b32 v14, 2, v2")
        A(f"ds_write_b32 v14, v12 offset:{L_Z}")
        A(f"ds_write_b32 v14, v12 offset:{L_Z+256}")
        HB, HI, G, TT = 3, 4, 5, 6
        A(f"v_lshrrev_b32 v{HB}, 5, v2")
        A(f"v_and_b32 v{HI}, 31, v2")
        A(f"v_lshrrev_b32 v{G}, 4, v2")
        A(f"v_and_b32 v{TT}, 15, v2")
        VAW, VAR, VDW, VTR = 7, 8, 9, 10
        A("s_lshl_b32 s52, s3, 9")
        A(f"v_lshlrev_b32 v{VAW}, 8, v{HB}")
        A(f"v_lshl_add_u32 v{VAW}, v{HI}, 3, v{VAW}")
        A(f"s_add_u32 s53, s52, {L_A}")
        A(f"v_add_u32 v{VAW}, s53, v{VAW}")
        A(f"v_and_b32 v{VAR}, 1, v2")
        A(f"v_lshlrev_b32 v{VAR}, 8, v{VAR}")
        A(f"v_lshl_add_u32 v{VAR}, v{G}, 4, v{VAR}")
        A(f"v_add_u32 v{VAR}, s53, v{VAR}")
        A(f"s_add_u32 s53, s52, {L_D}")
        A(f"v_lshlrev_b32 v{VDW}, 2, v2")
        A(f"v_add_u32 v{VDW}, s53, v{VDW}")
        A("s_waitcnt lgkmcnt(0)")
        self.srd(84, 98, 0x20000000)
        self.srd(76, 96, 256)
        A("s_or_b32 s54, s2, s3")
        A("s_cmp_eq_u32 s54, 0")
        A("s_cbranch_scc0 L_notagw")
        A("s_or_b32 s66, s66, 1")
        A("v_mov_b32 v12, s66")
        A("s_mov_b64 exec, 1")
        A("buffer_atomic_cmpswap v[12:13], off, s[76:79], 0 sc1")
        A("s_mov_b64 exec, -1")
        L("L_notagw")
        self.srd(20, 24, 2048)
        A(f"s_add_u32 s16, s98, {HH_OFF}")
        A("s_addc_u32 s17, s99, 0")
        A(f"s_mov_b32 s18, {43*128}")
        A("s_mov_b32 s19, 0x20000")
        self.srd(72, 50, 2048)
        for r in range(10, 24):
            A(f"v_mov_b32 v{r}, 0")
        for r in (54, 55, 56, 57, 59, 60, 61, 62):
            A(f"s_mov_b32 s{r}, 0")
        if self.H == 1:
            A("s_lshl_b32 s83, s40, 3")
            A("s_add_u32 s83, s83, s41")
            A("s_lshl_b32 s83, s83, 10")
            A(f"s_add_u32 s83, s83, {PART_OFF}")
            A("s_mov_b32 s82, s40")
            A("s_mov_b32 s81, s41")
            A("s_mov_b32 s67, s83")
        else:
            A(f"s_xor_b32 s82, s40, {self.px}")
            A("s_min_u32 s82, s82, s40")
            A("s_lshr_b32 s54, s40, 5")
            A("s_lshl_b32 s54, s54, 2")
            A("s_add_u32 s54, s54, s41")
            A("s_lshl_b32 s54, s54, 10")
            A(f"s_add_u32 s54, s54, {PART_OFF}")
            A("s_lshl_b32 s83, s82, 13")
            A("s_add_u32 s83, s83, s54")
            A(f"s_xor_b32 s67, s82, {self.px}")
            A("s_lshl_b32 s67, s67, 13")
            A("s_add_u32 s67, s67, s54")
            A("s_lshr_b32 s81, s40, 5")
            A("s_or_b32 s81, s81, s41")
        A("s_mov_b32 s45, s82")
        A("s_lshl_b32 s82, s82, 7")
        A(f"s_add_u32 s82, s82, {CNT_OFF}")
        self.stamp(0)
        A(f"s_cmp_lt_u32 s89, {R_Q0}")
        A("s_cbranch_scc1 L_pro_mod")
        A(f"s_cmp_lt_u32 s89, {R_WO0}")
        A("s_cbranch_scc1 L_pro_q")
        A("s_barrier")
        A("s_branch L_common1")

        BF, AF, DT = 40, 24, 12
        DT = 104
        TMP = 120

        def wide_voff(rowbytes, colbyte_s):
            A("s_lshl_b32 s54, s3, 7")
            A("v_lshrrev_b32 v11, 3, v2")
            A("v_add_u32 v11, s54, v11")
            A(f"s_mov_b32 s55, {rowbytes}")
            A("v_mul_lo_u32 v11, v11, s55")
            A(f"v_and_b32 v{TMP}, 7, v2")
            A(f"v_lshl_add_u32 v11, v{TMP}, 4, v11")
            A(f"v_add_u32 v11, s{colbyte_s}, v11")

        def wide_tr_base():
            A(f"v_lshrrev_b32 v{VTR}, 2, v{TT}")
            A(f"v_lshl_add_u32 v{VTR}, v{G}, 3, v{VTR}")
            A(f"v_lshlrev_b32 v{VTR}, 7, v{VTR}")
            A(f"v_and_b32 v{TMP}, 3, v{TT}")
            A(f"v_lshl_add_u32 v{VTR}, v{TMP}, 3, v{VTR}")
            A("s_lshl_b32 s54, s3, 14")
            A(f"s_add_u32 s54, s54, {L_W}")
            A(f"v_add_u32 v{VTR}, s54, v{VTR}")

        L("L_pro_mod")
        self.srd(12, 38, 2048)
        A(f"v_lshlrev_b32 v{TMP}, 10, v{HB}")
        A(f"v_lshl_add_u32 v{TMP}, v{HI}, 3, v{TMP}")
        A("s_lshl_b32 s54, s3, 8")
        A(f"buffer_load_dwordx2 v[{TMP+2}:{TMP+3}], v{TMP}, s[12:15], s54 offen")
        self.srd(8, 48, 512 * 6144)
        A("s_lshl_b32 s56, s89, 7")
        wide_voff(6144, 56)
        A("s_lshl_b32 s57, s3, 14")
        self.dma_weights(8, 16, 11, 8 * 6144, 57)
        A("s_barrier")
        wide_tr_base()
        A("s_waitcnt vmcnt(16)")
        X = TMP + 4
        self.unpack2(TMP + 2, X, X + 1)
        self.unpack2(TMP + 3, X + 2, X + 3)
        A(f"s_mov_b32 s58, {f32(-LOG2E)}")
        for k in range(4):
            A(f"v_mul_f32 v{X+4+k}, s58, v{X+k}")
        for k in range(4):
            A(f"v_exp_f32 v{X+4+k}, v{X+4+k}")
        self.nop(1)
        for k in range(4):
            A(f"v_add_f32 v{X+4+k}, 1.0, v{X+4+k}")
        for k in range(4):
            A(f"v_rcp_f32 v{X+4+k}, v{X+4+k}")
        self.nop(1)
        for k in range(4):
            A(f"v_mul_f32 v{X+k}, v{X+k}, v{X+4+k}")
        A(f"v_cvt_pk_bf16_f32 v{X+8}, v{X}, v{X+1}")
        A(f"v_cvt_pk_bf16_f32 v{X+9}, v{X+2}, v{X+3}")
        A(f"ds_write_b64 v{VAW}, v[{X+8}:{X+9}]")
        A("s_lshr_b32 s60, s89, 3")
        A("s_lshl_b32 s60, s60, 12")
        A("s_and_b32 s61, s89, 7")
        A("s_lshl_b32 s61, s61, 8")
        A("s_add_u32 s60, s60, s61")
        A(f"s_add_u32 s60, s60, {MOD_OFF}")
        A("s_mov_b32 s61, 2048")
        A("s_mov_b32 s62, 0")
        A("s_branch L_common1")

        L("L_pro_q")
        A(f"v_lshlrev_b32 v{TMP}, 10, v{HB}")
        A(f"v_lshl_add_u32 v{TMP+1}, v{HI}, 5, v{TMP}")
        A(f"buffer_load_dwordx4 v[{TMP+4}:{TMP+7}], v{TMP+1}, s[20:23], 0 offen")
        A(f"buffer_load_dwordx4 v[{TMP+8}:{TMP+11}], v{TMP+1}, s[20:23], 0 offen offset:16")
        A(f"v_lshl_add_u32 v{TMP}, v{HI}, 3, v{TMP}")
        A("s_lshl_b32 s54, s3, 8")
        A(f"buffer_load_dwordx2 v[{TMP+2}:{TMP+3}], v{TMP}, s[20:23], s54 offen")
        self.srd(8, 28, 512 * 8192)
        A(f"s_sub_u32 s59, s89, {R_Q0}")
        A("s_lshl_b32 s56, s59, 7")
        wide_voff(8192, 56)
        A("s_lshl_b32 s57, s3, 14")
        self.dma_weights(8, 16, 11, 8 * 8192, 57)
        A("s_barrier")
        wide_tr_base()
        A("s_waitcnt vmcnt(16)")
        S1, S2, U0, U1 = TMP + 12, TMP + 13, TMP + 14, TMP + 15
        A(f"v_mov_b32 v{S1}, 0")
        A(f"v_mov_b32 v{S2}, 0")
        for k in range(8):
            self.unpack2(TMP + 4 + k, U0, U1)
            A(f"v_add_f32 v{S1}, v{S1}, v{U0}")
            A(f"v_fmac_f32 v{S2}, v{U0}, v{U0}")
            A(f"v_add_f32 v{S1}, v{S1}, v{U1}")
            A(f"v_fmac_f32 v{S2}, v{U1}, v{U1}")
        self.allred32([S1, S2], [U0, U1])
        NX = TMP + 16
        self.unpack2(TMP + 2, NX, NX + 1)
        self.unpack2(TMP + 3, NX + 2, NX + 3)
        self.ln_norm(S1, S2, NX, U0, U1)
        A("s_lshl_b32 s60, s59, 8")
        A(f"s_add_u32 s60, s60, {Q_OFF}")
        A("s_mov_b32 s61, 16384")
        A("s_mov_b32 s62, 1")
        L("L_common1")
        A("buffer_load_dword v165, off, s[76:79], 0 sc1")
        CL = TMP + 24
        for k in range(4):
            A(f"v_mov_b32 v{CL+k}, -1")
        A("s_cmp_eq_u32 s3, 3")
        A("s_cbranch_scc0 L_noclear")
        A(f"v_lshlrev_b32 v{CL+4}, 4, v2")
        A("s_mov_b32 exec_lo, -1")
        A("s_mov_b32 exec_hi, 1")
        A(f"buffer_store_dwordx4 v[{CL}:{CL+3}], v{CL+4}, s[84:87], s83 offen sc1")
        if self.H == 2:
            A(f"buffer_store_dwordx4 v[{CL}:{CL+3}], v{CL+4}, s[84:87], s67 offen sc1")
        A("s_mov_b64 exec, -1")
        A(f"s_sub_u32 s64, s89, {R_WO0}")
        A("s_cmp_lt_u32 s64, 64")
        A("s_cbranch_scc0 L_noclr_wo")
        self.slice_of(64, R_WO0, 64)
        A("s_lshr_b32 s65, s64, 3")
        A("s_lshl_b32 s65, s65, 12")
        A("s_and_b32 s66, s64, 7")
        A("s_lshl_b32 s66, s66, 8")
        A("s_add_u32 s65, s65, s66")
        A(f"s_add_u32 s65, s65, {ATT_OFF}")
        A(f"v_lshlrev_b32 v{CL+4}, 11, v{G}")
        A(f"v_lshl_add_u32 v{CL+4}, v{TT}, 4, v{CL+4}")
        A("s_mov_b32 exec_hi, 0")
        A(f"buffer_store_dwordx4 v[{CL}:{CL+3}], v{CL+4}, s[84:87], s65 offen sc1")
        A("s_mov_b64 exec, -1")
        L("L_noclr_wo")
        A(f"s_sub_u32 s64, s89, {R_UP0}")
        A("s_cmp_lt_u32 s64, 43")
        A("s_cbranch_scc0 L_noclr_up")
        self.slice_of(64, R_UP0, 43)
        A("s_lshl_b32 s65, s64, 7")
        A(f"s_add_u32 s65, s65, {HH_OFF}")
        A(f"v_lshlrev_b32 v{CL+4}, 4, v2")
        A("s_mov_b64 exec, 0xff")
        A(f"buffer_store_dwordx4 v[{CL}:{CL+3}], v{CL+4}, s[84:87], s65 offen sc1")
        A("s_mov_b64 exec, -1")
        L("L_noclr_up")
        A("s_cmp_eq_u32 s81, 0")
        A("s_cbranch_scc0 L_noclr_cnt")
        A(f"v_mov_b32 v{CL+4}, {self.NS*4*self.H}")
        A(f"s_mul_i32 s65, s45, {self.cstr}")
        A(f"s_add_u32 s65, s65, {CTR_OFF}")
        A("s_mov_b64 exec, 1")
        A(f"buffer_store_dword v{CL+4}, off, s[84:87], s65 sc1")
        A("s_mov_b64 exec, -1")
        L("L_noclr_cnt")
        L("L_noclear")
        A("s_waitcnt vmcnt(0)")
        A("v_cmp_eq_u32 vcc, 0, v165")
        A("s_cbranch_vccz L_gottag")
        pl = self.poll_head()
        A("buffer_load_dword v165, off, s[76:79], 0 sc1")
        A("s_waitcnt vmcnt(0)")
        A("v_cmp_eq_u32 vcc, 0, v165")
        self.poll_tail(pl, sleep=2)
        L("L_gottag")
        A("v_readfirstlane_b32 s80, v165")
        self.stamp(10)
        A("s_cmp_eq_u32 s3, 3")
        A("s_cbranch_scc0 L_nocount")
        A("s_and_b32 s63, s2, 3")
        A("s_lshl_b32 s63, s63, 2")
        A("s_add_u32 s63, s63, 128")
        A(f"v_mov_b32 v{CL+5}, 1")
        A("s_mov_b64 exec, 1")
        A(f"buffer_atomic_add v{CL+5}, off, s[76:79], s63 sc1")
        A("s_cmp_eq_u32 s81, 0")
        A("s_cbranch_scc0 L_nocnttag")
        A(f"v_mov_b32 v{CL+4}, s80")
        A(f"buffer_store_dword v{CL+4}, off, s[84:87], s82 offset:64 sc1")
        L("L_nocnttag")
        A("s_mov_b64 exec, -1")
        L("L_nocount")
        A(f"s_cmp_lt_u32 s89, {R_WO0}")
        A("s_cbranch_scc0 L_qgather")
        self.tr_reads(VTR, BF, 4, [0, 32, 64, 96], 128)
        A("s_cmp_eq_u32 s62, 0")
        A("s_cbranch_scc1 L_pro_gemv")
        GA = TMP + 4
        A(f"v_lshlrev_b32 v{TMP}, 11, v{HB}")
        A(f"v_lshl_add_u32 v{TMP}, v{HI}, 4, v{TMP}")
        A("s_lshl_b32 s54, s3, 9")
        A(f"s_add_u32 s54, s54, {MOD_OFF}")
        A(f"s_add_u32 s55, s54, 4096")
        pl = self.poll_head()
        A(f"buffer_load_dwordx4 v[{GA}:{GA+3}], v{TMP}, s[84:87], s55 offen sc1")
        A(f"buffer_load_dwordx4 v[{GA+4}:{GA+7}], v{TMP}, s[84:87], s54 offen sc1")
        A("s_waitcnt vmcnt(0)")
        self.check_tags([GA + 1, GA + 3, GA + 5, GA + 7], TMP + 1)
        self.poll_tail(pl, sleep=self.ps1)
        self.stamp(3)
        T4 = TMP + 20
        self.unpack2(GA, T4, T4 + 1)
        self.unpack2(GA + 2, T4 + 2, T4 + 3)
        for k in range(4):
            A(f"v_add_f32 v{T4+k}, 1.0, v{T4+k}")
        self.rnd2(T4, T4 + 1, TMP + 1)
        self.rnd2(T4 + 2, T4 + 3, TMP + 2)
        self.modulate(NX, T4, GA + 4, GA + 6, TMP + 1, TMP + 24, VAW)
        L("L_pro_gemv")
        A("s_waitcnt lgkmcnt(0)")
        self.a_frags_from_stage(VAR, AF)
        A("s_waitcnt lgkmcnt(0)")
        self.mfmas(AF, BF, DT, 4, 4)
        self.d_to_lds(DT, 4, TMP, TMP + 1, VDW)
        A(f"v_mov_b32 v{TMP+2}, {L_CNT}")
        A(f"v_mov_b32 v{TMP+3}, 1")
        A("s_mov_b64 exec, 1")
        A(f"ds_add_rtn_u32 v{TMP+4}, v{TMP+2}, v{TMP+3}")
        A("s_mov_b64 exec, -1")
        A("s_waitcnt lgkmcnt(0)")
        A(f"v_readfirstlane_b32 s54, v{TMP+4}")
        A("s_cmp_eq_u32 s54, 3")
        A("s_cbranch_scc0 L_qgather")
        self.d_sum(G, TT, TMP)
        A(f"v_cvt_pk_bf16_f32 v{TMP+8}, v{TMP+4}, v{TMP+5}")
        A(f"v_mov_b32 v{TMP+9}, s80")
        A(f"v_cvt_pk_bf16_f32 v{TMP+10}, v{TMP+6}, v{TMP+7}")
        A(f"v_mov_b32 v{TMP+11}, s80")
        A(f"v_mul_lo_u32 v{TMP}, v{G}, s61")
        A(f"v_lshl_add_u32 v{TMP}, v{TT}, 4, v{TMP}")
        A("s_mov_b32 exec_hi, 0")
        A(f"buffer_store_dwordx4 v[{TMP+8}:{TMP+11}], v{TMP}, s[84:87], s60 offen sc1")
        A("s_mov_b64 exec, -1")
        self.stamp(4)
        L("L_qgather")
        A("s_cmp_eq_u32 s3, 3")
        A("s_cbranch_scc0 L_qg2")
        pl = self.poll_head()
        A(f"buffer_load_dword v{TMP}, off, s[84:87], s82 offset:64 sc1")
        A("s_waitcnt vmcnt(0)")
        A(f"v_cmp_ne_u32 vcc, s80, v{TMP}")
        self.poll_tail(pl, sleep=8)
        if self.flagq:
            A(f"v_mov_b32 v{TMP}, 0")
            A(f"v_mov_b32 v{TMP+1}, 1")
            A(f"ds_write_b32 v{TMP}, v{TMP+1} offset:{L_QF+4}")
        L("L_qg2")
        A("s_cmp_eq_u32 s3, 0")
        A("s_cbranch_scc0 L_b2")
        A("s_lshl_b32 s54, s45, 9")
        A(f"s_add_u32 s54, s54, {Q_OFF}")
        A(f"s_xor_b32 s55, s45, {self.px}")
        A("s_lshl_b32 s55, s55, 9")
        A(f"s_add_u32 s55, s55, {Q_OFF}")
        A(f"v_lshlrev_b32 v{TMP}, 3, v2")
        pl = self.poll_head()
        A(f"buffer_load_dwordx2 v[{TMP+2}:{TMP+3}], v{TMP}, s[84:87], s54 offen sc1")
        if self.H == 2:
            A(f"buffer_load_dwordx2 v[{TMP+4}:{TMP+5}], v{TMP}, s[84:87], s55 offen sc1")
        A("s_waitcnt vmcnt(0)")
        self.check_tags([TMP + 3, TMP + 5][:self.H], TMP + 6)
        self.poll_tail(pl, sleep=self.ps2)
        A(f"v_lshlrev_b32 v{TMP}, 2, v2")
        A(f"ds_write_b32 v{TMP}, v{TMP+2} offset:{L_Q}")
        if self.H == 2:
            A(f"ds_write_b32 v{TMP}, v{TMP+4} offset:{L_Q+256}")
        if self.flagq:
            A(f"v_mov_b32 v{TMP}, 0")
            A(f"v_mov_b32 v{TMP+1}, 1")
            A(f"ds_write_b32 v{TMP}, v{TMP+1} offset:{L_QF}")
        A("s_waitcnt lgkmcnt(0)")
        self.stamp(5)
        L("L_b2")
        if not self.flagq:
            A("s_barrier")
        else:
            A(f"v_mov_b32 v{TMP}, 0")
            pl = self.poll_head()
            A(f"ds_read_b32 v{TMP+1}, v{TMP} offset:{L_QF}")
            A("s_waitcnt lgkmcnt(0)")
            A(f"v_cmp_eq_u32 vcc, 0, v{TMP+1}")
            self.poll_tail(pl, sleep=4)
        A(f"s_cmp_lt_u32 s89, {R_WO0}")
        A("s_cbranch_scc1 L_b3")
        A(f"s_cmp_lt_u32 s89, {R_WO1}")
        A("s_cbranch_scc1 L_prep_wo")
        A(f"s_cmp_ge_u32 s89, {R_DN0}")
        A("s_cbranch_scc1 L_prep_dn")
        A(f"s_cmp_lt_u32 s89, {R_UP0}")
        A("s_cbranch_scc1 L_b3")
        A(f"s_cmp_lt_u32 s89, {R_UP1}")
        A("s_cbranch_scc1 L_prep_up")
        A("s_branch L_b3")

        def narrow_voff(rowbytes, rows_per_wave, colbyte_s):
            A(f"s_mul_i32 s54, s3, {rows_per_wave}")
            A("v_lshrrev_b32 v11, 2, v2")
            A("v_add_u32 v11, s54, v11")
            A(f"s_mov_b32 s55, {rowbytes}")
            A("v_mul_lo_u32 v11, v11, s55")
            A(f"v_and_b32 v{VTR}, 3, v2")
            A(f"v_lshl_add_u32 v11, v{VTR}, 4, v11")
            A(f"v_add_u32 v11, s{colbyte_s}, v11")

        def narrow_tr_base(rows_per_wave):
            A(f"v_lshrrev_b32 v{VTR}, 2, v{TT}")
            A(f"v_lshl_add_u32 v{VTR}, v{G}, 3, v{VTR}")
            A(f"v_lshlrev_b32 v{VTR}, 6, v{VTR}")
            A(f"v_and_b32 v12, 3, v{TT}")
            A(f"v_lshl_add_u32 v{VTR}, v12, 3, v{VTR}")
            A(f"s_mul_i32 s54, s3, {rows_per_wave*64}")
            A(f"s_add_u32 s54, s54, {L_W}")
            A(f"v_add_u32 v{VTR}, s54, v{VTR}")

        def wait_cleared(t):
            pl = self.poll_head()
            A(f"buffer_load_dwordx4 v[{t}:{t+3}], off, s[76:79], 0 offset:128 sc1")
            A("s_waitcnt vmcnt(0)")
            A(f"v_add_u32 v{t}, v{t}, v{t+1}")
            A(f"v_add3_u32 v{t}, v{t}, v{t+2}, v{t+3}")
            A(f"v_cmp_gt_u32 vcc, 256, v{t}")
            self.poll_tail(pl, sleep=16)

        self.intail = True
        L("L_prep_wo")
        self.slice_of(59, R_WO0, 64)
        self.srd(8, 30, 4096 * 1024)
        A("s_lshr_b32 s56, s59, 3")
        A("s_lshl_b32 s56, s56, 19")
        A("s_and_b32 s57, s59, 7")
        A("s_lshl_b32 s57, s57, 7")
        A("s_add_u32 s56, s56, s57")
        wide_voff(1024, 56)
        A("s_lshl_b32 s57, s3, 14")
        self.dma_weights(8, 16, 11, 8 * 1024, 57, skip='nowo')
        wide_tr_base()
        wait_cleared(TMP)
        self.tr_reads(VTR, BF, 4, [0, 32, 64, 96], 128)
        A(f"v_lshlrev_b32 v11, 18, v{HB}")
        A(f"v_lshl_add_u32 v12, v{HI}, 4, v11")
        A(f"v_and_b32 v{TMP}, {4*self.H-1}, v2")
        A(f"v_lshl_add_u32 v11, v{TMP}, 10, v11")
        A("s_lshr_b32 s56, s59, 3")
        A("s_lshl_b32 s60, s56, 12")
        A("s_lshl_b32 s56, s56, 2")
        A("s_add_u32 s56, s56, s3")
        A("s_lshl_b32 s56, s56, 13")
        A(f"s_add_u32 s56, s56, {PART_OFF}")
        A("s_add_u32 s55, s56, 4096")
        A("s_and_b32 s57, s59, 7")
        A("s_lshl_b32 s57, s57, 8")
        A("s_add_u32 s60, s60, s57")
        A(f"s_add_u32 s60, s60, {ATT_OFF}")
        A("s_waitcnt lgkmcnt(0)")
        A("s_branch L_b3")

        XV, GAV, T4U, SBV = TMP + 28, TMP + 32, TMP + 36, TMP + 40
        L("L_prep_up")
        self.slice_of(59, R_UP0, 43)
        self.srd(8, 32, 512 * 2752)
        self.srd(12, 34, 512 * 2752)
        A("s_lshl_b32 s56, s59, 6")
        narrow_voff(2752, 128, 56)
        A("s_lshl_b32 s57, s3, 13")
        self.dma_weights(8, 8, 11, 16 * 2752, 57, skip='noup')
        A("s_add_u32 s57, s57, 32768")
        self.dma_weights(12, 8, 11, 16 * 2752, 57, skip='noup')
        narrow_tr_base(128)
        A(f"v_lshlrev_b32 v{TMP}, 10, v{HB}")
        A(f"v_lshl_add_u32 v{TMP}, v{HI}, 3, v{TMP}")
        A("s_lshl_b32 s54, s3, 8")
        A(f"buffer_load_dwordx2 v[{TMP+2}:{TMP+3}], v{TMP}, s[20:23], s54 offen")
        A(f"v_lshlrev_b32 v{TMP}, 11, v{HB}")
        A(f"v_lshl_add_u32 v{TMP}, v{HI}, 4, v{TMP}")
        A("s_lshl_b32 s54, s3, 9")
        A(f"s_add_u32 s54, s54, {MOD_OFF + 2*4096}")
        A(f"s_add_u32 s55, s54, 4096")
        A(f"s_add_u32 s56, s54, 8192")
        GA = TMP + 4
        pl = self.poll_head()
        A(f"buffer_load_dwordx4 v[{GA}:{GA+3}], v{TMP}, s[84:87], s54 offen sc1")
        A(f"buffer_load_dwordx4 v[{GA+4}:{GA+7}], v{TMP}, s[84:87], s55 offen sc1")
        A(f"buffer_load_dwordx4 v[{GA+8}:{GA+11}], v{TMP}, s[84:87], s56 offen sc1")
        A("s_waitcnt vmcnt(0)")
        self.check_tags([GA + 1, GA + 3, GA + 5, GA + 7, GA + 9, GA + 11], TMP + 16)
        self.poll_tail(pl)
        self.unpack2(TMP + 2, XV, XV + 1)
        self.unpack2(TMP + 3, XV + 2, XV + 3)
        self.unpack2(GA, GAV, GAV + 1)
        self.unpack2(GA + 2, GAV + 2, GAV + 3)
        A(f"v_mov_b32 v{SBV}, v{GA+4}")
        A(f"v_mov_b32 v{SBV+1}, v{GA+6}")
        self.unpack2(GA + 8, T4U, T4U + 1)
        self.unpack2(GA + 10, T4U + 2, T4U + 3)
        for k in range(4):
            A(f"v_add_f32 v{T4U+k}, 1.0, v{T4U+k}")
        self.rnd2(T4U, T4U + 1, TMP + 1)
        self.rnd2(T4U + 2, T4U + 3, TMP + 1)
        wait_cleared(TMP)
        self.tr_reads(VTR, BF, 4, [0, 32, 32768, 32768 + 32], 64)
        A(f"v_lshlrev_b32 v12, 11, v{HB}")
        A(f"v_lshl_add_u32 v12, v{HI}, 4, v12")
        A("s_lshl_b32 s56, s3, 9")
        A(f"s_add_u32 s56, s56, {ATT_OFF}")
        A("s_lshl_b32 s60, s59, 7")
        A(f"s_add_u32 s60, s60, {HH_OFF}")
        A("s_waitcnt lgkmcnt(0)")
        A("s_branch L_b3")

        DBF, DAF, DDT = 32, 120, 24
        L("L_prep_dn")
        self.slice_of(59, R_DN0, 16)
        self.srd(8, 36, 1376 * 1024)
        A("s_lshl_b32 s56, s59, 6")
        narrow_voff(1024, 352, 56)
        A(f"s_mul_i32 s57, s3, {352*64}")
        self.dma_weights(8, 22, 11, 16 * 1024, 57, skip='nodn')
        narrow_tr_base(352)
        A("v_lshrrev_b32 v13, 3, v2")
        A("v_and_b32 v13, 1, v13")
        A("v_and_b32 v14, 7, v2")
        A("v_lshlrev_b32 v15, 10, v13")
        A("v_lshl_add_u32 v15, v14, 3, v15")
        A("buffer_load_dwordx2 v[16:17], v15, s[20:23], s56 offen")
        A("v_lshlrev_b32 v15, 11, v13")
        A("v_lshl_add_u32 v15, v14, 4, v15")
        A("s_lshl_b32 s54, s59, 7")
        A(f"s_add_u32 s55, s54, {MOD_OFF + 5*4096}")
        A(f"s_add_u32 s54, s54, {MOD_OFF + 2*4096}")
        pl = self.poll_head()
        A(f"buffer_load_dwordx4 v[{DAF}:{DAF+3}], v15, s[84:87], s54 offen sc1")
        A(f"buffer_load_dwordx4 v[{DAF+4}:{DAF+7}], v15, s[84:87], s55 offen sc1")
        A("s_waitcnt vmcnt(0)")
        self.check_tags([DAF + 1, DAF + 3, DAF + 5, DAF + 7], DAF + 8)
        self.poll_tail(pl)
        A(f"v_mov_b32 v18, v{DAF}")
        A(f"v_mov_b32 v19, v{DAF+2}")
        A(f"v_mov_b32 v20, v{DAF+4}")
        A(f"v_mov_b32 v21, v{DAF+6}")
        wait_cleared(DAF)
        self.tr_reads(VTR, DBF, 11, [0, 32], 64)
        A("s_lshl_b32 s56, s59, 7")
        A(f"s_add_u32 s56, s56, {ATT_OFF}")
        A("v_and_b32 v12, 1, v2")
        A("v_lshlrev_b32 v12, 6, v12")
        A(f"v_lshl_add_u32 v12, v{G}, 4, v12")
        A(f"s_mul_i32 s57, s3, {11*128}")
        A("s_waitcnt lgkmcnt(0)")
        L("L_b3")
        A("s_cmp_eq_u32 s3, 2")
        A("s_cbranch_scc0 L_b3x")
        A("s_setprio 1")
        A(f"s_mul_i32 s65, s45, {self.cstr}")
        A(f"s_add_u32 s65, s65, {CTR_OFF}")
        A("s_add_u32 s26, s98, s65")
        A("s_addc_u32 s27, s99, 0")
        A("v_mov_b32 v22, 0")
        pl = self.poll_head()
        A(f"ds_read_b32 v23, v22 offset:{L_QF+4}")
        A("s_waitcnt lgkmcnt(0)")
        A("v_cmp_eq_u32 vcc, 0, v23")
        self.poll_tail(pl, sleep=8)
        A("s_mov_b32 s64, 0")
        L("L_disp")
        A(f"ds_read_b32 v23, v22 offset:{L_NEED}")
        A("s_waitcnt lgkmcnt(0)")
        A("v_readfirstlane_b32 s65, v23")
        A("s_cmp_lt_u32 s64, s65")
        A("s_cbranch_scc1 L_disp_go")
        A("s_cmp_eq_u32 s88, 0")
        A("s_cbranch_scc1 L_disp_end")
        A("s_sub_u32 s88, s88, 1")
        A("s_sleep 2")
        A("s_branch L_disp")
        L("L_disp_go")
        A("s_mov_b32 s66, 1")
        A("s_atomic_add s66, s[26:27], 0 glc")
        A("s_lshl_b32 s65, s64, 2")
        A("v_mov_b32 v24, s65")
        A("s_waitcnt lgkmcnt(0)")
        A(f"s_cmp_ge_u32 s66, {64 * self.H}")
        A("s_cbranch_scc1 L_disp_end")
        A("s_add_u32 s66, s66, 1")
        A("v_mov_b32 v23, s66")
        A(f"ds_write_b32 v24, v23 offset:{L_RL}")
        A("s_add_u32 s64, s64, 1")
        A("s_cmp_lt_u32 s64, 63")
        A("s_cbranch_scc1 L_disp")
        L("L_disp_end")
        A("v_lshlrev_b32 v24, 2, v2")
        A(f"v_mov_b32 v23, {64 * self.H + 1}")
        A("v_cmp_le_u32 vcc, s64, v2")
        A("s_mov_b64 exec, vcc")
        A(f"ds_write_b32 v24, v23 offset:{L_RL}")
        A("s_mov_b64 exec, -1")
        A("s_setprio 2")
        L("L_b3x")
        if self.dry:
            A("s_mov_b32 s69, 1")
            A("s_mov_b32 s86, 0")
            A("s_mov_b32 s18, 0")
            A("s_mov_b32 s74, 0")
            A("s_branch L_after_b3")
            L("L_exit")
            A("s_cmp_eq_u32 s69, 0")
            A("s_cbranch_scc1 L_end")
            A("s_mov_b64 exec, -1")
            A("s_mov_b32 s69, 0")
            A("s_mov_b32 s86, 0x20000000")
            A(f"s_mov_b32 s18, {43*128}")
            A("s_mov_b32 s74, 2048")
            A("s_waitcnt vmcnt(0) lgkmcnt(0)")
        A("s_barrier")
        L("L_after_b3")
        EX = "L_exit" if self.dry else "L_end"
        self.stamp(6)
        A(f"s_cmp_lt_u32 s3, {self.H}")
        A("s_cbranch_scc0 L_tail")
        C = 120
        A(f"v_and_b32 v{C}, 7, v2")
        A(f"v_lshlrev_b32 v{C}, 3, v{C}")
        A("s_lshl_b32 s63, s3, 6")
        A(f"v_add_u32 v{C}, s63, v{C}")
        A(f"ds_read_b64 v[{C+2}:{C+3}], v{C} offset:{L_ML}")
        A(f"v_lshlrev_b32 v{C+1}, 3, v2")
        A("s_lshl_b32 s63, s3, 13")
        A(f"v_add_u32 v{C+7}, s63, v{C+1}")
        for w in range(8):
            A(f"ds_read_b64 v[{C+8+2*w}:{C+9+2*w}], v{C+7} offset:{L_P + w*1024}")
        A("s_waitcnt lgkmcnt(8)")
        A(f"v_max_f32_dpp v{C+4}, v{C+2}, v{C+2} row_ror:1 row_mask:0xf bank_mask:0xf")
        self.nop(2)
        A(f"v_max_f32_dpp v{C+4}, v{C+4}, v{C+4} row_ror:2 row_mask:0xf bank_mask:0xf")
        self.nop(2)
        A(f"v_max_f32_dpp v{C+4}, v{C+4}, v{C+4} row_ror:4 row_mask:0xf bank_mask:0xf")
        A(f"s_mov_b32 s58, {f32(LOG2E)}")
        A(f"v_sub_f32 v{C+6}, v{C+2}, v{C+4}")
        A(f"v_mul_f32 v{C+6}, s58, v{C+6}")
        A(f"v_exp_f32 v{C+6}, v{C+6}")
        self.nop(1)
        A(f"v_mul_f32 v{C+5}, v{C+6}, v{C+3}")
        self.nop(2)
        A(f"v_add_f32_dpp v{C+5}, v{C+5}, v{C+5} row_ror:1 row_mask:0xf bank_mask:0xf")
        self.nop(2)
        A(f"v_add_f32_dpp v{C+5}, v{C+5}, v{C+5} row_ror:2 row_mask:0xf bank_mask:0xf")
        self.nop(2)
        A(f"v_add_f32_dpp v{C+5}, v{C+5}, v{C+5} row_ror:4 row_mask:0xf bank_mask:0xf")
        A("s_waitcnt lgkmcnt(0)")
        A(f"v_mul_f32_dpp v{C+24}, v{C+6}, v{C+8} row_newbcast:0 row_mask:0xf bank_mask:0xf")
        A(f"v_mul_f32_dpp v{C+25}, v{C+6}, v{C+9} row_newbcast:0 row_mask:0xf bank_mask:0xf")
        for w in range(1, 8):
            A(f"v_fmac_f32_dpp v{C+24}, v{C+6}, v{C+8+2*w} row_newbcast:{w} row_mask:0xf bank_mask:0xf")
            A(f"v_fmac_f32_dpp v{C+25}, v{C+6}, v{C+9+2*w} row_newbcast:{w} row_mask:0xf bank_mask:0xf")
        for r in (C + 24, C + 25, C + 4, C + 5):
            A(f"v_min_u32 v{r}, -2, v{r}")
        A("s_cmp_eq_u32 s3, 0")
        A("s_cselect_b32 s63, s83, s67")
        A(f"v_mov_b32_dpp v{C+26}, v{C+24} quad_perm:[1,1,3,3] row_mask:0xf bank_mask:0xf")
        A(f"v_mov_b32_dpp v{C+27}, v{C+25} quad_perm:[1,1,3,3] row_mask:0xf bank_mask:0xf")
        A("s_mov_b32 exec_lo, 0x55555555")
        A("s_mov_b32 exec_hi, 0x55555555")
        A(f"buffer_store_dwordx4 v[{C+24}:{C+27}], v{C+1}, s[84:87], s63 offen sc1")
        A("s_mov_b64 exec, 1")
        A(f"buffer_store_dwordx2 v[{C+4}:{C+5}], off, s[84:87], s63 offset:512 sc1")
        A("s_mov_b64 exec, -1")
        self.stamp(7)
        L("L_tail")
        A(f"s_cmp_lt_u32 s89, {R_WO0}")
        A(f"s_cbranch_scc1 {EX}")
        A(f"s_cmp_lt_u32 s89, {R_WO1}")
        A("s_cbranch_scc1 L_tail_wo")
        A(f"s_cmp_ge_u32 s89, {R_DN0}")
        A("s_cbranch_scc1 L_tail_dn")
        A(f"s_cmp_lt_u32 s89, {R_UP0}")
        A(f"s_cbranch_scc1 {EX}")
        A(f"s_cmp_lt_u32 s89, {R_UP1}")
        A("s_cbranch_scc1 L_tail_up")
        A(f"s_branch {EX}")

        L("L_tail_wo")
        regs = [AF + 4 * i for i in range(4)] + [DT + 4 * i for i in range(4)]
        O = TMP
        lds_ = [([f"buffer_load_dwordx4 v[{regs[r]}:{regs[r]+3}], v12, s[84:87], {'s56' if r < 4 else 's55'} offen offset:{(r & 3)*1024} sc1"],
                 [regs[r] + k for k in range(4)]) for r in range(4 * self.H)]
        lds_.append(([f"buffer_load_dwordx2 v[{O}:{O+1}], v11, s[84:87], s56 offen offset:512 sc1"], [O, O + 1]))
        self.poll_multi(lds_, O + 2)
        self.stamp(8)
        MM, FF, LL = O + 2, O + 3, O + 6
        A(f"v_max_f32_dpp v{MM}, v{O}, v{O} row_ror:1 row_mask:0xf bank_mask:0xf")
        A(f"s_mov_b32 s58, {f32(LOG2E)}")
        self.nop(1)
        A(f"v_max_f32_dpp v{MM}, v{MM}, v{MM} row_ror:2 row_mask:0xf bank_mask:0xf")
        if self.H == 2:
            self.nop(2)
            A(f"v_max_f32_dpp v{MM}, v{MM}, v{MM} row_ror:4 row_mask:0xf bank_mask:0xf")
        A(f"v_sub_f32 v{FF}, v{O}, v{MM}")
        A(f"v_mul_f32 v{FF}, s58, v{FF}")
        A(f"v_exp_f32 v{FF}, v{FF}")
        self.nop(1)
        A(f"v_mul_f32 v{LL}, v{FF}, v{O+1}")
        self.nop(1)
        for k in range(4):
            A(f"v_mul_f32_dpp v{O+8+k}, v{FF}, v{regs[0]+k} row_newbcast:0 row_mask:0xf bank_mask:0xf")
        A(f"v_add_f32_dpp v{LL}, v{LL}, v{LL} row_ror:1 row_mask:0xf bank_mask:0xf")
        for r in range(1, 4 * self.H):
            for k in range(4):
                A(f"v_fmac_f32_dpp v{O+8+k}, v{FF}, v{regs[r]+k} row_newbcast:{r} row_mask:0xf bank_mask:0xf")
            if r == 1:
                A(f"v_add_f32_dpp v{LL}, v{LL}, v{LL} row_ror:2 row_mask:0xf bank_mask:0xf")
            if r == 2 and self.H == 2:
                A(f"v_add_f32_dpp v{LL}, v{LL}, v{LL} row_ror:4 row_mask:0xf bank_mask:0xf")
            if r == 1 + self.H:
                A(f"v_rcp_f32 v{LL}, v{LL}")
        for k in range(4):
            A(f"v_mul_f32 v{O+8+k}, v{LL}, v{O+8+k}")
        A(f"v_cvt_pk_bf16_f32 v{O+4}, v{O+8}, v{O+9}")
        A(f"v_cvt_pk_bf16_f32 v{O+5}, v{O+10}, v{O+11}")
        A(f"ds_write_b64 v{VAW}, v[{O+4}:{O+5}]")
        A("s_waitcnt lgkmcnt(0)")
        self.a_frags_from_stage(VAR, AF)
        A("s_waitcnt lgkmcnt(0)")
        self.mfmas(AF, BF, DT, 4, 4)
        self.d_to_lds(DT, 4, TMP, TMP + 1, VDW)
        A("s_waitcnt lgkmcnt(0)")
        self.bar()
        A("s_cmp_eq_u32 s3, 0")
        A(f"s_cbranch_scc0 {EX}")
        self.d_sum(G, TT, TMP)
        for k in range(4):
            A(f"v_min_u32 v{TMP+4+k}, -2, v{TMP+4+k}")
        A(f"v_lshlrev_b32 v{TMP}, 11, v{G}")
        A(f"v_lshl_add_u32 v{TMP}, v{TT}, 4, v{TMP}")
        A("s_mov_b32 exec_hi, 0")
        A(f"buffer_store_dwordx4 v[{TMP+4}:{TMP+7}], v{TMP}, s[84:87], s60 offen sc1")
        self.stamp(9)
        A(f"s_branch {EX}")

        L("L_tail_up")
        P = 12
        P = DT
        regs = [AF + 4 * i for i in range(4)] + [DT + 4 * i for i in range(4)]
        self.poll_multi([([f"s_add_u32 s57, s56, {hg*4096}", f"buffer_load_dwordx4 v[{regs[hg]}:{regs[hg]+3}], v12, s[84:87], s57 offen sc1"],
                          [regs[hg] + k for k in range(4)]) for hg in range(8)], TMP)
        self.stamp(8)
        X1 = TMP + 4
        self.sum8_x1(regs, X1, XV, GAV, TMP)
        S1, S2, U0, U1 = TMP + 8, TMP + 9, TMP + 10, TMP + 11
        A(f"v_add_f32 v{S1}, v{X1}, v{X1+1}")
        A(f"v_mul_f32 v{S2}, v{X1}, v{X1}")
        A(f"v_add_f32 v{U0}, v{X1+2}, v{X1+3}")
        A(f"v_fmac_f32 v{S2}, v{X1+1}, v{X1+1}")
        A(f"v_add_f32 v{S1}, v{S1}, v{U0}")
        A(f"v_fmac_f32 v{S2}, v{X1+2}, v{X1+2}")
        A(f"v_fmac_f32 v{S2}, v{X1+3}, v{X1+3}")
        self.allred32([S1, S2], [U0, U1])
        A(f"v_lshlrev_b32 v{U0}, 5, v{HB}")
        A("s_lshl_b32 s54, s3, 3")
        A(f"v_add_u32 v{U1}, s54, v{U0}")
        A(f"ds_write_b64 v{U1}, v[{S1}:{S2}] offset:{L_ST}")
        A("s_waitcnt lgkmcnt(0)")
        self.bar()
        Q8 = TMP + 12
        A(f"ds_read_b128 v[{Q8}:{Q8+3}], v{U0} offset:{L_ST}")
        A(f"ds_read_b128 v[{Q8+4}:{Q8+7}], v{U0} offset:{L_ST+16}")
        A("s_waitcnt lgkmcnt(0)")
        A(f"v_add_f32 v{S1}, v{Q8}, v{Q8+2}")
        A(f"v_add_f32 v{S2}, v{Q8+1}, v{Q8+3}")
        A(f"v_add_f32 v{U0}, v{Q8+4}, v{Q8+6}")
        A(f"v_add_f32 v{U1}, v{Q8+5}, v{Q8+7}")
        A(f"v_add_f32 v{S1}, v{S1}, v{U0}")
        A(f"v_add_f32 v{S2}, v{S2}, v{U1}")
        self.ln_norm(S1, S2, X1, U0, U1)
        self.modulate(X1, T4U, SBV, SBV + 1, TMP, TMP + 12, VAW)
        A("s_waitcnt lgkmcnt(0)")
        self.a_frags_from_stage(VAR, AF)
        A("s_waitcnt lgkmcnt(0)")
        self.mfmas(AF, BF, DT, 4, 4)
        self.d_to_lds(DT, 4, TMP, TMP + 1, VDW)
        A("s_waitcnt lgkmcnt(0)")
        self.bar()
        A("s_cmp_eq_u32 s3, 0")
        A(f"s_cbranch_scc0 {EX}")
        A(f"v_lshrrev_b32 v{TMP}, 3, v2")
        A(f"v_and_b32 v{TMP}, 1, v{TMP}")
        A(f"v_and_b32 v{TMP+1}, 7, v2")
        A(f"v_lshlrev_b32 v{TMP+2}, 8, v{TMP}")
        A(f"v_lshl_add_u32 v{TMP+2}, v{TMP+1}, 4, v{TMP+2}")
        GT = AF
        for j in range(4):
            A(f"ds_read_b128 v[{AF+4*j}:{AF+4*j+3}], v{TMP+2} offset:{L_D + j*512}")
            A(f"ds_read_b128 v[{DT+4*j}:{DT+4*j+3}], v{TMP+2} offset:{L_D + j*512 + 128}")
        A(f"v_lshlrev_b32 v{TMP+3}, 6, v{TMP}")
        A(f"v_lshl_add_u32 v{TMP+3}, v{TMP+1}, 3, v{TMP+3}")
        A("s_waitcnt lgkmcnt(0)")
        for base in (AF, DT):
            for k in range(4):
                A(f"v_add_f32 v{base+k}, v{base+k}, v{base+4+k}")
                A(f"v_add_f32 v{base+8+k}, v{base+8+k}, v{base+12+k}")
            for k in range(4):
                A(f"v_add_f32 v{base+k}, v{base+k}, v{base+8+k}")
            self.rnd2(base, base + 1, base + 4)
            self.rnd2(base + 2, base + 3, base + 5)
        A(f"s_mov_b32 s58, {f32(-LOG2E)}")
        for k in range(4):
            A(f"v_mul_f32 v{AF+4+k}, s58, v{AF+k}")
        for k in range(4):
            A(f"v_exp_f32 v{AF+4+k}, v{AF+4+k}")
        self.nop(1)
        for k in range(4):
            A(f"v_add_f32 v{AF+4+k}, 1.0, v{AF+4+k}")
        for k in range(4):
            A(f"v_rcp_f32 v{AF+4+k}, v{AF+4+k}")
        self.nop(1)
        for k in range(4):
            A(f"v_mul_f32 v{AF+k}, v{AF+k}, v{AF+4+k}")
        self.rnd2(AF, AF + 1, AF + 4)
        self.rnd2(AF + 2, AF + 3, AF + 5)
        for k in range(4):
            A(f"v_mul_f32 v{AF+k}, v{AF+k}, v{DT+k}")
        A(f"v_cvt_pk_bf16_f32 v{AF+8}, v{AF}, v{AF+1}")
        A(f"v_cvt_pk_bf16_f32 v{AF+9}, v{AF+2}, v{AF+3}")
        A(f"v_min_u32 v{AF+8}, -2, v{AF+8}")
        A(f"v_min_u32 v{AF+9}, -2, v{AF+9}")
        self.nop(1)
        A(f"v_mov_b32_dpp v{AF+10}, v{AF+8} quad_perm:[1,1,3,3] row_mask:0xf bank_mask:0xf")
        A(f"v_mov_b32_dpp v{AF+11}, v{AF+9} quad_perm:[1,1,3,3] row_mask:0xf bank_mask:0xf")
        A("s_mov_b64 exec, 0x5555")
        A(f"buffer_store_dwordx4 v[{AF+8}:{AF+11}], v{TMP+3}, s[84:87], s60 offen sc1")
        self.stamp(9)
        A(f"s_branch {EX}")

        L("L_tail_dn")
        A("s_cmp_eq_u32 s3, 0")
        A("s_cbranch_scc0 L_dn_hh")
        regs = [DAF + 4 * i for i in range(8)]
        self.poll_multi([([f"s_add_u32 s54, s56, {hg*4096}", f"buffer_load_dwordx4 v[{regs[hg]}:{regs[hg]+3}], v15, s[84:87], s54 offen sc1"],
                          [regs[hg] + k for k in range(4)]) for hg in range(8)], DAF + 32)
        self.unpack2(16, DAF + 32, DAF + 33)
        self.unpack2(17, DAF + 34, DAF + 35)
        self.unpack2(18, DAF + 36, DAF + 37)
        self.unpack2(19, DAF + 38, DAF + 39)
        self.sum8_x1(regs, DAF + 40, DAF + 32, DAF + 36, 22)
        A(f"v_cvt_pk_bf16_f32 v10, v{DAF+40}, v{DAF+41}")
        A(f"v_cvt_pk_bf16_f32 v11, v{DAF+42}, v{DAF+43}")
        L("L_dn_hh")
        self.poll_multi([([f"buffer_load_dwordx4 v[{DAF+4*t}:{DAF+4*t+3}], v12, s[16:19], s57 offen offset:{t*128} sc1"],
                          [DAF + 4 * t + k for k in range(4)]) for t in range(11)], 22)
        self.stamp(8)
        self.mfmas(DAF, DBF, DDT, 11, 2)
        self.d_to_lds(DDT, 2, 22, 23, VDW)
        A("s_waitcnt lgkmcnt(0)")
        self.bar()
        A("s_cmp_eq_u32 s3, 0")
        A(f"s_cbranch_scc0 {EX}")
        A("v_lshlrev_b32 v22, 8, v13")
        A("v_lshl_add_u32 v22, v14, 4, v22")
        F = DAF
        for j in range(4):
            A(f"ds_read_b128 v[{F+4*j}:{F+4*j+3}], v22 offset:{L_D + j*512}")
        self.unpack2(20, F + 16, F + 17)
        self.unpack2(21, F + 18, F + 19)
        self.unpack2(10, F + 20, F + 21)
        self.unpack2(11, F + 22, F + 23)
        A("v_lshlrev_b32 v23, 10, v13")
        A("v_lshl_add_u32 v23, v14, 3, v23")
        A("s_lshl_b32 s54, s59, 6")
        A("s_waitcnt lgkmcnt(0)")
        for k in range(4):
            A(f"v_add_f32 v{F+k}, v{F+k}, v{F+4+k}")
            A(f"v_add_f32 v{F+8+k}, v{F+8+k}, v{F+12+k}")
        for k in range(4):
            A(f"v_add_f32 v{F+k}, v{F+k}, v{F+8+k}")
        self.rnd2(F, F + 1, F + 4)
        self.rnd2(F + 2, F + 3, F + 5)
        for k in range(4):
            A(f"v_mul_f32 v{F+k}, v{F+k}, v{F+16+k}")
        self.rnd2(F, F + 1, F + 4)
        self.rnd2(F + 2, F + 3, F + 5)
        for k in range(4):
            A(f"v_add_f32 v{F+k}, v{F+k}, v{F+20+k}")
        A(f"v_cvt_pk_bf16_f32 v{F+8}, v{F}, v{F+1}")
        A(f"v_cvt_pk_bf16_f32 v{F+9}, v{F+2}, v{F+3}")
        A("s_mov_b64 exec, 0xffff")
        A(f"buffer_store_dwordx2 v[{F+8}:{F+9}], v23, s[72:75], s54 offen")
        self.stamp(9)
        A(f"s_branch {EX}")

    def d_sum(self, G, TT, t):
        A = self.A
        A(f"v_and_b32 v{t}, 1, v{G}")
        A(f"v_lshlrev_b32 v{t}, 8, v{t}")
        A(f"v_lshl_add_u32 v{t}, v{TT}, 4, v{t}")
        for j in range(4):
            A(f"ds_read_b128 v[{t+4+4*j}:{t+7+4*j}], v{t} offset:{L_D + j*512}")
        A("s_waitcnt lgkmcnt(0)")
        for k in range(4):
            A(f"v_add_f32 v{t+4+k}, v{t+4+k}, v{t+8+k}")
            A(f"v_add_f32 v{t+12+k}, v{t+12+k}, v{t+16+k}")
        for k in range(4):
            A(f"v_add_f32 v{t+4+k}, v{t+4+k}, v{t+12+k}")

    def sum8_x1(self, regs, X1, XV, GAV, t):
        A = self.A
        for a, b in ((0, 1), (2, 3), (4, 5), (6, 7), (0, 2), (4, 6)):
            for k in range(4):
                A(f"v_add_f32 v{regs[a]+k}, v{regs[a]+k}, v{regs[b]+k}")
        for k in range(4):
            A(f"v_add_f32 v{X1+k}, v{regs[0]+k}, v{regs[4]+k}")
        self.rnd2(X1, X1 + 1, t)
        self.rnd2(X1 + 2, X1 + 3, t + 1)
        for k in range(4):
            A(f"v_mul_f32 v{X1+k}, v{X1+k}, v{GAV+k}")
        self.rnd2(X1, X1 + 1, t)
        self.rnd2(X1 + 2, X1 + 3, t + 1)
        for k in range(4):
            A(f"v_add_f32 v{X1+k}, v{X1+k}, v{XV+k}")
        self.rnd2(X1, X1 + 1, t)
        self.rnd2(X1 + 2, X1 + 3, t + 1)

    def ln_norm(self, S1, S2, X, U0, U1):
        A = self.A
        A(f"s_mov_b32 s58, {f32(1.0/512)}")
        A(f"v_mul_f32 v{S1}, s58, v{S1}")
        A(f"v_mul_f32 v{S2}, s58, v{S2}")
        A(f"v_fma_f32 v{S2}, -v{S1}, v{S1}, v{S2}")
        A(f"v_max_f32 v{S2}, 0, v{S2}")
        self.rnd2(S1, S2, U0)
        A(f"v_add_f32 v{S2}, {f32(1e-5)}, v{S2}")
        self.rnd1(S2)
        A(f"v_sqrt_f32 v{S2}, v{S2}")
        for k in range(4):
            A(f"v_sub_f32 v{X+k}, v{X+k}, v{S1}")
        self.rnd1(S2)
        A(f"v_rcp_f32 v{S2}, v{S2}")
        self.rnd2(X, X + 1, U0)
        self.rnd2(X + 2, X + 3, U1)
        for k in range(4):
            A(f"v_mul_f32 v{X+k}, v{X+k}, v{S2}")
        self.rnd2(X, X + 1, U0)
        self.rnd2(X + 2, X + 3, U1)

    def modulate(self, N, T4, sp0, sp1, t0, w, VAW):
        A = self.A
        for k in range(4):
            A(f"v_mul_f32 v{N+k}, v{N+k}, v{T4+k}")
        self.rnd2(N, N + 1, t0)
        self.rnd2(N + 2, N + 3, t0 + 1)
        self.unpack2(sp0, w, w + 1)
        self.unpack2(sp1, w + 2, w + 3)
        for k in range(4):
            A(f"v_add_f32 v{N+k}, v{N+k}, v{w+k}")
        A(f"v_cvt_pk_bf16_f32 v{w+4}, v{N}, v{N+1}")
        A(f"v_cvt_pk_bf16_f32 v{w+5}, v{N+2}, v{N+3}")
        A(f"ds_write_b64 v{VAW}, v[{w+4}:{w+5}]")


HEADER = open("cdna_kernels/%s.s.ref" % NAME).read().split("; Override launch geometry")[0] if True else ""

if __name__ == "__main__":
    import argparse
    ap = argparse.ArgumentParser()
    ap.add_argument("-o", default="k.s")
    ap.add_argument("--R", type=int, default=3)
    ap.add_argument("--B", type=int, default=32)
    ap.add_argument("--stamps", action="store_true")
    ap.add_argument("--sleep", type=int, default=1)
    ap.add_argument("--NS", type=int, default=12)
    ap.add_argument("--R0", type=int, default=3)
    ap.add_argument("--grp", default="iod")
    ap.add_argument("--CP", type=int, default=0)
    ap.add_argument("--dbg", default="")
    ap.add_argument("--pace", type=int, default=0)
    ap.add_argument("--tpol", default="nt")
    ap.add_argument("--xmap", action="store_true")
    ap.add_argument("--flagq", action="store_true")
    ap.add_argument("--TH", type=int, default=480)
    ap.add_argument("--kvpol", default="nt")
    ap.add_argument("--dry", action="store_true")
    ap.add_argument("--pm", action="store_true")
    ap.add_argument("--rot", type=int, default=0)
    ap.add_argument("--H", type=int, default=1)
    ap.add_argument("--px", type=int, default=33)
    ap.add_argument("--egw", type=int, default=0)
    ap.add_argument("--cstr", type=int, default=4224)
    ap.add_argument("--ps1", type=int, default=1)
    ap.add_argument("--ps2", type=int, default=1)
    a = ap.parse_args()
    B = a.B
    if a.stamps and B > 32:
        B = 32
    g = Gen(R=a.R, B=B, stamps=a.stamps, sleep=a.sleep, NS=a.NS, R0=a.R0, grp=a.grp, CP=a.CP, dbg=a.dbg, pace=a.pace, tpol=a.tpol, xmap=a.xmap, flagq=a.flagq, ps1=a.ps1, ps2=a.ps2, TH=a.TH, kvpol=a.kvpol, dry=a.dry, pm=a.pm, rot=a.rot, H=a.H, cstr=a.cstr, egw=a.egw, px=a.px)
    open(a.o, "w").write(HEADER + g.build())
```

```python
import sys, struct

NAME = "adaLN_cond__mha_block_cached__glu_gated_swiglu__decode"

def f32(x):
    return "0x%08x" % struct.unpack("<I", struct.pack("<f", x))[0]

LOG2E = 1.4426950408889634
SCALE = 128 ** -0.5

MOD_OFF = 0x0000
Q_OFF = 0x8000
PART_OFF = 0x10000
ATT_OFF = 0x90000
HH_OFF = 0x98000
CNT_OFF = 0x9A000
CTR_OFF = 0x100000
WS_USED = 0x9C000
STAMP_OFF = 0x10000000
L_A = 0
L_D = L_A + 2048
L_ST = L_D + 2048
L_Q = L_ST + 64
L_Z = L_Q + 512
L_CNT = L_Z
L_QF = L_Z + 16
L_NEED = L_Z + 32
L_RL = L_Z + 256
L_ML = L_Z + 512
L_P = 5376
L_W = L_P + 16384
LDS_BYTES = L_W + 90112
assert L_ML + 128 <= L_P and L_P % 128 == 0

R_MOD0, R_Q0, R_WO0, R_WO1, R_UP0, R_UP1, R_DN0 = 0, 48, 112, 176, 192, 235, 240
SENT = 0xFFFFFFFF


class Gen:
    def __init__(self, R=3, B=32, stamps=False, NS=12, sleep=1, R0=3, grp='iod', CP=0, dbg='', pace=0, tpol='nt', xmap=False, flagq=False, ps1=1, ps2=1, TH=480, kvpol='nt', dry=False, pm=False, rot=0, H=1, cstr=4224, egw=0, px=33):
        self.o = []
        self.R, self.B, self.stamps, self.NS, self.sleep, self.R0, self.grp = R, B, stamps, NS, sleep, R0, grp
        self.uid = 0
        self.CP = CP
        self.dbg = dbg
        self.px = px
        self.egw = egw
        self.cstr = cstr
        self.H = H
        self.rot = rot
        self.pm = pm
        self.dry = dry
        self.kvpol = kvpol
        self.TH = TH
        self.ps1, self.ps2 = ps1, ps2
        self.pace, self.tpol, self.xmap, self.flagq = pace, tpol, xmap, flagq

    def A(self, s):
        self.o.append("    " + s)

    def L(self, s):
        self.o.append(s + ":")

    def lab(self, p):
        self.uid += 1
        return f"L_{p}_{self.uid}"

    def nop(self, n):
        while n > 0:
            k = min(n, 16)
            self.A(f"s_nop {k-1}")
            n -= k

    def srd(self, d, b, nbytes):
        self.A(f"s_mov_b32 s{d}, s{b}")
        self.A(f"s_mov_b32 s{d+1}, s{b+1}")
        self.A(f"s_mov_b32 s{d+2}, {nbytes}")
        self.A(f"s_mov_b32 s{d+3}, 0x20000")

    def stamp(self, idx, src=None, wave=False):
        if not self.stamps:
            return
        A = self.A
        if src is None:
            A("s_memrealtime s[90:91]")
        else:
            A(f"s_mov_b64 s[90:91], {src}")
        A("s_mov_b64 s[92:93], exec")
        A("s_mov_b64 exec, 1")
        A("s_lshl_b32 s94, s2, 9")
        if wave:
            A("s_lshl_b32 s95, s3, 5")
            A("s_add_u32 s94, s94, s95")
        A(f"s_add_u32 s94, s94, {STAMP_OFF + idx*8}")
        A("s_waitcnt lgkmcnt(0)")
        A("v_mov_b32 v166, s90")
        A("v_mov_b32 v167, s91")
        A("buffer_store_dwordx2 v[166:167], off, s[84:87], s94")
        A("s_mov_b64 exec, s[92:93]")

    def rnd2(self, a, b, t):
        self.A(f"v_cvt_pk_bf16_f32 v{t}, v{a}, v{b}")
        self.A(f"v_lshlrev_b32 v{a}, 16, v{t}")
        self.A(f"v_and_b32 v{b}, 0xffff0000, v{t}")

    def rnd1(self, a):
        self.A(f"v_cvt_pk_bf16_f32 v{a}, v{a}, v{a}")
        self.A(f"v_and_b32 v{a}, 0xffff0000, v{a}")

    def unpack2(self, src, lo, hi):
        self.A(f"v_lshlrev_b32 v{lo}, 16, v{src}")
        self.A(f"v_and_b32 v{hi}, 0xffff0000, v{src}")

    def allred32(self, regs, tmps):
        A = self.A
        for rot in (8, 4, 2, 1):
            self.nop(2 if len(regs) < 2 else max(0, 2 - (len(regs) - 1)))
            for r in regs:
                A(f"v_add_f32_dpp v{r}, v{r}, v{r} row_ror:{rot} row_mask:0xf bank_mask:0xf")
        for r, t in zip(regs, tmps):
            A(f"v_mov_b32 v{t}, v{r}")
        self.nop(2)
        for r, t in zip(regs, tmps):
            A(f"v_permlane16_swap_b32 v{r}, v{t}")
        self.nop(1)
        for r, t in zip(regs, tmps):
            A(f"v_add_f32 v{r}, v{r}, v{t}")

    def slice_of(self, dst, r0, n):
        A = self.A
        A(f"s_sub_u32 s{dst}, s89, {r0}")
        if not self.xmap:
            return
        q, rem = divmod(n, 8)
        A(f"s_and_b32 s68, s{dst}, 7")
        A(f"s_lshr_b32 s{dst}, s{dst}, 3")
        A(f"s_min_u32 s69, s68, {rem}")
        A(f"s_mul_i32 s68, s68, {q}")
        A(f"s_add_u32 s{dst}, s{dst}, s68")
        A(f"s_add_u32 s{dst}, s{dst}, s69")

    def dstamp(self, word):
        if "dtime" not in self.dbg:
            return
        A = self.A
        A("s_memrealtime s[90:91]")
        A("s_mov_b64 s[92:93], exec")
        A("s_mov_b64 exec, 1")
        A("s_waitcnt lgkmcnt(0)")
        A("s_sub_u32 s90, s90, s80")
        A("v_mov_b32 v166, s90")
        A(f"buffer_atomic_umax v166, off, s[76:79], 0 offset:{word*4} sc1")
        A("s_mov_b64 exec, s[92:93]")

    def bar(self):
        if not self.dry:
            self.A("s_barrier")
            return
        l = self.lab("nb")
        self.A("s_cmp_eq_u32 s69, 0")
        self.A(f"s_cbranch_scc0 {l}")
        self.A("s_barrier")
        self.L(l)

    def poll_head(self):
        l = self.lab("poll")
        self.L(l)
        return l

    def poll_tail(self, l, sleep=None):
        A = self.A
        d = self.lab("pdone")
        A(f"s_cbranch_vccz {d}")
        A("s_cmp_eq_u32 s88, 0")
        A(f"s_cbranch_scc1 {d}")
        A("s_sub_u32 s88, s88, 1")
        if (self.sleep if sleep is None else sleep):
            A(f"s_sleep {self.sleep if sleep is None else sleep}")
        A(f"s_branch {l}")
        self.L(d)

    def poll_multi(self, loads, t):
        A, L = self.A, self.L
        n = len(loads)
        if not self.pm:
            pl = self.poll_head()
            for lines, regs in loads:
                for x in lines:
                    A(x)
            A("s_waitcnt vmcnt(0)")
            self.check_sent([r for lines, regs in loads for r in regs], t)
            self.poll_tail(pl)
            return
        A(f"s_mov_b32 s95, {(1 << n) - 1}")
        first = True
        top = self.lab("mp")
        done = self.lab("mpd")
        for lines, regs in loads:
            for x in lines:
                A(x)
        chk = self.lab("mpc")
        A(f"s_branch {chk}")
        L(top)
        for r, (lines, regs) in enumerate(loads):
            sk = self.lab("mps")
            A(f"s_bitcmp1_b32 s95, {r}")
            A(f"s_cbranch_scc0 {sk}")
            for x in lines:
                A(x)
            L(sk)
        L(chk)
        A("s_waitcnt vmcnt(0)")
        for r, (lines, regs) in enumerate(loads):
            sk = self.lab("mpk")
            A(f"s_bitcmp1_b32 s95, {r}")
            A(f"s_cbranch_scc0 {sk}")
            self.check_sent(regs, t)
            A(f"s_cbranch_vccnz {sk}")
            A(f"s_bitset0_b32 s95, {r}")
            L(sk)
        A("s_cmp_eq_u32 s95, 0")
        A(f"s_cbranch_scc1 {done}")
        A("s_cmp_eq_u32 s88, 0")
        A(f"s_cbranch_scc1 {done}")
        A("s_sub_u32 s88, s88, 1")
        if self.sleep:
            A(f"s_sleep {self.sleep}")
        A(f"s_branch {top}")
        L(done)

    def check_sent(self, regs, t):
        A = self.A
        regs = list(regs)
        if len(regs) >= 3:
            A(f"v_max3_u32 v{t}, v{regs[0]}, v{regs[1]}, v{regs[2]}")
            regs = regs[3:]
        else:
            A(f"v_max_u32 v{t}, v{regs[0]}, v{regs[1]}")
            regs = regs[2:]
        while len(regs) >= 2:
            A(f"v_max3_u32 v{t}, v{t}, v{regs[0]}, v{regs[1]}")
            regs = regs[2:]
        if regs:
            A(f"v_max_u32 v{t}, v{t}, v{regs[0]}")
        A(f"v_cmp_eq_u32 vcc, -1, v{t}")

    def check_tags(self, regs, t):
        A = self.A
        A(f"v_xor_b32 v{t}, s80, v{regs[0]}")
        for r in regs[1:]:
            A(f"v_xor_b32 v{t+1}, s80, v{r}")
            A(f"v_or_b32 v{t}, v{t}, v{t+1}")
        A(f"v_cmp_ne_u32 vcc, 0, v{t}")

    def dma_weights(self, srd, nins, voff, row_step_bytes, lds_base_s, soff0=0, pol="nt", skip=""):
        A = self.A
        if "notaildma" in self.dbg and getattr(self, "intail", False):
            return
        if "noprodma" in self.dbg and not getattr(self, "intail", False):
            nins = 16
            A(f"s_mov_b32 s{srd+2}, 0")
        A(f"s_mov_b32 s70, {soff0}")
        A(f"s_add_u32 s71, s{lds_base_s}, {L_W}")
        intail = getattr(self, "intail", False)
        if intail:
            pol = self.tpol
            if skip and skip in self.dbg:
                return
        for i in range(nins):
            if intail and self.pace and i >= self.pace:
                A(f"s_waitcnt vmcnt({self.pace-1})")
            A("s_mov_b32 m0, s71")
            A(f"s_add_u32 s71, s71, 1024")
            A(f"buffer_load_dwordx4 v{voff}, s[{srd}:{srd+3}], s70 offen {pol} lds")
            A(f"s_add_u32 s70, s70, {row_step_bytes}")

    def tr_reads(self, vaddr, breg, nk, cgs, rowb):
        for t in range(nk):
            for ci, cgoff in enumerate(cgs):
                r = breg + (t * len(cgs) + ci) * 4
                off = t * 32 * rowb + cgoff
                self.A(f"ds_read_b64_tr_b16 v[{r}:{r+1}], v{vaddr} offset:{off}")
                self.A(f"ds_read_b64_tr_b16 v[{r+2}:{r+3}], v{vaddr} offset:{off + 4*rowb}")

    def mfmas(self, areg, breg, dreg, nk, ncg):
        for t in range(nk):
            for c in range(ncg):
                a = areg + 4 * t
                b = breg + (t * ncg + c) * 4
                d = dreg + 4 * c
                src = "0" if t == 0 else f"v[{d}:{d+3}]"
                self.A(f"v_mfma_f32_16x16x32_bf16 v[{d}:{d+3}], v[{a}:{a+3}], v[{b}:{b+3}], {src}")

    def d_to_lds(self, dreg, ncg, x0, x1, vaddr):
        A = self.A
        self.nop(8)
        for c in range(ncg):
            A(f"v_mov_b32_dpp v{x0}, v{dreg+4*c} quad_perm:[0,1,2,3] row_mask:{1<<c:#x} bank_mask:0xf")
            A(f"v_mov_b32_dpp v{x1}, v{dreg+4*c+1} quad_perm:[0,1,2,3] row_mask:{1<<c:#x} bank_mask:0xf")
        A(f"ds_write_b32 v{vaddr}, v{x0}")
        A(f"ds_write_b32 v{vaddr}, v{x1} offset:256")

    def a_frags_from_stage(self, vaddr, areg):
        for t in range(4):
            self.A(f"ds_read_b128 v[{areg+4*t}:{areg+4*t+3}], v{vaddr} offset:{t*64}")

    def build(self):
        A, L = self.A, self.L
        o = self.o
        o.append(f"; @launch grid=(256,1,1) block=(768,1,1) lds={LDS_BYTES}")
        o.append('.amdgcn_target "amdgcn-amd-amdhsa--gfx950"')
        o.append(".text")
        o.append(f".globl {NAME}_kernel")
        o.append(".p2align 8")
        o.append(f".type {NAME}_kernel,@function")
        L(f"{NAME}_kernel")
        if self.stamps:
            A("s_memrealtime s[100:101]")
        A("s_cmp_ge_u32 s2, 256")
        A("s_cbranch_scc1 L_end")
        A("s_load_dwordx4 s[4:7], s[0:1], 8")
        A("s_load_dwordx4 s[96:99], s[0:1], 96")
        A("v_lshrrev_b32 v1, 6, v0")
        A("v_and_b32 v2, 63, v0")
        A("v_readfirstlane_b32 s3, v1")
        if self.grp == "pair":
            A("s_and_b32 s40, s2, 7")
            A("s_lshr_b32 s40, s40, 1")
            A("s_lshr_b32 s43, s2, 4")
            A("s_lshl_b32 s43, s43, 2")
            A("s_add_u32 s40, s40, s43")
            A("s_and_b32 s41, s2, 1")
            A("s_lshr_b32 s43, s2, 3")
            A("s_and_b32 s43, s43, 1")
            A("s_lshl_b32 s43, s43, 1")
            A("s_add_u32 s41, s41, s43")
        else:
            A("s_lshr_b32 s41, s2, 1")
            A("s_xor_b32 s40, s41, s2")
            A("s_and_b32 s40, s40, 1")
            A("s_and_b32 s41, s41, 3")
            A("s_lshr_b32 s43, s2, 3")
            A("s_lshl_b32 s43, s43, 1")
            A("s_add_u32 s40, s40, s43")
        A("s_lshr_b32 s89, s40, 1")
        A("s_add_u32 s89, s89, s41")
        A("s_and_b32 s89, s89, 3")
        A("s_lshl_b32 s89, s89, 6")
        A("s_add_u32 s89, s89, s40")
        A("s_cmp_ge_u32 s3, 8")
        A("s_cbranch_scc1 L_helper")
        self.streamer()
        L("L_helper")
        self.helper()
        L("L_end")
        A("s_endpgm")
        o.append('.section .rodata,"a"')
        o.append(".p2align 6")
        o.append(f".amdhsa_kernel {NAME}_kernel")
        o.append("  .amdhsa_next_free_vgpr 168")
        o.append("  .amdhsa_next_free_sgpr 102")
        o.append("  .amdhsa_accum_offset 168")
        o.append("  .amdhsa_group_segment_fixed_size 0")
        o.append("  .amdhsa_kernarg_size 112")
        o.append("  .amdhsa_user_sgpr_count 2")
        o.append("  .amdhsa_user_sgpr_kernarg_segment_ptr 1")
        o.append("  .amdhsa_system_sgpr_workgroup_id_x 1")
        o.append(".end_amdhsa_kernel")
        return "\n".join(o) + "\n"

    def streamer(self):
        A, L = self.A, self.L
        R, B, NS, R0 = self.R, self.B, self.NS, self.R0
        VOFF, QF, MK, D, M, MN, LS = 1, 2, 6, 10, 14, 15, 16
        AC, T0, T1, S, PP = 17, 21, 22, 23, 24
        AS = 26
        LANE = 34
        EP, CLM = 35, 25
        RING = 168 - 4 * B - (2 if self.stamps else 0)
        RING -= RING % 2
        assert RING >= 36
        A(f"v_mov_b32 v{LANE}, v2")
        A("s_lshl_b32 s44, s41, 3")
        A("s_add_u32 s44, s44, s3")
        A("s_lshl_b32 s44, s44, 12")
        A(f"s_mul_i32 s45, s40, {self.rot}")
        A("s_lshl_b32 s45, s45, 15")
        A("s_add_u32 s44, s44, s45")
        A("s_lshl_b32 s33, s40, 21")
        A(f"v_lshlrev_b32 v{VOFF}, 4, v2")
        A("s_waitcnt lgkmcnt(0)")
        self.srd(8, 4, 0x8000000)
        self.srd(12, 6, 0x8000000)
        N = (NS - 1) * 8 + R
        NC = (NS - 1) * 8

        def issue(p):
            i, j = divmod(p, 8)
            t, j = divmod(j, 4)
            r = RING + 4 * (p % B)
            srd = "s[8:11]" if t == 0 else "s[12:15]"
            if j == 0 and t == 0:
                A(f"s_add_u32 s16, s44, {i * 32 * 4096}")
                A("s_and_b32 s16, s16, 0x1fffff")
                A("s_add_u32 s16, s16, s33")
                if self.stamps and i < 12:
                    A(f"s_memrealtime s[{48+2*i}:{49+2*i}]")
            A(f"buffer_load_dwordx4 v[{r}:{r+3}], v{VOFF}, {srd}, s16 offen offset:{j*1024} {self.kvpol}")

        for p in range(R0):
            issue(p)
        if self.stamps:
            A("s_memrealtime s[30:31]")
        self.srd(84, 98, 0x20000000)
        A("s_barrier")
        if self.H == 2:
            A(f"s_xor_b32 s43, s40, {self.px}")
            A("s_min_u32 s43, s43, s40")
            A(f"s_xor_b32 s39, s43, {self.px}")
            A("s_lshl_b32 s39, s39, 21")
        else:
            A("s_mov_b32 s43, s40")
        A("s_lshl_b32 s45, s43, 3")
        A("s_add_u32 s45, s45, s3")
        A(f"s_mul_i32 s45, s45, {self.cstr}")
        A(f"s_add_u32 s45, s45, {CTR_OFF}")
        A("s_lshl_b32 s42, s3, 12")
        A(f"s_mul_i32 s38, s43, {self.rot}")
        A("s_lshl_b32 s38, s38, 15")
        A("s_add_u32 s42, s42, s38")
        A("s_lshl_b32 s43, s43, 21")
        if self.H == 2:
            A("s_lshr_b32 s32, s40, 5")
        else:
            A("s_mov_b32 s32, 0")
        A("s_mov_b32 s28, s32")
        A("s_mov_b32 s29, s32")
        A("s_add_u32 s26, s98, s45")
        A("s_addc_u32 s27, s99, 0")
        A(f"v_and_b32 v{T0}, 15, v{LANE}")
        A(f"v_and_b32 v{T1}, 1, v{LANE}")
        A(f"v_lshlrev_b32 v{T1}, 4, v{T1}")
        A(f"s_mov_b32 s17, 0xffff")
        A(f"v_mov_b32 v{S}, s17")
        A(f"v_lshlrev_b32 v{T1}, v{T1}, v{S}")
        A(f"v_lshrrev_b32 v{T0}, 1, v{T0}")
        for k in range(4):
            A(f"v_cmp_eq_u32 vcc, {k}, v{T0}")
            self.nop(2)
            A(f"v_cndmask_b32 v{MK+k}, 0, v{T1}, vcc")
        for k in range(4):
            A(f"v_mov_b32 v{D+k}, 0")
        A(f"v_mov_b32 v{M}, {f32(-3.0e38)}")
        A(f"v_mov_b32 v{MN}, 0")
        A(f"v_mov_b32 v{LS}, 0")
        A(f"v_and_b32 v35, 15, v{LANE}")
        A(f"v_lshlrev_b32 v35, 5, v35")
        A(f"v_lshrrev_b32 v{T1}, 4, v{LANE}")
        A(f"v_and_b32 v{S}, 1, v{T1}")
        A(f"v_lshl_add_u32 v35, v{S}, 4, v35")
        A(f"v_lshrrev_b32 v{T1}, 1, v{T1}")
        A(f"v_lshl_add_u32 v35, v{T1}, 9, v35")
        A("s_lshl_b32 s20, s3, 10")
        A(f"v_add_u32 v35, s20, v35")
        A("s_lshl_b32 s20, s3, 3")
        A(f"v_mov_b32 v25, s20")
        A(f"s_mov_b32 s18, {f32(SCALE)}")
        A(f"s_mov_b32 s19, {f32(LOG2E)}")
        for p in range(R0, B):
            A(f"s_waitcnt vmcnt({R0-1 if p < 8 else R-1})")
            issue(p)
        self.stamp(1)
        self.stamp(11, "s[100:101]")
        self.stamp(12, "s[30:31]")
        A(f"v_and_b32 v{T0}, 15, v{LANE}")
        A(f"v_lshlrev_b32 v{T0}, 4, v{T0}")
        A("s_lshl_b32 s20, s32, 8")
        A(f"v_add_u32 v{T0}, s20, v{T0}")
        if not self.flagq:
            A("s_barrier")
            A(f"ds_read_b128 v[{QF}:{QF+3}], v{T0} offset:{L_Q}")
            A("s_waitcnt lgkmcnt(0)")
        else:
            A(f"v_mov_b32 v{T1}, 0")
            A("s_mov_b32 s88, 0x400000")
            pl = self.poll_head()
            A(f"ds_read_b32 v{AS}, v{T1} offset:{L_QF}")
            A(f"ds_read_b128 v[{QF}:{QF+3}], v{T0} offset:{L_Q}")
            A("s_waitcnt lgkmcnt(0)")
            A(f"v_cmp_eq_u32 vcc, 0, v{AS}")
            self.poll_tail(pl, sleep=1)
        if self.stamps:
            A("s_waitcnt vmcnt(0)")
        beta = [0, 2, 1, 3]
        st = {"I": B, "landed": (B if self.stamps else B - R)}

        def need(c):
            if c >= st["landed"]:
                A(f"s_waitcnt vmcnt({st['I'] - 1 - c})")
                st["landed"] = c + 1

        def paced_issue():
            I = st["I"]
            if I >= N:
                return
            if I - st["landed"] >= R:
                A(f"s_waitcnt vmcnt({R-1})")
                st["landed"] = I - (R - 1)
            issue(I)
            st["I"] = I + 1

        def consume(c):
            i, j = divmod(c, 8)
            t, j = divmod(j, 4)
            r = RING + 4 * (c % B)
            need(c)
            if "nocomp" in self.dbg:
                A(f"v_xor_b32 v{AC}, v{AC}, v{r}")
            elif t == 0:
                A(f"v_dot2_f32_bf16 v{AC+j}, v{r}, v{QF}, 0")
                for k in range(1, 4):
                    A(f"v_dot2_f32_bf16 v{AC+j}, v{r+k}, v{QF+k}, v{AC+j}")
            else:
                a = AS + 4 * (j & 1)
                for k in range(4):
                    A(f"v_and_b32_dpp v{a+k}, v{PP}, v{MK+k} row_newbcast:{4*beta[j]} row_mask:0xf bank_mask:0xf")
                self.nop(2)
                A(f"v_mfma_f32_16x16x32_bf16 v[{D}:{D+3}], v[{a}:{a+3}], v[{r}:{r+3}], v[{D}:{D+3}]")

        def softmax():
            if "nocomp" in self.dbg:
                return
            self.nop(3)
            A(f"v_add_f32_dpp v{T0}, v{AC}, v{AC} row_ror:8 row_mask:0xf bank_mask:0x3")
            A(f"v_add_f32_dpp v{T1}, v{AC+2}, v{AC+2} row_ror:8 row_mask:0xf bank_mask:0x3")
            A(f"v_add_f32_dpp v{T0}, v{AC+1}, v{AC+1} row_ror:8 row_mask:0xf bank_mask:0xc")
            A(f"v_add_f32_dpp v{T1}, v{AC+3}, v{AC+3} row_ror:8 row_mask:0xf bank_mask:0xc")
            self.nop(1)
            A(f"v_add_f32_dpp v{S}, v{T0}, v{T0} row_shl:4 row_mask:0xf bank_mask:0x5")
            A(f"v_add_f32_dpp v{S}, v{T1}, v{T1} row_shr:4 row_mask:0xf bank_mask:0xa")
            self.nop(2)
            A(f"v_add_f32_dpp v{S}, v{S}, v{S} quad_perm:[2,3,0,1] row_mask:0xf bank_mask:0xf")
            self.nop(2)
            A(f"v_add_f32_dpp v{S}, v{S}, v{S} quad_perm:[1,0,3,2] row_mask:0xf bank_mask:0xf")
            self.rnd1(S)
            A(f"v_mul_f32 v{S}, s18, v{S}")
            self.rnd1(S)
            A(f"v_cmp_gt_f32 vcc, v{S}, v{M}")
            bk = self.lab("back")
            A(f"s_cbranch_vccz {bk}")
            A("s_call_b64 s[46:47], L_rare")
            L(bk)
            A(f"v_fma_f32 v{T0}, v{S}, s19, v{MN}")
            A(f"v_exp_f32 v{T0}, v{T0}")
            self.nop(1)
            A(f"v_add_f32 v{LS}, v{LS}, v{T0}")
            A(f"v_cvt_pk_bf16_f32 v{PP}, v{T0}, v{T0}")
            self.nop(2)

        c = 0
        while c < NC:
            lag = st["I"] - c
            ncons = 2 if lag > R + 1 else 1
            if st["I"] < N and st["I"] - B < c and lag <= R:
                paced_issue()
            for _ in range(ncons):
                if c >= NC:
                    break
                consume(c)
                c += 1
                if c % 8 == 4:
                    softmax()
            if st["I"] < N and st["I"] - B < c and (st["I"] - c) > R:
                paced_issue()
        assert st["I"] == N, (st, N)
        base = (NS - 1) * 8
        alt = (base + 8) % B
        st["landed"] = 1 << 30

        def ld(pos, sl, soff):
            t, jl = divmod(pos, 4)
            r = RING + 4 * (sl % B)
            srd = "s[8:11]" if t == 0 else "s[12:15]"
            A(f"buffer_load_dwordx4 v[{r}:{r+3}], v{VOFF}, {srd}, {soff} offen offset:{jl*1024} {self.kvpol}")

        CP = self.CP

        def claim():
            if "fake" in self.dbg:
                A("s_add_u32 s39, s39, 4")
                A("s_mov_b32 s24, s39")
                if "fakeld" in self.dbg:
                    A("s_load_dword s38, s[26:27], 0 glc")
                if "fakeat" in self.dbg:
                    A("s_mov_b32 s38, 1")
                    A("s_atomic_add s38, s[26:27], 0 glc")
                return
            A("s_mov_b32 s24, 1")
            A("s_atomic_add s24, s[26:27], 0 glc")

        def eat(sl, j_from, younger):
            for j in range(j_from, 8):
                A(f"s_waitcnt vmcnt({younger + 7 - j})")
                consume(sl + j)
                if j == 3:
                    softmax()

        CX = RING + 4 * ((base + 16) % B)
        ACT = [QF, QF + 1, QF + 2, QF + 3, D, D + 1, D + 2, D + 3, M, MN, LS]
        SAV = [CX + k for k in range(11)]
        self.ctx = (ACT, SAV)
        if self.H == 2:
            A(f"v_and_b32 v{T0}, 15, v{LANE}")
            A(f"v_lshlrev_b32 v{T0}, 4, v{T0}")
            A("s_xor_b32 s20, s32, 1")
            A("s_lshl_b32 s20, s20, 8")
            A(f"v_add_u32 v{T0}, s20, v{T0}")
            A(f"ds_read_b128 v[{CX}:{CX+3}], v{T0} offset:{L_Q}")
            for k in range(4, 8):
                A(f"v_mov_b32 v{CX+k}, 0")
            A(f"v_mov_b32 v{CX+8}, {f32(-3.0e38)}")
            A(f"v_mov_b32 v{CX+9}, 0")
            A(f"v_mov_b32 v{CX+10}, 0")

        def decode(dst, hd, src=24):
            if self.H == 1:
                A(f"s_lshl_b32 s{dst}, s{src}, 15")
                A(f"s_add_u32 s{dst}, s{dst}, s42")
                if self.rot:
                    A(f"s_and_b32 s{dst}, s{dst}, 0x1fffff")
                A(f"s_add_u32 s{dst}, s{dst}, s43")
                return
            A(f"s_and_b32 s{hd}, s{src}, 1")
            A(f"s_lshr_b32 s{dst}, s{src}, 1")
            A(f"s_lshl_b32 s{dst}, s{dst}, 15")
            A(f"s_add_u32 s{dst}, s{dst}, s42")
            A(f"s_mul_i32 s21, s{hd}, {((32 * self.rot) & 63) << 15}")
            A(f"s_add_u32 s{dst}, s{dst}, s21")
            A(f"s_and_b32 s{dst}, s{dst}, 0x1fffff")
            A(f"s_lshl_b32 s21, s{hd}, 26")
            A(f"s_add_u32 s{dst}, s{dst}, s21")
            A(f"s_add_u32 s{dst}, s{dst}, s43")

        def switch(hd):
            if self.H == 1:
                return
            l = self.lab("nosw")
            A(f"s_cmp_eq_u32 s32, s{hd}")
            A(f"s_cbranch_scc1 {l}")
            A("s_call_b64 s[46:47], L_swap")
            L(l)

        if self.stamps:
            A("s_mov_b32 s78, 0")
            A("s_mov_b32 s79, 0")
        j0 = 8 - R
        assert CP < j0
        RLA, RLV, NDV, ZA = CX + 12, CX + 13, CX + 14, CX + 15
        END = 64 * self.H + 1
        A(f"v_mov_b32 v{RLA}, 0")
        A(f"v_mov_b32 v{ZA}, 0")
        A(f"v_mov_b32 v{NDV}, 1")
        A(f"ds_max_u32 v{ZA}, v{NDV} offset:{L_NEED}")
        if self.H == 1:
            A("s_sub_u32 s42, s42, 0x8000")
            A("s_add_u32 s42, s42, s43")
        else:
            A("s_add_u32 s43, s43, s42")
            A("s_add_u32 s39, s39, s42")

        def rl_read():
            A(f"ds_read_b32 v{RLV}, v{RLA} offset:{L_RL}")

        def rl_get():
            got = self.lab("got")
            A("s_waitcnt lgkmcnt(0)")
            A(f"v_readfirstlane_b32 s24, v{RLV}")
            A("s_cmp_lg_u32 s24, 0")
            A(f"s_cbranch_scc1 {got}")
            A("s_call_b64 s[46:47], L_rlspin")
            L(got)

        def rl_next(dst, hd):
            A(f"v_add_u32 v{NDV}, 1, v{NDV}")
            A(f"v_add_u32 v{RLA}, 4, v{RLA}")
            A(f"ds_max_u32 v{ZA}, v{NDV} offset:{L_NEED}")
            if self.H == 1:
                A(f"s_lshl_b32 s{dst}, s24, 15")
                A(f"s_add_u32 s{dst}, s{dst}, s42")
            else:
                A("s_sub_u32 s24, s24, 1")
                A(f"s_and_b32 s{hd}, s24, 1")
                A("s_cselect_b32 s21, s39, s43")
                A(f"s_lshr_b32 s{dst}, s24, 1")
                A(f"s_lshl_b32 s{dst}, s{dst}, 15")
                A(f"s_add_u32 s{dst}, s{dst}, s21")

        L("L_dyn")
        if self.stamps:
            A("s_add_u32 s78, s78, 1")
        switch(28)
        for j in range(8):
            if j == j0 - 1:
                rl_read()
            if j == j0:
                if self.stamps:
                    A("s_memrealtime s[34:35]")
                rl_get()
                if self.stamps:
                    A("s_mov_b32 m0, s78")
                    A("v_writelane_b32 v36, s34, m0")
                    A("s_add_u32 m0, s78, 32")
                    A("s_sub_u32 s35, s24, 1")
                    A("v_writelane_b32 v36, s35, m0")
                A(f"s_cmp_ge_u32 s24, {self.TH * self.H // 8 + 1}")
                A("s_cbranch_scc1 L_fin")
                rl_next(16, 28)
            A(f"s_waitcnt vmcnt({R-1})")
            jj = j + R
            ld(jj % 8, base + jj % 8, "s16")
            consume(base + j)
            if j == 3:
                softmax()
        A("s_branch L_dyn")
        L("L_rlspin")
        pl = self.poll_head()
        rl_read()
        A("s_waitcnt lgkmcnt(0)")
        A(f"v_cmp_eq_u32 vcc, 0, v{RLV}")
        self.poll_tail(pl, sleep=1)
        A(f"v_readfirstlane_b32 s24, v{RLV}")
        A("s_cmp_eq_u32 s24, 0")
        A(f"s_cselect_b32 s24, {END}, s24")
        A("s_setpc_b64 s[46:47]")
        L("L_fin")
        if self.stamps:
            A("s_memrealtime s[76:77]")
        if self.TH < 512:
            A(f"s_cmp_ge_u32 s24, {END}")
            A("s_cbranch_scc1 L_fin_last")
            rl_next(25, 29)
            for jj in range(8):
                ld(jj, alt + jj, "s25")
            eat(base, j0, 8)
            for (P, Q, hp, hq, me) in ((alt, base, 29, 28, "A"), (base, alt, 28, 29, "B")):
                L(f"L_eg{me}")
                if self.egw:
                    A(f"s_waitcnt vmcnt({8 - self.egw})")
                rl_read()
                rl_get()
                A(f"s_cmp_ge_u32 s24, {END}")
                A(f"s_cbranch_scc1 L_drain{me}")
                rl_next(25, hq)
                for jj in range(8):
                    ld(jj, Q + jj, "s25")
                switch(hp)
                eat(P, 0, 8)
                if me == "B":
                    A("s_branch L_egA")
            L("L_drainA")
            switch(29)
            eat(alt, 0, 0)
            A("s_branch L_done")
            L("L_drainB")
            switch(28)
            eat(base, 0, 0)
            A("s_branch L_done")
            L("L_fin_last")
        eat(base, j0, 0)
        L("L_done")
        self.stamp(2)
        if self.stamps:
            A("s_lshl_b32 s36, s2, 11")
            A("s_lshl_b32 s37, s3, 8")
            A("s_add_u32 s36, s36, s37")
            A(f"s_add_u32 s36, s36, {STAMP_OFF + 0x40000}")
            A(f"v_lshlrev_b32 v37, 2, v{LANE}")
            A("buffer_store_dword v36, v37, s[84:87], s36 offen")
        self.stamp(32, wave=True)
        self.stamp(33, "s[76:77]", wave=True)
        self.stamp(34, "s[78:79]", wave=True)
        if self.stamps:
            A("s_cmp_eq_u32 s3, 0")
            A("s_cbranch_scc0 L_noprof")
            for i in range(min(NS, 12)):
                self.stamp(16 + i, f"s[{48+2*i}:{49+2*i}]")
            self.stamp(16 + 14)
            L("L_noprof")
        if self.H == 1:
            for ctl, msk in (("row_ror:4", "0xf"), ("row_ror:8", "0xf"), ("row_bcast:15", "0xa"), ("row_bcast:31", "0xc")):
                A(f"v_add_f32_dpp v{LS}, v{LS}, v{LS} {ctl} row_mask:{msk} bank_mask:0xf")
                self.nop(2)
            A(f"ds_write_b128 v35, v[{D}:{D+3}] offset:{L_P}")
            A(f"v_mov_b32 v{MN}, v{LS}")
            A("s_mov_b32 exec_lo, 0")
            A("s_mov_b32 exec_hi, 0x80000000")
            A(f"ds_write_b64 v25, v[{M}:{M+1}] offset:{L_ML}")
            A("s_waitcnt lgkmcnt(0)")
            A("s_barrier")
            A("s_endpgm")
        else:
            LS2, M2, D2 = CX + 10, CX + 8, CX + 4
            for ctl, msk in (("row_ror:4", "0xf"), ("row_ror:8", "0xf"), ("row_bcast:15", "0xa"), ("row_bcast:31", "0xc")):
                A(f"v_add_f32_dpp v{LS}, v{LS}, v{LS} {ctl} row_mask:{msk} bank_mask:0xf")
                A(f"v_add_f32_dpp v{LS2}, v{LS2}, v{LS2} {ctl} row_mask:{msk} bank_mask:0xf")
                self.nop(1)
            A("s_lshl_b32 s20, s32, 13")
            A("s_xor_b32 s21, s20, 8192")
            A(f"v_add_u32 v{T0}, s20, v35")
            A(f"v_add_u32 v{T1}, s21, v35")
            A(f"ds_write_b128 v{T0}, v[{D}:{D+3}] offset:{L_P}")
            A(f"ds_write_b128 v{T1}, v[{D2}:{D2+3}] offset:{L_P}")
            A(f"v_mov_b32 v{MN}, v{LS}")
            A(f"v_mov_b32 v{M2+1}, v{LS2}")
            A("s_lshl_b32 s20, s32, 6")
            A("s_xor_b32 s21, s20, 64")
            A(f"v_add_u32 v{T0}, s20, v25")
            A(f"v_add_u32 v{T1}, s21, v25")
            A("s_mov_b32 exec_lo, 0")
            A("s_mov_b32 exec_hi, 0x80000000")
            A(f"ds_write_b64 v{T0}, v[{M}:{M+1}] offset:{L_ML}")
            A(f"ds_write_b64 v{T1}, v[{M2}:{M2+1}] offset:{L_ML}")
            A("s_waitcnt lgkmcnt(0)")
            A("s_barrier")
            A("s_endpgm")
            L("L_swap")
            self.nop(8)
            for a, b in zip(ACT, SAV):
                A(f"v_swap_b32 v{a}, v{b}")
            A("s_xor_b32 s32, s32, 1")
            A("s_setpc_b64 s[46:47]")

        L("L_rare")
        A(f"v_max_f32_dpp v{T0}, v{S}, v{S} row_ror:4 row_mask:0xf bank_mask:0xf")
        self.nop(2)
        A(f"v_max_f32_dpp v{T0}, v{T0}, v{T0} row_ror:8 row_mask:0xf bank_mask:0xf")
        self.nop(1)
        A(f"v_readlane_b32 s20, v{T0}, 0")
        A(f"v_readlane_b32 s21, v{T0}, 16")
        A(f"v_readlane_b32 s22, v{T0}, 32")
        A(f"v_readlane_b32 s23, v{T0}, 48")
        A(f"v_max_f32 v{T1}, s20, v{M}")
        A(f"v_max_f32 v{T1}, s21, v{T1}")
        A(f"v_max_f32 v{T1}, s22, v{T1}")
        A(f"v_max_f32 v{T1}, s23, v{T1}")
        A(f"v_sub_f32 v{T0}, v{M}, v{T1}")
        A(f"v_mul_f32 v{T0}, s19, v{T0}")
        A(f"v_exp_f32 v{T0}, v{T0}")
        A(f"v_mov_b32 v{M}, v{T1}")
        A(f"v_mul_f32 v{MN}, s19, v{T1}")
        A(f"v_sub_f32 v{MN}, 0, v{MN}")
        for k in range(4):
            A(f"v_mul_f32 v{D+k}, v{D+k}, v{T0}")
        A(f"v_mul_f32 v{LS}, v{LS}, v{T0}")
        A("s_setpc_b64 s[46:47]")

    def helper(self):
        A, L = self.A, self.L
        A("s_setprio 2")
        A("s_sub_u32 s3, s3, 8")
        A("s_load_dwordx2 s[24:25], s[0:1], 0")
        A("s_load_dwordx4 s[28:31], s[0:1], 24")
        A("s_load_dwordx4 s[32:35], s[0:1], 48")
        A("s_load_dwordx4 s[36:39], s[0:1], 64")
        A("s_load_dwordx4 s[48:51], s[0:1], 80")
        A("s_memrealtime s[66:67]")
        A("s_mov_b32 s88, 0x80000")
        A("v_mov_b32 v12, 0")
        A("v_mov_b32 v13, 0")
        A("v_mov_b32 v14, 0")
        A("v_mov_b32 v15, 0")
        A("v_lshlrev_b32 v14, 2, v2")
        A(f"ds_write_b32 v14, v12 offset:{L_Z}")
        A(f"ds_write_b32 v14, v12 offset:{L_Z+256}")
        HB, HI, G, TT = 3, 4, 5, 6
        A(f"v_lshrrev_b32 v{HB}, 5, v2")
        A(f"v_and_b32 v{HI}, 31, v2")
        A(f"v_lshrrev_b32 v{G}, 4, v2")
        A(f"v_and_b32 v{TT}, 15, v2")
        VAW, VAR, VDW, VTR = 7, 8, 9, 10
        A("s_lshl_b32 s52, s3, 9")
        A(f"v_lshlrev_b32 v{VAW}, 8, v{HB}")
        A(f"v_lshl_add_u32 v{VAW}, v{HI}, 3, v{VAW}")
        A(f"s_add_u32 s53, s52, {L_A}")
        A(f"v_add_u32 v{VAW}, s53, v{VAW}")
        A(f"v_and_b32 v{VAR}, 1, v2")
        A(f"v_lshlrev_b32 v{VAR}, 8, v{VAR}")
        A(f"v_lshl_add_u32 v{VAR}, v{G}, 4, v{VAR}")
        A(f"v_add_u32 v{VAR}, s53, v{VAR}")
        A(f"s_add_u32 s53, s52, {L_D}")
        A(f"v_lshlrev_b32 v{VDW}, 2, v2")
        A(f"v_add_u32 v{VDW}, s53, v{VDW}")
        A("s_waitcnt lgkmcnt(0)")
        self.srd(84, 98, 0x20000000)
        self.srd(76, 96, 256)
        A("s_or_b32 s54, s2, s3")
        A("s_cmp_eq_u32 s54, 0")
        A("s_cbranch_scc0 L_notagw")
        A("s_or_b32 s66, s66, 1")
        A("v_mov_b32 v12, s66")
        A("s_mov_b64 exec, 1")
        A("buffer_atomic_cmpswap v[12:13], off, s[76:79], 0 sc1")
        A("s_mov_b64 exec, -1")
        L("L_notagw")
        self.srd(20, 24, 2048)
        A(f"s_add_u32 s16, s98, {HH_OFF}")
        A("s_addc_u32 s17, s99, 0")
        A(f"s_mov_b32 s18, {43*128}")
        A("s_mov_b32 s19, 0x20000")
        self.srd(72, 50, 2048)
        for r in range(10, 24):
            A(f"v_mov_b32 v{r}, 0")
        for r in (54, 55, 56, 57, 59, 60, 61, 62):
            A(f"s_mov_b32 s{r}, 0")
        if self.H == 1:
            A("s_lshl_b32 s83, s40, 3")
            A("s_add_u32 s83, s83, s41")
            A("s_lshl_b32 s83, s83, 10")
            A(f"s_add_u32 s83, s83, {PART_OFF}")
            A("s_mov_b32 s82, s40")
            A("s_mov_b32 s81, s41")
            A("s_mov_b32 s67, s83")
        else:
            A(f"s_xor_b32 s82, s40, {self.px}")
            A("s_min_u32 s82, s82, s40")
            A("s_lshr_b32 s54, s40, 5")
            A("s_lshl_b32 s54, s54, 2")
            A("s_add_u32 s54, s54, s41")
            A("s_lshl_b32 s54, s54, 10")
            A(f"s_add_u32 s54, s54, {PART_OFF}")
            A("s_lshl_b32 s83, s82, 13")
            A("s_add_u32 s83, s83, s54")
            A(f"s_xor_b32 s67, s82, {self.px}")
            A("s_lshl_b32 s67, s67, 13")
            A("s_add_u32 s67, s67, s54")
            A("s_lshr_b32 s81, s40, 5")
            A("s_or_b32 s81, s81, s41")
        A("s_mov_b32 s45, s82")
        A("s_lshl_b32 s82, s82, 7")
        A(f"s_add_u32 s82, s82, {CNT_OFF}")
        self.stamp(0)
        A(f"s_cmp_lt_u32 s89, {R_Q0}")
        A("s_cbranch_scc1 L_pro_mod")
        A(f"s_cmp_lt_u32 s89, {R_WO0}")
        A("s_cbranch_scc1 L_pro_q")
        A("s_barrier")
        A("s_branch L_common1")

        BF, AF, DT = 40, 24, 12
        DT = 104
        TMP = 120

        def wide_voff(rowbytes, colbyte_s):
            A("s_lshl_b32 s54, s3, 7")
            A("v_lshrrev_b32 v11, 3, v2")
            A("v_add_u32 v11, s54, v11")
            A(f"s_mov_b32 s55, {rowbytes}")
            A("v_mul_lo_u32 v11, v11, s55")
            A(f"v_and_b32 v{TMP}, 7, v2")
            A(f"v_lshl_add_u32 v11, v{TMP}, 4, v11")
            A(f"v_add_u32 v11, s{colbyte_s}, v11")

        def wide_tr_base():
            A(f"v_lshrrev_b32 v{VTR}, 2, v{TT}")
            A(f"v_lshl_add_u32 v{VTR}, v{G}, 3, v{VTR}")
            A(f"v_lshlrev_b32 v{VTR}, 7, v{VTR}")
            A(f"v_and_b32 v{TMP}, 3, v{TT}")
            A(f"v_lshl_add_u32 v{VTR}, v{TMP}, 3, v{VTR}")
            A("s_lshl_b32 s54, s3, 14")
            A(f"s_add_u32 s54, s54, {L_W}")
            A(f"v_add_u32 v{VTR}, s54, v{VTR}")

        L("L_pro_mod")
        self.srd(12, 38, 2048)
        A(f"v_lshlrev_b32 v{TMP}, 10, v{HB}")
        A(f"v_lshl_add_u32 v{TMP}, v{HI}, 3, v{TMP}")
        A("s_lshl_b32 s54, s3, 8")
        A(f"buffer_load_dwordx2 v[{TMP+2}:{TMP+3}], v{TMP}, s[12:15], s54 offen")
        self.srd(8, 48, 512 * 6144)
        A("s_lshl_b32 s56, s89, 7")
        wide_voff(6144, 56)
        A("s_lshl_b32 s57, s3, 14")
        self.dma_weights(8, 16, 11, 8 * 6144, 57)
        A("s_barrier")
        wide_tr_base()
        A("s_waitcnt vmcnt(16)")
        X = TMP + 4
        self.unpack2(TMP + 2, X, X + 1)
        self.unpack2(TMP + 3, X + 2, X + 3)
        A(f"s_mov_b32 s58, {f32(-LOG2E)}")
        for k in range(4):
            A(f"v_mul_f32 v{X+4+k}, s58, v{X+k}")
        for k in range(4):
            A(f"v_exp_f32 v{X+4+k}, v{X+4+k}")
        self.nop(1)
        for k in range(4):
            A(f"v_add_f32 v{X+4+k}, 1.0, v{X+4+k}")
        for k in range(4):
            A(f"v_rcp_f32 v{X+4+k}, v{X+4+k}")
        self.nop(1)
        for k in range(4):
            A(f"v_mul_f32 v{X+k}, v{X+k}, v{X+4+k}")
        A(f"v_cvt_pk_bf16_f32 v{X+8}, v{X}, v{X+1}")
        A(f"v_cvt_pk_bf16_f32 v{X+9}, v{X+2}, v{X+3}")
        A(f"ds_write_b64 v{VAW}, v[{X+8}:{X+9}]")
        A("s_lshr_b32 s60, s89, 3")
        A("s_lshl_b32 s60, s60, 12")
        A("s_and_b32 s61, s89, 7")
        A("s_lshl_b32 s61, s61, 8")
        A("s_add_u32 s60, s60, s61")
        A(f"s_add_u32 s60, s60, {MOD_OFF}")
        A("s_mov_b32 s61, 2048")
        A("s_mov_b32 s62, 0")
        A("s_branch L_common1")

        L("L_pro_q")
        A(f"v_lshlrev_b32 v{TMP}, 10, v{HB}")
        A(f"v_lshl_add_u32 v{TMP+1}, v{HI}, 5, v{TMP}")
        A(f"buffer_load_dwordx4 v[{TMP+4}:{TMP+7}], v{TMP+1}, s[20:23], 0 offen")
        A(f"buffer_load_dwordx4 v[{TMP+8}:{TMP+11}], v{TMP+1}, s[20:23], 0 offen offset:16")
        A(f"v_lshl_add_u32 v{TMP}, v{HI}, 3, v{TMP}")
        A("s_lshl_b32 s54, s3, 8")
        A(f"buffer_load_dwordx2 v[{TMP+2}:{TMP+3}], v{TMP}, s[20:23], s54 offen")
        self.srd(8, 28, 512 * 8192)
        A(f"s_sub_u32 s59, s89, {R_Q0}")
        A("s_lshl_b32 s56, s59, 7")
        wide_voff(8192, 56)
        A("s_lshl_b32 s57, s3, 14")
        self.dma_weights(8, 16, 11, 8 * 8192, 57)
        A("s_barrier")
        wide_tr_base()
        A("s_waitcnt vmcnt(16)")
        S1, S2, U0, U1 = TMP + 12, TMP + 13, TMP + 14, TMP + 15
        A(f"v_mov_b32 v{S1}, 0")
        A(f"v_mov_b32 v{S2}, 0")
        for k in range(8):
            self.unpack2(TMP + 4 + k, U0, U1)
            A(f"v_add_f32 v{S1}, v{S1}, v{U0}")
            A(f"v_fmac_f32 v{S2}, v{U0}, v{U0}")
            A(f"v_add_f32 v{S1}, v{S1}, v{U1}")
            A(f"v_fmac_f32 v{S2}, v{U1}, v{U1}")
        self.allred32([S1, S2], [U0, U1])
        NX = TMP + 16
        self.unpack2(TMP + 2, NX, NX + 1)
        self.unpack2(TMP + 3, NX + 2, NX + 3)
        self.ln_norm(S1, S2, NX, U0, U1)
        A("s_lshl_b32 s60, s59, 8")
        A(f"s_add_u32 s60, s60, {Q_OFF}")
        A("s_mov_b32 s61, 16384")
        A("s_mov_b32 s62, 1")
        L("L_common1")
        A("buffer_load_dword v165, off, s[76:79], 0 sc1")
        CL = TMP + 24
        for k in range(4):
            A(f"v_mov_b32 v{CL+k}, -1")
        A("s_cmp_eq_u32 s3, 3")
        A("s_cbranch_scc0 L_noclear")
        A(f"v_lshlrev_b32 v{CL+4}, 4, v2")
        A("s_mov_b32 exec_lo, -1")
        A("s_mov_b32 exec_hi, 1")
        A(f"buffer_store_dwordx4 v[{CL}:{CL+3}], v{CL+4}, s[84:87], s83 offen sc1")
        if self.H == 2:
            A(f"buffer_store_dwordx4 v[{CL}:{CL+3}], v{CL+4}, s[84:87], s67 offen sc1")
        A("s_mov_b64 exec, -1")
        A(f"s_sub_u32 s64, s89, {R_WO0}")
        A("s_cmp_lt_u32 s64, 64")
        A("s_cbranch_scc0 L_noclr_wo")
        self.slice_of(64, R_WO0, 64)
        A("s_lshr_b32 s65, s64, 3")
        A("s_lshl_b32 s65, s65, 12")
        A("s_and_b32 s66, s64, 7")
        A("s_lshl_b32 s66, s66, 8")
        A("s_add_u32 s65, s65, s66")
        A(f"s_add_u32 s65, s65, {ATT_OFF}")
        A(f"v_lshlrev_b32 v{CL+4}, 11, v{G}")
        A(f"v_lshl_add_u32 v{CL+4}, v{TT}, 4, v{CL+4}")
        A("s_mov_b32 exec_hi, 0")
        A(f"buffer_store_dwordx4 v[{CL}:{CL+3}], v{CL+4}, s[84:87], s65 offen sc1")
        A("s_mov_b64 exec, -1")
        L("L_noclr_wo")
        A(f"s_sub_u32 s64, s89, {R_UP0}")
        A("s_cmp_lt_u32 s64, 43")
        A("s_cbranch_scc0 L_noclr_up")
        self.slice_of(64, R_UP0, 43)
        A("s_lshl_b32 s65, s64, 7")
        A(f"s_add_u32 s65, s65, {HH_OFF}")
        A(f"v_lshlrev_b32 v{CL+4}, 4, v2")
        A("s_mov_b64 exec, 0xff")
        A(f"buffer_store_dwordx4 v[{CL}:{CL+3}], v{CL+4}, s[84:87], s65 offen sc1")
        A("s_mov_b64 exec, -1")
        L("L_noclr_up")
        A("s_cmp_eq_u32 s81, 0")
        A("s_cbranch_scc0 L_noclr_cnt")
        A(f"v_mov_b32 v{CL+4}, {self.NS*4*self.H}")
        A(f"s_mul_i32 s65, s45, {self.cstr}")
        A(f"s_add_u32 s65, s65, {CTR_OFF}")
        A("s_mov_b64 exec, 1")
        A(f"buffer_store_dword v{CL+4}, off, s[84:87], s65 sc1")
        A("s_mov_b64 exec, -1")
        L("L_noclr_cnt")
        L("L_noclear")
        A("s_waitcnt vmcnt(0)")
        A("v_cmp_eq_u32 vcc, 0, v165")
        A("s_cbranch_vccz L_gottag")
        pl = self.poll_head()
        A("buffer_load_dword v165, off, s[76:79], 0 sc1")
        A("s_waitcnt vmcnt(0)")
        A("v_cmp_eq_u32 vcc, 0, v165")
        self.poll_tail(pl, sleep=2)
        L("L_gottag")
        A("v_readfirstlane_b32 s80, v165")
        self.stamp(10)
        A("s_cmp_eq_u32 s3, 3")
        A("s_cbranch_scc0 L_nocount")
        A("s_and_b32 s63, s2, 3")
        A("s_lshl_b32 s63, s63, 2")
        A("s_add_u32 s63, s63, 128")
        A(f"v_mov_b32 v{CL+5}, 1")
        A("s_mov_b64 exec, 1")
        A(f"buffer_atomic_add v{CL+5}, off, s[76:79], s63 sc1")
        A("s_cmp_eq_u32 s81, 0")
        A("s_cbranch_scc0 L_nocnttag")
        A(f"v_mov_b32 v{CL+4}, s80")
        A(f"buffer_store_dword v{CL+4}, off, s[84:87], s82 offset:64 sc1")
        L("L_nocnttag")
        A("s_mov_b64 exec, -1")
        L("L_nocount")
        A(f"s_cmp_lt_u32 s89, {R_WO0}")
        A("s_cbranch_scc0 L_qgather")
        self.tr_reads(VTR, BF, 4, [0, 32, 64, 96], 128)
        A("s_cmp_eq_u32 s62, 0")
        A("s_cbranch_scc1 L_pro_gemv")
        GA = TMP + 4
        A(f"v_lshlrev_b32 v{TMP}, 11, v{HB}")
        A(f"v_lshl_add_u32 v{TMP}, v{HI}, 4, v{TMP}")
        A("s_lshl_b32 s54, s3, 9")
        A(f"s_add_u32 s54, s54, {MOD_OFF}")
        A(f"s_add_u32 s55, s54, 4096")
        pl = self.poll_head()
        A(f"buffer_load_dwordx4 v[{GA}:{GA+3}], v{TMP}, s[84:87], s55 offen sc1")
        A(f"buffer_load_dwordx4 v[{GA+4}:{GA+7}], v{TMP}, s[84:87], s54 offen sc1")
        A("s_waitcnt vmcnt(0)")
        self.check_tags([GA + 1, GA + 3, GA + 5, GA + 7], TMP + 1)
        self.poll_tail(pl, sleep=self.ps1)
        self.stamp(3)
        T4 = TMP + 20
        self.unpack2(GA, T4, T4 + 1)
        self.unpack2(GA + 2, T4 + 2, T4 + 3)
        for k in range(4):
            A(f"v_add_f32 v{T4+k}, 1.0, v{T4+k}")
        self.rnd2(T4, T4 + 1, TMP + 1)
        self.rnd2(T4 + 2, T4 + 3, TMP + 2)
        self.modulate(NX, T4, GA + 4, GA + 6, TMP + 1, TMP + 24, VAW)
        L("L_pro_gemv")
        A("s_waitcnt lgkmcnt(0)")
        self.a_frags_from_stage(VAR, AF)
        A("s_waitcnt lgkmcnt(0)")
        self.mfmas(AF, BF, DT, 4, 4)
        self.d_to_lds(DT, 4, TMP, TMP + 1, VDW)
        A(f"v_mov_b32 v{TMP+2}, {L_CNT}")
        A(f"v_mov_b32 v{TMP+3}, 1")
        A("s_mov_b64 exec, 1")
        A(f"ds_add_rtn_u32 v{TMP+4}, v{TMP+2}, v{TMP+3}")
        A("s_mov_b64 exec, -1")
        A("s_waitcnt lgkmcnt(0)")
        A(f"v_readfirstlane_b32 s54, v{TMP+4}")
        A("s_cmp_eq_u32 s54, 3")
        A("s_cbranch_scc0 L_qgather")
        self.d_sum(G, TT, TMP)
        A(f"v_cvt_pk_bf16_f32 v{TMP+8}, v{TMP+4}, v{TMP+5}")
        A(f"v_mov_b32 v{TMP+9}, s80")
        A(f"v_cvt_pk_bf16_f32 v{TMP+10}, v{TMP+6}, v{TMP+7}")
        A(f"v_mov_b32 v{TMP+11}, s80")
        A(f"v_mul_lo_u32 v{TMP}, v{G}, s61")
        A(f"v_lshl_add_u32 v{TMP}, v{TT}, 4, v{TMP}")
        A("s_mov_b32 exec_hi, 0")
        A(f"buffer_store_dwordx4 v[{TMP+8}:{TMP+11}], v{TMP}, s[84:87], s60 offen sc1")
        A("s_mov_b64 exec, -1")
        self.stamp(4)
        L("L_qgather")
        A("s_cmp_eq_u32 s3, 3")
        A("s_cbranch_scc0 L_qg2")
        pl = self.poll_head()
        A(f"buffer_load_dword v{TMP}, off, s[84:87], s82 offset:64 sc1")
        A("s_waitcnt vmcnt(0)")
        A(f"v_cmp_ne_u32 vcc, s80, v{TMP}")
        self.poll_tail(pl, sleep=8)
        if self.flagq:
            A(f"v_mov_b32 v{TMP}, 0")
            A(f"v_mov_b32 v{TMP+1}, 1")
            A(f"ds_write_b32 v{TMP}, v{TMP+1} offset:{L_QF+4}")
        L("L_qg2")
        A("s_cmp_eq_u32 s3, 0")
        A("s_cbranch_scc0 L_b2")
        A("s_lshl_b32 s54, s45, 9")
        A(f"s_add_u32 s54, s54, {Q_OFF}")
        A(f"s_xor_b32 s55, s45, {self.px}")
        A("s_lshl_b32 s55, s55, 9")
        A(f"s_add_u32 s55, s55, {Q_OFF}")
        A(f"v_lshlrev_b32 v{TMP}, 3, v2")
        pl = self.poll_head()
        A(f"buffer_load_dwordx2 v[{TMP+2}:{TMP+3}], v{TMP}, s[84:87], s54 offen sc1")
        if self.H == 2:
            A(f"buffer_load_dwordx2 v[{TMP+4}:{TMP+5}], v{TMP}, s[84:87], s55 offen sc1")
        A("s_waitcnt vmcnt(0)")
        self.check_tags([TMP + 3, TMP + 5][:self.H], TMP + 6)
        self.poll_tail(pl, sleep=self.ps2)
        A(f"v_lshlrev_b32 v{TMP}, 2, v2")
        A(f"ds_write_b32 v{TMP}, v{TMP+2} offset:{L_Q}")
        if self.H == 2:
            A(f"ds_write_b32 v{TMP}, v{TMP+4} offset:{L_Q+256}")
        if self.flagq:
            A(f"v_mov_b32 v{TMP}, 0")
            A(f"v_mov_b32 v{TMP+1}, 1")
            A(f"ds_write_b32 v{TMP}, v{TMP+1} offset:{L_QF}")
        A("s_waitcnt lgkmcnt(0)")
        self.stamp(5)
        self.dstamp(3)
        L("L_b2")
        if not self.flagq:
            A("s_barrier")
        else:
            A(f"v_mov_b32 v{TMP}, 0")
            pl = self.poll_head()
            A(f"ds_read_b32 v{TMP+1}, v{TMP} offset:{L_QF}")
            A("s_waitcnt lgkmcnt(0)")
            A(f"v_cmp_eq_u32 vcc, 0, v{TMP+1}")
            self.poll_tail(pl, sleep=4)
        A(f"s_cmp_lt_u32 s89, {R_WO0}")
        A("s_cbranch_scc1 L_b3")
        A(f"s_cmp_lt_u32 s89, {R_WO1}")
        A("s_cbranch_scc1 L_prep_wo")
        A(f"s_cmp_ge_u32 s89, {R_DN0}")
        A("s_cbranch_scc1 L_prep_dn")
        A(f"s_cmp_lt_u32 s89, {R_UP0}")
        A("s_cbranch_scc1 L_b3")
        A(f"s_cmp_lt_u32 s89, {R_UP1}")
        A("s_cbranch_scc1 L_prep_up")
        A("s_branch L_b3")

        def narrow_voff(rowbytes, rows_per_wave, colbyte_s):
            A(f"s_mul_i32 s54, s3, {rows_per_wave}")
            A("v_lshrrev_b32 v11, 2, v2")
            A("v_add_u32 v11, s54, v11")
            A(f"s_mov_b32 s55, {rowbytes}")
            A("v_mul_lo_u32 v11, v11, s55")
            A(f"v_and_b32 v{VTR}, 3, v2")
            A(f"v_lshl_add_u32 v11, v{VTR}, 4, v11")
            A(f"v_add_u32 v11, s{colbyte_s}, v11")

        def narrow_tr_base(rows_per_wave):
            A(f"v_lshrrev_b32 v{VTR}, 2, v{TT}")
            A(f"v_lshl_add_u32 v{VTR}, v{G}, 3, v{VTR}")
            A(f"v_lshlrev_b32 v{VTR}, 6, v{VTR}")
            A(f"v_and_b32 v12, 3, v{TT}")
            A(f"v_lshl_add_u32 v{VTR}, v12, 3, v{VTR}")
            A(f"s_mul_i32 s54, s3, {rows_per_wave*64}")
            A(f"s_add_u32 s54, s54, {L_W}")
            A(f"v_add_u32 v{VTR}, s54, v{VTR}")

        def wait_cleared(t):
            pl = self.poll_head()
            A(f"buffer_load_dwordx4 v[{t}:{t+3}], off, s[76:79], 0 offset:128 sc1")
            A("s_waitcnt vmcnt(0)")
            A(f"v_add_u32 v{t}, v{t}, v{t+1}")
            A(f"v_add3_u32 v{t}, v{t}, v{t+2}, v{t+3}")
            A(f"v_cmp_gt_u32 vcc, 256, v{t}")
            self.poll_tail(pl, sleep=16)

        self.intail = True
        L("L_prep_wo")
        self.slice_of(59, R_WO0, 64)
        self.srd(8, 30, 4096 * 1024)
        A("s_lshr_b32 s56, s59, 3")
        A("s_lshl_b32 s56, s56, 19")
        A("s_and_b32 s57, s59, 7")
        A("s_lshl_b32 s57, s57, 7")
        A("s_add_u32 s56, s56, s57")
        wide_voff(1024, 56)
        A("s_lshl_b32 s57, s3, 14")
        self.dma_weights(8, 16, 11, 8 * 1024, 57, skip='nowo')
        wide_tr_base()
        wait_cleared(TMP)
        self.tr_reads(VTR, BF, 4, [0, 32, 64, 96], 128)
        A(f"v_lshlrev_b32 v11, 18, v{HB}")
        A(f"v_lshl_add_u32 v12, v{HI}, 4, v11")
        A(f"v_and_b32 v{TMP}, {4*self.H-1}, v2")
        A(f"v_lshl_add_u32 v11, v{TMP}, 10, v11")
        A("s_lshr_b32 s56, s59, 3")
        A("s_lshl_b32 s60, s56, 12")
        A("s_lshl_b32 s56, s56, 2")
        A("s_add_u32 s56, s56, s3")
        A("s_lshl_b32 s56, s56, 13")
        A(f"s_add_u32 s56, s56, {PART_OFF}")
        A("s_add_u32 s55, s56, 4096")
        A("s_and_b32 s57, s59, 7")
        A("s_lshl_b32 s57, s57, 8")
        A("s_add_u32 s60, s60, s57")
        A(f"s_add_u32 s60, s60, {ATT_OFF}")
        A("s_waitcnt lgkmcnt(0)")
        A("s_branch L_b3")

        XV, GAV, T4U, SBV = TMP + 28, TMP + 32, TMP + 36, TMP + 40
        L("L_prep_up")
        self.slice_of(59, R_UP0, 43)
        self.srd(8, 32, 512 * 2752)
        self.srd(12, 34, 512 * 2752)
        A("s_lshl_b32 s56, s59, 6")
        narrow_voff(2752, 128, 56)
        A("s_lshl_b32 s57, s3, 13")
        self.dma_weights(8, 8, 11, 16 * 2752, 57, skip='noup')
        A("s_add_u32 s57, s57, 32768")
        self.dma_weights(12, 8, 11, 16 * 2752, 57, skip='noup')
        narrow_tr_base(128)
        A(f"v_lshlrev_b32 v{TMP}, 10, v{HB}")
        A(f"v_lshl_add_u32 v{TMP}, v{HI}, 3, v{TMP}")
        A("s_lshl_b32 s54, s3, 8")
        A(f"buffer_load_dwordx2 v[{TMP+2}:{TMP+3}], v{TMP}, s[20:23], s54 offen")
        A(f"v_lshlrev_b32 v{TMP}, 11, v{HB}")
        A(f"v_lshl_add_u32 v{TMP}, v{HI}, 4, v{TMP}")
        A("s_lshl_b32 s54, s3, 9")
        A(f"s_add_u32 s54, s54, {MOD_OFF + 2*4096}")
        A(f"s_add_u32 s55, s54, 4096")
        A(f"s_add_u32 s56, s54, 8192")
        GA = TMP + 4
        pl = self.poll_head()
        A(f"buffer_load_dwordx4 v[{GA}:{GA+3}], v{TMP}, s[84:87], s54 offen sc1")
        A(f"buffer_load_dwordx4 v[{GA+4}:{GA+7}], v{TMP}, s[84:87], s55 offen sc1")
        A(f"buffer_load_dwordx4 v[{GA+8}:{GA+11}], v{TMP}, s[84:87], s56 offen sc1")
        A("s_waitcnt vmcnt(0)")
        self.check_tags([GA + 1, GA + 3, GA + 5, GA + 7, GA + 9, GA + 11], TMP + 16)
        self.poll_tail(pl)
        self.unpack2(TMP + 2, XV, XV + 1)
        self.unpack2(TMP + 3, XV + 2, XV + 3)
        self.unpack2(GA, GAV, GAV + 1)
        self.unpack2(GA + 2, GAV + 2, GAV + 3)
        A(f"v_mov_b32 v{SBV}, v{GA+4}")
        A(f"v_mov_b32 v{SBV+1}, v{GA+6}")
        self.unpack2(GA + 8, T4U, T4U + 1)
        self.unpack2(GA + 10, T4U + 2, T4U + 3)
        for k in range(4):
            A(f"v_add_f32 v{T4U+k}, 1.0, v{T4U+k}")
        self.rnd2(T4U, T4U + 1, TMP + 1)
        self.rnd2(T4U + 2, T4U + 3, TMP + 1)
        wait_cleared(TMP)
        self.tr_reads(VTR, BF, 4, [0, 32, 32768, 32768 + 32], 64)
        A(f"v_lshlrev_b32 v12, 11, v{HB}")
        A(f"v_lshl_add_u32 v12, v{HI}, 4, v12")
        A("s_lshl_b32 s56, s3, 9")
        A(f"s_add_u32 s56, s56, {ATT_OFF}")
        A("s_lshl_b32 s60, s59, 7")
        A(f"s_add_u32 s60, s60, {HH_OFF}")
        A("s_waitcnt lgkmcnt(0)")
        A("s_branch L_b3")

        DBF, DAF, DDT = 32, 120, 24
        L("L_prep_dn")
        self.slice_of(59, R_DN0, 16)
        self.srd(8, 36, 1376 * 1024)
        A("s_lshl_b32 s56, s59, 6")
        narrow_voff(1024, 352, 56)
        A(f"s_mul_i32 s57, s3, {352*64}")
        self.dma_weights(8, 22, 11, 16 * 1024, 57, skip='nodn')
        narrow_tr_base(352)
        A("v_lshrrev_b32 v13, 3, v2")
        A("v_and_b32 v13, 1, v13")
        A("v_and_b32 v14, 7, v2")
        A("v_lshlrev_b32 v15, 10, v13")
        A("v_lshl_add_u32 v15, v14, 3, v15")
        A("buffer_load_dwordx2 v[16:17], v15, s[20:23], s56 offen")
        A("v_lshlrev_b32 v15, 11, v13")
        A("v_lshl_add_u32 v15, v14, 4, v15")
        A("s_lshl_b32 s54, s59, 7")
        A(f"s_add_u32 s55, s54, {MOD_OFF + 5*4096}")
        A(f"s_add_u32 s54, s54, {MOD_OFF + 2*4096}")
        pl = self.poll_head()
        A(f"buffer_load_dwordx4 v[{DAF}:{DAF+3}], v15, s[84:87], s54 offen sc1")
        A(f"buffer_load_dwordx4 v[{DAF+4}:{DAF+7}], v15, s[84:87], s55 offen sc1")
        A("s_waitcnt vmcnt(0)")
        self.check_tags([DAF + 1, DAF + 3, DAF + 5, DAF + 7], DAF + 8)
        self.poll_tail(pl)
        A(f"v_mov_b32 v18, v{DAF}")
        A(f"v_mov_b32 v19, v{DAF+2}")
        A(f"v_mov_b32 v20, v{DAF+4}")
        A(f"v_mov_b32 v21, v{DAF+6}")
        wait_cleared(DAF)
        self.tr_reads(VTR, DBF, 11, [0, 32], 64)
        A("s_lshl_b32 s56, s59, 7")
        A(f"s_add_u32 s56, s56, {ATT_OFF}")
        A("v_and_b32 v12, 1, v2")
        A("v_lshlrev_b32 v12, 6, v12")
        A(f"v_lshl_add_u32 v12, v{G}, 4, v12")
        A(f"s_mul_i32 s57, s3, {11*128}")
        A("s_waitcnt lgkmcnt(0)")
        L("L_b3")
        A("s_cmp_eq_u32 s3, 2")
        A("s_cbranch_scc0 L_b3x")
        A("s_setprio 1")
        A(f"s_mul_i32 s65, s45, {self.cstr}")
        A(f"s_add_u32 s65, s65, {CTR_OFF}")
        A("s_add_u32 s26, s98, s65")
        A("s_addc_u32 s27, s99, 0")
        A("v_mov_b32 v22, 0")
        pl = self.poll_head()
        A(f"ds_read_b32 v23, v22 offset:{L_QF+4}")
        A("s_waitcnt lgkmcnt(0)")
        A("v_cmp_eq_u32 vcc, 0, v23")
        self.poll_tail(pl, sleep=8)
        A("s_mov_b32 s64, 0")
        L("L_disp")
        A(f"ds_read_b32 v23, v22 offset:{L_NEED}")
        A("s_waitcnt lgkmcnt(0)")
        A("v_readfirstlane_b32 s65, v23")
        A("s_cmp_lt_u32 s64, s65")
        A("s_cbranch_scc1 L_disp_go")
        A("s_cmp_eq_u32 s88, 0")
        A("s_cbranch_scc1 L_disp_end")
        A("s_sub_u32 s88, s88, 1")
        A("s_sleep 2")
        A("s_branch L_disp")
        L("L_disp_go")
        A("s_mov_b32 s66, 1")
        A("s_atomic_add s66, s[26:27], 0 glc")
        A("s_lshl_b32 s65, s64, 2")
        A("v_mov_b32 v24, s65")
        A("s_waitcnt lgkmcnt(0)")
        A(f"s_cmp_ge_u32 s66, {64 * self.H}")
        A("s_cbranch_scc1 L_disp_end")
        A("s_add_u32 s66, s66, 1")
        A("v_mov_b32 v23, s66")
        A(f"ds_write_b32 v24, v23 offset:{L_RL}")
        A("s_add_u32 s64, s64, 1")
        A("s_cmp_lt_u32 s64, 63")
        A("s_cbranch_scc1 L_disp")
        L("L_disp_end")
        A("v_lshlrev_b32 v24, 2, v2")
        A(f"v_mov_b32 v23, {64 * self.H + 1}")
        A("v_cmp_le_u32 vcc, s64, v2")
        A("s_mov_b64 exec, vcc")
        A(f"ds_write_b32 v24, v23 offset:{L_RL}")
        A("s_mov_b64 exec, -1")
        A("s_setprio 2")
        L("L_b3x")
        if self.dry:
            A("s_mov_b32 s69, 1")
            A("s_mov_b32 s86, 0")
            A("s_mov_b32 s18, 0")
            A("s_mov_b32 s74, 0")
            A("s_branch L_after_b3")
            L("L_exit")
            A("s_cmp_eq_u32 s69, 0")
            A("s_cbranch_scc1 L_end")
            A("s_mov_b64 exec, -1")
            A("s_mov_b32 s69, 0")
            A("s_mov_b32 s86, 0x20000000")
            A(f"s_mov_b32 s18, {43*128}")
            A("s_mov_b32 s74, 2048")
            A("s_waitcnt vmcnt(0) lgkmcnt(0)")
        A("s_barrier")
        L("L_after_b3")
        EX = "L_exit" if self.dry else "L_end"
        self.stamp(6)
        A(f"s_cmp_lt_u32 s3, {self.H}")
        A("s_cbranch_scc0 L_tail")
        C = 120
        A(f"v_and_b32 v{C}, 7, v2")
        A(f"v_lshlrev_b32 v{C}, 3, v{C}")
        A("s_lshl_b32 s63, s3, 6")
        A(f"v_add_u32 v{C}, s63, v{C}")
        A(f"ds_read_b64 v[{C+2}:{C+3}], v{C} offset:{L_ML}")
        A(f"v_lshlrev_b32 v{C+1}, 3, v2")
        A("s_lshl_b32 s63, s3, 13")
        A(f"v_add_u32 v{C+7}, s63, v{C+1}")
        for w in range(8):
            A(f"ds_read_b64 v[{C+8+2*w}:{C+9+2*w}], v{C+7} offset:{L_P + w*1024}")
        A("s_waitcnt lgkmcnt(8)")
        A(f"v_max_f32_dpp v{C+4}, v{C+2}, v{C+2} row_ror:1 row_mask:0xf bank_mask:0xf")
        self.nop(2)
        A(f"v_max_f32_dpp v{C+4}, v{C+4}, v{C+4} row_ror:2 row_mask:0xf bank_mask:0xf")
        self.nop(2)
        A(f"v_max_f32_dpp v{C+4}, v{C+4}, v{C+4} row_ror:4 row_mask:0xf bank_mask:0xf")
        A(f"s_mov_b32 s58, {f32(LOG2E)}")
        A(f"v_sub_f32 v{C+6}, v{C+2}, v{C+4}")
        A(f"v_mul_f32 v{C+6}, s58, v{C+6}")
        A(f"v_exp_f32 v{C+6}, v{C+6}")
        self.nop(1)
        A(f"v_mul_f32 v{C+5}, v{C+6}, v{C+3}")
        self.nop(2)
        A(f"v_add_f32_dpp v{C+5}, v{C+5}, v{C+5} row_ror:1 row_mask:0xf bank_mask:0xf")
        self.nop(2)
        A(f"v_add_f32_dpp v{C+5}, v{C+5}, v{C+5} row_ror:2 row_mask:0xf bank_mask:0xf")
        self.nop(2)
        A(f"v_add_f32_dpp v{C+5}, v{C+5}, v{C+5} row_ror:4 row_mask:0xf bank_mask:0xf")
        A("s_waitcnt lgkmcnt(0)")
        A(f"v_mul_f32_dpp v{C+24}, v{C+6}, v{C+8} row_newbcast:0 row_mask:0xf bank_mask:0xf")
        A(f"v_mul_f32_dpp v{C+25}, v{C+6}, v{C+9} row_newbcast:0 row_mask:0xf bank_mask:0xf")
        for w in range(1, 8):
            A(f"v_fmac_f32_dpp v{C+24}, v{C+6}, v{C+8+2*w} row_newbcast:{w} row_mask:0xf bank_mask:0xf")
            A(f"v_fmac_f32_dpp v{C+25}, v{C+6}, v{C+9+2*w} row_newbcast:{w} row_mask:0xf bank_mask:0xf")
        for r in (C + 24, C + 25, C + 4, C + 5):
            A(f"v_min_u32 v{r}, -2, v{r}")
        A("s_cmp_eq_u32 s3, 0")
        A("s_cselect_b32 s63, s83, s67")
        A(f"v_mov_b32_dpp v{C+26}, v{C+24} quad_perm:[1,1,3,3] row_mask:0xf bank_mask:0xf")
        A(f"v_mov_b32_dpp v{C+27}, v{C+25} quad_perm:[1,1,3,3] row_mask:0xf bank_mask:0xf")
        A("s_mov_b32 exec_lo, 0x55555555")
        A("s_mov_b32 exec_hi, 0x55555555")
        A(f"buffer_store_dwordx4 v[{C+24}:{C+27}], v{C+1}, s[84:87], s63 offen sc1")
        A("s_mov_b64 exec, 1")
        A(f"buffer_store_dwordx2 v[{C+4}:{C+5}], off, s[84:87], s63 offset:512 sc1")
        A("s_mov_b64 exec, -1")
        self.stamp(7)
        self.dstamp(2)
        L("L_tail")
        A(f"s_cmp_lt_u32 s89, {R_WO0}")
        A(f"s_cbranch_scc1 {EX}")
        A(f"s_cmp_lt_u32 s89, {R_WO1}")
        A("s_cbranch_scc1 L_tail_wo")
        A(f"s_cmp_ge_u32 s89, {R_DN0}")
        A("s_cbranch_scc1 L_tail_dn")
        A(f"s_cmp_lt_u32 s89, {R_UP0}")
        A(f"s_cbranch_scc1 {EX}")
        A(f"s_cmp_lt_u32 s89, {R_UP1}")
        A("s_cbranch_scc1 L_tail_up")
        A(f"s_branch {EX}")

        L("L_tail_wo")
        regs = [AF + 4 * i for i in range(4)] + [DT + 4 * i for i in range(4)]
        O = TMP
        lds_ = [([f"buffer_load_dwordx4 v[{regs[r]}:{regs[r]+3}], v12, s[84:87], {'s56' if r < 4 else 's55'} offen offset:{(r & 3)*1024} sc1"],
                 [regs[r] + k for k in range(4)]) for r in range(4 * self.H)]
        lds_.append(([f"buffer_load_dwordx2 v[{O}:{O+1}], v11, s[84:87], s56 offen offset:512 sc1"], [O, O + 1]))
        self.poll_multi(lds_, O + 2)
        self.stamp(8)
        MM, FF, LL = O + 2, O + 3, O + 6
        A(f"v_max_f32_dpp v{MM}, v{O}, v{O} row_ror:1 row_mask:0xf bank_mask:0xf")
        A(f"s_mov_b32 s58, {f32(LOG2E)}")
        self.nop(1)
        A(f"v_max_f32_dpp v{MM}, v{MM}, v{MM} row_ror:2 row_mask:0xf bank_mask:0xf")
        if self.H == 2:
            self.nop(2)
            A(f"v_max_f32_dpp v{MM}, v{MM}, v{MM} row_ror:4 row_mask:0xf bank_mask:0xf")
        A(f"v_sub_f32 v{FF}, v{O}, v{MM}")
        A(f"v_mul_f32 v{FF}, s58, v{FF}")
        A(f"v_exp_f32 v{FF}, v{FF}")
        self.nop(1)
        A(f"v_mul_f32 v{LL}, v{FF}, v{O+1}")
        self.nop(1)
        for k in range(4):
            A(f"v_mul_f32_dpp v{O+8+k}, v{FF}, v{regs[0]+k} row_newbcast:0 row_mask:0xf bank_mask:0xf")
        A(f"v_add_f32_dpp v{LL}, v{LL}, v{LL} row_ror:1 row_mask:0xf bank_mask:0xf")
        for r in range(1, 4 * self.H):
            for k in range(4):
                A(f"v_fmac_f32_dpp v{O+8+k}, v{FF}, v{regs[r]+k} row_newbcast:{r} row_mask:0xf bank_mask:0xf")
            if r == 1:
                A(f"v_add_f32_dpp v{LL}, v{LL}, v{LL} row_ror:2 row_mask:0xf bank_mask:0xf")
            if r == 2 and self.H == 2:
                A(f"v_add_f32_dpp v{LL}, v{LL}, v{LL} row_ror:4 row_mask:0xf bank_mask:0xf")
            if r == 1 + self.H:
                A(f"v_rcp_f32 v{LL}, v{LL}")
        for k in range(4):
            A(f"v_mul_f32 v{O+8+k}, v{LL}, v{O+8+k}")
        A(f"v_cvt_pk_bf16_f32 v{O+4}, v{O+8}, v{O+9}")
        A(f"v_cvt_pk_bf16_f32 v{O+5}, v{O+10}, v{O+11}")
        A(f"ds_write_b64 v{VAW}, v[{O+4}:{O+5}]")
        A("s_waitcnt lgkmcnt(0)")
        self.a_frags_from_stage(VAR, AF)
        A("s_waitcnt lgkmcnt(0)")
        self.mfmas(AF, BF, DT, 4, 4)
        self.d_to_lds(DT, 4, TMP, TMP + 1, VDW)
        A("s_waitcnt lgkmcnt(0)")
        self.bar()
        A("s_cmp_eq_u32 s3, 0")
        A(f"s_cbranch_scc0 {EX}")
        self.d_sum(G, TT, TMP)
        for k in range(4):
            A(f"v_min_u32 v{TMP+4+k}, -2, v{TMP+4+k}")
        A(f"v_lshlrev_b32 v{TMP}, 11, v{G}")
        A(f"v_lshl_add_u32 v{TMP}, v{TT}, 4, v{TMP}")
        A("s_mov_b32 exec_hi, 0")
        A(f"buffer_store_dwordx4 v[{TMP+4}:{TMP+7}], v{TMP}, s[84:87], s60 offen sc1")
        self.stamp(9)
        self.dstamp(4)
        A(f"s_branch {EX}")

        L("L_tail_up")
        P = 12
        P = DT
        regs = [AF + 4 * i for i in range(4)] + [DT + 4 * i for i in range(4)]
        self.poll_multi([([f"s_add_u32 s57, s56, {hg*4096}", f"buffer_load_dwordx4 v[{regs[hg]}:{regs[hg]+3}], v12, s[84:87], s57 offen sc1"],
                          [regs[hg] + k for k in range(4)]) for hg in range(8)], TMP)
        self.stamp(8)
        X1 = TMP + 4
        self.sum8_x1(regs, X1, XV, GAV, TMP)
        S1, S2, U0, U1 = TMP + 8, TMP + 9, TMP + 10, TMP + 11
        A(f"v_add_f32 v{S1}, v{X1}, v{X1+1}")
        A(f"v_mul_f32 v{S2}, v{X1}, v{X1}")
        A(f"v_add_f32 v{U0}, v{X1+2}, v{X1+3}")
        A(f"v_fmac_f32 v{S2}, v{X1+1}, v{X1+1}")
        A(f"v_add_f32 v{S1}, v{S1}, v{U0}")
        A(f"v_fmac_f32 v{S2}, v{X1+2}, v{X1+2}")
        A(f"v_fmac_f32 v{S2}, v{X1+3}, v{X1+3}")
        self.allred32([S1, S2], [U0, U1])
        A(f"v_lshlrev_b32 v{U0}, 5, v{HB}")
        A("s_lshl_b32 s54, s3, 3")
        A(f"v_add_u32 v{U1}, s54, v{U0}")
        A(f"ds_write_b64 v{U1}, v[{S1}:{S2}] offset:{L_ST}")
        A("s_waitcnt lgkmcnt(0)")
        self.bar()
        Q8 = TMP + 12
        A(f"ds_read_b128 v[{Q8}:{Q8+3}], v{U0} offset:{L_ST}")
        A(f"ds_read_b128 v[{Q8+4}:{Q8+7}], v{U0} offset:{L_ST+16}")
        A("s_waitcnt lgkmcnt(0)")
        A(f"v_add_f32 v{S1}, v{Q8}, v{Q8+2}")
        A(f"v_add_f32 v{S2}, v{Q8+1}, v{Q8+3}")
        A(f"v_add_f32 v{U0}, v{Q8+4}, v{Q8+6}")
        A(f"v_add_f32 v{U1}, v{Q8+5}, v{Q8+7}")
        A(f"v_add_f32 v{S1}, v{S1}, v{U0}")
        A(f"v_add_f32 v{S2}, v{S2}, v{U1}")
        self.ln_norm(S1, S2, X1, U0, U1)
        self.modulate(X1, T4U, SBV, SBV + 1, TMP, TMP + 12, VAW)
        A("s_waitcnt lgkmcnt(0)")
        self.a_frags_from_stage(VAR, AF)
        A("s_waitcnt lgkmcnt(0)")
        self.mfmas(AF, BF, DT, 4, 4)
        self.d_to_lds(DT, 4, TMP, TMP + 1, VDW)
        A("s_waitcnt lgkmcnt(0)")
        self.bar()
        A("s_cmp_eq_u32 s3, 0")
        A(f"s_cbranch_scc0 {EX}")
        A(f"v_lshrrev_b32 v{TMP}, 3, v2")
        A(f"v_and_b32 v{TMP}, 1, v{TMP}")
        A(f"v_and_b32 v{TMP+1}, 7, v2")
        A(f"v_lshlrev_b32 v{TMP+2}, 8, v{TMP}")
        A(f"v_lshl_add_u32 v{TMP+2}, v{TMP+1}, 4, v{TMP+2}")
        GT = AF
        for j in range(4):
            A(f"ds_read_b128 v[{AF+4*j}:{AF+4*j+3}], v{TMP+2} offset:{L_D + j*512}")
            A(f"ds_read_b128 v[{DT+4*j}:{DT+4*j+3}], v{TMP+2} offset:{L_D + j*512 + 128}")
        A(f"v_lshlrev_b32 v{TMP+3}, 6, v{TMP}")
        A(f"v_lshl_add_u32 v{TMP+3}, v{TMP+1}, 3, v{TMP+3}")
        A("s_waitcnt lgkmcnt(0)")
        for base in (AF, DT):
            for k in range(4):
                A(f"v_add_f32 v{base+k}, v{base+k}, v{base+4+k}")
                A(f"v_add_f32 v{base+8+k}, v{base+8+k}, v{base+12+k}")
            for k in range(4):
                A(f"v_add_f32 v{base+k}, v{base+k}, v{base+8+k}")
            self.rnd2(base, base + 1, base + 4)
            self.rnd2(base + 2, base + 3, base + 5)
        A(f"s_mov_b32 s58, {f32(-LOG2E)}")
        for k in range(4):
            A(f"v_mul_f32 v{AF+4+k}, s58, v{AF+k}")
        for k in range(4):
            A(f"v_exp_f32 v{AF+4+k}, v{AF+4+k}")
        self.nop(1)
        for k in range(4):
            A(f"v_add_f32 v{AF+4+k}, 1.0, v{AF+4+k}")
        for k in range(4):
            A(f"v_rcp_f32 v{AF+4+k}, v{AF+4+k}")
        self.nop(1)
        for k in range(4):
            A(f"v_mul_f32 v{AF+k}, v{AF+k}, v{AF+4+k}")
        self.rnd2(AF, AF + 1, AF + 4)
        self.rnd2(AF + 2, AF + 3, AF + 5)
        for k in range(4):
            A(f"v_mul_f32 v{AF+k}, v{AF+k}, v{DT+k}")
        A(f"v_cvt_pk_bf16_f32 v{AF+8}, v{AF}, v{AF+1}")
        A(f"v_cvt_pk_bf16_f32 v{AF+9}, v{AF+2}, v{AF+3}")
        A(f"v_min_u32 v{AF+8}, -2, v{AF+8}")
        A(f"v_min_u32 v{AF+9}, -2, v{AF+9}")
        self.nop(1)
        A(f"v_mov_b32_dpp v{AF+10}, v{AF+8} quad_perm:[1,1,3,3] row_mask:0xf bank_mask:0xf")
        A(f"v_mov_b32_dpp v{AF+11}, v{AF+9} quad_perm:[1,1,3,3] row_mask:0xf bank_mask:0xf")
        A("s_mov_b64 exec, 0x5555")
        A(f"buffer_store_dwordx4 v[{AF+8}:{AF+11}], v{TMP+3}, s[84:87], s60 offen sc1")
        self.stamp(9)
        self.dstamp(5)
        A(f"s_branch {EX}")

        L("L_tail_dn")
        A("s_cmp_eq_u32 s3, 0")
        A("s_cbranch_scc0 L_dn_hh")
        regs = [DAF + 4 * i for i in range(8)]
        self.poll_multi([([f"s_add_u32 s54, s56, {hg*4096}", f"buffer_load_dwordx4 v[{regs[hg]}:{regs[hg]+3}], v15, s[84:87], s54 offen sc1"],
                          [regs[hg] + k for k in range(4)]) for hg in range(8)], DAF + 32)
        self.unpack2(16, DAF + 32, DAF + 33)
        self.unpack2(17, DAF + 34, DAF + 35)
        self.unpack2(18, DAF + 36, DAF + 37)
        self.unpack2(19, DAF + 38, DAF + 39)
        self.sum8_x1(regs, DAF + 40, DAF + 32, DAF + 36, 22)
        A(f"v_cvt_pk_bf16_f32 v10, v{DAF+40}, v{DAF+41}")
        A(f"v_cvt_pk_bf16_f32 v11, v{DAF+42}, v{DAF+43}")
        L("L_dn_hh")
        self.poll_multi([([f"buffer_load_dwordx4 v[{DAF+4*t}:{DAF+4*t+3}], v12, s[16:19], s57 offen offset:{t*128} sc1"],
                          [DAF + 4 * t + k for k in range(4)]) for t in range(11)], 22)
        self.stamp(8)
        self.mfmas(DAF, DBF, DDT, 11, 2)
        self.d_to_lds(DDT, 2, 22, 23, VDW)
        A("s_waitcnt lgkmcnt(0)")
        self.bar()
        A("s_cmp_eq_u32 s3, 0")
        A(f"s_cbranch_scc0 {EX}")
        A("v_lshlrev_b32 v22, 8, v13")
        A("v_lshl_add_u32 v22, v14, 4, v22")
        F = DAF
        for j in range(4):
            A(f"ds_read_b128 v[{F+4*j}:{F+4*j+3}], v22 offset:{L_D + j*512}")
        self.unpack2(20, F + 16, F + 17)
        self.unpack2(21, F + 18, F + 19)
        self.unpack2(10, F + 20, F + 21)
        self.unpack2(11, F + 22, F + 23)
        A("v_lshlrev_b32 v23, 10, v13")
        A("v_lshl_add_u32 v23, v14, 3, v23")
        A("s_lshl_b32 s54, s59, 6")
        A("s_waitcnt lgkmcnt(0)")
        for k in range(4):
            A(f"v_add_f32 v{F+k}, v{F+k}, v{F+4+k}")
            A(f"v_add_f32 v{F+8+k}, v{F+8+k}, v{F+12+k}")
        for k in range(4):
            A(f"v_add_f32 v{F+k}, v{F+k}, v{F+8+k}")
        self.rnd2(F, F + 1, F + 4)
        self.rnd2(F + 2, F + 3, F + 5)
        for k in range(4):
            A(f"v_mul_f32 v{F+k}, v{F+k}, v{F+16+k}")
        self.rnd2(F, F + 1, F + 4)
        self.rnd2(F + 2, F + 3, F + 5)
        for k in range(4):
            A(f"v_add_f32 v{F+k}, v{F+k}, v{F+20+k}")
        A(f"v_cvt_pk_bf16_f32 v{F+8}, v{F}, v{F+1}")
        A(f"v_cvt_pk_bf16_f32 v{F+9}, v{F+2}, v{F+3}")
        A("s_mov_b64 exec, 0xffff")
        A(f"buffer_store_dwordx2 v[{F+8}:{F+9}], v23, s[72:75], s54 offen")
        self.stamp(9)
        self.dstamp(1)
        A(f"s_branch {EX}")

    def d_sum(self, G, TT, t):
        A = self.A
        A(f"v_and_b32 v{t}, 1, v{G}")
        A(f"v_lshlrev_b32 v{t}, 8, v{t}")
        A(f"v_lshl_add_u32 v{t}, v{TT}, 4, v{t}")
        for j in range(4):
            A(f"ds_read_b128 v[{t+4+4*j}:{t+7+4*j}], v{t} offset:{L_D + j*512}")
        A("s_waitcnt lgkmcnt(0)")
        for k in range(4):
            A(f"v_add_f32 v{t+4+k}, v{t+4+k}, v{t+8+k}")
            A(f"v_add_f32 v{t+12+k}, v{t+12+k}, v{t+16+k}")
        for k in range(4):
            A(f"v_add_f32 v{t+4+k}, v{t+4+k}, v{t+12+k}")

    def sum8_x1(self, regs, X1, XV, GAV, t):
        A = self.A
        for a, b in ((0, 1), (2, 3), (4, 5), (6, 7), (0, 2), (4, 6)):
            for k in range(4):
                A(f"v_add_f32 v{regs[a]+k}, v{regs[a]+k}, v{regs[b]+k}")
        for k in range(4):
            A(f"v_add_f32 v{X1+k}, v{regs[0]+k}, v{regs[4]+k}")
        self.rnd2(X1, X1 + 1, t)
        self.rnd2(X1 + 2, X1 + 3, t + 1)
        for k in range(4):
            A(f"v_mul_f32 v{X1+k}, v{X1+k}, v{GAV+k}")
        self.rnd2(X1, X1 + 1, t)
        self.rnd2(X1 + 2, X1 + 3, t + 1)
        for k in range(4):
            A(f"v_add_f32 v{X1+k}, v{X1+k}, v{XV+k}")
        self.rnd2(X1, X1 + 1, t)
        self.rnd2(X1 + 2, X1 + 3, t + 1)

    def ln_norm(self, S1, S2, X, U0, U1):
        A = self.A
        A(f"s_mov_b32 s58, {f32(1.0/512)}")
        A(f"v_mul_f32 v{S1}, s58, v{S1}")
        A(f"v_mul_f32 v{S2}, s58, v{S2}")
        A(f"v_fma_f32 v{S2}, -v{S1}, v{S1}, v{S2}")
        A(f"v_max_f32 v{S2}, 0, v{S2}")
        self.rnd2(S1, S2, U0)
        A(f"v_add_f32 v{S2}, {f32(1e-5)}, v{S2}")
        self.rnd1(S2)
        A(f"v_sqrt_f32 v{S2}, v{S2}")
        for k in range(4):
            A(f"v_sub_f32 v{X+k}, v{X+k}, v{S1}")
        self.rnd1(S2)
        A(f"v_rcp_f32 v{S2}, v{S2}")
        self.rnd2(X, X + 1, U0)
        self.rnd2(X + 2, X + 3, U1)
        for k in range(4):
            A(f"v_mul_f32 v{X+k}, v{X+k}, v{S2}")
        self.rnd2(X, X + 1, U0)
        self.rnd2(X + 2, X + 3, U1)

    def modulate(self, N, T4, sp0, sp1, t0, w, VAW):
        A = self.A
        for k in range(4):
            A(f"v_mul_f32 v{N+k}, v{N+k}, v{T4+k}")
        self.rnd2(N, N + 1, t0)
        self.rnd2(N + 2, N + 3, t0 + 1)
        self.unpack2(sp0, w, w + 1)
        self.unpack2(sp1, w + 2, w + 3)
        for k in range(4):
            A(f"v_add_f32 v{N+k}, v{N+k}, v{w+k}")
        A(f"v_cvt_pk_bf16_f32 v{w+4}, v{N}, v{N+1}")
        A(f"v_cvt_pk_bf16_f32 v{w+5}, v{N+2}, v{N+3}")
        A(f"ds_write_b64 v{VAW}, v[{w+4}:{w+5}]")


HEADER = open("cdna_kernels/%s.s.ref" % NAME).read().split("; Override launch geometry")[0] if True else ""

if __name__ == "__main__":
    import argparse
    ap = argparse.ArgumentParser()
    ap.add_argument("-o", default="k.s")
    ap.add_argument("--R", type=int, default=3)
    ap.add_argument("--B", type=int, default=32)
    ap.add_argument("--stamps", action="store_true")
    ap.add_argument("--sleep", type=int, default=1)
    ap.add_argument("--NS", type=int, default=12)
    ap.add_argument("--R0", type=int, default=3)
    ap.add_argument("--grp", default="iod")
    ap.add_argument("--CP", type=int, default=0)
    ap.add_argument("--dbg", default="")
    ap.add_argument("--pace", type=int, default=0)
    ap.add_argument("--tpol", default="nt")
    ap.add_argument("--xmap", action="store_true")
    ap.add_argument("--flagq", action="store_true")
    ap.add_argument("--TH", type=int, default=480)
    ap.add_argument("--kvpol", default="nt")
    ap.add_argument("--dry", action="store_true")
    ap.add_argument("--pm", action="store_true")
    ap.add_argument("--rot", type=int, default=0)
    ap.add_argument("--H", type=int, default=1)
    ap.add_argument("--px", type=int, default=33)
    ap.add_argument("--egw", type=int, default=0)
    ap.add_argument("--cstr", type=int, default=4224)
    ap.add_argument("--ps1", type=int, default=1)
    ap.add_argument("--ps2", type=int, default=1)
    a = ap.parse_args()
    B = a.B
    if a.stamps and B > 32:
        B = 32
    g = Gen(R=a.R, B=B, stamps=a.stamps, sleep=a.sleep, NS=a.NS, R0=a.R0, grp=a.grp, CP=a.CP, dbg=a.dbg, pace=a.pace, tpol=a.tpol, xmap=a.xmap, flagq=a.flagq, ps1=a.ps1, ps2=a.ps2, TH=a.TH, kvpol=a.kvpol, dry=a.dry, pm=a.pm, rot=a.rot, H=a.H, cstr=a.cstr, egw=a.egw, px=a.px)
    open(a.o, "w").write(HEADER + g.build())
```

```python
import sys, struct

NAME = "adaLN_cond__mha_block_cached__glu_gated_swiglu__decode"

def f32(x):
    return "0x%08x" % struct.unpack("<I", struct.pack("<f", x))[0]

LOG2E = 1.4426950408889634
SCALE = 128 ** -0.5

MOD_OFF = 0x0000
Q_OFF = 0x8000
PART_OFF = 0x10000
ATT_OFF = 0x90000
HH_OFF = 0x98000
CNT_OFF = 0x9A000
CTR_OFF = 0x100000
WS_USED = 0x9C000
STAMP_OFF = 0x10000000
L_A = 0
L_D = L_A + 2048
L_ST = L_D + 2048
L_Q = L_ST + 64
L_Z = L_Q + 512
L_CNT = L_Z
L_QF = L_Z + 16
L_NEED = L_Z + 32
L_RL = L_Z + 256
L_ML = L_Z + 512
L_P = 5376
L_W = L_P + 16384
LDS_BYTES = L_W + 90112
assert L_ML + 128 <= L_P and L_P % 128 == 0

R_MOD0, R_Q0, R_WO0, R_WO1, R_UP0, R_UP1, R_DN0 = 0, 48, 112, 176, 192, 235, 240
SENT = 0xFFFFFFFF


class Gen:
    def __init__(self, R=3, B=32, stamps=False, NS=12, sleep=1, R0=3, grp='iod', CP=0, dbg='', pace=0, tpol='nt', xmap=False, flagq=False, ps1=1, ps2=1, TH=480, kvpol='nt', dry=False, pm=False, rot=0, H=1, cstr=4224, egw=0, px=33):
        self.o = []
        self.R, self.B, self.stamps, self.NS, self.sleep, self.R0, self.grp = R, B, stamps, NS, sleep, R0, grp
        self.uid = 0
        self.CP = CP
        self.dbg = dbg
        self.px = px
        self.egw = egw
        self.cstr = cstr
        self.H = H
        self.rot = rot
        self.pm = pm
        self.dry = dry
        self.kvpol = kvpol
        self.TH = TH
        self.ps1, self.ps2 = ps1, ps2
        self.pace, self.tpol, self.xmap, self.flagq = pace, tpol, xmap, flagq

    def A(self, s):
        self.o.append("    " + s)

    def L(self, s):
        self.o.append(s + ":")

    def lab(self, p):
        self.uid += 1
        return f"L_{p}_{self.uid}"

    def nop(self, n):
        while n > 0:
            k = min(n, 16)
            self.A(f"s_nop {k-1}")
            n -= k

    def srd(self, d, b, nbytes):
        self.A(f"s_mov_b32 s{d}, s{b}")
        self.A(f"s_mov_b32 s{d+1}, s{b+1}")
        self.A(f"s_mov_b32 s{d+2}, {nbytes}")
        self.A(f"s_mov_b32 s{d+3}, 0x20000")

    def stamp(self, idx, src=None, wave=False):
        if not self.stamps:
            return
        A = self.A
        if src is None:
            A("s_memrealtime s[90:91]")
        else:
            A(f"s_mov_b64 s[90:91], {src}")
        A("s_mov_b64 s[92:93], exec")
        A("s_mov_b64 exec, 1")
        A("s_lshl_b32 s94, s2, 9")
        if wave:
            A("s_lshl_b32 s95, s3, 5")
            A("s_add_u32 s94, s94, s95")
        A(f"s_add_u32 s94, s94, {STAMP_OFF + idx*8}")
        A("s_waitcnt lgkmcnt(0)")
        A("v_mov_b32 v166, s90")
        A("v_mov_b32 v167, s91")
        A("buffer_store_dwordx2 v[166:167], off, s[84:87], s94")
        A("s_mov_b64 exec, s[92:93]")

    def rnd2(self, a, b, t):
        self.A(f"v_cvt_pk_bf16_f32 v{t}, v{a}, v{b}")
        self.A(f"v_lshlrev_b32 v{a}, 16, v{t}")
        self.A(f"v_and_b32 v{b}, 0xffff0000, v{t}")

    def rnd1(self, a):
        self.A(f"v_cvt_pk_bf16_f32 v{a}, v{a}, v{a}")
        self.A(f"v_and_b32 v{a}, 0xffff0000, v{a}")

    def unpack2(self, src, lo, hi):
        self.A(f"v_lshlrev_b32 v{lo}, 16, v{src}")
        self.A(f"v_and_b32 v{hi}, 0xffff0000, v{src}")

    def allred32(self, regs, tmps):
        A = self.A
        for rot in (8, 4, 2, 1):
            self.nop(2 if len(regs) < 2 else max(0, 2 - (len(regs) - 1)))
            for r in regs:
                A(f"v_add_f32_dpp v{r}, v{r}, v{r} row_ror:{rot} row_mask:0xf bank_mask:0xf")
        for r, t in zip(regs, tmps):
            A(f"v_mov_b32 v{t}, v{r}")
        self.nop(2)
        for r, t in zip(regs, tmps):
            A(f"v_permlane16_swap_b32 v{r}, v{t}")
        self.nop(1)
        for r, t in zip(regs, tmps):
            A(f"v_add_f32 v{r}, v{r}, v{t}")

    def slice_of(self, dst, r0, n):
        A = self.A
        A(f"s_sub_u32 s{dst}, s89, {r0}")
        if not self.xmap:
            return
        q, rem = divmod(n, 8)
        A(f"s_and_b32 s68, s{dst}, 7")
        A(f"s_lshr_b32 s{dst}, s{dst}, 3")
        A(f"s_min_u32 s69, s68, {rem}")
        A(f"s_mul_i32 s68, s68, {q}")
        A(f"s_add_u32 s{dst}, s{dst}, s68")
        A(f"s_add_u32 s{dst}, s{dst}, s69")

    def dstamp(self, word, mn=False, tagreg=80, srd=76):
        if "dtime" not in self.dbg:
            return
        A = self.A
        A("s_memrealtime s[90:91]")
        A("s_mov_b64 s[92:93], exec")
        A("s_mov_b64 exec, 1")
        A("s_waitcnt lgkmcnt(0)")
        A(f"s_sub_u32 s90, s90, s{tagreg}")
        if mn:
            A("s_sub_u32 s90, 100000, s90")
        A("v_mov_b32 v166, s90")
        A(f"buffer_atomic_umax v166, off, s[{srd}:{srd+3}], 0 offset:{word*4} sc1")
        A("s_mov_b64 exec, s[92:93]")

    def bar(self):
        if not self.dry:
            self.A("s_barrier")
            return
        l = self.lab("nb")
        self.A("s_cmp_eq_u32 s69, 0")
        self.A(f"s_cbranch_scc0 {l}")
        self.A("s_barrier")
        self.L(l)

    def poll_head(self):
        l = self.lab("poll")
        self.L(l)
        return l

    def poll_tail(self, l, sleep=None):
        A = self.A
        d = self.lab("pdone")
        A(f"s_cbranch_vccz {d}")
        A("s_cmp_eq_u32 s88, 0")
        A(f"s_cbranch_scc1 {d}")
        A("s_sub_u32 s88, s88, 1")
        if (self.sleep if sleep is None else sleep):
            A(f"s_sleep {self.sleep if sleep is None else sleep}")
        A(f"s_branch {l}")
        self.L(d)

    def poll_multi(self, loads, t):
        A, L = self.A, self.L
        n = len(loads)
        if not self.pm:
            pl = self.poll_head()
            for lines, regs in loads:
                for x in lines:
                    A(x)
            A("s_waitcnt vmcnt(0)")
            self.check_sent([r for lines, regs in loads for r in regs], t)
            self.poll_tail(pl)
            return
        A(f"s_mov_b32 s95, {(1 << n) - 1}")
        first = True
        top = self.lab("mp")
        done = self.lab("mpd")
        for lines, regs in loads:
            for x in lines:
                A(x)
        chk = self.lab("mpc")
        A(f"s_branch {chk}")
        L(top)
        for r, (lines, regs) in enumerate(loads):
            sk = self.lab("mps")
            A(f"s_bitcmp1_b32 s95, {r}")
            A(f"s_cbranch_scc0 {sk}")
            for x in lines:
                A(x)
            L(sk)
        L(chk)
        A("s_waitcnt vmcnt(0)")
        for r, (lines, regs) in enumerate(loads):
            sk = self.lab("mpk")
            A(f"s_bitcmp1_b32 s95, {r}")
            A(f"s_cbranch_scc0 {sk}")
            self.check_sent(regs, t)
            A(f"s_cbranch_vccnz {sk}")
            A(f"s_bitset0_b32 s95, {r}")
            L(sk)
        A("s_cmp_eq_u32 s95, 0")
        A(f"s_cbranch_scc1 {done}")
        A("s_cmp_eq_u32 s88, 0")
        A(f"s_cbranch_scc1 {done}")
        A("s_sub_u32 s88, s88, 1")
        if self.sleep:
            A(f"s_sleep {self.sleep}")
        A(f"s_branch {top}")
        L(done)

    def check_sent(self, regs, t):
        A = self.A
        regs = list(regs)
        if len(regs) >= 3:
            A(f"v_max3_u32 v{t}, v{regs[0]}, v{regs[1]}, v{regs[2]}")
            regs = regs[3:]
        else:
            A(f"v_max_u32 v{t}, v{regs[0]}, v{regs[1]}")
            regs = regs[2:]
        while len(regs) >= 2:
            A(f"v_max3_u32 v{t}, v{t}, v{regs[0]}, v{regs[1]}")
            regs = regs[2:]
        if regs:
            A(f"v_max_u32 v{t}, v{t}, v{regs[0]}")
        A(f"v_cmp_eq_u32 vcc, -1, v{t}")

    def check_tags(self, regs, t):
        A = self.A
        A(f"v_xor_b32 v{t}, s80, v{regs[0]}")
        for r in regs[1:]:
            A(f"v_xor_b32 v{t+1}, s80, v{r}")
            A(f"v_or_b32 v{t}, v{t}, v{t+1}")
        A(f"v_cmp_ne_u32 vcc, 0, v{t}")

    def dma_weights(self, srd, nins, voff, row_step_bytes, lds_base_s, soff0=0, pol="nt", skip=""):
        A = self.A
        if "notaildma" in self.dbg and getattr(self, "intail", False):
            return
        if "noprodma" in self.dbg and not getattr(self, "intail", False):
            nins = 16
            A(f"s_mov_b32 s{srd+2}, 0")
        A(f"s_mov_b32 s70, {soff0}")
        A(f"s_add_u32 s71, s{lds_base_s}, {L_W}")
        intail = getattr(self, "intail", False)
        if intail:
            pol = self.tpol
            if skip and skip in self.dbg:
                return
        for i in range(nins):
            if intail and self.pace and i >= self.pace:
                A(f"s_waitcnt vmcnt({self.pace-1})")
            A("s_mov_b32 m0, s71")
            A(f"s_add_u32 s71, s71, 1024")
            A(f"buffer_load_dwordx4 v{voff}, s[{srd}:{srd+3}], s70 offen {pol} lds")
            A(f"s_add_u32 s70, s70, {row_step_bytes}")

    def tr_reads(self, vaddr, breg, nk, cgs, rowb):
        for t in range(nk):
            for ci, cgoff in enumerate(cgs):
                r = breg + (t * len(cgs) + ci) * 4
                off = t * 32 * rowb + cgoff
                self.A(f"ds_read_b64_tr_b16 v[{r}:{r+1}], v{vaddr} offset:{off}")
                self.A(f"ds_read_b64_tr_b16 v[{r+2}:{r+3}], v{vaddr} offset:{off + 4*rowb}")

    def mfmas(self, areg, breg, dreg, nk, ncg):
        for t in range(nk):
            for c in range(ncg):
                a = areg + 4 * t
                b = breg + (t * ncg + c) * 4
                d = dreg + 4 * c
                src = "0" if t == 0 else f"v[{d}:{d+3}]"
                self.A(f"v_mfma_f32_16x16x32_bf16 v[{d}:{d+3}], v[{a}:{a+3}], v[{b}:{b+3}], {src}")

    def d_to_lds(self, dreg, ncg, x0, x1, vaddr):
        A = self.A
        self.nop(8)
        for c in range(ncg):
            A(f"v_mov_b32_dpp v{x0}, v{dreg+4*c} quad_perm:[0,1,2,3] row_mask:{1<<c:#x} bank_mask:0xf")
            A(f"v_mov_b32_dpp v{x1}, v{dreg+4*c+1} quad_perm:[0,1,2,3] row_mask:{1<<c:#x} bank_mask:0xf")
        A(f"ds_write_b32 v{vaddr}, v{x0}")
        A(f"ds_write_b32 v{vaddr}, v{x1} offset:256")

    def a_frags_from_stage(self, vaddr, areg):
        for t in range(4):
            self.A(f"ds_read_b128 v[{areg+4*t}:{areg+4*t+3}], v{vaddr} offset:{t*64}")

    def build(self):
        A, L = self.A, self.L
        o = self.o
        o.append(f"; @launch grid=(256,1,1) block=(768,1,1) lds={LDS_BYTES}")
        o.append('.amdgcn_target "amdgcn-amd-amdhsa--gfx950"')
        o.append(".text")
        o.append(f".globl {NAME}_kernel")
        o.append(".p2align 8")
        o.append(f".type {NAME}_kernel,@function")
        L(f"{NAME}_kernel")
        if self.stamps:
            A("s_memrealtime s[100:101]")
        A("s_cmp_ge_u32 s2, 256")
        A("s_cbranch_scc1 L_end")
        A("s_load_dwordx4 s[4:7], s[0:1], 8")
        A("s_load_dwordx4 s[96:99], s[0:1], 96")
        A("v_lshrrev_b32 v1, 6, v0")
        A("v_and_b32 v2, 63, v0")
        A("v_readfirstlane_b32 s3, v1")
        if self.grp == "pair":
            A("s_and_b32 s40, s2, 7")
            A("s_lshr_b32 s40, s40, 1")
            A("s_lshr_b32 s43, s2, 4")
            A("s_lshl_b32 s43, s43, 2")
            A("s_add_u32 s40, s40, s43")
            A("s_and_b32 s41, s2, 1")
            A("s_lshr_b32 s43, s2, 3")
            A("s_and_b32 s43, s43, 1")
            A("s_lshl_b32 s43, s43, 1")
            A("s_add_u32 s41, s41, s43")
        else:
            A("s_lshr_b32 s41, s2, 1")
            A("s_xor_b32 s40, s41, s2")
            A("s_and_b32 s40, s40, 1")
            A("s_and_b32 s41, s41, 3")
            A("s_lshr_b32 s43, s2, 3")
            A("s_lshl_b32 s43, s43, 1")
            A("s_add_u32 s40, s40, s43")
        A("s_lshr_b32 s89, s40, 1")
        A("s_add_u32 s89, s89, s41")
        A("s_and_b32 s89, s89, 3")
        A("s_lshl_b32 s89, s89, 6")
        A("s_add_u32 s89, s89, s40")
        A("s_cmp_ge_u32 s3, 8")
        A("s_cbranch_scc1 L_helper")
        self.streamer()
        L("L_helper")
        self.helper()
        L("L_end")
        A("s_endpgm")
        o.append('.section .rodata,"a"')
        o.append(".p2align 6")
        o.append(f".amdhsa_kernel {NAME}_kernel")
        o.append("  .amdhsa_next_free_vgpr 168")
        o.append("  .amdhsa_next_free_sgpr 102")
        o.append("  .amdhsa_accum_offset 168")
        o.append("  .amdhsa_group_segment_fixed_size 0")
        o.append("  .amdhsa_kernarg_size 112")
        o.append("  .amdhsa_user_sgpr_count 2")
        o.append("  .amdhsa_user_sgpr_kernarg_segment_ptr 1")
        o.append("  .amdhsa_system_sgpr_workgroup_id_x 1")
        o.append(".end_amdhsa_kernel")
        return "\n".join(o) + "\n"

    def streamer(self):
        A, L = self.A, self.L
        R, B, NS, R0 = self.R, self.B, self.NS, self.R0
        VOFF, QF, MK, D, M, MN, LS = 1, 2, 6, 10, 14, 15, 16
        AC, T0, T1, S, PP = 17, 21, 22, 23, 24
        AS = 26
        LANE = 34
        EP, CLM = 35, 25
        RING = 168 - 4 * B - (2 if self.stamps else 0)
        RING -= RING % 2
        assert RING >= 36
        A(f"v_mov_b32 v{LANE}, v2")
        A("s_lshl_b32 s44, s41, 3")
        A("s_add_u32 s44, s44, s3")
        A("s_lshl_b32 s44, s44, 12")
        A(f"s_mul_i32 s45, s40, {self.rot}")
        A("s_lshl_b32 s45, s45, 15")
        A("s_add_u32 s44, s44, s45")
        A("s_lshl_b32 s33, s40, 21")
        A(f"v_lshlrev_b32 v{VOFF}, 4, v2")
        A("s_waitcnt lgkmcnt(0)")
        self.srd(8, 4, 0x8000000)
        self.srd(12, 6, 0x8000000)
        N = (NS - 1) * 8 + R
        NC = (NS - 1) * 8

        def issue(p):
            i, j = divmod(p, 8)
            t, j = divmod(j, 4)
            r = RING + 4 * (p % B)
            srd = "s[8:11]" if t == 0 else "s[12:15]"
            if j == 0 and t == 0:
                A(f"s_add_u32 s16, s44, {i * 32 * 4096}")
                A("s_and_b32 s16, s16, 0x1fffff")
                A("s_add_u32 s16, s16, s33")
                if self.stamps and i < 12:
                    A(f"s_memrealtime s[{48+2*i}:{49+2*i}]")
            A(f"buffer_load_dwordx4 v[{r}:{r+3}], v{VOFF}, {srd}, s16 offen offset:{j*1024} {self.kvpol}")

        for p in range(R0):
            issue(p)
        if self.stamps:
            A("s_memrealtime s[30:31]")
        self.srd(84, 98, 0x20000000)
        A("s_barrier")
        if self.H == 2:
            A(f"s_xor_b32 s43, s40, {self.px}")
            A("s_min_u32 s43, s43, s40")
            A(f"s_xor_b32 s39, s43, {self.px}")
            A("s_lshl_b32 s39, s39, 21")
        else:
            A("s_mov_b32 s43, s40")
        A("s_lshl_b32 s45, s43, 3")
        A("s_add_u32 s45, s45, s3")
        A(f"s_mul_i32 s45, s45, {self.cstr}")
        A(f"s_add_u32 s45, s45, {CTR_OFF}")
        A("s_lshl_b32 s42, s3, 12")
        A(f"s_mul_i32 s38, s43, {self.rot}")
        A("s_lshl_b32 s38, s38, 15")
        A("s_add_u32 s42, s42, s38")
        A("s_lshl_b32 s43, s43, 21")
        if self.H == 2:
            A("s_lshr_b32 s32, s40, 5")
        else:
            A("s_mov_b32 s32, 0")
        A("s_mov_b32 s28, s32")
        A("s_mov_b32 s29, s32")
        A("s_add_u32 s26, s98, s45")
        A("s_addc_u32 s27, s99, 0")
        A(f"v_and_b32 v{T0}, 15, v{LANE}")
        A(f"v_and_b32 v{T1}, 1, v{LANE}")
        A(f"v_lshlrev_b32 v{T1}, 4, v{T1}")
        A(f"s_mov_b32 s17, 0xffff")
        A(f"v_mov_b32 v{S}, s17")
        A(f"v_lshlrev_b32 v{T1}, v{T1}, v{S}")
        A(f"v_lshrrev_b32 v{T0}, 1, v{T0}")
        for k in range(4):
            A(f"v_cmp_eq_u32 vcc, {k}, v{T0}")
            self.nop(2)
            A(f"v_cndmask_b32 v{MK+k}, 0, v{T1}, vcc")
        for k in range(4):
            A(f"v_mov_b32 v{D+k}, 0")
        A(f"v_mov_b32 v{M}, {f32(-3.0e38)}")
        A(f"v_mov_b32 v{MN}, 0")
        A(f"v_mov_b32 v{LS}, 0")
        A(f"v_and_b32 v35, 15, v{LANE}")
        A(f"v_lshlrev_b32 v35, 5, v35")
        A(f"v_lshrrev_b32 v{T1}, 4, v{LANE}")
        A(f"v_and_b32 v{S}, 1, v{T1}")
        A(f"v_lshl_add_u32 v35, v{S}, 4, v35")
        A(f"v_lshrrev_b32 v{T1}, 1, v{T1}")
        A(f"v_lshl_add_u32 v35, v{T1}, 9, v35")
        A("s_lshl_b32 s20, s3, 10")
        A(f"v_add_u32 v35, s20, v35")
        A("s_lshl_b32 s20, s3, 3")
        A(f"v_mov_b32 v25, s20")
        A(f"s_mov_b32 s18, {f32(SCALE)}")
        A(f"s_mov_b32 s19, {f32(LOG2E)}")
        for p in range(R0, B):
            A(f"s_waitcnt vmcnt({R0-1 if p < 8 else R-1})")
            issue(p)
        self.stamp(1)
        self.stamp(11, "s[100:101]")
        self.stamp(12, "s[30:31]")
        A(f"v_and_b32 v{T0}, 15, v{LANE}")
        A(f"v_lshlrev_b32 v{T0}, 4, v{T0}")
        A("s_lshl_b32 s20, s32, 8")
        A(f"v_add_u32 v{T0}, s20, v{T0}")
        if not self.flagq:
            A("s_barrier")
            A(f"ds_read_b128 v[{QF}:{QF+3}], v{T0} offset:{L_Q}")
            A("s_waitcnt lgkmcnt(0)")
        else:
            A(f"v_mov_b32 v{T1}, 0")
            A("s_mov_b32 s88, 0x400000")
            pl = self.poll_head()
            A(f"ds_read_b32 v{AS}, v{T1} offset:{L_QF}")
            A(f"ds_read_b128 v[{QF}:{QF+3}], v{T0} offset:{L_Q}")
            A("s_waitcnt lgkmcnt(0)")
            A(f"v_cmp_eq_u32 vcc, 0, v{AS}")
            self.poll_tail(pl, sleep=1)
        if self.stamps:
            A("s_waitcnt vmcnt(0)")
        beta = [0, 2, 1, 3]
        st = {"I": B, "landed": (B if self.stamps else B - R)}

        def need(c):
            if c >= st["landed"]:
                A(f"s_waitcnt vmcnt({st['I'] - 1 - c})")
                st["landed"] = c + 1

        def paced_issue():
            I = st["I"]
            if I >= N:
                return
            if I - st["landed"] >= R:
                A(f"s_waitcnt vmcnt({R-1})")
                st["landed"] = I - (R - 1)
            issue(I)
            st["I"] = I + 1

        def consume(c):
            i, j = divmod(c, 8)
            t, j = divmod(j, 4)
            r = RING + 4 * (c % B)
            need(c)
            if "nocomp" in self.dbg:
                A(f"v_xor_b32 v{AC}, v{AC}, v{r}")
            elif t == 0:
                A(f"v_dot2_f32_bf16 v{AC+j}, v{r}, v{QF}, 0")
                for k in range(1, 4):
                    A(f"v_dot2_f32_bf16 v{AC+j}, v{r+k}, v{QF+k}, v{AC+j}")
            else:
                a = AS + 4 * (j & 1)
                for k in range(4):
                    A(f"v_and_b32_dpp v{a+k}, v{PP}, v{MK+k} row_newbcast:{4*beta[j]} row_mask:0xf bank_mask:0xf")
                self.nop(2)
                A(f"v_mfma_f32_16x16x32_bf16 v[{D}:{D+3}], v[{a}:{a+3}], v[{r}:{r+3}], v[{D}:{D+3}]")

        def softmax():
            if "nocomp" in self.dbg:
                return
            self.nop(3)
            A(f"v_add_f32_dpp v{T0}, v{AC}, v{AC} row_ror:8 row_mask:0xf bank_mask:0x3")
            A(f"v_add_f32_dpp v{T1}, v{AC+2}, v{AC+2} row_ror:8 row_mask:0xf bank_mask:0x3")
            A(f"v_add_f32_dpp v{T0}, v{AC+1}, v{AC+1} row_ror:8 row_mask:0xf bank_mask:0xc")
            A(f"v_add_f32_dpp v{T1}, v{AC+3}, v{AC+3} row_ror:8 row_mask:0xf bank_mask:0xc")
            self.nop(1)
            A(f"v_add_f32_dpp v{S}, v{T0}, v{T0} row_shl:4 row_mask:0xf bank_mask:0x5")
            A(f"v_add_f32_dpp v{S}, v{T1}, v{T1} row_shr:4 row_mask:0xf bank_mask:0xa")
            self.nop(2)
            A(f"v_add_f32_dpp v{S}, v{S}, v{S} quad_perm:[2,3,0,1] row_mask:0xf bank_mask:0xf")
            self.nop(2)
            A(f"v_add_f32_dpp v{S}, v{S}, v{S} quad_perm:[1,0,3,2] row_mask:0xf bank_mask:0xf")
            self.rnd1(S)
            A(f"v_mul_f32 v{S}, s18, v{S}")
            self.rnd1(S)
            A(f"v_cmp_gt_f32 vcc, v{S}, v{M}")
            bk = self.lab("back")
            A(f"s_cbranch_vccz {bk}")
            A("s_call_b64 s[46:47], L_rare")
            L(bk)
            A(f"v_fma_f32 v{T0}, v{S}, s19, v{MN}")
            A(f"v_exp_f32 v{T0}, v{T0}")
            self.nop(1)
            A(f"v_add_f32 v{LS}, v{LS}, v{T0}")
            A(f"v_cvt_pk_bf16_f32 v{PP}, v{T0}, v{T0}")
            self.nop(2)

        c = 0
        while c < NC:
            lag = st["I"] - c
            ncons = 2 if lag > R + 1 else 1
            if st["I"] < N and st["I"] - B < c and lag <= R:
                paced_issue()
            for _ in range(ncons):
                if c >= NC:
                    break
                consume(c)
                c += 1
                if c % 8 == 4:
                    softmax()
            if st["I"] < N and st["I"] - B < c and (st["I"] - c) > R:
                paced_issue()
        assert st["I"] == N, (st, N)
        base = (NS - 1) * 8
        alt = (base + 8) % B
        st["landed"] = 1 << 30

        def ld(pos, sl, soff):
            t, jl = divmod(pos, 4)
            r = RING + 4 * (sl % B)
            srd = "s[8:11]" if t == 0 else "s[12:15]"
            A(f"buffer_load_dwordx4 v[{r}:{r+3}], v{VOFF}, {srd}, {soff} offen offset:{jl*1024} {self.kvpol}")

        CP = self.CP

        def claim():
            if "fake" in self.dbg:
                A("s_add_u32 s39, s39, 4")
                A("s_mov_b32 s24, s39")
                if "fakeld" in self.dbg:
                    A("s_load_dword s38, s[26:27], 0 glc")
                if "fakeat" in self.dbg:
                    A("s_mov_b32 s38, 1")
                    A("s_atomic_add s38, s[26:27], 0 glc")
                return
            A("s_mov_b32 s24, 1")
            A("s_atomic_add s24, s[26:27], 0 glc")

        def eat(sl, j_from, younger):
            for j in range(j_from, 8):
                A(f"s_waitcnt vmcnt({younger + 7 - j})")
                consume(sl + j)
                if j == 3:
                    softmax()

        CX = RING + 4 * ((base + 16) % B)
        ACT = [QF, QF + 1, QF + 2, QF + 3, D, D + 1, D + 2, D + 3, M, MN, LS]
        SAV = [CX + k for k in range(11)]
        self.ctx = (ACT, SAV)
        if self.H == 2:
            A(f"v_and_b32 v{T0}, 15, v{LANE}")
            A(f"v_lshlrev_b32 v{T0}, 4, v{T0}")
            A("s_xor_b32 s20, s32, 1")
            A("s_lshl_b32 s20, s20, 8")
            A(f"v_add_u32 v{T0}, s20, v{T0}")
            A(f"ds_read_b128 v[{CX}:{CX+3}], v{T0} offset:{L_Q}")
            for k in range(4, 8):
                A(f"v_mov_b32 v{CX+k}, 0")
            A(f"v_mov_b32 v{CX+8}, {f32(-3.0e38)}")
            A(f"v_mov_b32 v{CX+9}, 0")
            A(f"v_mov_b32 v{CX+10}, 0")

        def decode(dst, hd, src=24):
            if self.H == 1:
                A(f"s_lshl_b32 s{dst}, s{src}, 15")
                A(f"s_add_u32 s{dst}, s{dst}, s42")
                if self.rot:
                    A(f"s_and_b32 s{dst}, s{dst}, 0x1fffff")
                A(f"s_add_u32 s{dst}, s{dst}, s43")
                return
            A(f"s_and_b32 s{hd}, s{src}, 1")
            A(f"s_lshr_b32 s{dst}, s{src}, 1")
            A(f"s_lshl_b32 s{dst}, s{dst}, 15")
            A(f"s_add_u32 s{dst}, s{dst}, s42")
            A(f"s_mul_i32 s21, s{hd}, {((32 * self.rot) & 63) << 15}")
            A(f"s_add_u32 s{dst}, s{dst}, s21")
            A(f"s_and_b32 s{dst}, s{dst}, 0x1fffff")
            A(f"s_lshl_b32 s21, s{hd}, 26")
            A(f"s_add_u32 s{dst}, s{dst}, s21")
            A(f"s_add_u32 s{dst}, s{dst}, s43")

        def switch(hd):
            if self.H == 1:
                return
            l = self.lab("nosw")
            A(f"s_cmp_eq_u32 s32, s{hd}")
            A(f"s_cbranch_scc1 {l}")
            A("s_call_b64 s[46:47], L_swap")
            L(l)

        if self.stamps:
            A("s_mov_b32 s78, 0")
            A("s_mov_b32 s79, 0")
        j0 = 8 - R
        assert CP < j0
        RLA, RLV, NDV, ZA = CX + 12, CX + 13, CX + 14, CX + 15
        END = 64 * self.H + 1
        A(f"v_mov_b32 v{RLA}, 0")
        A(f"v_mov_b32 v{ZA}, 0")
        A(f"v_mov_b32 v{NDV}, 1")
        A(f"ds_max_u32 v{ZA}, v{NDV} offset:{L_NEED}")
        if self.H == 1:
            A("s_sub_u32 s42, s42, 0x8000")
            A("s_add_u32 s42, s42, s43")
        else:
            A("s_add_u32 s43, s43, s42")
            A("s_add_u32 s39, s39, s42")

        def rl_read():
            A(f"ds_read_b32 v{RLV}, v{RLA} offset:{L_RL}")

        def rl_get():
            got = self.lab("got")
            A("s_waitcnt lgkmcnt(0)")
            A(f"v_readfirstlane_b32 s24, v{RLV}")
            A("s_cmp_lg_u32 s24, 0")
            A(f"s_cbranch_scc1 {got}")
            A("s_call_b64 s[46:47], L_rlspin")
            L(got)

        def rl_next(dst, hd):
            A(f"v_add_u32 v{NDV}, 1, v{NDV}")
            A(f"v_add_u32 v{RLA}, 4, v{RLA}")
            A(f"ds_max_u32 v{ZA}, v{NDV} offset:{L_NEED}")
            if self.H == 1:
                A(f"s_lshl_b32 s{dst}, s24, 15")
                A(f"s_add_u32 s{dst}, s{dst}, s42")
            else:
                A("s_sub_u32 s24, s24, 1")
                A(f"s_and_b32 s{hd}, s24, 1")
                A("s_cselect_b32 s21, s39, s43")
                A(f"s_lshr_b32 s{dst}, s24, 1")
                A(f"s_lshl_b32 s{dst}, s{dst}, 15")
                A(f"s_add_u32 s{dst}, s{dst}, s21")

        L("L_dyn")
        if self.stamps:
            A("s_add_u32 s78, s78, 1")
        switch(28)
        for j in range(8):
            if j == j0 - 1:
                rl_read()
            if j == j0:
                if self.stamps:
                    A("s_memrealtime s[34:35]")
                rl_get()
                if self.stamps:
                    A("s_mov_b32 m0, s78")
                    A("v_writelane_b32 v36, s34, m0")
                    A("s_add_u32 m0, s78, 32")
                    A("s_sub_u32 s35, s24, 1")
                    A("v_writelane_b32 v36, s35, m0")
                A(f"s_cmp_ge_u32 s24, {self.TH * self.H // 8 + 1}")
                A("s_cbranch_scc1 L_fin")
                rl_next(16, 28)
            A(f"s_waitcnt vmcnt({R-1})")
            jj = j + R
            ld(jj % 8, base + jj % 8, "s16")
            consume(base + j)
            if j == 3:
                softmax()
        A("s_branch L_dyn")
        L("L_rlspin")
        pl = self.poll_head()
        rl_read()
        A("s_waitcnt lgkmcnt(0)")
        A(f"v_cmp_eq_u32 vcc, 0, v{RLV}")
        self.poll_tail(pl, sleep=1)
        A(f"v_readfirstlane_b32 s24, v{RLV}")
        A("s_cmp_eq_u32 s24, 0")
        A(f"s_cselect_b32 s24, {END}, s24")
        A("s_setpc_b64 s[46:47]")
        L("L_fin")
        if self.stamps:
            A("s_memrealtime s[76:77]")
        if self.TH < 512:
            A(f"s_cmp_ge_u32 s24, {END}")
            A("s_cbranch_scc1 L_fin_last")
            rl_next(25, 29)
            for jj in range(8):
                ld(jj, alt + jj, "s25")
            eat(base, j0, 8)
            for (P, Q, hp, hq, me) in ((alt, base, 29, 28, "A"), (base, alt, 28, 29, "B")):
                L(f"L_eg{me}")
                if self.egw:
                    A(f"s_waitcnt vmcnt({8 - self.egw})")
                rl_read()
                rl_get()
                A(f"s_cmp_ge_u32 s24, {END}")
                A(f"s_cbranch_scc1 L_drain{me}")
                rl_next(25, hq)
                for jj in range(8):
                    ld(jj, Q + jj, "s25")
                switch(hp)
                eat(P, 0, 8)
                if me == "B":
                    A("s_branch L_egA")
            L("L_drainA")
            switch(29)
            eat(alt, 0, 0)
            A("s_branch L_done")
            L("L_drainB")
            switch(28)
            eat(base, 0, 0)
            A("s_branch L_done")
            L("L_fin_last")
        eat(base, j0, 0)
        L("L_done")
        self.stamp(2)
        if self.stamps:
            A("s_lshl_b32 s36, s2, 11")
            A("s_lshl_b32 s37, s3, 8")
            A("s_add_u32 s36, s36, s37")
            A(f"s_add_u32 s36, s36, {STAMP_OFF + 0x40000}")
            A(f"v_lshlrev_b32 v37, 2, v{LANE}")
            A("buffer_store_dword v36, v37, s[84:87], s36 offen")
        self.stamp(32, wave=True)
        self.stamp(33, "s[76:77]", wave=True)
        self.stamp(34, "s[78:79]", wave=True)
        if self.stamps:
            A("s_cmp_eq_u32 s3, 0")
            A("s_cbranch_scc0 L_noprof")
            for i in range(min(NS, 12)):
                self.stamp(16 + i, f"s[{48+2*i}:{49+2*i}]")
            self.stamp(16 + 14)
            L("L_noprof")
        if self.H == 1:
            for ctl, msk in (("row_ror:4", "0xf"), ("row_ror:8", "0xf"), ("row_bcast:15", "0xa"), ("row_bcast:31", "0xc")):
                A(f"v_add_f32_dpp v{LS}, v{LS}, v{LS} {ctl} row_mask:{msk} bank_mask:0xf")
                self.nop(2)
            A(f"ds_write_b128 v35, v[{D}:{D+3}] offset:{L_P}")
            A(f"v_mov_b32 v{MN}, v{LS}")
            A("s_mov_b32 exec_lo, 0")
            A("s_mov_b32 exec_hi, 0x80000000")
            A(f"ds_write_b64 v25, v[{M}:{M+1}] offset:{L_ML}")
            A("s_waitcnt lgkmcnt(0)")
            A("s_barrier")
            A("s_endpgm")
        else:
            LS2, M2, D2 = CX + 10, CX + 8, CX + 4
            for ctl, msk in (("row_ror:4", "0xf"), ("row_ror:8", "0xf"), ("row_bcast:15", "0xa"), ("row_bcast:31", "0xc")):
                A(f"v_add_f32_dpp v{LS}, v{LS}, v{LS} {ctl} row_mask:{msk} bank_mask:0xf")
                A(f"v_add_f32_dpp v{LS2}, v{LS2}, v{LS2} {ctl} row_mask:{msk} bank_mask:0xf")
                self.nop(1)
            A("s_lshl_b32 s20, s32, 13")
            A("s_xor_b32 s21, s20, 8192")
            A(f"v_add_u32 v{T0}, s20, v35")
            A(f"v_add_u32 v{T1}, s21, v35")
            A(f"ds_write_b128 v{T0}, v[{D}:{D+3}] offset:{L_P}")
            A(f"ds_write_b128 v{T1}, v[{D2}:{D2+3}] offset:{L_P}")
            A(f"v_mov_b32 v{MN}, v{LS}")
            A(f"v_mov_b32 v{M2+1}, v{LS2}")
            A("s_lshl_b32 s20, s32, 6")
            A("s_xor_b32 s21, s20, 64")
            A(f"v_add_u32 v{T0}, s20, v25")
            A(f"v_add_u32 v{T1}, s21, v25")
            A("s_mov_b32 exec_lo, 0")
            A("s_mov_b32 exec_hi, 0x80000000")
            A(f"ds_write_b64 v{T0}, v[{M}:{M+1}] offset:{L_ML}")
            A(f"ds_write_b64 v{T1}, v[{M2}:{M2+1}] offset:{L_ML}")
            A("s_waitcnt lgkmcnt(0)")
            A("s_barrier")
            A("s_endpgm")
            L("L_swap")
            self.nop(8)
            for a, b in zip(ACT, SAV):
                A(f"v_swap_b32 v{a}, v{b}")
            A("s_xor_b32 s32, s32, 1")
            A("s_setpc_b64 s[46:47]")

        L("L_rare")
        A(f"v_max_f32_dpp v{T0}, v{S}, v{S} row_ror:4 row_mask:0xf bank_mask:0xf")
        self.nop(2)
        A(f"v_max_f32_dpp v{T0}, v{T0}, v{T0} row_ror:8 row_mask:0xf bank_mask:0xf")
        self.nop(1)
        A(f"v_readlane_b32 s20, v{T0}, 0")
        A(f"v_readlane_b32 s21, v{T0}, 16")
        A(f"v_readlane_b32 s22, v{T0}, 32")
        A(f"v_readlane_b32 s23, v{T0}, 48")
        A(f"v_max_f32 v{T1}, s20, v{M}")
        A(f"v_max_f32 v{T1}, s21, v{T1}")
        A(f"v_max_f32 v{T1}, s22, v{T1}")
        A(f"v_max_f32 v{T1}, s23, v{T1}")
        A(f"v_sub_f32 v{T0}, v{M}, v{T1}")
        A(f"v_mul_f32 v{T0}, s19, v{T0}")
        A(f"v_exp_f32 v{T0}, v{T0}")
        A(f"v_mov_b32 v{M}, v{T1}")
        A(f"v_mul_f32 v{MN}, s19, v{T1}")
        A(f"v_sub_f32 v{MN}, 0, v{MN}")
        for k in range(4):
            A(f"v_mul_f32 v{D+k}, v{D+k}, v{T0}")
        A(f"v_mul_f32 v{LS}, v{LS}, v{T0}")
        A("s_setpc_b64 s[46:47]")

    def helper(self):
        A, L = self.A, self.L
        A("s_setprio 2")
        A("s_sub_u32 s3, s3, 8")
        A("s_load_dwordx2 s[24:25], s[0:1], 0")
        A("s_load_dwordx4 s[28:31], s[0:1], 24")
        A("s_load_dwordx4 s[32:35], s[0:1], 48")
        A("s_load_dwordx4 s[36:39], s[0:1], 64")
        A("s_load_dwordx4 s[48:51], s[0:1], 80")
        A("s_memrealtime s[66:67]")
        A("s_mov_b32 s88, 0x80000")
        A("v_mov_b32 v12, 0")
        A("v_mov_b32 v13, 0")
        A("v_mov_b32 v14, 0")
        A("v_mov_b32 v15, 0")
        A("v_lshlrev_b32 v14, 2, v2")
        A(f"ds_write_b32 v14, v12 offset:{L_Z}")
        A(f"ds_write_b32 v14, v12 offset:{L_Z+256}")
        HB, HI, G, TT = 3, 4, 5, 6
        A(f"v_lshrrev_b32 v{HB}, 5, v2")
        A(f"v_and_b32 v{HI}, 31, v2")
        A(f"v_lshrrev_b32 v{G}, 4, v2")
        A(f"v_and_b32 v{TT}, 15, v2")
        VAW, VAR, VDW, VTR = 7, 8, 9, 10
        A("s_lshl_b32 s52, s3, 9")
        A(f"v_lshlrev_b32 v{VAW}, 8, v{HB}")
        A(f"v_lshl_add_u32 v{VAW}, v{HI}, 3, v{VAW}")
        A(f"s_add_u32 s53, s52, {L_A}")
        A(f"v_add_u32 v{VAW}, s53, v{VAW}")
        A(f"v_and_b32 v{VAR}, 1, v2")
        A(f"v_lshlrev_b32 v{VAR}, 8, v{VAR}")
        A(f"v_lshl_add_u32 v{VAR}, v{G}, 4, v{VAR}")
        A(f"v_add_u32 v{VAR}, s53, v{VAR}")
        A(f"s_add_u32 s53, s52, {L_D}")
        A(f"v_lshlrev_b32 v{VDW}, 2, v2")
        A(f"v_add_u32 v{VDW}, s53, v{VDW}")
        A("s_waitcnt lgkmcnt(0)")
        self.srd(84, 98, 0x20000000)
        self.srd(76, 96, 256)
        A("s_or_b32 s54, s2, s3")
        A("s_cmp_eq_u32 s54, 0")
        A("s_cbranch_scc0 L_notagw")
        A("s_or_b32 s66, s66, 1")
        A("v_mov_b32 v12, s66")
        A("s_mov_b64 exec, 1")
        A("buffer_atomic_cmpswap v[12:13], off, s[76:79], 0 sc1")
        A("s_mov_b64 exec, -1")
        L("L_notagw")
        self.srd(20, 24, 2048)
        A(f"s_add_u32 s16, s98, {HH_OFF}")
        A("s_addc_u32 s17, s99, 0")
        A(f"s_mov_b32 s18, {43*128}")
        A("s_mov_b32 s19, 0x20000")
        self.srd(72, 50, 2048)
        for r in range(10, 24):
            A(f"v_mov_b32 v{r}, 0")
        for r in (54, 55, 56, 57, 59, 60, 61, 62):
            A(f"s_mov_b32 s{r}, 0")
        if self.H == 1:
            A("s_lshl_b32 s83, s40, 3")
            A("s_add_u32 s83, s83, s41")
            A("s_lshl_b32 s83, s83, 10")
            A(f"s_add_u32 s83, s83, {PART_OFF}")
            A("s_mov_b32 s82, s40")
            A("s_mov_b32 s81, s41")
            A("s_mov_b32 s67, s83")
        else:
            A(f"s_xor_b32 s82, s40, {self.px}")
            A("s_min_u32 s82, s82, s40")
            A("s_lshr_b32 s54, s40, 5")
            A("s_lshl_b32 s54, s54, 2")
            A("s_add_u32 s54, s54, s41")
            A("s_lshl_b32 s54, s54, 10")
            A(f"s_add_u32 s54, s54, {PART_OFF}")
            A("s_lshl_b32 s83, s82, 13")
            A("s_add_u32 s83, s83, s54")
            A(f"s_xor_b32 s67, s82, {self.px}")
            A("s_lshl_b32 s67, s67, 13")
            A("s_add_u32 s67, s67, s54")
            A("s_lshr_b32 s81, s40, 5")
            A("s_or_b32 s81, s81, s41")
        A("s_mov_b32 s45, s82")
        A("s_lshl_b32 s82, s82, 7")
        A(f"s_add_u32 s82, s82, {CNT_OFF}")
        self.stamp(0)
        A(f"s_cmp_lt_u32 s89, {R_Q0}")
        A("s_cbranch_scc1 L_pro_mod")
        A(f"s_cmp_lt_u32 s89, {R_WO0}")
        A("s_cbranch_scc1 L_pro_q")
        A("s_barrier")
        A("s_branch L_common1")

        BF, AF, DT = 40, 24, 12
        DT = 104
        TMP = 120

        def wide_voff(rowbytes, colbyte_s):
            A("s_lshl_b32 s54, s3, 7")
            A("v_lshrrev_b32 v11, 3, v2")
            A("v_add_u32 v11, s54, v11")
            A(f"s_mov_b32 s55, {rowbytes}")
            A("v_mul_lo_u32 v11, v11, s55")
            A(f"v_and_b32 v{TMP}, 7, v2")
            A(f"v_lshl_add_u32 v11, v{TMP}, 4, v11")
            A(f"v_add_u32 v11, s{colbyte_s}, v11")

        def wide_tr_base():
            A(f"v_lshrrev_b32 v{VTR}, 2, v{TT}")
            A(f"v_lshl_add_u32 v{VTR}, v{G}, 3, v{VTR}")
            A(f"v_lshlrev_b32 v{VTR}, 7, v{VTR}")
            A(f"v_and_b32 v{TMP}, 3, v{TT}")
            A(f"v_lshl_add_u32 v{VTR}, v{TMP}, 3, v{VTR}")
            A("s_lshl_b32 s54, s3, 14")
            A(f"s_add_u32 s54, s54, {L_W}")
            A(f"v_add_u32 v{VTR}, s54, v{VTR}")

        L("L_pro_mod")
        self.srd(12, 38, 2048)
        A(f"v_lshlrev_b32 v{TMP}, 10, v{HB}")
        A(f"v_lshl_add_u32 v{TMP}, v{HI}, 3, v{TMP}")
        A("s_lshl_b32 s54, s3, 8")
        A(f"buffer_load_dwordx2 v[{TMP+2}:{TMP+3}], v{TMP}, s[12:15], s54 offen")
        self.srd(8, 48, 512 * 6144)
        A("s_lshl_b32 s56, s89, 7")
        wide_voff(6144, 56)
        A("s_lshl_b32 s57, s3, 14")
        self.dma_weights(8, 16, 11, 8 * 6144, 57)
        A("s_barrier")
        wide_tr_base()
        A("s_waitcnt vmcnt(16)")
        X = TMP + 4
        self.unpack2(TMP + 2, X, X + 1)
        self.unpack2(TMP + 3, X + 2, X + 3)
        A(f"s_mov_b32 s58, {f32(-LOG2E)}")
        for k in range(4):
            A(f"v_mul_f32 v{X+4+k}, s58, v{X+k}")
        for k in range(4):
            A(f"v_exp_f32 v{X+4+k}, v{X+4+k}")
        self.nop(1)
        for k in range(4):
            A(f"v_add_f32 v{X+4+k}, 1.0, v{X+4+k}")
        for k in range(4):
            A(f"v_rcp_f32 v{X+4+k}, v{X+4+k}")
        self.nop(1)
        for k in range(4):
            A(f"v_mul_f32 v{X+k}, v{X+k}, v{X+4+k}")
        A(f"v_cvt_pk_bf16_f32 v{X+8}, v{X}, v{X+1}")
        A(f"v_cvt_pk_bf16_f32 v{X+9}, v{X+2}, v{X+3}")
        A(f"ds_write_b64 v{VAW}, v[{X+8}:{X+9}]")
        A("s_lshr_b32 s60, s89, 3")
        A("s_lshl_b32 s60, s60, 12")
        A("s_and_b32 s61, s89, 7")
        A("s_lshl_b32 s61, s61, 8")
        A("s_add_u32 s60, s60, s61")
        A(f"s_add_u32 s60, s60, {MOD_OFF}")
        A("s_mov_b32 s61, 2048")
        A("s_mov_b32 s62, 0")
        A("s_branch L_common1")

        L("L_pro_q")
        A(f"v_lshlrev_b32 v{TMP}, 10, v{HB}")
        A(f"v_lshl_add_u32 v{TMP+1}, v{HI}, 5, v{TMP}")
        A(f"buffer_load_dwordx4 v[{TMP+4}:{TMP+7}], v{TMP+1}, s[20:23], 0 offen")
        A(f"buffer_load_dwordx4 v[{TMP+8}:{TMP+11}], v{TMP+1}, s[20:23], 0 offen offset:16")
        A(f"v_lshl_add_u32 v{TMP}, v{HI}, 3, v{TMP}")
        A("s_lshl_b32 s54, s3, 8")
        A(f"buffer_load_dwordx2 v[{TMP+2}:{TMP+3}], v{TMP}, s[20:23], s54 offen")
        self.srd(8, 28, 512 * 8192)
        A(f"s_sub_u32 s59, s89, {R_Q0}")
        A("s_lshl_b32 s56, s59, 7")
        wide_voff(8192, 56)
        A("s_lshl_b32 s57, s3, 14")
        self.dma_weights(8, 16, 11, 8 * 8192, 57)
        A("s_barrier")
        wide_tr_base()
        A("s_waitcnt vmcnt(16)")
        S1, S2, U0, U1 = TMP + 12, TMP + 13, TMP + 14, TMP + 15
        A(f"v_mov_b32 v{S1}, 0")
        A(f"v_mov_b32 v{S2}, 0")
        for k in range(8):
            self.unpack2(TMP + 4 + k, U0, U1)
            A(f"v_add_f32 v{S1}, v{S1}, v{U0}")
            A(f"v_fmac_f32 v{S2}, v{U0}, v{U0}")
            A(f"v_add_f32 v{S1}, v{S1}, v{U1}")
            A(f"v_fmac_f32 v{S2}, v{U1}, v{U1}")
        self.allred32([S1, S2], [U0, U1])
        NX = TMP + 16
        self.unpack2(TMP + 2, NX, NX + 1)
        self.unpack2(TMP + 3, NX + 2, NX + 3)
        self.ln_norm(S1, S2, NX, U0, U1)
        A("s_lshl_b32 s60, s59, 8")
        A(f"s_add_u32 s60, s60, {Q_OFF}")
        A("s_mov_b32 s61, 16384")
        A("s_mov_b32 s62, 1")
        L("L_common1")
        A("buffer_load_dword v165, off, s[76:79], 0 sc1")
        CL = TMP + 24
        for k in range(4):
            A(f"v_mov_b32 v{CL+k}, -1")
        A("s_cmp_eq_u32 s3, 3")
        A("s_cbranch_scc0 L_noclear")
        A(f"v_lshlrev_b32 v{CL+4}, 4, v2")
        A("s_mov_b32 exec_lo, -1")
        A("s_mov_b32 exec_hi, 1")
        A(f"buffer_store_dwordx4 v[{CL}:{CL+3}], v{CL+4}, s[84:87], s83 offen sc1")
        if self.H == 2:
            A(f"buffer_store_dwordx4 v[{CL}:{CL+3}], v{CL+4}, s[84:87], s67 offen sc1")
        A("s_mov_b64 exec, -1")
        A(f"s_sub_u32 s64, s89, {R_WO0}")
        A("s_cmp_lt_u32 s64, 64")
        A("s_cbranch_scc0 L_noclr_wo")
        self.slice_of(64, R_WO0, 64)
        A("s_lshr_b32 s65, s64, 3")
        A("s_lshl_b32 s65, s65, 12")
        A("s_and_b32 s66, s64, 7")
        A("s_lshl_b32 s66, s66, 8")
        A("s_add_u32 s65, s65, s66")
        A(f"s_add_u32 s65, s65, {ATT_OFF}")
        A(f"v_lshlrev_b32 v{CL+4}, 11, v{G}")
        A(f"v_lshl_add_u32 v{CL+4}, v{TT}, 4, v{CL+4}")
        A("s_mov_b32 exec_hi, 0")
        A(f"buffer_store_dwordx4 v[{CL}:{CL+3}], v{CL+4}, s[84:87], s65 offen sc1")
        A("s_mov_b64 exec, -1")
        L("L_noclr_wo")
        A(f"s_sub_u32 s64, s89, {R_UP0}")
        A("s_cmp_lt_u32 s64, 43")
        A("s_cbranch_scc0 L_noclr_up")
        self.slice_of(64, R_UP0, 43)
        A("s_lshl_b32 s65, s64, 7")
        A(f"s_add_u32 s65, s65, {HH_OFF}")
        A(f"v_lshlrev_b32 v{CL+4}, 4, v2")
        A("s_mov_b64 exec, 0xff")
        A(f"buffer_store_dwordx4 v[{CL}:{CL+3}], v{CL+4}, s[84:87], s65 offen sc1")
        A("s_mov_b64 exec, -1")
        L("L_noclr_up")
        A("s_cmp_eq_u32 s81, 0")
        A("s_cbranch_scc0 L_noclr_cnt")
        A(f"v_mov_b32 v{CL+4}, {self.NS*4*self.H}")
        A(f"s_mul_i32 s65, s45, {self.cstr}")
        A(f"s_add_u32 s65, s65, {CTR_OFF}")
        A("s_mov_b64 exec, 1")
        A(f"buffer_store_dword v{CL+4}, off, s[84:87], s65 sc1")
        A("s_mov_b64 exec, -1")
        L("L_noclr_cnt")
        L("L_noclear")
        A("s_waitcnt vmcnt(0)")
        A("v_cmp_eq_u32 vcc, 0, v165")
        A("s_cbranch_vccz L_gottag")
        pl = self.poll_head()
        A("buffer_load_dword v165, off, s[76:79], 0 sc1")
        A("s_waitcnt vmcnt(0)")
        A("v_cmp_eq_u32 vcc, 0, v165")
        self.poll_tail(pl, sleep=2)
        L("L_gottag")
        A("v_readfirstlane_b32 s80, v165")
        if "dtime" in self.dbg:
            A("s_cmp_lt_u32 s89, 16")
            A("s_cbranch_scc0 L_dt3")
            self.dstamp(11)
            L("L_dt3")
            self.dstamp(12)
        self.stamp(10)
        A("s_cmp_eq_u32 s3, 3")
        A("s_cbranch_scc0 L_nocount")
        A("s_and_b32 s63, s2, 3")
        A("s_lshl_b32 s63, s63, 2")
        A("s_add_u32 s63, s63, 128")
        A(f"v_mov_b32 v{CL+5}, 1")
        A("s_mov_b64 exec, 1")
        A(f"buffer_atomic_add v{CL+5}, off, s[76:79], s63 sc1")
        A("s_cmp_eq_u32 s81, 0")
        A("s_cbranch_scc0 L_nocnttag")
        A(f"v_mov_b32 v{CL+4}, s80")
        A(f"buffer_store_dword v{CL+4}, off, s[84:87], s82 offset:64 sc1")
        L("L_nocnttag")
        A("s_mov_b64 exec, -1")
        L("L_nocount")
        A(f"s_cmp_lt_u32 s89, {R_WO0}")
        A("s_cbranch_scc0 L_qgather")
        self.tr_reads(VTR, BF, 4, [0, 32, 64, 96], 128)
        A("s_cmp_eq_u32 s62, 0")
        A("s_cbranch_scc1 L_pro_gemv")
        GA = TMP + 4
        A(f"v_lshlrev_b32 v{TMP}, 11, v{HB}")
        A(f"v_lshl_add_u32 v{TMP}, v{HI}, 4, v{TMP}")
        A("s_lshl_b32 s54, s3, 9")
        A(f"s_add_u32 s54, s54, {MOD_OFF}")
        A(f"s_add_u32 s55, s54, 4096")
        pl = self.poll_head()
        A(f"buffer_load_dwordx4 v[{GA}:{GA+3}], v{TMP}, s[84:87], s55 offen sc1")
        A(f"buffer_load_dwordx4 v[{GA+4}:{GA+7}], v{TMP}, s[84:87], s54 offen sc1")
        A("s_waitcnt vmcnt(0)")
        self.check_tags([GA + 1, GA + 3, GA + 5, GA + 7], TMP + 1)
        self.poll_tail(pl, sleep=self.ps1)
        self.stamp(3)
        self.dstamp(9)
        self.dstamp(10, mn=True)
        T4 = TMP + 20
        self.unpack2(GA, T4, T4 + 1)
        self.unpack2(GA + 2, T4 + 2, T4 + 3)
        for k in range(4):
            A(f"v_add_f32 v{T4+k}, 1.0, v{T4+k}")
        self.rnd2(T4, T4 + 1, TMP + 1)
        self.rnd2(T4 + 2, T4 + 3, TMP + 2)
        self.modulate(NX, T4, GA + 4, GA + 6, TMP + 1, TMP + 24, VAW)
        L("L_pro_gemv")
        A("s_waitcnt lgkmcnt(0)")
        self.a_frags_from_stage(VAR, AF)
        A("s_waitcnt lgkmcnt(0)")
        self.mfmas(AF, BF, DT, 4, 4)
        self.d_to_lds(DT, 4, TMP, TMP + 1, VDW)
        A(f"v_mov_b32 v{TMP+2}, {L_CNT}")
        A(f"v_mov_b32 v{TMP+3}, 1")
        A("s_mov_b64 exec, 1")
        A(f"ds_add_rtn_u32 v{TMP+4}, v{TMP+2}, v{TMP+3}")
        A("s_mov_b64 exec, -1")
        A("s_waitcnt lgkmcnt(0)")
        A(f"v_readfirstlane_b32 s54, v{TMP+4}")
        A("s_cmp_eq_u32 s54, 3")
        A("s_cbranch_scc0 L_qgather")
        self.d_sum(G, TT, TMP)
        A(f"v_cvt_pk_bf16_f32 v{TMP+8}, v{TMP+4}, v{TMP+5}")
        A(f"v_mov_b32 v{TMP+9}, s80")
        A(f"v_cvt_pk_bf16_f32 v{TMP+10}, v{TMP+6}, v{TMP+7}")
        A(f"v_mov_b32 v{TMP+11}, s80")
        A(f"v_mul_lo_u32 v{TMP}, v{G}, s61")
        A(f"v_lshl_add_u32 v{TMP}, v{TT}, 4, v{TMP}")
        A("s_mov_b32 exec_hi, 0")
        A(f"buffer_store_dwordx4 v[{TMP+8}:{TMP+11}], v{TMP}, s[84:87], s60 offen sc1")
        A("s_mov_b64 exec, -1")
        self.stamp(4)
        if "dtime" in self.dbg:
            A("s_cmp_lt_u32 s89, 16")
            A("s_cbranch_scc0 L_dt1")
            self.dstamp(7)
            L("L_dt1")
            A("s_cmp_ge_u32 s89, 48")
            A("s_cbranch_scc0 L_dt2")
            self.dstamp(8)
            L("L_dt2")
        L("L_qgather")
        A("s_cmp_eq_u32 s3, 3")
        A("s_cbranch_scc0 L_qg2")
        pl = self.poll_head()
        A(f"buffer_load_dword v{TMP}, off, s[84:87], s82 offset:64 sc1")
        A("s_waitcnt vmcnt(0)")
        A(f"v_cmp_ne_u32 vcc, s80, v{TMP}")
        self.poll_tail(pl, sleep=8)
        if self.flagq:
            A(f"v_mov_b32 v{TMP}, 0")
            A(f"v_mov_b32 v{TMP+1}, 1")
            A(f"ds_write_b32 v{TMP}, v{TMP+1} offset:{L_QF+4}")
        L("L_qg2")
        A("s_cmp_eq_u32 s3, 0")
        A("s_cbranch_scc0 L_b2")
        A("s_lshl_b32 s54, s45, 9")
        A(f"s_add_u32 s54, s54, {Q_OFF}")
        A(f"s_xor_b32 s55, s45, {self.px}")
        A("s_lshl_b32 s55, s55, 9")
        A(f"s_add_u32 s55, s55, {Q_OFF}")
        A(f"v_lshlrev_b32 v{TMP}, 3, v2")
        pl = self.poll_head()
        A(f"buffer_load_dwordx2 v[{TMP+2}:{TMP+3}], v{TMP}, s[84:87], s54 offen sc1")
        if self.H == 2:
            A(f"buffer_load_dwordx2 v[{TMP+4}:{TMP+5}], v{TMP}, s[84:87], s55 offen sc1")
        A("s_waitcnt vmcnt(0)")
        self.check_tags([TMP + 3, TMP + 5][:self.H], TMP + 6)
        self.poll_tail(pl, sleep=self.ps2)
        A(f"v_lshlrev_b32 v{TMP}, 2, v2")
        A(f"ds_write_b32 v{TMP}, v{TMP+2} offset:{L_Q}")
        if self.H == 2:
            A(f"ds_write_b32 v{TMP}, v{TMP+4} offset:{L_Q+256}")
        if self.flagq:
            A(f"v_mov_b32 v{TMP}, 0")
            A(f"v_mov_b32 v{TMP+1}, 1")
            A(f"ds_write_b32 v{TMP}, v{TMP+1} offset:{L_QF}")
        A("s_waitcnt lgkmcnt(0)")
        self.stamp(5)
        self.dstamp(3)
        self.dstamp(6, mn=True)
        L("L_b2")
        if not self.flagq:
            A("s_barrier")
        else:
            A(f"v_mov_b32 v{TMP}, 0")
            pl = self.poll_head()
            A(f"ds_read_b32 v{TMP+1}, v{TMP} offset:{L_QF}")
            A("s_waitcnt lgkmcnt(0)")
            A(f"v_cmp_eq_u32 vcc, 0, v{TMP+1}")
            self.poll_tail(pl, sleep=4)
        A(f"s_cmp_lt_u32 s89, {R_WO0}")
        A("s_cbranch_scc1 L_b3")
        A(f"s_cmp_lt_u32 s89, {R_WO1}")
        A("s_cbranch_scc1 L_prep_wo")
        A(f"s_cmp_ge_u32 s89, {R_DN0}")
        A("s_cbranch_scc1 L_prep_dn")
        A(f"s_cmp_lt_u32 s89, {R_UP0}")
        A("s_cbranch_scc1 L_b3")
        A(f"s_cmp_lt_u32 s89, {R_UP1}")
        A("s_cbranch_scc1 L_prep_up")
        A("s_branch L_b3")

        def narrow_voff(rowbytes, rows_per_wave, colbyte_s):
            A(f"s_mul_i32 s54, s3, {rows_per_wave}")
            A("v_lshrrev_b32 v11, 2, v2")
            A("v_add_u32 v11, s54, v11")
            A(f"s_mov_b32 s55, {rowbytes}")
            A("v_mul_lo_u32 v11, v11, s55")
            A(f"v_and_b32 v{VTR}, 3, v2")
            A(f"v_lshl_add_u32 v11, v{VTR}, 4, v11")
            A(f"v_add_u32 v11, s{colbyte_s}, v11")

        def narrow_tr_base(rows_per_wave):
            A(f"v_lshrrev_b32 v{VTR}, 2, v{TT}")
            A(f"v_lshl_add_u32 v{VTR}, v{G}, 3, v{VTR}")
            A(f"v_lshlrev_b32 v{VTR}, 6, v{VTR}")
            A(f"v_and_b32 v12, 3, v{TT}")
            A(f"v_lshl_add_u32 v{VTR}, v12, 3, v{VTR}")
            A(f"s_mul_i32 s54, s3, {rows_per_wave*64}")
            A(f"s_add_u32 s54, s54, {L_W}")
            A(f"v_add_u32 v{VTR}, s54, v{VTR}")

        def wait_cleared(t):
            pl = self.poll_head()
            A(f"buffer_load_dwordx4 v[{t}:{t+3}], off, s[76:79], 0 offset:128 sc1")
            A("s_waitcnt vmcnt(0)")
            A(f"v_add_u32 v{t}, v{t}, v{t+1}")
            A(f"v_add3_u32 v{t}, v{t}, v{t+2}, v{t+3}")
            A(f"v_cmp_gt_u32 vcc, 256, v{t}")
            self.poll_tail(pl, sleep=16)

        self.intail = True
        L("L_prep_wo")
        self.slice_of(59, R_WO0, 64)
        self.srd(8, 30, 4096 * 1024)
        A("s_lshr_b32 s56, s59, 3")
        A("s_lshl_b32 s56, s56, 19")
        A("s_and_b32 s57, s59, 7")
        A("s_lshl_b32 s57, s57, 7")
        A("s_add_u32 s56, s56, s57")
        wide_voff(1024, 56)
        A("s_lshl_b32 s57, s3, 14")
        self.dma_weights(8, 16, 11, 8 * 1024, 57, skip='nowo')
        wide_tr_base()
        wait_cleared(TMP)
        self.tr_reads(VTR, BF, 4, [0, 32, 64, 96], 128)
        A(f"v_lshlrev_b32 v11, 18, v{HB}")
        A(f"v_lshl_add_u32 v12, v{HI}, 4, v11")
        A(f"v_and_b32 v{TMP}, {4*self.H-1}, v2")
        A(f"v_lshl_add_u32 v11, v{TMP}, 10, v11")
        A("s_lshr_b32 s56, s59, 3")
        A("s_lshl_b32 s60, s56, 12")
        A("s_lshl_b32 s56, s56, 2")
        A("s_add_u32 s56, s56, s3")
        A("s_lshl_b32 s56, s56, 13")
        A(f"s_add_u32 s56, s56, {PART_OFF}")
        A("s_add_u32 s55, s56, 4096")
        A("s_and_b32 s57, s59, 7")
        A("s_lshl_b32 s57, s57, 8")
        A("s_add_u32 s60, s60, s57")
        A(f"s_add_u32 s60, s60, {ATT_OFF}")
        A("s_waitcnt lgkmcnt(0)")
        A("s_branch L_b3")

        XV, GAV, T4U, SBV = TMP + 28, TMP + 32, TMP + 36, TMP + 40
        L("L_prep_up")
        self.slice_of(59, R_UP0, 43)
        self.srd(8, 32, 512 * 2752)
        self.srd(12, 34, 512 * 2752)
        A("s_lshl_b32 s56, s59, 6")
        narrow_voff(2752, 128, 56)
        A("s_lshl_b32 s57, s3, 13")
        self.dma_weights(8, 8, 11, 16 * 2752, 57, skip='noup')
        A("s_add_u32 s57, s57, 32768")
        self.dma_weights(12, 8, 11, 16 * 2752, 57, skip='noup')
        narrow_tr_base(128)
        A(f"v_lshlrev_b32 v{TMP}, 10, v{HB}")
        A(f"v_lshl_add_u32 v{TMP}, v{HI}, 3, v{TMP}")
        A("s_lshl_b32 s54, s3, 8")
        A(f"buffer_load_dwordx2 v[{TMP+2}:{TMP+3}], v{TMP}, s[20:23], s54 offen")
        A(f"v_lshlrev_b32 v{TMP}, 11, v{HB}")
        A(f"v_lshl_add_u32 v{TMP}, v{HI}, 4, v{TMP}")
        A("s_lshl_b32 s54, s3, 9")
        A(f"s_add_u32 s54, s54, {MOD_OFF + 2*4096}")
        A(f"s_add_u32 s55, s54, 4096")
        A(f"s_add_u32 s56, s54, 8192")
        GA = TMP + 4
        pl = self.poll_head()
        A(f"buffer_load_dwordx4 v[{GA}:{GA+3}], v{TMP}, s[84:87], s54 offen sc1")
        A(f"buffer_load_dwordx4 v[{GA+4}:{GA+7}], v{TMP}, s[84:87], s55 offen sc1")
        A(f"buffer_load_dwordx4 v[{GA+8}:{GA+11}], v{TMP}, s[84:87], s56 offen sc1")
        A("s_waitcnt vmcnt(0)")
        self.check_tags([GA + 1, GA + 3, GA + 5, GA + 7, GA + 9, GA + 11], TMP + 16)
        self.poll_tail(pl)
        self.unpack2(TMP + 2, XV, XV + 1)
        self.unpack2(TMP + 3, XV + 2, XV + 3)
        self.unpack2(GA, GAV, GAV + 1)
        self.unpack2(GA + 2, GAV + 2, GAV + 3)
        A(f"v_mov_b32 v{SBV}, v{GA+4}")
        A(f"v_mov_b32 v{SBV+1}, v{GA+6}")
        self.unpack2(GA + 8, T4U, T4U + 1)
        self.unpack2(GA + 10, T4U + 2, T4U + 3)
        for k in range(4):
            A(f"v_add_f32 v{T4U+k}, 1.0, v{T4U+k}")
        self.rnd2(T4U, T4U + 1, TMP + 1)
        self.rnd2(T4U + 2, T4U + 3, TMP + 1)
        wait_cleared(TMP)
        self.tr_reads(VTR, BF, 4, [0, 32, 32768, 32768 + 32], 64)
        A(f"v_lshlrev_b32 v12, 11, v{HB}")
        A(f"v_lshl_add_u32 v12, v{HI}, 4, v12")
        A("s_lshl_b32 s56, s3, 9")
        A(f"s_add_u32 s56, s56, {ATT_OFF}")
        A("s_lshl_b32 s60, s59, 7")
        A(f"s_add_u32 s60, s60, {HH_OFF}")
        A("s_waitcnt lgkmcnt(0)")
        A("s_branch L_b3")

        DBF, DAF, DDT = 32, 120, 24
        L("L_prep_dn")
        self.slice_of(59, R_DN0, 16)
        self.srd(8, 36, 1376 * 1024)
        A("s_lshl_b32 s56, s59, 6")
        narrow_voff(1024, 352, 56)
        A(f"s_mul_i32 s57, s3, {352*64}")
        self.dma_weights(8, 22, 11, 16 * 1024, 57, skip='nodn')
        narrow_tr_base(352)
        A("v_lshrrev_b32 v13, 3, v2")
        A("v_and_b32 v13, 1, v13")
        A("v_and_b32 v14, 7, v2")
        A("v_lshlrev_b32 v15, 10, v13")
        A("v_lshl_add_u32 v15, v14, 3, v15")
        A("buffer_load_dwordx2 v[16:17], v15, s[20:23], s56 offen")
        A("v_lshlrev_b32 v15, 11, v13")
        A("v_lshl_add_u32 v15, v14, 4, v15")
        A("s_lshl_b32 s54, s59, 7")
        A(f"s_add_u32 s55, s54, {MOD_OFF + 5*4096}")
        A(f"s_add_u32 s54, s54, {MOD_OFF + 2*4096}")
        pl = self.poll_head()
        A(f"buffer_load_dwordx4 v[{DAF}:{DAF+3}], v15, s[84:87], s54 offen sc1")
        A(f"buffer_load_dwordx4 v[{DAF+4}:{DAF+7}], v15, s[84:87], s55 offen sc1")
        A("s_waitcnt vmcnt(0)")
        self.check_tags([DAF + 1, DAF + 3, DAF + 5, DAF + 7], DAF + 8)
        self.poll_tail(pl)
        A(f"v_mov_b32 v18, v{DAF}")
        A(f"v_mov_b32 v19, v{DAF+2}")
        A(f"v_mov_b32 v20, v{DAF+4}")
        A(f"v_mov_b32 v21, v{DAF+6}")
        wait_cleared(DAF)
        self.tr_reads(VTR, DBF, 11, [0, 32], 64)
        A("s_lshl_b32 s56, s59, 7")
        A(f"s_add_u32 s56, s56, {ATT_OFF}")
        A("v_and_b32 v12, 1, v2")
        A("v_lshlrev_b32 v12, 6, v12")
        A(f"v_lshl_add_u32 v12, v{G}, 4, v12")
        A(f"s_mul_i32 s57, s3, {11*128}")
        A("s_waitcnt lgkmcnt(0)")
        L("L_b3")
        A("s_cmp_eq_u32 s3, 2")
        A("s_cbranch_scc0 L_b3x")
        A("s_setprio 1")
        A(f"s_mul_i32 s65, s45, {self.cstr}")
        A(f"s_add_u32 s65, s65, {CTR_OFF}")
        A("s_add_u32 s26, s98, s65")
        A("s_addc_u32 s27, s99, 0")
        A("v_mov_b32 v22, 0")
        pl = self.poll_head()
        A(f"ds_read_b32 v23, v22 offset:{L_QF+4}")
        A("s_waitcnt lgkmcnt(0)")
        A("v_cmp_eq_u32 vcc, 0, v23")
        self.poll_tail(pl, sleep=8)
        A("s_mov_b32 s64, 0")
        L("L_disp")
        A(f"ds_read_b32 v23, v22 offset:{L_NEED}")
        A("s_waitcnt lgkmcnt(0)")
        A("v_readfirstlane_b32 s65, v23")
        A("s_cmp_lt_u32 s64, s65")
        A("s_cbranch_scc1 L_disp_go")
        A("s_cmp_eq_u32 s88, 0")
        A("s_cbranch_scc1 L_disp_end")
        A("s_sub_u32 s88, s88, 1")
        A("s_sleep 2")
        A("s_branch L_disp")
        L("L_disp_go")
        A("s_mov_b32 s66, 1")
        A("s_atomic_add s66, s[26:27], 0 glc")
        A("s_lshl_b32 s65, s64, 2")
        A("v_mov_b32 v24, s65")
        A("s_waitcnt lgkmcnt(0)")
        A(f"s_cmp_ge_u32 s66, {64 * self.H}")
        A("s_cbranch_scc1 L_disp_end")
        A("s_add_u32 s66, s66, 1")
        A("v_mov_b32 v23, s66")
        A(f"ds_write_b32 v24, v23 offset:{L_RL}")
        A("s_add_u32 s64, s64, 1")
        A("s_cmp_lt_u32 s64, 63")
        A("s_cbranch_scc1 L_disp")
        L("L_disp_end")
        A("v_lshlrev_b32 v24, 2, v2")
        A(f"v_mov_b32 v23, {64 * self.H + 1}")
        A("v_cmp_le_u32 vcc, s64, v2")
        A("s_mov_b64 exec, vcc")
        A(f"ds_write_b32 v24, v23 offset:{L_RL}")
        A("s_mov_b64 exec, -1")
        A("s_setprio 2")
        L("L_b3x")
        if self.dry:
            A("s_mov_b32 s69, 1")
            A("s_mov_b32 s86, 0")
            A("s_mov_b32 s18, 0")
            A("s_mov_b32 s74, 0")
            A("s_branch L_after_b3")
            L("L_exit")
            A("s_cmp_eq_u32 s69, 0")
            A("s_cbranch_scc1 L_end")
            A("s_mov_b64 exec, -1")
            A("s_mov_b32 s69, 0")
            A("s_mov_b32 s86, 0x20000000")
            A(f"s_mov_b32 s18, {43*128}")
            A("s_mov_b32 s74, 2048")
            A("s_waitcnt vmcnt(0) lgkmcnt(0)")
        A("s_barrier")
        L("L_after_b3")
        EX = "L_exit" if self.dry else "L_end"
        self.stamp(6)
        A(f"s_cmp_lt_u32 s3, {self.H}")
        A("s_cbranch_scc0 L_tail")
        C = 120
        A(f"v_and_b32 v{C}, 7, v2")
        A(f"v_lshlrev_b32 v{C}, 3, v{C}")
        A("s_lshl_b32 s63, s3, 6")
        A(f"v_add_u32 v{C}, s63, v{C}")
        A(f"ds_read_b64 v[{C+2}:{C+3}], v{C} offset:{L_ML}")
        A(f"v_lshlrev_b32 v{C+1}, 3, v2")
        A("s_lshl_b32 s63, s3, 13")
        A(f"v_add_u32 v{C+7}, s63, v{C+1}")
        for w in range(8):
            A(f"ds_read_b64 v[{C+8+2*w}:{C+9+2*w}], v{C+7} offset:{L_P + w*1024}")
        A("s_waitcnt lgkmcnt(8)")
        A(f"v_max_f32_dpp v{C+4}, v{C+2}, v{C+2} row_ror:1 row_mask:0xf bank_mask:0xf")
        self.nop(2)
        A(f"v_max_f32_dpp v{C+4}, v{C+4}, v{C+4} row_ror:2 row_mask:0xf bank_mask:0xf")
        self.nop(2)
        A(f"v_max_f32_dpp v{C+4}, v{C+4}, v{C+4} row_ror:4 row_mask:0xf bank_mask:0xf")
        A(f"s_mov_b32 s58, {f32(LOG2E)}")
        A(f"v_sub_f32 v{C+6}, v{C+2}, v{C+4}")
        A(f"v_mul_f32 v{C+6}, s58, v{C+6}")
        A(f"v_exp_f32 v{C+6}, v{C+6}")
        self.nop(1)
        A(f"v_mul_f32 v{C+5}, v{C+6}, v{C+3}")
        self.nop(2)
        A(f"v_add_f32_dpp v{C+5}, v{C+5}, v{C+5} row_ror:1 row_mask:0xf bank_mask:0xf")
        self.nop(2)
        A(f"v_add_f32_dpp v{C+5}, v{C+5}, v{C+5} row_ror:2 row_mask:0xf bank_mask:0xf")
        self.nop(2)
        A(f"v_add_f32_dpp v{C+5}, v{C+5}, v{C+5} row_ror:4 row_mask:0xf bank_mask:0xf")
        A("s_waitcnt lgkmcnt(0)")
        A(f"v_mul_f32_dpp v{C+24}, v{C+6}, v{C+8} row_newbcast:0 row_mask:0xf bank_mask:0xf")
        A(f"v_mul_f32_dpp v{C+25}, v{C+6}, v{C+9} row_newbcast:0 row_mask:0xf bank_mask:0xf")
        for w in range(1, 8):
            A(f"v_fmac_f32_dpp v{C+24}, v{C+6}, v{C+8+2*w} row_newbcast:{w} row_mask:0xf bank_mask:0xf")
            A(f"v_fmac_f32_dpp v{C+25}, v{C+6}, v{C+9+2*w} row_newbcast:{w} row_mask:0xf bank_mask:0xf")
        for r in (C + 24, C + 25, C + 4, C + 5):
            A(f"v_min_u32 v{r}, -2, v{r}")
        A("s_cmp_eq_u32 s3, 0")
        A("s_cselect_b32 s63, s83, s67")
        A(f"v_mov_b32_dpp v{C+26}, v{C+24} quad_perm:[1,1,3,3] row_mask:0xf bank_mask:0xf")
        A(f"v_mov_b32_dpp v{C+27}, v{C+25} quad_perm:[1,1,3,3] row_mask:0xf bank_mask:0xf")
        A("s_mov_b32 exec_lo, 0x55555555")
        A("s_mov_b32 exec_hi, 0x55555555")
        A(f"buffer_store_dwordx4 v[{C+24}:{C+27}], v{C+1}, s[84:87], s63 offen sc1")
        A("s_mov_b64 exec, 1")
        A(f"buffer_store_dwordx2 v[{C+4}:{C+5}], off, s[84:87], s63 offset:512 sc1")
        A("s_mov_b64 exec, -1")
        self.stamp(7)
        self.dstamp(2)
        L("L_tail")
        A(f"s_cmp_lt_u32 s89, {R_WO0}")
        A(f"s_cbranch_scc1 {EX}")
        A(f"s_cmp_lt_u32 s89, {R_WO1}")
        A("s_cbranch_scc1 L_tail_wo")
        A(f"s_cmp_ge_u32 s89, {R_DN0}")
        A("s_cbranch_scc1 L_tail_dn")
        A(f"s_cmp_lt_u32 s89, {R_UP0}")
        A(f"s_cbranch_scc1 {EX}")
        A(f"s_cmp_lt_u32 s89, {R_UP1}")
        A("s_cbranch_scc1 L_tail_up")
        A(f"s_branch {EX}")

        L("L_tail_wo")
        regs = [AF + 4 * i for i in range(4)] + [DT + 4 * i for i in range(4)]
        O = TMP
        lds_ = [([f"buffer_load_dwordx4 v[{regs[r]}:{regs[r]+3}], v12, s[84:87], {'s56' if r < 4 else 's55'} offen offset:{(r & 3)*1024} sc1"],
                 [regs[r] + k for k in range(4)]) for r in range(4 * self.H)]
        lds_.append(([f"buffer_load_dwordx2 v[{O}:{O+1}], v11, s[84:87], s56 offen offset:512 sc1"], [O, O + 1]))
        self.poll_multi(lds_, O + 2)
        self.stamp(8)
        MM, FF, LL = O + 2, O + 3, O + 6
        A(f"v_max_f32_dpp v{MM}, v{O}, v{O} row_ror:1 row_mask:0xf bank_mask:0xf")
        A(f"s_mov_b32 s58, {f32(LOG2E)}")
        self.nop(1)
        A(f"v_max_f32_dpp v{MM}, v{MM}, v{MM} row_ror:2 row_mask:0xf bank_mask:0xf")
        if self.H == 2:
            self.nop(2)
            A(f"v_max_f32_dpp v{MM}, v{MM}, v{MM} row_ror:4 row_mask:0xf bank_mask:0xf")
        A(f"v_sub_f32 v{FF}, v{O}, v{MM}")
        A(f"v_mul_f32 v{FF}, s58, v{FF}")
        A(f"v_exp_f32 v{FF}, v{FF}")
        self.nop(1)
        A(f"v_mul_f32 v{LL}, v{FF}, v{O+1}")
        self.nop(1)
        for k in range(4):
            A(f"v_mul_f32_dpp v{O+8+k}, v{FF}, v{regs[0]+k} row_newbcast:0 row_mask:0xf bank_mask:0xf")
        A(f"v_add_f32_dpp v{LL}, v{LL}, v{LL} row_ror:1 row_mask:0xf bank_mask:0xf")
        for r in range(1, 4 * self.H):
            for k in range(4):
                A(f"v_fmac_f32_dpp v{O+8+k}, v{FF}, v{regs[r]+k} row_newbcast:{r} row_mask:0xf bank_mask:0xf")
            if r == 1:
                A(f"v_add_f32_dpp v{LL}, v{LL}, v{LL} row_ror:2 row_mask:0xf bank_mask:0xf")
            if r == 2 and self.H == 2:
                A(f"v_add_f32_dpp v{LL}, v{LL}, v{LL} row_ror:4 row_mask:0xf bank_mask:0xf")
            if r == 1 + self.H:
                A(f"v_rcp_f32 v{LL}, v{LL}")
        for k in range(4):
            A(f"v_mul_f32 v{O+8+k}, v{LL}, v{O+8+k}")
        A(f"v_cvt_pk_bf16_f32 v{O+4}, v{O+8}, v{O+9}")
        A(f"v_cvt_pk_bf16_f32 v{O+5}, v{O+10}, v{O+11}")
        A(f"ds_write_b64 v{VAW}, v[{O+4}:{O+5}]")
        A("s_waitcnt lgkmcnt(0)")
        self.a_frags_from_stage(VAR, AF)
        A("s_waitcnt lgkmcnt(0)")
        self.mfmas(AF, BF, DT, 4, 4)
        self.d_to_lds(DT, 4, TMP, TMP + 1, VDW)
        A("s_waitcnt lgkmcnt(0)")
        self.bar()
        A("s_cmp_eq_u32 s3, 0")
        A(f"s_cbranch_scc0 {EX}")
        self.d_sum(G, TT, TMP)
        for k in range(4):
            A(f"v_min_u32 v{TMP+4+k}, -2, v{TMP+4+k}")
        A(f"v_lshlrev_b32 v{TMP}, 11, v{G}")
        A(f"v_lshl_add_u32 v{TMP}, v{TT}, 4, v{TMP}")
        A("s_mov_b32 exec_hi, 0")
        A(f"buffer_store_dwordx4 v[{TMP+4}:{TMP+7}], v{TMP}, s[84:87], s60 offen sc1")
        self.stamp(9)
        self.dstamp(4)
        A(f"s_branch {EX}")

        L("L_tail_up")
        P = 12
        P = DT
        regs = [AF + 4 * i for i in range(4)] + [DT + 4 * i for i in range(4)]
        self.poll_multi([([f"s_add_u32 s57, s56, {hg*4096}", f"buffer_load_dwordx4 v[{regs[hg]}:{regs[hg]+3}], v12, s[84:87], s57 offen sc1"],
                          [regs[hg] + k for k in range(4)]) for hg in range(8)], TMP)
        self.stamp(8)
        X1 = TMP + 4
        self.sum8_x1(regs, X1, XV, GAV, TMP)
        S1, S2, U0, U1 = TMP + 8, TMP + 9, TMP + 10, TMP + 11
        A(f"v_add_f32 v{S1}, v{X1}, v{X1+1}")
        A(f"v_mul_f32 v{S2}, v{X1}, v{X1}")
        A(f"v_add_f32 v{U0}, v{X1+2}, v{X1+3}")
        A(f"v_fmac_f32 v{S2}, v{X1+1}, v{X1+1}")
        A(f"v_add_f32 v{S1}, v{S1}, v{U0}")
        A(f"v_fmac_f32 v{S2}, v{X1+2}, v{X1+2}")
        A(f"v_fmac_f32 v{S2}, v{X1+3}, v{X1+3}")
        self.allred32([S1, S2], [U0, U1])
        A(f"v_lshlrev_b32 v{U0}, 5, v{HB}")
        A("s_lshl_b32 s54, s3, 3")
        A(f"v_add_u32 v{U1}, s54, v{U0}")
        A(f"ds_write_b64 v{U1}, v[{S1}:{S2}] offset:{L_ST}")
        A("s_waitcnt lgkmcnt(0)")
        self.bar()
        Q8 = TMP + 12
        A(f"ds_read_b128 v[{Q8}:{Q8+3}], v{U0} offset:{L_ST}")
        A(f"ds_read_b128 v[{Q8+4}:{Q8+7}], v{U0} offset:{L_ST+16}")
        A("s_waitcnt lgkmcnt(0)")
        A(f"v_add_f32 v{S1}, v{Q8}, v{Q8+2}")
        A(f"v_add_f32 v{S2}, v{Q8+1}, v{Q8+3}")
        A(f"v_add_f32 v{U0}, v{Q8+4}, v{Q8+6}")
        A(f"v_add_f32 v{U1}, v{Q8+5}, v{Q8+7}")
        A(f"v_add_f32 v{S1}, v{S1}, v{U0}")
        A(f"v_add_f32 v{S2}, v{S2}, v{U1}")
        self.ln_norm(S1, S2, X1, U0, U1)
        self.modulate(X1, T4U, SBV, SBV + 1, TMP, TMP + 12, VAW)
        A("s_waitcnt lgkmcnt(0)")
        self.a_frags_from_stage(VAR, AF)
        A("s_waitcnt lgkmcnt(0)")
        self.mfmas(AF, BF, DT, 4, 4)
        self.d_to_lds(DT, 4, TMP, TMP + 1, VDW)
        A("s_waitcnt lgkmcnt(0)")
        self.bar()
        A("s_cmp_eq_u32 s3, 0")
        A(f"s_cbranch_scc0 {EX}")
        A(f"v_lshrrev_b32 v{TMP}, 3, v2")
        A(f"v_and_b32 v{TMP}, 1, v{TMP}")
        A(f"v_and_b32 v{TMP+1}, 7, v2")
        A(f"v_lshlrev_b32 v{TMP+2}, 8, v{TMP}")
        A(f"v_lshl_add_u32 v{TMP+2}, v{TMP+1}, 4, v{TMP+2}")
        GT = AF
        for j in range(4):
            A(f"ds_read_b128 v[{AF+4*j}:{AF+4*j+3}], v{TMP+2} offset:{L_D + j*512}")
            A(f"ds_read_b128 v[{DT+4*j}:{DT+4*j+3}], v{TMP+2} offset:{L_D + j*512 + 128}")
        A(f"v_lshlrev_b32 v{TMP+3}, 6, v{TMP}")
        A(f"v_lshl_add_u32 v{TMP+3}, v{TMP+1}, 3, v{TMP+3}")
        A("s_waitcnt lgkmcnt(0)")
        for base in (AF, DT):
            for k in range(4):
                A(f"v_add_f32 v{base+k}, v{base+k}, v{base+4+k}")
                A(f"v_add_f32 v{base+8+k}, v{base+8+k}, v{base+12+k}")
            for k in range(4):
                A(f"v_add_f32 v{base+k}, v{base+k}, v{base+8+k}")
            self.rnd2(base, base + 1, base + 4)
            self.rnd2(base + 2, base + 3, base + 5)
        A(f"s_mov_b32 s58, {f32(-LOG2E)}")
        for k in range(4):
            A(f"v_mul_f32 v{AF+4+k}, s58, v{AF+k}")
        for k in range(4):
            A(f"v_exp_f32 v{AF+4+k}, v{AF+4+k}")
        self.nop(1)
        for k in range(4):
            A(f"v_add_f32 v{AF+4+k}, 1.0, v{AF+4+k}")
        for k in range(4):
            A(f"v_rcp_f32 v{AF+4+k}, v{AF+4+k}")
        self.nop(1)
        for k in range(4):
            A(f"v_mul_f32 v{AF+k}, v{AF+k}, v{AF+4+k}")
        self.rnd2(AF, AF + 1, AF + 4)
        self.rnd2(AF + 2, AF + 3, AF + 5)
        for k in range(4):
            A(f"v_mul_f32 v{AF+k}, v{AF+k}, v{DT+k}")
        A(f"v_cvt_pk_bf16_f32 v{AF+8}, v{AF}, v{AF+1}")
        A(f"v_cvt_pk_bf16_f32 v{AF+9}, v{AF+2}, v{AF+3}")
        A(f"v_min_u32 v{AF+8}, -2, v{AF+8}")
        A(f"v_min_u32 v{AF+9}, -2, v{AF+9}")
        self.nop(1)
        A(f"v_mov_b32_dpp v{AF+10}, v{AF+8} quad_perm:[1,1,3,3] row_mask:0xf bank_mask:0xf")
        A(f"v_mov_b32_dpp v{AF+11}, v{AF+9} quad_perm:[1,1,3,3] row_mask:0xf bank_mask:0xf")
        A("s_mov_b64 exec, 0x5555")
        A(f"buffer_store_dwordx4 v[{AF+8}:{AF+11}], v{TMP+3}, s[84:87], s60 offen sc1")
        self.stamp(9)
        self.dstamp(5)
        A(f"s_branch {EX}")

        L("L_tail_dn")
        A("s_cmp_eq_u32 s3, 0")
        A("s_cbranch_scc0 L_dn_hh")
        regs = [DAF + 4 * i for i in range(8)]
        self.poll_multi([([f"s_add_u32 s54, s56, {hg*4096}", f"buffer_load_dwordx4 v[{regs[hg]}:{regs[hg]+3}], v15, s[84:87], s54 offen sc1"],
                          [regs[hg] + k for k in range(4)]) for hg in range(8)], DAF + 32)
        self.unpack2(16, DAF + 32, DAF + 33)
        self.unpack2(17, DAF + 34, DAF + 35)
        self.unpack2(18, DAF + 36, DAF + 37)
        self.unpack2(19, DAF + 38, DAF + 39)
        self.sum8_x1(regs, DAF + 40, DAF + 32, DAF + 36, 22)
        A(f"v_cvt_pk_bf16_f32 v10, v{DAF+40}, v{DAF+41}")
        A(f"v_cvt_pk_bf16_f32 v11, v{DAF+42}, v{DAF+43}")
        L("L_dn_hh")
        self.poll_multi([([f"buffer_load_dwordx4 v[{DAF+4*t}:{DAF+4*t+3}], v12, s[16:19], s57 offen offset:{t*128} sc1"],
                          [DAF + 4 * t + k for k in range(4)]) for t in range(11)], 22)
        self.stamp(8)
        self.mfmas(DAF, DBF, DDT, 11, 2)
        self.d_to_lds(DDT, 2, 22, 23, VDW)
        A("s_waitcnt lgkmcnt(0)")
        self.bar()
        A("s_cmp_eq_u32 s3, 0")
        A(f"s_cbranch_scc0 {EX}")
        A("v_lshlrev_b32 v22, 8, v13")
        A("v_lshl_add_u32 v22, v14, 4, v22")
        F = DAF
        for j in range(4):
            A(f"ds_read_b128 v[{F+4*j}:{F+4*j+3}], v22 offset:{L_D + j*512}")
        self.unpack2(20, F + 16, F + 17)
        self.unpack2(21, F + 18, F + 19)
        self.unpack2(10, F + 20, F + 21)
        self.unpack2(11, F + 22, F + 23)
        A("v_lshlrev_b32 v23, 10, v13")
        A("v_lshl_add_u32 v23, v14, 3, v23")
        A("s_lshl_b32 s54, s59, 6")
        A("s_waitcnt lgkmcnt(0)")
        for k in range(4):
            A(f"v_add_f32 v{F+k}, v{F+k}, v{F+4+k}")
            A(f"v_add_f32 v{F+8+k}, v{F+8+k}, v{F+12+k}")
        for k in range(4):
            A(f"v_add_f32 v{F+k}, v{F+k}, v{F+8+k}")
        self.rnd2(F, F + 1, F + 4)
        self.rnd2(F + 2, F + 3, F + 5)
        for k in range(4):
            A(f"v_mul_f32 v{F+k}, v{F+k}, v{F+16+k}")
        self.rnd2(F, F + 1, F + 4)
        self.rnd2(F + 2, F + 3, F + 5)
        for k in range(4):
            A(f"v_add_f32 v{F+k}, v{F+k}, v{F+20+k}")
        A(f"v_cvt_pk_bf16_f32 v{F+8}, v{F}, v{F+1}")
        A(f"v_cvt_pk_bf16_f32 v{F+9}, v{F+2}, v{F+3}")
        A("s_mov_b64 exec, 0xffff")
        A(f"buffer_store_dwordx2 v[{F+8}:{F+9}], v23, s[72:75], s54 offen")
        self.stamp(9)
        self.dstamp(1)
        A(f"s_branch {EX}")

    def d_sum(self, G, TT, t):
        A = self.A
        A(f"v_and_b32 v{t}, 1, v{G}")
        A(f"v_lshlrev_b32 v{t}, 8, v{t}")
        A(f"v_lshl_add_u32 v{t}, v{TT}, 4, v{t}")
        for j in range(4):
            A(f"ds_read_b128 v[{t+4+4*j}:{t+7+4*j}], v{t} offset:{L_D + j*512}")
        A("s_waitcnt lgkmcnt(0)")
        for k in range(4):
            A(f"v_add_f32 v{t+4+k}, v{t+4+k}, v{t+8+k}")
            A(f"v_add_f32 v{t+12+k}, v{t+12+k}, v{t+16+k}")
        for k in range(4):
            A(f"v_add_f32 v{t+4+k}, v{t+4+k}, v{t+12+k}")

    def sum8_x1(self, regs, X1, XV, GAV, t):
        A = self.A
        for a, b in ((0, 1), (2, 3), (4, 5), (6, 7), (0, 2), (4, 6)):
            for k in range(4):
                A(f"v_add_f32 v{regs[a]+k}, v{regs[a]+k}, v{regs[b]+k}")
        for k in range(4):
            A(f"v_add_f32 v{X1+k}, v{regs[0]+k}, v{regs[4]+k}")
        self.rnd2(X1, X1 + 1, t)
        self.rnd2(X1 + 2, X1 + 3, t + 1)
        for k in range(4):
            A(f"v_mul_f32 v{X1+k}, v{X1+k}, v{GAV+k}")
        self.rnd2(X1, X1 + 1, t)
        self.rnd2(X1 + 2, X1 + 3, t + 1)
        for k in range(4):
            A(f"v_add_f32 v{X1+k}, v{X1+k}, v{XV+k}")
        self.rnd2(X1, X1 + 1, t)
        self.rnd2(X1 + 2, X1 + 3, t + 1)

    def ln_norm(self, S1, S2, X, U0, U1):
        A = self.A
        A(f"s_mov_b32 s58, {f32(1.0/512)}")
        A(f"v_mul_f32 v{S1}, s58, v{S1}")
        A(f"v_mul_f32 v{S2}, s58, v{S2}")
        A(f"v_fma_f32 v{S2}, -v{S1}, v{S1}, v{S2}")
        A(f"v_max_f32 v{S2}, 0, v{S2}")
        self.rnd2(S1, S2, U0)
        A(f"v_add_f32 v{S2}, {f32(1e-5)}, v{S2}")
        self.rnd1(S2)
        A(f"v_sqrt_f32 v{S2}, v{S2}")
        for k in range(4):
            A(f"v_sub_f32 v{X+k}, v{X+k}, v{S1}")
        self.rnd1(S2)
        A(f"v_rcp_f32 v{S2}, v{S2}")
        self.rnd2(X, X + 1, U0)
        self.rnd2(X + 2, X + 3, U1)
        for k in range(4):
            A(f"v_mul_f32 v{X+k}, v{X+k}, v{S2}")
        self.rnd2(X, X + 1, U0)
        self.rnd2(X + 2, X + 3, U1)

    def modulate(self, N, T4, sp0, sp1, t0, w, VAW):
        A = self.A
        for k in range(4):
            A(f"v_mul_f32 v{N+k}, v{N+k}, v{T4+k}")
        self.rnd2(N, N + 1, t0)
        self.rnd2(N + 2, N + 3, t0 + 1)
        self.unpack2(sp0, w, w + 1)
        self.unpack2(sp1, w + 2, w + 3)
        for k in range(4):
            A(f"v_add_f32 v{N+k}, v{N+k}, v{w+k}")
        A(f"v_cvt_pk_bf16_f32 v{w+4}, v{N}, v{N+1}")
        A(f"v_cvt_pk_bf16_f32 v{w+5}, v{N+2}, v{N+3}")
        A(f"ds_write_b64 v{VAW}, v[{w+4}:{w+5}]")


HEADER = open("cdna_kernels/%s.s.ref" % NAME).read().split("; Override launch geometry")[0] if True else ""

if __name__ == "__main__":
    import argparse
    ap = argparse.ArgumentParser()
    ap.add_argument("-o", default="k.s")
    ap.add_argument("--R", type=int, default=3)
    ap.add_argument("--B", type=int, default=32)
    ap.add_argument("--stamps", action="store_true")
    ap.add_argument("--sleep", type=int, default=1)
    ap.add_argument("--NS", type=int, default=12)
    ap.add_argument("--R0", type=int, default=3)
    ap.add_argument("--grp", default="iod")
    ap.add_argument("--CP", type=int, default=0)
    ap.add_argument("--dbg", default="")
    ap.add_argument("--pace", type=int, default=0)
    ap.add_argument("--tpol", default="nt")
    ap.add_argument("--xmap", action="store_true")
    ap.add_argument("--flagq", action="store_true")
    ap.add_argument("--TH", type=int, default=480)
    ap.add_argument("--kvpol", default="nt")
    ap.add_argument("--dry", action="store_true")
    ap.add_argument("--pm", action="store_true")
    ap.add_argument("--rot", type=int, default=0)
    ap.add_argument("--H", type=int, default=1)
    ap.add_argument("--px", type=int, default=33)
    ap.add_argument("--egw", type=int, default=0)
    ap.add_argument("--cstr", type=int, default=4224)
    ap.add_argument("--ps1", type=int, default=1)
    ap.add_argument("--ps2", type=int, default=1)
    a = ap.parse_args()
    B = a.B
    if a.stamps and B > 32:
        B = 32
    g = Gen(R=a.R, B=B, stamps=a.stamps, sleep=a.sleep, NS=a.NS, R0=a.R0, grp=a.grp, CP=a.CP, dbg=a.dbg, pace=a.pace, tpol=a.tpol, xmap=a.xmap, flagq=a.flagq, ps1=a.ps1, ps2=a.ps2, TH=a.TH, kvpol=a.kvpol, dry=a.dry, pm=a.pm, rot=a.rot, H=a.H, cstr=a.cstr, egw=a.egw, px=a.px)
    open(a.o, "w").write(HEADER + g.build())
```

```python
import sys, struct

NAME = "adaLN_cond__mha_block_cached__glu_gated_swiglu__decode"

def f32(x):
    return "0x%08x" % struct.unpack("<I", struct.pack("<f", x))[0]

LOG2E = 1.4426950408889634
SCALE = 128 ** -0.5

MOD_OFF = 0x0000
Q_OFF = 0x8000
PART_OFF = 0x10000
ATT_OFF = 0x90000
HH_OFF = 0x98000
CNT_OFF = 0x9A000
CTR_OFF = 0x100000
WS_USED = 0x9C000
STAMP_OFF = 0x10000000
L_A = 0
L_D = L_A + 2048
L_ST = L_D + 2048
L_Q = L_ST + 64
L_Z = L_Q + 512
L_CNT = L_Z
L_QF = L_Z + 16
L_NEED = L_Z + 32
L_RL = L_Z + 256
L_ML = L_Z + 512
L_P = 5376
L_W = L_P + 16384
LDS_BYTES = L_W + 90112
assert L_ML + 128 <= L_P and L_P % 128 == 0

R_MOD0, R_Q0, R_WO0, R_WO1, R_UP0, R_UP1, R_DN0 = 0, 48, 112, 176, 192, 235, 240
SENT = 0xFFFFFFFF


class Gen:
    def __init__(self, R=3, B=32, stamps=False, NS=12, sleep=1, R0=3, grp='iod', CP=0, dbg='', pace=0, tpol='nt', xmap=False, flagq=False, ps1=1, ps2=1, TH=480, kvpol='nt', dry=False, pm=False, rot=0, H=1, cstr=4224, egw=0, px=33):
        self.o = []
        self.R, self.B, self.stamps, self.NS, self.sleep, self.R0, self.grp = R, B, stamps, NS, sleep, R0, grp
        self.uid = 0
        self.CP = CP
        self.dbg = dbg
        self.px = px
        self.egw = egw
        self.cstr = cstr
        self.H = H
        self.rot = rot
        self.pm = pm
        self.dry = dry
        self.kvpol = kvpol
        self.TH = TH
        self.ps1, self.ps2 = ps1, ps2
        self.pace, self.tpol, self.xmap, self.flagq = pace, tpol, xmap, flagq

    def A(self, s):
        self.o.append("    " + s)

    def L(self, s):
        self.o.append(s + ":")

    def lab(self, p):
        self.uid += 1
        return f"L_{p}_{self.uid}"

    def nop(self, n):
        while n > 0:
            k = min(n, 16)
            self.A(f"s_nop {k-1}")
            n -= k

    def srd(self, d, b, nbytes):
        self.A(f"s_mov_b32 s{d}, s{b}")
        self.A(f"s_mov_b32 s{d+1}, s{b+1}")
        self.A(f"s_mov_b32 s{d+2}, {nbytes}")
        self.A(f"s_mov_b32 s{d+3}, 0x20000")

    def stamp(self, idx, src=None, wave=False):
        if not self.stamps:
            return
        A = self.A
        if src is None:
            A("s_memrealtime s[90:91]")
        else:
            A(f"s_mov_b64 s[90:91], {src}")
        A("s_mov_b64 s[92:93], exec")
        A("s_mov_b64 exec, 1")
        A("s_lshl_b32 s94, s2, 9")
        if wave:
            A("s_lshl_b32 s95, s3, 5")
            A("s_add_u32 s94, s94, s95")
        A(f"s_add_u32 s94, s94, {STAMP_OFF + idx*8}")
        A("s_waitcnt lgkmcnt(0)")
        A("v_mov_b32 v166, s90")
        A("v_mov_b32 v167, s91")
        A("buffer_store_dwordx2 v[166:167], off, s[84:87], s94")
        A("s_mov_b64 exec, s[92:93]")

    def rnd2(self, a, b, t):
        self.A(f"v_cvt_pk_bf16_f32 v{t}, v{a}, v{b}")
        self.A(f"v_lshlrev_b32 v{a}, 16, v{t}")
        self.A(f"v_and_b32 v{b}, 0xffff0000, v{t}")

    def rnd1(self, a):
        self.A(f"v_cvt_pk_bf16_f32 v{a}, v{a}, v{a}")
        self.A(f"v_and_b32 v{a}, 0xffff0000, v{a}")

    def unpack2(self, src, lo, hi):
        self.A(f"v_lshlrev_b32 v{lo}, 16, v{src}")
        self.A(f"v_and_b32 v{hi}, 0xffff0000, v{src}")

    def allred32(self, regs, tmps):
        A = self.A
        for rot in (8, 4, 2, 1):
            self.nop(2 if len(regs) < 2 else max(0, 2 - (len(regs) - 1)))
            for r in regs:
                A(f"v_add_f32_dpp v{r}, v{r}, v{r} row_ror:{rot} row_mask:0xf bank_mask:0xf")
        for r, t in zip(regs, tmps):
            A(f"v_mov_b32 v{t}, v{r}")
        self.nop(2)
        for r, t in zip(regs, tmps):
            A(f"v_permlane16_swap_b32 v{r}, v{t}")
        self.nop(1)
        for r, t in zip(regs, tmps):
            A(f"v_add_f32 v{r}, v{r}, v{t}")

    def slice_of(self, dst, r0, n):
        A = self.A
        A(f"s_sub_u32 s{dst}, s89, {r0}")
        if not self.xmap:
            return
        q, rem = divmod(n, 8)
        A(f"s_and_b32 s68, s{dst}, 7")
        A(f"s_lshr_b32 s{dst}, s{dst}, 3")
        A(f"s_min_u32 s69, s68, {rem}")
        A(f"s_mul_i32 s68, s68, {q}")
        A(f"s_add_u32 s{dst}, s{dst}, s68")
        A(f"s_add_u32 s{dst}, s{dst}, s69")

    def dstamp(self, word, mn=False, tagreg=80, srd=76):
        if "dtime" not in self.dbg:
            return
        A = self.A
        A("s_memrealtime s[90:91]")
        A("s_mov_b64 s[92:93], exec")
        A("s_mov_b64 exec, 1")
        A("s_waitcnt lgkmcnt(0)")
        A(f"s_sub_u32 s90, s90, s{tagreg}")
        if mn:
            A("s_sub_u32 s90, 100000, s90")
        A("v_mov_b32 v166, s90")
        A(f"buffer_atomic_umax v166, off, s[{srd}:{srd+3}], 0 offset:{word*4} sc1")
        A("s_mov_b64 exec, s[92:93]")

    def dmark(self, k):
        if "dpro" in self.dbg:
            r = [4, 6, 100, 42][k]
            self.A(f"s_memrealtime s[{r}:{r+1}]")

    def demit(self):
        if "dpro" not in self.dbg:
            return
        A, L = self.A, self.L
        A("s_waitcnt lgkmcnt(0)")
        A("s_mov_b64 exec, 1")
        def em(reg, word, mn=False):
            l = self.lab("de")
            A(f"s_cmp_eq_u32 s{reg}, 0")
            A(f"s_cbranch_scc1 {l}")
            A(f"s_sub_u32 s90, s{reg}, s80")
            if mn:
                A("s_sub_u32 s90, 100000, s90")
            A("v_mov_b32 v166, s90")
            A(f"buffer_atomic_umax v166, off, s[76:79], 0 offset:{word*4} sc1")
            L(l)
        em(4, 3); em(4, 6, True)
        em(100, 9); em(100, 10, True)
        a = self.lab("da"); b = self.lab("db")
        A("s_cmp_lt_u32 s89, 16")
        A(f"s_cbranch_scc0 {a}")
        em(6, 7); em(42, 11)
        L(a)
        A("s_cmp_ge_u32 s89, 48")
        A(f"s_cbranch_scc0 {b}")
        em(6, 8); em(42, 12)
        L(b)
        A("s_mov_b64 exec, -1")

    def bar(self):
        if not self.dry:
            self.A("s_barrier")
            return
        l = self.lab("nb")
        self.A("s_cmp_eq_u32 s69, 0")
        self.A(f"s_cbranch_scc0 {l}")
        self.A("s_barrier")
        self.L(l)

    def poll_head(self):
        l = self.lab("poll")
        self.L(l)
        return l

    def poll_tail(self, l, sleep=None):
        A = self.A
        d = self.lab("pdone")
        A(f"s_cbranch_vccz {d}")
        A("s_cmp_eq_u32 s88, 0")
        A(f"s_cbranch_scc1 {d}")
        A("s_sub_u32 s88, s88, 1")
        if (self.sleep if sleep is None else sleep):
            A(f"s_sleep {self.sleep if sleep is None else sleep}")
        A(f"s_branch {l}")
        self.L(d)

    def poll_multi(self, loads, t):
        A, L = self.A, self.L
        n = len(loads)
        if not self.pm:
            pl = self.poll_head()
            for lines, regs in loads:
                for x in lines:
                    A(x)
            A("s_waitcnt vmcnt(0)")
            self.check_sent([r for lines, regs in loads for r in regs], t)
            self.poll_tail(pl)
            return
        A(f"s_mov_b32 s95, {(1 << n) - 1}")
        first = True
        top = self.lab("mp")
        done = self.lab("mpd")
        for lines, regs in loads:
            for x in lines:
                A(x)
        chk = self.lab("mpc")
        A(f"s_branch {chk}")
        L(top)
        for r, (lines, regs) in enumerate(loads):
            sk = self.lab("mps")
            A(f"s_bitcmp1_b32 s95, {r}")
            A(f"s_cbranch_scc0 {sk}")
            for x in lines:
                A(x)
            L(sk)
        L(chk)
        A("s_waitcnt vmcnt(0)")
        for r, (lines, regs) in enumerate(loads):
            sk = self.lab("mpk")
            A(f"s_bitcmp1_b32 s95, {r}")
            A(f"s_cbranch_scc0 {sk}")
            self.check_sent(regs, t)
            A(f"s_cbranch_vccnz {sk}")
            A(f"s_bitset0_b32 s95, {r}")
            L(sk)
        A("s_cmp_eq_u32 s95, 0")
        A(f"s_cbranch_scc1 {done}")
        A("s_cmp_eq_u32 s88, 0")
        A(f"s_cbranch_scc1 {done}")
        A("s_sub_u32 s88, s88, 1")
        if self.sleep:
            A(f"s_sleep {self.sleep}")
        A(f"s_branch {top}")
        L(done)

    def check_sent(self, regs, t):
        A = self.A
        regs = list(regs)
        if len(regs) >= 3:
            A(f"v_max3_u32 v{t}, v{regs[0]}, v{regs[1]}, v{regs[2]}")
            regs = regs[3:]
        else:
            A(f"v_max_u32 v{t}, v{regs[0]}, v{regs[1]}")
            regs = regs[2:]
        while len(regs) >= 2:
            A(f"v_max3_u32 v{t}, v{t}, v{regs[0]}, v{regs[1]}")
            regs = regs[2:]
        if regs:
            A(f"v_max_u32 v{t}, v{t}, v{regs[0]}")
        A(f"v_cmp_eq_u32 vcc, -1, v{t}")

    def check_tags(self, regs, t):
        A = self.A
        A(f"v_xor_b32 v{t}, s80, v{regs[0]}")
        for r in regs[1:]:
            A(f"v_xor_b32 v{t+1}, s80, v{r}")
            A(f"v_or_b32 v{t}, v{t}, v{t+1}")
        A(f"v_cmp_ne_u32 vcc, 0, v{t}")

    def dma_weights(self, srd, nins, voff, row_step_bytes, lds_base_s, soff0=0, pol="nt", skip=""):
        A = self.A
        if "notaildma" in self.dbg and getattr(self, "intail", False):
            return
        if "noprodma" in self.dbg and not getattr(self, "intail", False):
            nins = 16
            A(f"s_mov_b32 s{srd+2}, 0")
        A(f"s_mov_b32 s70, {soff0}")
        A(f"s_add_u32 s71, s{lds_base_s}, {L_W}")
        intail = getattr(self, "intail", False)
        if intail:
            pol = self.tpol
            if skip and skip in self.dbg:
                return
        for i in range(nins):
            if intail and self.pace and i >= self.pace:
                A(f"s_waitcnt vmcnt({self.pace-1})")
            A("s_mov_b32 m0, s71")
            A(f"s_add_u32 s71, s71, 1024")
            A(f"buffer_load_dwordx4 v{voff}, s[{srd}:{srd+3}], s70 offen {pol} lds")
            A(f"s_add_u32 s70, s70, {row_step_bytes}")

    def tr_reads(self, vaddr, breg, nk, cgs, rowb):
        for t in range(nk):
            for ci, cgoff in enumerate(cgs):
                r = breg + (t * len(cgs) + ci) * 4
                off = t * 32 * rowb + cgoff
                self.A(f"ds_read_b64_tr_b16 v[{r}:{r+1}], v{vaddr} offset:{off}")
                self.A(f"ds_read_b64_tr_b16 v[{r+2}:{r+3}], v{vaddr} offset:{off + 4*rowb}")

    def mfmas(self, areg, breg, dreg, nk, ncg):
        for t in range(nk):
            for c in range(ncg):
                a = areg + 4 * t
                b = breg + (t * ncg + c) * 4
                d = dreg + 4 * c
                src = "0" if t == 0 else f"v[{d}:{d+3}]"
                self.A(f"v_mfma_f32_16x16x32_bf16 v[{d}:{d+3}], v[{a}:{a+3}], v[{b}:{b+3}], {src}")

    def d_to_lds(self, dreg, ncg, x0, x1, vaddr):
        A = self.A
        self.nop(8)
        for c in range(ncg):
            A(f"v_mov_b32_dpp v{x0}, v{dreg+4*c} quad_perm:[0,1,2,3] row_mask:{1<<c:#x} bank_mask:0xf")
            A(f"v_mov_b32_dpp v{x1}, v{dreg+4*c+1} quad_perm:[0,1,2,3] row_mask:{1<<c:#x} bank_mask:0xf")
        A(f"ds_write_b32 v{vaddr}, v{x0}")
        A(f"ds_write_b32 v{vaddr}, v{x1} offset:256")

    def a_frags_from_stage(self, vaddr, areg):
        for t in range(4):
            self.A(f"ds_read_b128 v[{areg+4*t}:{areg+4*t+3}], v{vaddr} offset:{t*64}")

    def build(self):
        A, L = self.A, self.L
        o = self.o
        o.append(f"; @launch grid=(256,1,1) block=(768,1,1) lds={LDS_BYTES}")
        o.append('.amdgcn_target "amdgcn-amd-amdhsa--gfx950"')
        o.append(".text")
        o.append(f".globl {NAME}_kernel")
        o.append(".p2align 8")
        o.append(f".type {NAME}_kernel,@function")
        L(f"{NAME}_kernel")
        if self.stamps:
            A("s_memrealtime s[100:101]")
        A("s_cmp_ge_u32 s2, 256")
        A("s_cbranch_scc1 L_end")
        A("s_load_dwordx4 s[4:7], s[0:1], 8")
        A("s_load_dwordx4 s[96:99], s[0:1], 96")
        A("v_lshrrev_b32 v1, 6, v0")
        A("v_and_b32 v2, 63, v0")
        A("v_readfirstlane_b32 s3, v1")
        if self.grp == "pair":
            A("s_and_b32 s40, s2, 7")
            A("s_lshr_b32 s40, s40, 1")
            A("s_lshr_b32 s43, s2, 4")
            A("s_lshl_b32 s43, s43, 2")
            A("s_add_u32 s40, s40, s43")
            A("s_and_b32 s41, s2, 1")
            A("s_lshr_b32 s43, s2, 3")
            A("s_and_b32 s43, s43, 1")
            A("s_lshl_b32 s43, s43, 1")
            A("s_add_u32 s41, s41, s43")
        else:
            A("s_lshr_b32 s41, s2, 1")
            A("s_xor_b32 s40, s41, s2")
            A("s_and_b32 s40, s40, 1")
            A("s_and_b32 s41, s41, 3")
            A("s_lshr_b32 s43, s2, 3")
            A("s_lshl_b32 s43, s43, 1")
            A("s_add_u32 s40, s40, s43")
        A("s_lshr_b32 s89, s40, 1")
        A("s_add_u32 s89, s89, s41")
        A("s_and_b32 s89, s89, 3")
        A("s_lshl_b32 s89, s89, 6")
        A("s_add_u32 s89, s89, s40")
        A("s_cmp_ge_u32 s3, 8")
        A("s_cbranch_scc1 L_helper")
        self.streamer()
        L("L_helper")
        self.helper()
        L("L_end")
        A("s_endpgm")
        o.append('.section .rodata,"a"')
        o.append(".p2align 6")
        o.append(f".amdhsa_kernel {NAME}_kernel")
        o.append("  .amdhsa_next_free_vgpr 168")
        o.append("  .amdhsa_next_free_sgpr 102")
        o.append("  .amdhsa_accum_offset 168")
        o.append("  .amdhsa_group_segment_fixed_size 0")
        o.append("  .amdhsa_kernarg_size 112")
        o.append("  .amdhsa_user_sgpr_count 2")
        o.append("  .amdhsa_user_sgpr_kernarg_segment_ptr 1")
        o.append("  .amdhsa_system_sgpr_workgroup_id_x 1")
        o.append(".end_amdhsa_kernel")
        return "\n".join(o) + "\n"

    def streamer(self):
        A, L = self.A, self.L
        R, B, NS, R0 = self.R, self.B, self.NS, self.R0
        VOFF, QF, MK, D, M, MN, LS = 1, 2, 6, 10, 14, 15, 16
        AC, T0, T1, S, PP = 17, 21, 22, 23, 24
        AS = 26
        LANE = 34
        EP, CLM = 35, 25
        RING = 168 - 4 * B - (2 if self.stamps else 0)
        RING -= RING % 2
        assert RING >= 36
        A(f"v_mov_b32 v{LANE}, v2")
        A("s_lshl_b32 s44, s41, 3")
        A("s_add_u32 s44, s44, s3")
        A("s_lshl_b32 s44, s44, 12")
        A(f"s_mul_i32 s45, s40, {self.rot}")
        A("s_lshl_b32 s45, s45, 15")
        A("s_add_u32 s44, s44, s45")
        A("s_lshl_b32 s33, s40, 21")
        A(f"v_lshlrev_b32 v{VOFF}, 4, v2")
        A("s_waitcnt lgkmcnt(0)")
        self.srd(8, 4, 0x8000000)
        self.srd(12, 6, 0x8000000)
        N = (NS - 1) * 8 + R
        NC = (NS - 1) * 8

        def issue(p):
            i, j = divmod(p, 8)
            t, j = divmod(j, 4)
            r = RING + 4 * (p % B)
            srd = "s[8:11]" if t == 0 else "s[12:15]"
            if j == 0 and t == 0:
                A(f"s_add_u32 s16, s44, {i * 32 * 4096}")
                A("s_and_b32 s16, s16, 0x1fffff")
                A("s_add_u32 s16, s16, s33")
                if self.stamps and i < 12:
                    A(f"s_memrealtime s[{48+2*i}:{49+2*i}]")
            A(f"buffer_load_dwordx4 v[{r}:{r+3}], v{VOFF}, {srd}, s16 offen offset:{j*1024} {self.kvpol}")

        for p in range(R0):
            issue(p)
        if self.stamps:
            A("s_memrealtime s[30:31]")
        self.srd(84, 98, 0x20000000)
        A("s_barrier")
        if self.H == 2:
            A(f"s_xor_b32 s43, s40, {self.px}")
            A("s_min_u32 s43, s43, s40")
            A(f"s_xor_b32 s39, s43, {self.px}")
            A("s_lshl_b32 s39, s39, 21")
        else:
            A("s_mov_b32 s43, s40")
        A("s_lshl_b32 s45, s43, 3")
        A("s_add_u32 s45, s45, s3")
        A(f"s_mul_i32 s45, s45, {self.cstr}")
        A(f"s_add_u32 s45, s45, {CTR_OFF}")
        A("s_lshl_b32 s42, s3, 12")
        A(f"s_mul_i32 s38, s43, {self.rot}")
        A("s_lshl_b32 s38, s38, 15")
        A("s_add_u32 s42, s42, s38")
        A("s_lshl_b32 s43, s43, 21")
        if self.H == 2:
            A("s_lshr_b32 s32, s40, 5")
        else:
            A("s_mov_b32 s32, 0")
        A("s_mov_b32 s28, s32")
        A("s_mov_b32 s29, s32")
        A("s_add_u32 s26, s98, s45")
        A("s_addc_u32 s27, s99, 0")
        A(f"v_and_b32 v{T0}, 15, v{LANE}")
        A(f"v_and_b32 v{T1}, 1, v{LANE}")
        A(f"v_lshlrev_b32 v{T1}, 4, v{T1}")
        A(f"s_mov_b32 s17, 0xffff")
        A(f"v_mov_b32 v{S}, s17")
        A(f"v_lshlrev_b32 v{T1}, v{T1}, v{S}")
        A(f"v_lshrrev_b32 v{T0}, 1, v{T0}")
        for k in range(4):
            A(f"v_cmp_eq_u32 vcc, {k}, v{T0}")
            self.nop(2)
            A(f"v_cndmask_b32 v{MK+k}, 0, v{T1}, vcc")
        for k in range(4):
            A(f"v_mov_b32 v{D+k}, 0")
        A(f"v_mov_b32 v{M}, {f32(-3.0e38)}")
        A(f"v_mov_b32 v{MN}, 0")
        A(f"v_mov_b32 v{LS}, 0")
        A(f"v_and_b32 v35, 15, v{LANE}")
        A(f"v_lshlrev_b32 v35, 5, v35")
        A(f"v_lshrrev_b32 v{T1}, 4, v{LANE}")
        A(f"v_and_b32 v{S}, 1, v{T1}")
        A(f"v_lshl_add_u32 v35, v{S}, 4, v35")
        A(f"v_lshrrev_b32 v{T1}, 1, v{T1}")
        A(f"v_lshl_add_u32 v35, v{T1}, 9, v35")
        A("s_lshl_b32 s20, s3, 10")
        A(f"v_add_u32 v35, s20, v35")
        A("s_lshl_b32 s20, s3, 3")
        A(f"v_mov_b32 v25, s20")
        A(f"s_mov_b32 s18, {f32(SCALE)}")
        A(f"s_mov_b32 s19, {f32(LOG2E)}")
        for p in range(R0, B):
            A(f"s_waitcnt vmcnt({R0-1 if p < 8 else R-1})")
            issue(p)
        self.stamp(1)
        self.stamp(11, "s[100:101]")
        self.stamp(12, "s[30:31]")
        A(f"v_and_b32 v{T0}, 15, v{LANE}")
        A(f"v_lshlrev_b32 v{T0}, 4, v{T0}")
        A("s_lshl_b32 s20, s32, 8")
        A(f"v_add_u32 v{T0}, s20, v{T0}")
        if not self.flagq:
            A("s_barrier")
            A(f"ds_read_b128 v[{QF}:{QF+3}], v{T0} offset:{L_Q}")
            A("s_waitcnt lgkmcnt(0)")
        else:
            A(f"v_mov_b32 v{T1}, 0")
            A("s_mov_b32 s88, 0x400000")
            pl = self.poll_head()
            A(f"ds_read_b32 v{AS}, v{T1} offset:{L_QF}")
            A(f"ds_read_b128 v[{QF}:{QF+3}], v{T0} offset:{L_Q}")
            A("s_waitcnt lgkmcnt(0)")
            A(f"v_cmp_eq_u32 vcc, 0, v{AS}")
            self.poll_tail(pl, sleep=1)
        if self.stamps:
            A("s_waitcnt vmcnt(0)")
        beta = [0, 2, 1, 3]
        st = {"I": B, "landed": (B if self.stamps else B - R)}

        def need(c):
            if c >= st["landed"]:
                A(f"s_waitcnt vmcnt({st['I'] - 1 - c})")
                st["landed"] = c + 1

        def paced_issue():
            I = st["I"]
            if I >= N:
                return
            if I - st["landed"] >= R:
                A(f"s_waitcnt vmcnt({R-1})")
                st["landed"] = I - (R - 1)
            issue(I)
            st["I"] = I + 1

        def consume(c):
            i, j = divmod(c, 8)
            t, j = divmod(j, 4)
            r = RING + 4 * (c % B)
            need(c)
            if "nocomp" in self.dbg:
                A(f"v_xor_b32 v{AC}, v{AC}, v{r}")
            elif t == 0:
                A(f"v_dot2_f32_bf16 v{AC+j}, v{r}, v{QF}, 0")
                for k in range(1, 4):
                    A(f"v_dot2_f32_bf16 v{AC+j}, v{r+k}, v{QF+k}, v{AC+j}")
            else:
                a = AS + 4 * (j & 1)
                for k in range(4):
                    A(f"v_and_b32_dpp v{a+k}, v{PP}, v{MK+k} row_newbcast:{4*beta[j]} row_mask:0xf bank_mask:0xf")
                self.nop(2)
                A(f"v_mfma_f32_16x16x32_bf16 v[{D}:{D+3}], v[{a}:{a+3}], v[{r}:{r+3}], v[{D}:{D+3}]")

        def softmax():
            if "nocomp" in self.dbg:
                return
            self.nop(3)
            A(f"v_add_f32_dpp v{T0}, v{AC}, v{AC} row_ror:8 row_mask:0xf bank_mask:0x3")
            A(f"v_add_f32_dpp v{T1}, v{AC+2}, v{AC+2} row_ror:8 row_mask:0xf bank_mask:0x3")
            A(f"v_add_f32_dpp v{T0}, v{AC+1}, v{AC+1} row_ror:8 row_mask:0xf bank_mask:0xc")
            A(f"v_add_f32_dpp v{T1}, v{AC+3}, v{AC+3} row_ror:8 row_mask:0xf bank_mask:0xc")
            self.nop(1)
            A(f"v_add_f32_dpp v{S}, v{T0}, v{T0} row_shl:4 row_mask:0xf bank_mask:0x5")
            A(f"v_add_f32_dpp v{S}, v{T1}, v{T1} row_shr:4 row_mask:0xf bank_mask:0xa")
            self.nop(2)
            A(f"v_add_f32_dpp v{S}, v{S}, v{S} quad_perm:[2,3,0,1] row_mask:0xf bank_mask:0xf")
            self.nop(2)
            A(f"v_add_f32_dpp v{S}, v{S}, v{S} quad_perm:[1,0,3,2] row_mask:0xf bank_mask:0xf")
            self.rnd1(S)
            A(f"v_mul_f32 v{S}, s18, v{S}")
            self.rnd1(S)
            A(f"v_cmp_gt_f32 vcc, v{S}, v{M}")
            bk = self.lab("back")
            A(f"s_cbranch_vccz {bk}")
            A("s_call_b64 s[46:47], L_rare")
            L(bk)
            A(f"v_fma_f32 v{T0}, v{S}, s19, v{MN}")
            A(f"v_exp_f32 v{T0}, v{T0}")
            self.nop(1)
            A(f"v_add_f32 v{LS}, v{LS}, v{T0}")
            A(f"v_cvt_pk_bf16_f32 v{PP}, v{T0}, v{T0}")
            self.nop(2)

        c = 0
        while c < NC:
            lag = st["I"] - c
            ncons = 2 if lag > R + 1 else 1
            if st["I"] < N and st["I"] - B < c and lag <= R:
                paced_issue()
            for _ in range(ncons):
                if c >= NC:
                    break
                consume(c)
                c += 1
                if c % 8 == 4:
                    softmax()
            if st["I"] < N and st["I"] - B < c and (st["I"] - c) > R:
                paced_issue()
        assert st["I"] == N, (st, N)
        base = (NS - 1) * 8
        alt = (base + 8) % B
        st["landed"] = 1 << 30

        def ld(pos, sl, soff):
            t, jl = divmod(pos, 4)
            r = RING + 4 * (sl % B)
            srd = "s[8:11]" if t == 0 else "s[12:15]"
            A(f"buffer_load_dwordx4 v[{r}:{r+3}], v{VOFF}, {srd}, {soff} offen offset:{jl*1024} {self.kvpol}")

        CP = self.CP

        def claim():
            if "fake" in self.dbg:
                A("s_add_u32 s39, s39, 4")
                A("s_mov_b32 s24, s39")
                if "fakeld" in self.dbg:
                    A("s_load_dword s38, s[26:27], 0 glc")
                if "fakeat" in self.dbg:
                    A("s_mov_b32 s38, 1")
                    A("s_atomic_add s38, s[26:27], 0 glc")
                return
            A("s_mov_b32 s24, 1")
            A("s_atomic_add s24, s[26:27], 0 glc")

        def eat(sl, j_from, younger):
            for j in range(j_from, 8):
                A(f"s_waitcnt vmcnt({younger + 7 - j})")
                consume(sl + j)
                if j == 3:
                    softmax()

        CX = RING + 4 * ((base + 16) % B)
        ACT = [QF, QF + 1, QF + 2, QF + 3, D, D + 1, D + 2, D + 3, M, MN, LS]
        SAV = [CX + k for k in range(11)]
        self.ctx = (ACT, SAV)
        if self.H == 2:
            A(f"v_and_b32 v{T0}, 15, v{LANE}")
            A(f"v_lshlrev_b32 v{T0}, 4, v{T0}")
            A("s_xor_b32 s20, s32, 1")
            A("s_lshl_b32 s20, s20, 8")
            A(f"v_add_u32 v{T0}, s20, v{T0}")
            A(f"ds_read_b128 v[{CX}:{CX+3}], v{T0} offset:{L_Q}")
            for k in range(4, 8):
                A(f"v_mov_b32 v{CX+k}, 0")
            A(f"v_mov_b32 v{CX+8}, {f32(-3.0e38)}")
            A(f"v_mov_b32 v{CX+9}, 0")
            A(f"v_mov_b32 v{CX+10}, 0")

        def decode(dst, hd, src=24):
            if self.H == 1:
                A(f"s_lshl_b32 s{dst}, s{src}, 15")
                A(f"s_add_u32 s{dst}, s{dst}, s42")
                if self.rot:
                    A(f"s_and_b32 s{dst}, s{dst}, 0x1fffff")
                A(f"s_add_u32 s{dst}, s{dst}, s43")
                return
            A(f"s_and_b32 s{hd}, s{src}, 1")
            A(f"s_lshr_b32 s{dst}, s{src}, 1")
            A(f"s_lshl_b32 s{dst}, s{dst}, 15")
            A(f"s_add_u32 s{dst}, s{dst}, s42")
            A(f"s_mul_i32 s21, s{hd}, {((32 * self.rot) & 63) << 15}")
            A(f"s_add_u32 s{dst}, s{dst}, s21")
            A(f"s_and_b32 s{dst}, s{dst}, 0x1fffff")
            A(f"s_lshl_b32 s21, s{hd}, 26")
            A(f"s_add_u32 s{dst}, s{dst}, s21")
            A(f"s_add_u32 s{dst}, s{dst}, s43")

        def switch(hd):
            if self.H == 1:
                return
            l = self.lab("nosw")
            A(f"s_cmp_eq_u32 s32, s{hd}")
            A(f"s_cbranch_scc1 {l}")
            A("s_call_b64 s[46:47], L_swap")
            L(l)

        if self.stamps:
            A("s_mov_b32 s78, 0")
            A("s_mov_b32 s79, 0")
        j0 = 8 - R
        assert CP < j0
        RLA, RLV, NDV, ZA = CX + 12, CX + 13, CX + 14, CX + 15
        END = 64 * self.H + 1
        A(f"v_mov_b32 v{RLA}, 0")
        A(f"v_mov_b32 v{ZA}, 0")
        A(f"v_mov_b32 v{NDV}, 1")
        A(f"ds_max_u32 v{ZA}, v{NDV} offset:{L_NEED}")
        if self.H == 1:
            A("s_sub_u32 s42, s42, 0x8000")
            A("s_add_u32 s42, s42, s43")
        else:
            A("s_add_u32 s43, s43, s42")
            A("s_add_u32 s39, s39, s42")

        def rl_read():
            A(f"ds_read_b32 v{RLV}, v{RLA} offset:{L_RL}")

        def rl_get():
            got = self.lab("got")
            A("s_waitcnt lgkmcnt(0)")
            A(f"v_readfirstlane_b32 s24, v{RLV}")
            A("s_cmp_lg_u32 s24, 0")
            A(f"s_cbranch_scc1 {got}")
            A("s_call_b64 s[46:47], L_rlspin")
            L(got)

        def rl_next(dst, hd):
            A(f"v_add_u32 v{NDV}, 1, v{NDV}")
            A(f"v_add_u32 v{RLA}, 4, v{RLA}")
            A(f"ds_max_u32 v{ZA}, v{NDV} offset:{L_NEED}")
            if self.H == 1:
                A(f"s_lshl_b32 s{dst}, s24, 15")
                A(f"s_add_u32 s{dst}, s{dst}, s42")
            else:
                A("s_sub_u32 s24, s24, 1")
                A(f"s_and_b32 s{hd}, s24, 1")
                A("s_cselect_b32 s21, s39, s43")
                A(f"s_lshr_b32 s{dst}, s24, 1")
                A(f"s_lshl_b32 s{dst}, s{dst}, 15")
                A(f"s_add_u32 s{dst}, s{dst}, s21")

        L("L_dyn")
        if self.stamps:
            A("s_add_u32 s78, s78, 1")
        switch(28)
        for j in range(8):
            if j == j0 - 1:
                rl_read()
            if j == j0:
                if self.stamps:
                    A("s_memrealtime s[34:35]")
                rl_get()
                if self.stamps:
                    A("s_mov_b32 m0, s78")
                    A("v_writelane_b32 v36, s34, m0")
                    A("s_add_u32 m0, s78, 32")
                    A("s_sub_u32 s35, s24, 1")
                    A("v_writelane_b32 v36, s35, m0")
                A(f"s_cmp_ge_u32 s24, {self.TH * self.H // 8 + 1}")
                A("s_cbranch_scc1 L_fin")
                rl_next(16, 28)
            A(f"s_waitcnt vmcnt({R-1})")
            jj = j + R
            ld(jj % 8, base + jj % 8, "s16")
            consume(base + j)
            if j == 3:
                softmax()
        A("s_branch L_dyn")
        L("L_rlspin")
        pl = self.poll_head()
        rl_read()
        A("s_waitcnt lgkmcnt(0)")
        A(f"v_cmp_eq_u32 vcc, 0, v{RLV}")
        self.poll_tail(pl, sleep=1)
        A(f"v_readfirstlane_b32 s24, v{RLV}")
        A("s_cmp_eq_u32 s24, 0")
        A(f"s_cselect_b32 s24, {END}, s24")
        A("s_setpc_b64 s[46:47]")
        L("L_fin")
        if self.stamps:
            A("s_memrealtime s[76:77]")
        if self.TH < 512:
            A(f"s_cmp_ge_u32 s24, {END}")
            A("s_cbranch_scc1 L_fin_last")
            rl_next(25, 29)
            for jj in range(8):
                ld(jj, alt + jj, "s25")
            eat(base, j0, 8)
            for (P, Q, hp, hq, me) in ((alt, base, 29, 28, "A"), (base, alt, 28, 29, "B")):
                L(f"L_eg{me}")
                if self.egw:
                    A(f"s_waitcnt vmcnt({8 - self.egw})")
                rl_read()
                rl_get()
                A(f"s_cmp_ge_u32 s24, {END}")
                A(f"s_cbranch_scc1 L_drain{me}")
                rl_next(25, hq)
                for jj in range(8):
                    ld(jj, Q + jj, "s25")
                switch(hp)
                eat(P, 0, 8)
                if me == "B":
                    A("s_branch L_egA")
            L("L_drainA")
            switch(29)
            eat(alt, 0, 0)
            A("s_branch L_done")
            L("L_drainB")
            switch(28)
            eat(base, 0, 0)
            A("s_branch L_done")
            L("L_fin_last")
        eat(base, j0, 0)
        L("L_done")
        self.stamp(2)
        if self.stamps:
            A("s_lshl_b32 s36, s2, 11")
            A("s_lshl_b32 s37, s3, 8")
            A("s_add_u32 s36, s36, s37")
            A(f"s_add_u32 s36, s36, {STAMP_OFF + 0x40000}")
            A(f"v_lshlrev_b32 v37, 2, v{LANE}")
            A("buffer_store_dword v36, v37, s[84:87], s36 offen")
        self.stamp(32, wave=True)
        self.stamp(33, "s[76:77]", wave=True)
        self.stamp(34, "s[78:79]", wave=True)
        if self.stamps:
            A("s_cmp_eq_u32 s3, 0")
            A("s_cbranch_scc0 L_noprof")
            for i in range(min(NS, 12)):
                self.stamp(16 + i, f"s[{48+2*i}:{49+2*i}]")
            self.stamp(16 + 14)
            L("L_noprof")
        if self.H == 1:
            for ctl, msk in (("row_ror:4", "0xf"), ("row_ror:8", "0xf"), ("row_bcast:15", "0xa"), ("row_bcast:31", "0xc")):
                A(f"v_add_f32_dpp v{LS}, v{LS}, v{LS} {ctl} row_mask:{msk} bank_mask:0xf")
                self.nop(2)
            A(f"ds_write_b128 v35, v[{D}:{D+3}] offset:{L_P}")
            A(f"v_mov_b32 v{MN}, v{LS}")
            A("s_mov_b32 exec_lo, 0")
            A("s_mov_b32 exec_hi, 0x80000000")
            A(f"ds_write_b64 v25, v[{M}:{M+1}] offset:{L_ML}")
            A("s_waitcnt lgkmcnt(0)")
            A("s_barrier")
            A("s_endpgm")
        else:
            LS2, M2, D2 = CX + 10, CX + 8, CX + 4
            for ctl, msk in (("row_ror:4", "0xf"), ("row_ror:8", "0xf"), ("row_bcast:15", "0xa"), ("row_bcast:31", "0xc")):
                A(f"v_add_f32_dpp v{LS}, v{LS}, v{LS} {ctl} row_mask:{msk} bank_mask:0xf")
                A(f"v_add_f32_dpp v{LS2}, v{LS2}, v{LS2} {ctl} row_mask:{msk} bank_mask:0xf")
                self.nop(1)
            A("s_lshl_b32 s20, s32, 13")
            A("s_xor_b32 s21, s20, 8192")
            A(f"v_add_u32 v{T0}, s20, v35")
            A(f"v_add_u32 v{T1}, s21, v35")
            A(f"ds_write_b128 v{T0}, v[{D}:{D+3}] offset:{L_P}")
            A(f"ds_write_b128 v{T1}, v[{D2}:{D2+3}] offset:{L_P}")
            A(f"v_mov_b32 v{MN}, v{LS}")
            A(f"v_mov_b32 v{M2+1}, v{LS2}")
            A("s_lshl_b32 s20, s32, 6")
            A("s_xor_b32 s21, s20, 64")
            A(f"v_add_u32 v{T0}, s20, v25")
            A(f"v_add_u32 v{T1}, s21, v25")
            A("s_mov_b32 exec_lo, 0")
            A("s_mov_b32 exec_hi, 0x80000000")
            A(f"ds_write_b64 v{T0}, v[{M}:{M+1}] offset:{L_ML}")
            A(f"ds_write_b64 v{T1}, v[{M2}:{M2+1}] offset:{L_ML}")
            A("s_waitcnt lgkmcnt(0)")
            A("s_barrier")
            A("s_endpgm")
            L("L_swap")
            self.nop(8)
            for a, b in zip(ACT, SAV):
                A(f"v_swap_b32 v{a}, v{b}")
            A("s_xor_b32 s32, s32, 1")
            A("s_setpc_b64 s[46:47]")

        L("L_rare")
        A(f"v_max_f32_dpp v{T0}, v{S}, v{S} row_ror:4 row_mask:0xf bank_mask:0xf")
        self.nop(2)
        A(f"v_max_f32_dpp v{T0}, v{T0}, v{T0} row_ror:8 row_mask:0xf bank_mask:0xf")
        self.nop(1)
        A(f"v_readlane_b32 s20, v{T0}, 0")
        A(f"v_readlane_b32 s21, v{T0}, 16")
        A(f"v_readlane_b32 s22, v{T0}, 32")
        A(f"v_readlane_b32 s23, v{T0}, 48")
        A(f"v_max_f32 v{T1}, s20, v{M}")
        A(f"v_max_f32 v{T1}, s21, v{T1}")
        A(f"v_max_f32 v{T1}, s22, v{T1}")
        A(f"v_max_f32 v{T1}, s23, v{T1}")
        A(f"v_sub_f32 v{T0}, v{M}, v{T1}")
        A(f"v_mul_f32 v{T0}, s19, v{T0}")
        A(f"v_exp_f32 v{T0}, v{T0}")
        A(f"v_mov_b32 v{M}, v{T1}")
        A(f"v_mul_f32 v{MN}, s19, v{T1}")
        A(f"v_sub_f32 v{MN}, 0, v{MN}")
        for k in range(4):
            A(f"v_mul_f32 v{D+k}, v{D+k}, v{T0}")
        A(f"v_mul_f32 v{LS}, v{LS}, v{T0}")
        A("s_setpc_b64 s[46:47]")

    def helper(self):
        A, L = self.A, self.L
        A("s_setprio 2")
        A("s_sub_u32 s3, s3, 8")
        A("s_load_dwordx2 s[24:25], s[0:1], 0")
        A("s_load_dwordx4 s[28:31], s[0:1], 24")
        A("s_load_dwordx4 s[32:35], s[0:1], 48")
        A("s_load_dwordx4 s[36:39], s[0:1], 64")
        A("s_load_dwordx4 s[48:51], s[0:1], 80")
        A("s_memrealtime s[66:67]")
        A("s_mov_b32 s88, 0x80000")
        A("v_mov_b32 v12, 0")
        A("v_mov_b32 v13, 0")
        A("v_mov_b32 v14, 0")
        A("v_mov_b32 v15, 0")
        A("v_lshlrev_b32 v14, 2, v2")
        A(f"ds_write_b32 v14, v12 offset:{L_Z}")
        A(f"ds_write_b32 v14, v12 offset:{L_Z+256}")
        HB, HI, G, TT = 3, 4, 5, 6
        A(f"v_lshrrev_b32 v{HB}, 5, v2")
        A(f"v_and_b32 v{HI}, 31, v2")
        A(f"v_lshrrev_b32 v{G}, 4, v2")
        A(f"v_and_b32 v{TT}, 15, v2")
        VAW, VAR, VDW, VTR = 7, 8, 9, 10
        A("s_lshl_b32 s52, s3, 9")
        A(f"v_lshlrev_b32 v{VAW}, 8, v{HB}")
        A(f"v_lshl_add_u32 v{VAW}, v{HI}, 3, v{VAW}")
        A(f"s_add_u32 s53, s52, {L_A}")
        A(f"v_add_u32 v{VAW}, s53, v{VAW}")
        A(f"v_and_b32 v{VAR}, 1, v2")
        A(f"v_lshlrev_b32 v{VAR}, 8, v{VAR}")
        A(f"v_lshl_add_u32 v{VAR}, v{G}, 4, v{VAR}")
        A(f"v_add_u32 v{VAR}, s53, v{VAR}")
        A(f"s_add_u32 s53, s52, {L_D}")
        A(f"v_lshlrev_b32 v{VDW}, 2, v2")
        A(f"v_add_u32 v{VDW}, s53, v{VDW}")
        A("s_waitcnt lgkmcnt(0)")
        self.srd(84, 98, 0x20000000)
        self.srd(76, 96, 256)
        A("s_or_b32 s54, s2, s3")
        A("s_cmp_eq_u32 s54, 0")
        A("s_cbranch_scc0 L_notagw")
        A("s_or_b32 s66, s66, 1")
        A("v_mov_b32 v12, s66")
        A("s_mov_b64 exec, 1")
        A("buffer_atomic_cmpswap v[12:13], off, s[76:79], 0 sc1")
        A("s_mov_b64 exec, -1")
        L("L_notagw")
        self.srd(20, 24, 2048)
        A(f"s_add_u32 s16, s98, {HH_OFF}")
        A("s_addc_u32 s17, s99, 0")
        A(f"s_mov_b32 s18, {43*128}")
        A("s_mov_b32 s19, 0x20000")
        self.srd(72, 50, 2048)
        for r in range(10, 24):
            A(f"v_mov_b32 v{r}, 0")
        for r in (54, 55, 56, 57, 59, 60, 61, 62):
            A(f"s_mov_b32 s{r}, 0")
        if self.H == 1:
            A("s_lshl_b32 s83, s40, 3")
            A("s_add_u32 s83, s83, s41")
            A("s_lshl_b32 s83, s83, 10")
            A(f"s_add_u32 s83, s83, {PART_OFF}")
            A("s_mov_b32 s82, s40")
            A("s_mov_b32 s81, s41")
            A("s_mov_b32 s67, s83")
        else:
            A(f"s_xor_b32 s82, s40, {self.px}")
            A("s_min_u32 s82, s82, s40")
            A("s_lshr_b32 s54, s40, 5")
            A("s_lshl_b32 s54, s54, 2")
            A("s_add_u32 s54, s54, s41")
            A("s_lshl_b32 s54, s54, 10")
            A(f"s_add_u32 s54, s54, {PART_OFF}")
            A("s_lshl_b32 s83, s82, 13")
            A("s_add_u32 s83, s83, s54")
            A(f"s_xor_b32 s67, s82, {self.px}")
            A("s_lshl_b32 s67, s67, 13")
            A("s_add_u32 s67, s67, s54")
            A("s_lshr_b32 s81, s40, 5")
            A("s_or_b32 s81, s81, s41")
        A("s_mov_b32 s45, s82")
        A("s_lshl_b32 s82, s82, 7")
        A(f"s_add_u32 s82, s82, {CNT_OFF}")
        if "dpro" in self.dbg:
            for r in (4, 6, 100, 42):
                A(f"s_mov_b32 s{r}, 0")
        self.stamp(0)
        A(f"s_cmp_lt_u32 s89, {R_Q0}")
        A("s_cbranch_scc1 L_pro_mod")
        A(f"s_cmp_lt_u32 s89, {R_WO0}")
        A("s_cbranch_scc1 L_pro_q")
        A("s_barrier")
        A("s_branch L_common1")

        BF, AF, DT = 40, 24, 12
        DT = 104
        TMP = 120

        def wide_voff(rowbytes, colbyte_s):
            A("s_lshl_b32 s54, s3, 7")
            A("v_lshrrev_b32 v11, 3, v2")
            A("v_add_u32 v11, s54, v11")
            A(f"s_mov_b32 s55, {rowbytes}")
            A("v_mul_lo_u32 v11, v11, s55")
            A(f"v_and_b32 v{TMP}, 7, v2")
            A(f"v_lshl_add_u32 v11, v{TMP}, 4, v11")
            A(f"v_add_u32 v11, s{colbyte_s}, v11")

        def wide_tr_base():
            A(f"v_lshrrev_b32 v{VTR}, 2, v{TT}")
            A(f"v_lshl_add_u32 v{VTR}, v{G}, 3, v{VTR}")
            A(f"v_lshlrev_b32 v{VTR}, 7, v{VTR}")
            A(f"v_and_b32 v{TMP}, 3, v{TT}")
            A(f"v_lshl_add_u32 v{VTR}, v{TMP}, 3, v{VTR}")
            A("s_lshl_b32 s54, s3, 14")
            A(f"s_add_u32 s54, s54, {L_W}")
            A(f"v_add_u32 v{VTR}, s54, v{VTR}")

        L("L_pro_mod")
        self.srd(12, 38, 2048)
        A(f"v_lshlrev_b32 v{TMP}, 10, v{HB}")
        A(f"v_lshl_add_u32 v{TMP}, v{HI}, 3, v{TMP}")
        A("s_lshl_b32 s54, s3, 8")
        A(f"buffer_load_dwordx2 v[{TMP+2}:{TMP+3}], v{TMP}, s[12:15], s54 offen")
        self.srd(8, 48, 512 * 6144)
        A("s_lshl_b32 s56, s89, 7")
        wide_voff(6144, 56)
        A("s_lshl_b32 s57, s3, 14")
        self.dma_weights(8, 16, 11, 8 * 6144, 57)
        A("s_barrier")
        wide_tr_base()
        A("s_waitcnt vmcnt(16)")
        X = TMP + 4
        self.unpack2(TMP + 2, X, X + 1)
        self.unpack2(TMP + 3, X + 2, X + 3)
        A(f"s_mov_b32 s58, {f32(-LOG2E)}")
        for k in range(4):
            A(f"v_mul_f32 v{X+4+k}, s58, v{X+k}")
        for k in range(4):
            A(f"v_exp_f32 v{X+4+k}, v{X+4+k}")
        self.nop(1)
        for k in range(4):
            A(f"v_add_f32 v{X+4+k}, 1.0, v{X+4+k}")
        for k in range(4):
            A(f"v_rcp_f32 v{X+4+k}, v{X+4+k}")
        self.nop(1)
        for k in range(4):
            A(f"v_mul_f32 v{X+k}, v{X+k}, v{X+4+k}")
        A(f"v_cvt_pk_bf16_f32 v{X+8}, v{X}, v{X+1}")
        A(f"v_cvt_pk_bf16_f32 v{X+9}, v{X+2}, v{X+3}")
        A(f"ds_write_b64 v{VAW}, v[{X+8}:{X+9}]")
        A("s_lshr_b32 s60, s89, 3")
        A("s_lshl_b32 s60, s60, 12")
        A("s_and_b32 s61, s89, 7")
        A("s_lshl_b32 s61, s61, 8")
        A("s_add_u32 s60, s60, s61")
        A(f"s_add_u32 s60, s60, {MOD_OFF}")
        A("s_mov_b32 s61, 2048")
        A("s_mov_b32 s62, 0")
        A("s_branch L_common1")

        L("L_pro_q")
        A(f"v_lshlrev_b32 v{TMP}, 10, v{HB}")
        A(f"v_lshl_add_u32 v{TMP+1}, v{HI}, 5, v{TMP}")
        A(f"buffer_load_dwordx4 v[{TMP+4}:{TMP+7}], v{TMP+1}, s[20:23], 0 offen")
        A(f"buffer_load_dwordx4 v[{TMP+8}:{TMP+11}], v{TMP+1}, s[20:23], 0 offen offset:16")
        A(f"v_lshl_add_u32 v{TMP}, v{HI}, 3, v{TMP}")
        A("s_lshl_b32 s54, s3, 8")
        A(f"buffer_load_dwordx2 v[{TMP+2}:{TMP+3}], v{TMP}, s[20:23], s54 offen")
        self.srd(8, 28, 512 * 8192)
        A(f"s_sub_u32 s59, s89, {R_Q0}")
        A("s_lshl_b32 s56, s59, 7")
        wide_voff(8192, 56)
        A("s_lshl_b32 s57, s3, 14")
        self.dma_weights(8, 16, 11, 8 * 8192, 57)
        A("s_barrier")
        wide_tr_base()
        A("s_waitcnt vmcnt(16)")
        S1, S2, U0, U1 = TMP + 12, TMP + 13, TMP + 14, TMP + 15
        A(f"v_mov_b32 v{S1}, 0")
        A(f"v_mov_b32 v{S2}, 0")
        for k in range(8):
            self.unpack2(TMP + 4 + k, U0, U1)
            A(f"v_add_f32 v{S1}, v{S1}, v{U0}")
            A(f"v_fmac_f32 v{S2}, v{U0}, v{U0}")
            A(f"v_add_f32 v{S1}, v{S1}, v{U1}")
            A(f"v_fmac_f32 v{S2}, v{U1}, v{U1}")
        self.allred32([S1, S2], [U0, U1])
        NX = TMP + 16
        self.unpack2(TMP + 2, NX, NX + 1)
        self.unpack2(TMP + 3, NX + 2, NX + 3)
        self.ln_norm(S1, S2, NX, U0, U1)
        A("s_lshl_b32 s60, s59, 8")
        A(f"s_add_u32 s60, s60, {Q_OFF}")
        A("s_mov_b32 s61, 16384")
        A("s_mov_b32 s62, 1")
        L("L_common1")
        A("buffer_load_dword v165, off, s[76:79], 0 sc1")
        CL = TMP + 24
        for k in range(4):
            A(f"v_mov_b32 v{CL+k}, -1")
        A("s_cmp_eq_u32 s3, 3")
        A("s_cbranch_scc0 L_noclear")
        A(f"v_lshlrev_b32 v{CL+4}, 4, v2")
        A("s_mov_b32 exec_lo, -1")
        A("s_mov_b32 exec_hi, 1")
        A(f"buffer_store_dwordx4 v[{CL}:{CL+3}], v{CL+4}, s[84:87], s83 offen sc1")
        if self.H == 2:
            A(f"buffer_store_dwordx4 v[{CL}:{CL+3}], v{CL+4}, s[84:87], s67 offen sc1")
        A("s_mov_b64 exec, -1")
        A(f"s_sub_u32 s64, s89, {R_WO0}")
        A("s_cmp_lt_u32 s64, 64")
        A("s_cbranch_scc0 L_noclr_wo")
        self.slice_of(64, R_WO0, 64)
        A("s_lshr_b32 s65, s64, 3")
        A("s_lshl_b32 s65, s65, 12")
        A("s_and_b32 s66, s64, 7")
        A("s_lshl_b32 s66, s66, 8")
        A("s_add_u32 s65, s65, s66")
        A(f"s_add_u32 s65, s65, {ATT_OFF}")
        A(f"v_lshlrev_b32 v{CL+4}, 11, v{G}")
        A(f"v_lshl_add_u32 v{CL+4}, v{TT}, 4, v{CL+4}")
        A("s_mov_b32 exec_hi, 0")
        A(f"buffer_store_dwordx4 v[{CL}:{CL+3}], v{CL+4}, s[84:87], s65 offen sc1")
        A("s_mov_b64 exec, -1")
        L("L_noclr_wo")
        A(f"s_sub_u32 s64, s89, {R_UP0}")
        A("s_cmp_lt_u32 s64, 43")
        A("s_cbranch_scc0 L_noclr_up")
        self.slice_of(64, R_UP0, 43)
        A("s_lshl_b32 s65, s64, 7")
        A(f"s_add_u32 s65, s65, {HH_OFF}")
        A(f"v_lshlrev_b32 v{CL+4}, 4, v2")
        A("s_mov_b64 exec, 0xff")
        A(f"buffer_store_dwordx4 v[{CL}:{CL+3}], v{CL+4}, s[84:87], s65 offen sc1")
        A("s_mov_b64 exec, -1")
        L("L_noclr_up")
        A("s_cmp_eq_u32 s81, 0")
        A("s_cbranch_scc0 L_noclr_cnt")
        A(f"v_mov_b32 v{CL+4}, {self.NS*4*self.H}")
        A(f"s_mul_i32 s65, s45, {self.cstr}")
        A(f"s_add_u32 s65, s65, {CTR_OFF}")
        A("s_mov_b64 exec, 1")
        A(f"buffer_store_dword v{CL+4}, off, s[84:87], s65 sc1")
        A("s_mov_b64 exec, -1")
        L("L_noclr_cnt")
        L("L_noclear")
        A("s_waitcnt vmcnt(0)")
        A("v_cmp_eq_u32 vcc, 0, v165")
        A("s_cbranch_vccz L_gottag")
        pl = self.poll_head()
        A("buffer_load_dword v165, off, s[76:79], 0 sc1")
        A("s_waitcnt vmcnt(0)")
        A("v_cmp_eq_u32 vcc, 0, v165")
        self.poll_tail(pl, sleep=2)
        L("L_gottag")
        A("v_readfirstlane_b32 s80, v165")
        self.dmark(3)
        self.stamp(10)
        A("s_cmp_eq_u32 s3, 3")
        A("s_cbranch_scc0 L_nocount")
        A("s_and_b32 s63, s2, 3")
        A("s_lshl_b32 s63, s63, 2")
        A("s_add_u32 s63, s63, 128")
        A(f"v_mov_b32 v{CL+5}, 1")
        A("s_mov_b64 exec, 1")
        A(f"buffer_atomic_add v{CL+5}, off, s[76:79], s63 sc1")
        A("s_cmp_eq_u32 s81, 0")
        A("s_cbranch_scc0 L_nocnttag")
        A(f"v_mov_b32 v{CL+4}, s80")
        A(f"buffer_store_dword v{CL+4}, off, s[84:87], s82 offset:64 sc1")
        L("L_nocnttag")
        A("s_mov_b64 exec, -1")
        L("L_nocount")
        A(f"s_cmp_lt_u32 s89, {R_WO0}")
        A("s_cbranch_scc0 L_qgather")
        self.tr_reads(VTR, BF, 4, [0, 32, 64, 96], 128)
        A("s_cmp_eq_u32 s62, 0")
        A("s_cbranch_scc1 L_pro_gemv")
        GA = TMP + 4
        A(f"v_lshlrev_b32 v{TMP}, 11, v{HB}")
        A(f"v_lshl_add_u32 v{TMP}, v{HI}, 4, v{TMP}")
        A("s_lshl_b32 s54, s3, 9")
        A(f"s_add_u32 s54, s54, {MOD_OFF}")
        A(f"s_add_u32 s55, s54, 4096")
        pl = self.poll_head()
        A(f"buffer_load_dwordx4 v[{GA}:{GA+3}], v{TMP}, s[84:87], s55 offen sc1")
        A(f"buffer_load_dwordx4 v[{GA+4}:{GA+7}], v{TMP}, s[84:87], s54 offen sc1")
        A("s_waitcnt vmcnt(0)")
        self.check_tags([GA + 1, GA + 3, GA + 5, GA + 7], TMP + 1)
        self.poll_tail(pl, sleep=self.ps1)
        self.stamp(3)
        self.dmark(2)
        T4 = TMP + 20
        self.unpack2(GA, T4, T4 + 1)
        self.unpack2(GA + 2, T4 + 2, T4 + 3)
        for k in range(4):
            A(f"v_add_f32 v{T4+k}, 1.0, v{T4+k}")
        self.rnd2(T4, T4 + 1, TMP + 1)
        self.rnd2(T4 + 2, T4 + 3, TMP + 2)
        self.modulate(NX, T4, GA + 4, GA + 6, TMP + 1, TMP + 24, VAW)
        L("L_pro_gemv")
        A("s_waitcnt lgkmcnt(0)")
        self.a_frags_from_stage(VAR, AF)
        A("s_waitcnt lgkmcnt(0)")
        self.mfmas(AF, BF, DT, 4, 4)
        self.d_to_lds(DT, 4, TMP, TMP + 1, VDW)
        A(f"v_mov_b32 v{TMP+2}, {L_CNT}")
        A(f"v_mov_b32 v{TMP+3}, 1")
        A("s_mov_b64 exec, 1")
        A(f"ds_add_rtn_u32 v{TMP+4}, v{TMP+2}, v{TMP+3}")
        A("s_mov_b64 exec, -1")
        A("s_waitcnt lgkmcnt(0)")
        A(f"v_readfirstlane_b32 s54, v{TMP+4}")
        A("s_cmp_eq_u32 s54, 3")
        A("s_cbranch_scc0 L_qgather")
        self.d_sum(G, TT, TMP)
        A(f"v_cvt_pk_bf16_f32 v{TMP+8}, v{TMP+4}, v{TMP+5}")
        A(f"v_mov_b32 v{TMP+9}, s80")
        A(f"v_cvt_pk_bf16_f32 v{TMP+10}, v{TMP+6}, v{TMP+7}")
        A(f"v_mov_b32 v{TMP+11}, s80")
        A(f"v_mul_lo_u32 v{TMP}, v{G}, s61")
        A(f"v_lshl_add_u32 v{TMP}, v{TT}, 4, v{TMP}")
        A("s_mov_b32 exec_hi, 0")
        A(f"buffer_store_dwordx4 v[{TMP+8}:{TMP+11}], v{TMP}, s[84:87], s60 offen sc1")
        A("s_mov_b64 exec, -1")
        self.stamp(4)
        self.dmark(1)
        L("L_qgather")
        A("s_cmp_eq_u32 s3, 3")
        A("s_cbranch_scc0 L_qg2")
        pl = self.poll_head()
        A(f"buffer_load_dword v{TMP}, off, s[84:87], s82 offset:64 sc1")
        A("s_waitcnt vmcnt(0)")
        A(f"v_cmp_ne_u32 vcc, s80, v{TMP}")
        self.poll_tail(pl, sleep=8)
        if self.flagq:
            A(f"v_mov_b32 v{TMP}, 0")
            A(f"v_mov_b32 v{TMP+1}, 1")
            A(f"ds_write_b32 v{TMP}, v{TMP+1} offset:{L_QF+4}")
        L("L_qg2")
        A("s_cmp_eq_u32 s3, 0")
        A("s_cbranch_scc0 L_b2")
        A("s_lshl_b32 s54, s45, 9")
        A(f"s_add_u32 s54, s54, {Q_OFF}")
        A(f"s_xor_b32 s55, s45, {self.px}")
        A("s_lshl_b32 s55, s55, 9")
        A(f"s_add_u32 s55, s55, {Q_OFF}")
        A(f"v_lshlrev_b32 v{TMP}, 3, v2")
        pl = self.poll_head()
        A(f"buffer_load_dwordx2 v[{TMP+2}:{TMP+3}], v{TMP}, s[84:87], s54 offen sc1")
        if self.H == 2:
            A(f"buffer_load_dwordx2 v[{TMP+4}:{TMP+5}], v{TMP}, s[84:87], s55 offen sc1")
        A("s_waitcnt vmcnt(0)")
        self.check_tags([TMP + 3, TMP + 5][:self.H], TMP + 6)
        self.poll_tail(pl, sleep=self.ps2)
        A(f"v_lshlrev_b32 v{TMP}, 2, v2")
        A(f"ds_write_b32 v{TMP}, v{TMP+2} offset:{L_Q}")
        if self.H == 2:
            A(f"ds_write_b32 v{TMP}, v{TMP+4} offset:{L_Q+256}")
        if self.flagq:
            A(f"v_mov_b32 v{TMP}, 0")
            A(f"v_mov_b32 v{TMP+1}, 1")
            A(f"ds_write_b32 v{TMP}, v{TMP+1} offset:{L_QF}")
        A("s_waitcnt lgkmcnt(0)")
        self.stamp(5)
        self.dmark(0)
        L("L_b2")
        if not self.flagq:
            A("s_barrier")
        else:
            A(f"v_mov_b32 v{TMP}, 0")
            pl = self.poll_head()
            A(f"ds_read_b32 v{TMP+1}, v{TMP} offset:{L_QF}")
            A("s_waitcnt lgkmcnt(0)")
            A(f"v_cmp_eq_u32 vcc, 0, v{TMP+1}")
            self.poll_tail(pl, sleep=4)
        A(f"s_cmp_lt_u32 s89, {R_WO0}")
        A("s_cbranch_scc1 L_b3")
        A(f"s_cmp_lt_u32 s89, {R_WO1}")
        A("s_cbranch_scc1 L_prep_wo")
        A(f"s_cmp_ge_u32 s89, {R_DN0}")
        A("s_cbranch_scc1 L_prep_dn")
        A(f"s_cmp_lt_u32 s89, {R_UP0}")
        A("s_cbranch_scc1 L_b3")
        A(f"s_cmp_lt_u32 s89, {R_UP1}")
        A("s_cbranch_scc1 L_prep_up")
        A("s_branch L_b3")

        def narrow_voff(rowbytes, rows_per_wave, colbyte_s):
            A(f"s_mul_i32 s54, s3, {rows_per_wave}")
            A("v_lshrrev_b32 v11, 2, v2")
            A("v_add_u32 v11, s54, v11")
            A(f"s_mov_b32 s55, {rowbytes}")
            A("v_mul_lo_u32 v11, v11, s55")
            A(f"v_and_b32 v{VTR}, 3, v2")
            A(f"v_lshl_add_u32 v11, v{VTR}, 4, v11")
            A(f"v_add_u32 v11, s{colbyte_s}, v11")

        def narrow_tr_base(rows_per_wave):
            A(f"v_lshrrev_b32 v{VTR}, 2, v{TT}")
            A(f"v_lshl_add_u32 v{VTR}, v{G}, 3, v{VTR}")
            A(f"v_lshlrev_b32 v{VTR}, 6, v{VTR}")
            A(f"v_and_b32 v12, 3, v{TT}")
            A(f"v_lshl_add_u32 v{VTR}, v12, 3, v{VTR}")
            A(f"s_mul_i32 s54, s3, {rows_per_wave*64}")
            A(f"s_add_u32 s54, s54, {L_W}")
            A(f"v_add_u32 v{VTR}, s54, v{VTR}")

        def wait_cleared(t):
            pl = self.poll_head()
            A(f"buffer_load_dwordx4 v[{t}:{t+3}], off, s[76:79], 0 offset:128 sc1")
            A("s_waitcnt vmcnt(0)")
            A(f"v_add_u32 v{t}, v{t}, v{t+1}")
            A(f"v_add3_u32 v{t}, v{t}, v{t+2}, v{t+3}")
            A(f"v_cmp_gt_u32 vcc, 256, v{t}")
            self.poll_tail(pl, sleep=16)

        self.intail = True
        L("L_prep_wo")
        self.slice_of(59, R_WO0, 64)
        self.srd(8, 30, 4096 * 1024)
        A("s_lshr_b32 s56, s59, 3")
        A("s_lshl_b32 s56, s56, 19")
        A("s_and_b32 s57, s59, 7")
        A("s_lshl_b32 s57, s57, 7")
        A("s_add_u32 s56, s56, s57")
        wide_voff(1024, 56)
        A("s_lshl_b32 s57, s3, 14")
        self.dma_weights(8, 16, 11, 8 * 1024, 57, skip='nowo')
        wide_tr_base()
        wait_cleared(TMP)
        self.tr_reads(VTR, BF, 4, [0, 32, 64, 96], 128)
        A(f"v_lshlrev_b32 v11, 18, v{HB}")
        A(f"v_lshl_add_u32 v12, v{HI}, 4, v11")
        A(f"v_and_b32 v{TMP}, {4*self.H-1}, v2")
        A(f"v_lshl_add_u32 v11, v{TMP}, 10, v11")
        A("s_lshr_b32 s56, s59, 3")
        A("s_lshl_b32 s60, s56, 12")
        A("s_lshl_b32 s56, s56, 2")
        A("s_add_u32 s56, s56, s3")
        A("s_lshl_b32 s56, s56, 13")
        A(f"s_add_u32 s56, s56, {PART_OFF}")
        A("s_add_u32 s55, s56, 4096")
        A("s_and_b32 s57, s59, 7")
        A("s_lshl_b32 s57, s57, 8")
        A("s_add_u32 s60, s60, s57")
        A(f"s_add_u32 s60, s60, {ATT_OFF}")
        A("s_waitcnt lgkmcnt(0)")
        A("s_branch L_b3")

        XV, GAV, T4U, SBV = TMP + 28, TMP + 32, TMP + 36, TMP + 40
        L("L_prep_up")
        self.slice_of(59, R_UP0, 43)
        self.srd(8, 32, 512 * 2752)
        self.srd(12, 34, 512 * 2752)
        A("s_lshl_b32 s56, s59, 6")
        narrow_voff(2752, 128, 56)
        A("s_lshl_b32 s57, s3, 13")
        self.dma_weights(8, 8, 11, 16 * 2752, 57, skip='noup')
        A("s_add_u32 s57, s57, 32768")
        self.dma_weights(12, 8, 11, 16 * 2752, 57, skip='noup')
        narrow_tr_base(128)
        A(f"v_lshlrev_b32 v{TMP}, 10, v{HB}")
        A(f"v_lshl_add_u32 v{TMP}, v{HI}, 3, v{TMP}")
        A("s_lshl_b32 s54, s3, 8")
        A(f"buffer_load_dwordx2 v[{TMP+2}:{TMP+3}], v{TMP}, s[20:23], s54 offen")
        A(f"v_lshlrev_b32 v{TMP}, 11, v{HB}")
        A(f"v_lshl_add_u32 v{TMP}, v{HI}, 4, v{TMP}")
        A("s_lshl_b32 s54, s3, 9")
        A(f"s_add_u32 s54, s54, {MOD_OFF + 2*4096}")
        A(f"s_add_u32 s55, s54, 4096")
        A(f"s_add_u32 s56, s54, 8192")
        GA = TMP + 4
        pl = self.poll_head()
        A(f"buffer_load_dwordx4 v[{GA}:{GA+3}], v{TMP}, s[84:87], s54 offen sc1")
        A(f"buffer_load_dwordx4 v[{GA+4}:{GA+7}], v{TMP}, s[84:87], s55 offen sc1")
        A(f"buffer_load_dwordx4 v[{GA+8}:{GA+11}], v{TMP}, s[84:87], s56 offen sc1")
        A("s_waitcnt vmcnt(0)")
        self.check_tags([GA + 1, GA + 3, GA + 5, GA + 7, GA + 9, GA + 11], TMP + 16)
        self.poll_tail(pl)
        self.unpack2(TMP + 2, XV, XV + 1)
        self.unpack2(TMP + 3, XV + 2, XV + 3)
        self.unpack2(GA, GAV, GAV + 1)
        self.unpack2(GA + 2, GAV + 2, GAV + 3)
        A(f"v_mov_b32 v{SBV}, v{GA+4}")
        A(f"v_mov_b32 v{SBV+1}, v{GA+6}")
        self.unpack2(GA + 8, T4U, T4U + 1)
        self.unpack2(GA + 10, T4U + 2, T4U + 3)
        for k in range(4):
            A(f"v_add_f32 v{T4U+k}, 1.0, v{T4U+k}")
        self.rnd2(T4U, T4U + 1, TMP + 1)
        self.rnd2(T4U + 2, T4U + 3, TMP + 1)
        wait_cleared(TMP)
        self.tr_reads(VTR, BF, 4, [0, 32, 32768, 32768 + 32], 64)
        A(f"v_lshlrev_b32 v12, 11, v{HB}")
        A(f"v_lshl_add_u32 v12, v{HI}, 4, v12")
        A("s_lshl_b32 s56, s3, 9")
        A(f"s_add_u32 s56, s56, {ATT_OFF}")
        A("s_lshl_b32 s60, s59, 7")
        A(f"s_add_u32 s60, s60, {HH_OFF}")
        A("s_waitcnt lgkmcnt(0)")
        A("s_branch L_b3")

        DBF, DAF, DDT = 32, 120, 24
        L("L_prep_dn")
        self.slice_of(59, R_DN0, 16)
        self.srd(8, 36, 1376 * 1024)
        A("s_lshl_b32 s56, s59, 6")
        narrow_voff(1024, 352, 56)
        A(f"s_mul_i32 s57, s3, {352*64}")
        self.dma_weights(8, 22, 11, 16 * 1024, 57, skip='nodn')
        narrow_tr_base(352)
        A("v_lshrrev_b32 v13, 3, v2")
        A("v_and_b32 v13, 1, v13")
        A("v_and_b32 v14, 7, v2")
        A("v_lshlrev_b32 v15, 10, v13")
        A("v_lshl_add_u32 v15, v14, 3, v15")
        A("buffer_load_dwordx2 v[16:17], v15, s[20:23], s56 offen")
        A("v_lshlrev_b32 v15, 11, v13")
        A("v_lshl_add_u32 v15, v14, 4, v15")
        A("s_lshl_b32 s54, s59, 7")
        A(f"s_add_u32 s55, s54, {MOD_OFF + 5*4096}")
        A(f"s_add_u32 s54, s54, {MOD_OFF + 2*4096}")
        pl = self.poll_head()
        A(f"buffer_load_dwordx4 v[{DAF}:{DAF+3}], v15, s[84:87], s54 offen sc1")
        A(f"buffer_load_dwordx4 v[{DAF+4}:{DAF+7}], v15, s[84:87], s55 offen sc1")
        A("s_waitcnt vmcnt(0)")
        self.check_tags([DAF + 1, DAF + 3, DAF + 5, DAF + 7], DAF + 8)
        self.poll_tail(pl)
        A(f"v_mov_b32 v18, v{DAF}")
        A(f"v_mov_b32 v19, v{DAF+2}")
        A(f"v_mov_b32 v20, v{DAF+4}")
        A(f"v_mov_b32 v21, v{DAF+6}")
        wait_cleared(DAF)
        self.tr_reads(VTR, DBF, 11, [0, 32], 64)
        A("s_lshl_b32 s56, s59, 7")
        A(f"s_add_u32 s56, s56, {ATT_OFF}")
        A("v_and_b32 v12, 1, v2")
        A("v_lshlrev_b32 v12, 6, v12")
        A(f"v_lshl_add_u32 v12, v{G}, 4, v12")
        A(f"s_mul_i32 s57, s3, {11*128}")
        A("s_waitcnt lgkmcnt(0)")
        L("L_b3")
        A("s_cmp_eq_u32 s3, 2")
        A("s_cbranch_scc0 L_b3x")
        A("s_setprio 1")
        A(f"s_mul_i32 s65, s45, {self.cstr}")
        A(f"s_add_u32 s65, s65, {CTR_OFF}")
        A("s_add_u32 s26, s98, s65")
        A("s_addc_u32 s27, s99, 0")
        A("v_mov_b32 v22, 0")
        pl = self.poll_head()
        A(f"ds_read_b32 v23, v22 offset:{L_QF+4}")
        A("s_waitcnt lgkmcnt(0)")
        A("v_cmp_eq_u32 vcc, 0, v23")
        self.poll_tail(pl, sleep=8)
        A("s_mov_b32 s64, 0")
        L("L_disp")
        A(f"ds_read_b32 v23, v22 offset:{L_NEED}")
        A("s_waitcnt lgkmcnt(0)")
        A("v_readfirstlane_b32 s65, v23")
        A("s_cmp_lt_u32 s64, s65")
        A("s_cbranch_scc1 L_disp_go")
        A("s_cmp_eq_u32 s88, 0")
        A("s_cbranch_scc1 L_disp_end")
        A("s_sub_u32 s88, s88, 1")
        A("s_sleep 2")
        A("s_branch L_disp")
        L("L_disp_go")
        A("s_mov_b32 s66, 1")
        A("s_atomic_add s66, s[26:27], 0 glc")
        A("s_lshl_b32 s65, s64, 2")
        A("v_mov_b32 v24, s65")
        A("s_waitcnt lgkmcnt(0)")
        A(f"s_cmp_ge_u32 s66, {64 * self.H}")
        A("s_cbranch_scc1 L_disp_end")
        A("s_add_u32 s66, s66, 1")
        A("v_mov_b32 v23, s66")
        A(f"ds_write_b32 v24, v23 offset:{L_RL}")
        A("s_add_u32 s64, s64, 1")
        A("s_cmp_lt_u32 s64, 63")
        A("s_cbranch_scc1 L_disp")
        L("L_disp_end")
        A("v_lshlrev_b32 v24, 2, v2")
        A(f"v_mov_b32 v23, {64 * self.H + 1}")
        A("v_cmp_le_u32 vcc, s64, v2")
        A("s_mov_b64 exec, vcc")
        A(f"ds_write_b32 v24, v23 offset:{L_RL}")
        A("s_mov_b64 exec, -1")
        A("s_setprio 2")
        L("L_b3x")
        if self.dry:
            A("s_mov_b32 s69, 1")
            A("s_mov_b32 s86, 0")
            A("s_mov_b32 s18, 0")
            A("s_mov_b32 s74, 0")
            A("s_branch L_after_b3")
            L("L_exit")
            A("s_cmp_eq_u32 s69, 0")
            A("s_cbranch_scc1 L_end")
            A("s_mov_b64 exec, -1")
            A("s_mov_b32 s69, 0")
            A("s_mov_b32 s86, 0x20000000")
            A(f"s_mov_b32 s18, {43*128}")
            A("s_mov_b32 s74, 2048")
            A("s_waitcnt vmcnt(0) lgkmcnt(0)")
        A("s_barrier")
        L("L_after_b3")
        self.demit()
        EX = "L_exit" if self.dry else "L_end"
        self.stamp(6)
        A(f"s_cmp_lt_u32 s3, {self.H}")
        A("s_cbranch_scc0 L_tail")
        C = 120
        A(f"v_and_b32 v{C}, 7, v2")
        A(f"v_lshlrev_b32 v{C}, 3, v{C}")
        A("s_lshl_b32 s63, s3, 6")
        A(f"v_add_u32 v{C}, s63, v{C}")
        A(f"ds_read_b64 v[{C+2}:{C+3}], v{C} offset:{L_ML}")
        A(f"v_lshlrev_b32 v{C+1}, 3, v2")
        A("s_lshl_b32 s63, s3, 13")
        A(f"v_add_u32 v{C+7}, s63, v{C+1}")
        for w in range(8):
            A(f"ds_read_b64 v[{C+8+2*w}:{C+9+2*w}], v{C+7} offset:{L_P + w*1024}")
        A("s_waitcnt lgkmcnt(8)")
        A(f"v_max_f32_dpp v{C+4}, v{C+2}, v{C+2} row_ror:1 row_mask:0xf bank_mask:0xf")
        self.nop(2)
        A(f"v_max_f32_dpp v{C+4}, v{C+4}, v{C+4} row_ror:2 row_mask:0xf bank_mask:0xf")
        self.nop(2)
        A(f"v_max_f32_dpp v{C+4}, v{C+4}, v{C+4} row_ror:4 row_mask:0xf bank_mask:0xf")
        A(f"s_mov_b32 s58, {f32(LOG2E)}")
        A(f"v_sub_f32 v{C+6}, v{C+2}, v{C+4}")
        A(f"v_mul_f32 v{C+6}, s58, v{C+6}")
        A(f"v_exp_f32 v{C+6}, v{C+6}")
        self.nop(1)
        A(f"v_mul_f32 v{C+5}, v{C+6}, v{C+3}")
        self.nop(2)
        A(f"v_add_f32_dpp v{C+5}, v{C+5}, v{C+5} row_ror:1 row_mask:0xf bank_mask:0xf")
        self.nop(2)
        A(f"v_add_f32_dpp v{C+5}, v{C+5}, v{C+5} row_ror:2 row_mask:0xf bank_mask:0xf")
        self.nop(2)
        A(f"v_add_f32_dpp v{C+5}, v{C+5}, v{C+5} row_ror:4 row_mask:0xf bank_mask:0xf")
        A("s_waitcnt lgkmcnt(0)")
        A(f"v_mul_f32_dpp v{C+24}, v{C+6}, v{C+8} row_newbcast:0 row_mask:0xf bank_mask:0xf")
        A(f"v_mul_f32_dpp v{C+25}, v{C+6}, v{C+9} row_newbcast:0 row_mask:0xf bank_mask:0xf")
        for w in range(1, 8):
            A(f"v_fmac_f32_dpp v{C+24}, v{C+6}, v{C+8+2*w} row_newbcast:{w} row_mask:0xf bank_mask:0xf")
            A(f"v_fmac_f32_dpp v{C+25}, v{C+6}, v{C+9+2*w} row_newbcast:{w} row_mask:0xf bank_mask:0xf")
        for r in (C + 24, C + 25, C + 4, C + 5):
            A(f"v_min_u32 v{r}, -2, v{r}")
        A("s_cmp_eq_u32 s3, 0")
        A("s_cselect_b32 s63, s83, s67")
        A(f"v_mov_b32_dpp v{C+26}, v{C+24} quad_perm:[1,1,3,3] row_mask:0xf bank_mask:0xf")
        A(f"v_mov_b32_dpp v{C+27}, v{C+25} quad_perm:[1,1,3,3] row_mask:0xf bank_mask:0xf")
        A("s_mov_b32 exec_lo, 0x55555555")
        A("s_mov_b32 exec_hi, 0x55555555")
        A(f"buffer_store_dwordx4 v[{C+24}:{C+27}], v{C+1}, s[84:87], s63 offen sc1")
        A("s_mov_b64 exec, 1")
        A(f"buffer_store_dwordx2 v[{C+4}:{C+5}], off, s[84:87], s63 offset:512 sc1")
        A("s_mov_b64 exec, -1")
        self.stamp(7)
        self.dstamp(2)
        L("L_tail")
        A(f"s_cmp_lt_u32 s89, {R_WO0}")
        A(f"s_cbranch_scc1 {EX}")
        A(f"s_cmp_lt_u32 s89, {R_WO1}")
        A("s_cbranch_scc1 L_tail_wo")
        A(f"s_cmp_ge_u32 s89, {R_DN0}")
        A("s_cbranch_scc1 L_tail_dn")
        A(f"s_cmp_lt_u32 s89, {R_UP0}")
        A(f"s_cbranch_scc1 {EX}")
        A(f"s_cmp_lt_u32 s89, {R_UP1}")
        A("s_cbranch_scc1 L_tail_up")
        A(f"s_branch {EX}")

        L("L_tail_wo")
        regs = [AF + 4 * i for i in range(4)] + [DT + 4 * i for i in range(4)]
        O = TMP
        lds_ = [([f"buffer_load_dwordx4 v[{regs[r]}:{regs[r]+3}], v12, s[84:87], {'s56' if r < 4 else 's55'} offen offset:{(r & 3)*1024} sc1"],
                 [regs[r] + k for k in range(4)]) for r in range(4 * self.H)]
        lds_.append(([f"buffer_load_dwordx2 v[{O}:{O+1}], v11, s[84:87], s56 offen offset:512 sc1"], [O, O + 1]))
        self.poll_multi(lds_, O + 2)
        self.stamp(8)
        MM, FF, LL = O + 2, O + 3, O + 6
        A(f"v_max_f32_dpp v{MM}, v{O}, v{O} row_ror:1 row_mask:0xf bank_mask:0xf")
        A(f"s_mov_b32 s58, {f32(LOG2E)}")
        self.nop(1)
        A(f"v_max_f32_dpp v{MM}, v{MM}, v{MM} row_ror:2 row_mask:0xf bank_mask:0xf")
        if self.H == 2:
            self.nop(2)
            A(f"v_max_f32_dpp v{MM}, v{MM}, v{MM} row_ror:4 row_mask:0xf bank_mask:0xf")
        A(f"v_sub_f32 v{FF}, v{O}, v{MM}")
        A(f"v_mul_f32 v{FF}, s58, v{FF}")
        A(f"v_exp_f32 v{FF}, v{FF}")
        self.nop(1)
        A(f"v_mul_f32 v{LL}, v{FF}, v{O+1}")
        self.nop(1)
        for k in range(4):
            A(f"v_mul_f32_dpp v{O+8+k}, v{FF}, v{regs[0]+k} row_newbcast:0 row_mask:0xf bank_mask:0xf")
        A(f"v_add_f32_dpp v{LL}, v{LL}, v{LL} row_ror:1 row_mask:0xf bank_mask:0xf")
        for r in range(1, 4 * self.H):
            for k in range(4):
                A(f"v_fmac_f32_dpp v{O+8+k}, v{FF}, v{regs[r]+k} row_newbcast:{r} row_mask:0xf bank_mask:0xf")
            if r == 1:
                A(f"v_add_f32_dpp v{LL}, v{LL}, v{LL} row_ror:2 row_mask:0xf bank_mask:0xf")
            if r == 2 and self.H == 2:
                A(f"v_add_f32_dpp v{LL}, v{LL}, v{LL} row_ror:4 row_mask:0xf bank_mask:0xf")
            if r == 1 + self.H:
                A(f"v_rcp_f32 v{LL}, v{LL}")
        for k in range(4):
            A(f"v_mul_f32 v{O+8+k}, v{LL}, v{O+8+k}")
        A(f"v_cvt_pk_bf16_f32 v{O+4}, v{O+8}, v{O+9}")
        A(f"v_cvt_pk_bf16_f32 v{O+5}, v{O+10}, v{O+11}")
        A(f"ds_write_b64 v{VAW}, v[{O+4}:{O+5}]")
        A("s_waitcnt lgkmcnt(0)")
        self.a_frags_from_stage(VAR, AF)
        A("s_waitcnt lgkmcnt(0)")
        self.mfmas(AF, BF, DT, 4, 4)
        self.d_to_lds(DT, 4, TMP, TMP + 1, VDW)
        A("s_waitcnt lgkmcnt(0)")
        self.bar()
        A("s_cmp_eq_u32 s3, 0")
        A(f"s_cbranch_scc0 {EX}")
        self.d_sum(G, TT, TMP)
        for k in range(4):
            A(f"v_min_u32 v{TMP+4+k}, -2, v{TMP+4+k}")
        A(f"v_lshlrev_b32 v{TMP}, 11, v{G}")
        A(f"v_lshl_add_u32 v{TMP}, v{TT}, 4, v{TMP}")
        A("s_mov_b32 exec_hi, 0")
        A(f"buffer_store_dwordx4 v[{TMP+4}:{TMP+7}], v{TMP}, s[84:87], s60 offen sc1")
        self.stamp(9)
        self.dstamp(4)
        A(f"s_branch {EX}")

        L("L_tail_up")
        P = 12
        P = DT
        regs = [AF + 4 * i for i in range(4)] + [DT + 4 * i for i in range(4)]
        self.poll_multi([([f"s_add_u32 s57, s56, {hg*4096}", f"buffer_load_dwordx4 v[{regs[hg]}:{regs[hg]+3}], v12, s[84:87], s57 offen sc1"],
                          [regs[hg] + k for k in range(4)]) for hg in range(8)], TMP)
        self.stamp(8)
        X1 = TMP + 4
        self.sum8_x1(regs, X1, XV, GAV, TMP)
        S1, S2, U0, U1 = TMP + 8, TMP + 9, TMP + 10, TMP + 11
        A(f"v_add_f32 v{S1}, v{X1}, v{X1+1}")
        A(f"v_mul_f32 v{S2}, v{X1}, v{X1}")
        A(f"v_add_f32 v{U0}, v{X1+2}, v{X1+3}")
        A(f"v_fmac_f32 v{S2}, v{X1+1}, v{X1+1}")
        A(f"v_add_f32 v{S1}, v{S1}, v{U0}")
        A(f"v_fmac_f32 v{S2}, v{X1+2}, v{X1+2}")
        A(f"v_fmac_f32 v{S2}, v{X1+3}, v{X1+3}")
        self.allred32([S1, S2], [U0, U1])
        A(f"v_lshlrev_b32 v{U0}, 5, v{HB}")
        A("s_lshl_b32 s54, s3, 3")
        A(f"v_add_u32 v{U1}, s54, v{U0}")
        A(f"ds_write_b64 v{U1}, v[{S1}:{S2}] offset:{L_ST}")
        A("s_waitcnt lgkmcnt(0)")
        self.bar()
        Q8 = TMP + 12
        A(f"ds_read_b128 v[{Q8}:{Q8+3}], v{U0} offset:{L_ST}")
        A(f"ds_read_b128 v[{Q8+4}:{Q8+7}], v{U0} offset:{L_ST+16}")
        A("s_waitcnt lgkmcnt(0)")
        A(f"v_add_f32 v{S1}, v{Q8}, v{Q8+2}")
        A(f"v_add_f32 v{S2}, v{Q8+1}, v{Q8+3}")
        A(f"v_add_f32 v{U0}, v{Q8+4}, v{Q8+6}")
        A(f"v_add_f32 v{U1}, v{Q8+5}, v{Q8+7}")
        A(f"v_add_f32 v{S1}, v{S1}, v{U0}")
        A(f"v_add_f32 v{S2}, v{S2}, v{U1}")
        self.ln_norm(S1, S2, X1, U0, U1)
        self.modulate(X1, T4U, SBV, SBV + 1, TMP, TMP + 12, VAW)
        A("s_waitcnt lgkmcnt(0)")
        self.a_frags_from_stage(VAR, AF)
        A("s_waitcnt lgkmcnt(0)")
        self.mfmas(AF, BF, DT, 4, 4)
        self.d_to_lds(DT, 4, TMP, TMP + 1, VDW)
        A("s_waitcnt lgkmcnt(0)")
        self.bar()
        A("s_cmp_eq_u32 s3, 0")
        A(f"s_cbranch_scc0 {EX}")
        A(f"v_lshrrev_b32 v{TMP}, 3, v2")
        A(f"v_and_b32 v{TMP}, 1, v{TMP}")
        A(f"v_and_b32 v{TMP+1}, 7, v2")
        A(f"v_lshlrev_b32 v{TMP+2}, 8, v{TMP}")
        A(f"v_lshl_add_u32 v{TMP+2}, v{TMP+1}, 4, v{TMP+2}")
        GT = AF
        for j in range(4):
            A(f"ds_read_b128 v[{AF+4*j}:{AF+4*j+3}], v{TMP+2} offset:{L_D + j*512}")
            A(f"ds_read_b128 v[{DT+4*j}:{DT+4*j+3}], v{TMP+2} offset:{L_D + j*512 + 128}")
        A(f"v_lshlrev_b32 v{TMP+3}, 6, v{TMP}")
        A(f"v_lshl_add_u32 v{TMP+3}, v{TMP+1}, 3, v{TMP+3}")
        A("s_waitcnt lgkmcnt(0)")
        for base in (AF, DT):
            for k in range(4):
                A(f"v_add_f32 v{base+k}, v{base+k}, v{base+4+k}")
                A(f"v_add_f32 v{base+8+k}, v{base+8+k}, v{base+12+k}")
            for k in range(4):
                A(f"v_add_f32 v{base+k}, v{base+k}, v{base+8+k}")
            self.rnd2(base, base + 1, base + 4)
            self.rnd2(base + 2, base + 3, base + 5)
        A(f"s_mov_b32 s58, {f32(-LOG2E)}")
        for k in range(4):
            A(f"v_mul_f32 v{AF+4+k}, s58, v{AF+k}")
        for k in range(4):
            A(f"v_exp_f32 v{AF+4+k}, v{AF+4+k}")
        self.nop(1)
        for k in range(4):
            A(f"v_add_f32 v{AF+4+k}, 1.0, v{AF+4+k}")
        for k in range(4):
            A(f"v_rcp_f32 v{AF+4+k}, v{AF+4+k}")
        self.nop(1)
        for k in range(4):
            A(f"v_mul_f32 v{AF+k}, v{AF+k}, v{AF+4+k}")
        self.rnd2(AF, AF + 1, AF + 4)
        self.rnd2(AF + 2, AF + 3, AF + 5)
        for k in range(4):
            A(f"v_mul_f32 v{AF+k}, v{AF+k}, v{DT+k}")
        A(f"v_cvt_pk_bf16_f32 v{AF+8}, v{AF}, v{AF+1}")
        A(f"v_cvt_pk_bf16_f32 v{AF+9}, v{AF+2}, v{AF+3}")
        A(f"v_min_u32 v{AF+8}, -2, v{AF+8}")
        A(f"v_min_u32 v{AF+9}, -2, v{AF+9}")
        self.nop(1)
        A(f"v_mov_b32_dpp v{AF+10}, v{AF+8} quad_perm:[1,1,3,3] row_mask:0xf bank_mask:0xf")
        A(f"v_mov_b32_dpp v{AF+11}, v{AF+9} quad_perm:[1,1,3,3] row_mask:0xf bank_mask:0xf")
        A("s_mov_b64 exec, 0x5555")
        A(f"buffer_store_dwordx4 v[{AF+8}:{AF+11}], v{TMP+3}, s[84:87], s60 offen sc1")
        self.stamp(9)
        self.dstamp(5)
        A(f"s_branch {EX}")

        L("L_tail_dn")
        A("s_cmp_eq_u32 s3, 0")
        A("s_cbranch_scc0 L_dn_hh")
        regs = [DAF + 4 * i for i in range(8)]
        self.poll_multi([([f"s_add_u32 s54, s56, {hg*4096}", f"buffer_load_dwordx4 v[{regs[hg]}:{regs[hg]+3}], v15, s[84:87], s54 offen sc1"],
                          [regs[hg] + k for k in range(4)]) for hg in range(8)], DAF + 32)
        self.unpack2(16, DAF + 32, DAF + 33)
        self.unpack2(17, DAF + 34, DAF + 35)
        self.unpack2(18, DAF + 36, DAF + 37)
        self.unpack2(19, DAF + 38, DAF + 39)
        self.sum8_x1(regs, DAF + 40, DAF + 32, DAF + 36, 22)
        A(f"v_cvt_pk_bf16_f32 v10, v{DAF+40}, v{DAF+41}")
        A(f"v_cvt_pk_bf16_f32 v11, v{DAF+42}, v{DAF+43}")
        L("L_dn_hh")
        self.poll_multi([([f"buffer_load_dwordx4 v[{DAF+4*t}:{DAF+4*t+3}], v12, s[16:19], s57 offen offset:{t*128} sc1"],
                          [DAF + 4 * t + k for k in range(4)]) for t in range(11)], 22)
        self.stamp(8)
        self.mfmas(DAF, DBF, DDT, 11, 2)
        self.d_to_lds(DDT, 2, 22, 23, VDW)
        A("s_waitcnt lgkmcnt(0)")
        self.bar()
        A("s_cmp_eq_u32 s3, 0")
        A(f"s_cbranch_scc0 {EX}")
        A("v_lshlrev_b32 v22, 8, v13")
        A("v_lshl_add_u32 v22, v14, 4, v22")
        F = DAF
        for j in range(4):
            A(f"ds_read_b128 v[{F+4*j}:{F+4*j+3}], v22 offset:{L_D + j*512}")
        self.unpack2(20, F + 16, F + 17)
        self.unpack2(21, F + 18, F + 19)
        self.unpack2(10, F + 20, F + 21)
        self.unpack2(11, F + 22, F + 23)
        A("v_lshlrev_b32 v23, 10, v13")
        A("v_lshl_add_u32 v23, v14, 3, v23")
        A("s_lshl_b32 s54, s59, 6")
        A("s_waitcnt lgkmcnt(0)")
        for k in range(4):
            A(f"v_add_f32 v{F+k}, v{F+k}, v{F+4+k}")
            A(f"v_add_f32 v{F+8+k}, v{F+8+k}, v{F+12+k}")
        for k in range(4):
            A(f"v_add_f32 v{F+k}, v{F+k}, v{F+8+k}")
        self.rnd2(F, F + 1, F + 4)
        self.rnd2(F + 2, F + 3, F + 5)
        for k in range(4):
            A(f"v_mul_f32 v{F+k}, v{F+k}, v{F+16+k}")
        self.rnd2(F, F + 1, F + 4)
        self.rnd2(F + 2, F + 3, F + 5)
        for k in range(4):
            A(f"v_add_f32 v{F+k}, v{F+k}, v{F+20+k}")
        A(f"v_cvt_pk_bf16_f32 v{F+8}, v{F}, v{F+1}")
        A(f"v_cvt_pk_bf16_f32 v{F+9}, v{F+2}, v{F+3}")
        A("s_mov_b64 exec, 0xffff")
        A(f"buffer_store_dwordx2 v[{F+8}:{F+9}], v23, s[72:75], s54 offen")
        self.stamp(9)
        self.dstamp(1)
        A(f"s_branch {EX}")

    def d_sum(self, G, TT, t):
        A = self.A
        A(f"v_and_b32 v{t}, 1, v{G}")
        A(f"v_lshlrev_b32 v{t}, 8, v{t}")
        A(f"v_lshl_add_u32 v{t}, v{TT}, 4, v{t}")
        for j in range(4):
            A(f"ds_read_b128 v[{t+4+4*j}:{t+7+4*j}], v{t} offset:{L_D + j*512}")
        A("s_waitcnt lgkmcnt(0)")
        for k in range(4):
            A(f"v_add_f32 v{t+4+k}, v{t+4+k}, v{t+8+k}")
            A(f"v_add_f32 v{t+12+k}, v{t+12+k}, v{t+16+k}")
        for k in range(4):
            A(f"v_add_f32 v{t+4+k}, v{t+4+k}, v{t+12+k}")

    def sum8_x1(self, regs, X1, XV, GAV, t):
        A = self.A
        for a, b in ((0, 1), (2, 3), (4, 5), (6, 7), (0, 2), (4, 6)):
            for k in range(4):
                A(f"v_add_f32 v{regs[a]+k}, v{regs[a]+k}, v{regs[b]+k}")
        for k in range(4):
            A(f"v_add_f32 v{X1+k}, v{regs[0]+k}, v{regs[4]+k}")
        self.rnd2(X1, X1 + 1, t)
        self.rnd2(X1 + 2, X1 + 3, t + 1)
        for k in range(4):
            A(f"v_mul_f32 v{X1+k}, v{X1+k}, v{GAV+k}")
        self.rnd2(X1, X1 + 1, t)
        self.rnd2(X1 + 2, X1 + 3, t + 1)
        for k in range(4):
            A(f"v_add_f32 v{X1+k}, v{X1+k}, v{XV+k}")
        self.rnd2(X1, X1 + 1, t)
        self.rnd2(X1 + 2, X1 + 3, t + 1)

    def ln_norm(self, S1, S2, X, U0, U1):
        A = self.A
        A(f"s_mov_b32 s58, {f32(1.0/512)}")
        A(f"v_mul_f32 v{S1}, s58, v{S1}")
        A(f"v_mul_f32 v{S2}, s58, v{S2}")
        A(f"v_fma_f32 v{S2}, -v{S1}, v{S1}, v{S2}")
        A(f"v_max_f32 v{S2}, 0, v{S2}")
        self.rnd2(S1, S2, U0)
        A(f"v_add_f32 v{S2}, {f32(1e-5)}, v{S2}")
        self.rnd1(S2)
        A(f"v_sqrt_f32 v{S2}, v{S2}")
        for k in range(4):
            A(f"v_sub_f32 v{X+k}, v{X+k}, v{S1}")
        self.rnd1(S2)
        A(f"v_rcp_f32 v{S2}, v{S2}")
        self.rnd2(X, X + 1, U0)
        self.rnd2(X + 2, X + 3, U1)
        for k in range(4):
            A(f"v_mul_f32 v{X+k}, v{X+k}, v{S2}")
        self.rnd2(X, X + 1, U0)
        self.rnd2(X + 2, X + 3, U1)

    def modulate(self, N, T4, sp0, sp1, t0, w, VAW):
        A = self.A
        for k in range(4):
            A(f"v_mul_f32 v{N+k}, v{N+k}, v{T4+k}")
        self.rnd2(N, N + 1, t0)
        self.rnd2(N + 2, N + 3, t0 + 1)
        self.unpack2(sp0, w, w + 1)
        self.unpack2(sp1, w + 2, w + 3)
        for k in range(4):
            A(f"v_add_f32 v{N+k}, v{N+k}, v{w+k}")
        A(f"v_cvt_pk_bf16_f32 v{w+4}, v{N}, v{N+1}")
        A(f"v_cvt_pk_bf16_f32 v{w+5}, v{N+2}, v{N+3}")
        A(f"ds_write_b64 v{VAW}, v[{w+4}:{w+5}]")


HEADER = open("cdna_kernels/%s.s.ref" % NAME).read().split("; Override launch geometry")[0] if True else ""

if __name__ == "__main__":
    import argparse
    ap = argparse.ArgumentParser()
    ap.add_argument("-o", default="k.s")
    ap.add_argument("--R", type=int, default=3)
    ap.add_argument("--B", type=int, default=32)
    ap.add_argument("--stamps", action="store_true")
    ap.add_argument("--sleep", type=int, default=1)
    ap.add_argument("--NS", type=int, default=12)
    ap.add_argument("--R0", type=int, default=3)
    ap.add_argument("--grp", default="iod")
    ap.add_argument("--CP", type=int, default=0)
    ap.add_argument("--dbg", default="")
    ap.add_argument("--pace", type=int, default=0)
    ap.add_argument("--tpol", default="nt")
    ap.add_argument("--xmap", action="store_true")
    ap.add_argument("--flagq", action="store_true")
    ap.add_argument("--TH", type=int, default=480)
    ap.add_argument("--kvpol", default="nt")
    ap.add_argument("--dry", action="store_true")
    ap.add_argument("--pm", action="store_true")
    ap.add_argument("--rot", type=int, default=0)
    ap.add_argument("--H", type=int, default=1)
    ap.add_argument("--px", type=int, default=33)
    ap.add_argument("--egw", type=int, default=0)
    ap.add_argument("--cstr", type=int, default=4224)
    ap.add_argument("--ps1", type=int, default=1)
    ap.add_argument("--ps2", type=int, default=1)
    a = ap.parse_args()
    B = a.B
    if a.stamps and B > 32:
        B = 32
    g = Gen(R=a.R, B=B, stamps=a.stamps, sleep=a.sleep, NS=a.NS, R0=a.R0, grp=a.grp, CP=a.CP, dbg=a.dbg, pace=a.pace, tpol=a.tpol, xmap=a.xmap, flagq=a.flagq, ps1=a.ps1, ps2=a.ps2, TH=a.TH, kvpol=a.kvpol, dry=a.dry, pm=a.pm, rot=a.rot, H=a.H, cstr=a.cstr, egw=a.egw, px=a.px)
    open(a.o, "w").write(HEADER + g.build())
```

```python
import sys, struct

NAME = "adaLN_cond__mha_block_cached__glu_gated_swiglu__decode"

def f32(x):
    return "0x%08x" % struct.unpack("<I", struct.pack("<f", x))[0]

LOG2E = 1.4426950408889634
SCALE = 128 ** -0.5

MOD_OFF = 0x0000
Q_OFF = 0x8000
PART_OFF = 0x10000
ATT_OFF = 0x90000
HH_OFF = 0x98000
CNT_OFF = 0x9A000
CTR_OFF = 0x100000
WS_USED = 0x9C000
STAMP_OFF = 0x10000000
L_A = 0
L_D = L_A + 2048
L_ST = L_D + 2048
L_Q = L_ST + 64
L_Z = L_Q + 512
L_CNT = L_Z
L_QF = L_Z + 16
L_NEED = L_Z + 32
L_RL = L_Z + 256
L_ML = L_Z + 512
L_P = 5376
L_W = L_P + 16384
LDS_BYTES = L_W + 90112
assert L_ML + 128 <= L_P and L_P % 128 == 0

R_MOD0, R_Q0, R_WO0, R_WO1, R_UP0, R_UP1, R_DN0 = 0, 48, 112, 176, 192, 235, 240
SENT = 0xFFFFFFFF


class Gen:
    def __init__(self, R=3, B=32, stamps=False, NS=12, sleep=1, R0=3, grp='iod', CP=0, dbg='', pace=0, tpol='nt', xmap=False, flagq=False, ps1=1, ps2=1, TH=480, kvpol='nt', dry=False, pm=False, rot=0, H=1, cstr=4224, egw=0, px=33, late=False, hold=False):
        self.o = []
        self.R, self.B, self.stamps, self.NS, self.sleep, self.R0, self.grp = R, B, stamps, NS, sleep, R0, grp
        self.uid = 0
        self.CP = CP
        self.dbg = dbg
        self.late, self.hold = late, hold
        self.px = px
        self.egw = egw
        self.cstr = cstr
        self.H = H
        self.rot = rot
        self.pm = pm
        self.dry = dry
        self.kvpol = kvpol
        self.TH = TH
        self.ps1, self.ps2 = ps1, ps2
        self.pace, self.tpol, self.xmap, self.flagq = pace, tpol, xmap, flagq

    def A(self, s):
        self.o.append("    " + s)

    def L(self, s):
        self.o.append(s + ":")

    def lab(self, p):
        self.uid += 1
        return f"L_{p}_{self.uid}"

    def nop(self, n):
        while n > 0:
            k = min(n, 16)
            self.A(f"s_nop {k-1}")
            n -= k

    def srd(self, d, b, nbytes):
        self.A(f"s_mov_b32 s{d}, s{b}")
        self.A(f"s_mov_b32 s{d+1}, s{b+1}")
        self.A(f"s_mov_b32 s{d+2}, {nbytes}")
        self.A(f"s_mov_b32 s{d+3}, 0x20000")

    def stamp(self, idx, src=None, wave=False):
        if not self.stamps:
            return
        A = self.A
        if src is None:
            A("s_memrealtime s[90:91]")
        else:
            A(f"s_mov_b64 s[90:91], {src}")
        A("s_mov_b64 s[92:93], exec")
        A("s_mov_b64 exec, 1")
        A("s_lshl_b32 s94, s2, 9")
        if wave:
            A("s_lshl_b32 s95, s3, 5")
            A("s_add_u32 s94, s94, s95")
        A(f"s_add_u32 s94, s94, {STAMP_OFF + idx*8}")
        A("s_waitcnt lgkmcnt(0)")
        A("v_mov_b32 v166, s90")
        A("v_mov_b32 v167, s91")
        A("buffer_store_dwordx2 v[166:167], off, s[84:87], s94")
        A("s_mov_b64 exec, s[92:93]")

    def rnd2(self, a, b, t):
        self.A(f"v_cvt_pk_bf16_f32 v{t}, v{a}, v{b}")
        self.A(f"v_lshlrev_b32 v{a}, 16, v{t}")
        self.A(f"v_and_b32 v{b}, 0xffff0000, v{t}")

    def rnd1(self, a):
        self.A(f"v_cvt_pk_bf16_f32 v{a}, v{a}, v{a}")
        self.A(f"v_and_b32 v{a}, 0xffff0000, v{a}")

    def unpack2(self, src, lo, hi):
        self.A(f"v_lshlrev_b32 v{lo}, 16, v{src}")
        self.A(f"v_and_b32 v{hi}, 0xffff0000, v{src}")

    def allred32(self, regs, tmps):
        A = self.A
        for rot in (8, 4, 2, 1):
            self.nop(2 if len(regs) < 2 else max(0, 2 - (len(regs) - 1)))
            for r in regs:
                A(f"v_add_f32_dpp v{r}, v{r}, v{r} row_ror:{rot} row_mask:0xf bank_mask:0xf")
        for r, t in zip(regs, tmps):
            A(f"v_mov_b32 v{t}, v{r}")
        self.nop(2)
        for r, t in zip(regs, tmps):
            A(f"v_permlane16_swap_b32 v{r}, v{t}")
        self.nop(1)
        for r, t in zip(regs, tmps):
            A(f"v_add_f32 v{r}, v{r}, v{t}")

    def slice_of(self, dst, r0, n):
        A = self.A
        A(f"s_sub_u32 s{dst}, s89, {r0}")
        if not self.xmap:
            return
        q, rem = divmod(n, 8)
        A(f"s_and_b32 s68, s{dst}, 7")
        A(f"s_lshr_b32 s{dst}, s{dst}, 3")
        A(f"s_min_u32 s69, s68, {rem}")
        A(f"s_mul_i32 s68, s68, {q}")
        A(f"s_add_u32 s{dst}, s{dst}, s68")
        A(f"s_add_u32 s{dst}, s{dst}, s69")

    def dstamp(self, word, mn=False, tagreg=80, srd=76):
        if "dtime" not in self.dbg:
            return
        A = self.A
        A("s_memrealtime s[90:91]")
        A("s_mov_b64 s[92:93], exec")
        A("s_mov_b64 exec, 1")
        A("s_waitcnt lgkmcnt(0)")
        A(f"s_sub_u32 s90, s90, s{tagreg}")
        if mn:
            A("s_sub_u32 s90, 100000, s90")
        A("v_mov_b32 v166, s90")
        A(f"buffer_atomic_umax v166, off, s[{srd}:{srd+3}], 0 offset:{word*4} sc1")
        A("s_mov_b64 exec, s[92:93]")

    def dmark(self, k):
        if "dpro" in self.dbg:
            r = [4, 6, 100, 42][k]
            self.A(f"s_memrealtime s[{r}:{r+1}]")

    def demit(self):
        if "dpro" not in self.dbg:
            return
        A, L = self.A, self.L
        A("s_waitcnt lgkmcnt(0)")
        A("s_mov_b64 exec, 1")
        def em(reg, word, mn=False):
            l = self.lab("de")
            A(f"s_cmp_eq_u32 s{reg}, 0")
            A(f"s_cbranch_scc1 {l}")
            A(f"s_sub_u32 s90, s{reg}, s80")
            if mn:
                A("s_sub_u32 s90, 100000, s90")
            A("v_mov_b32 v166, s90")
            A(f"buffer_atomic_umax v166, off, s[76:79], 0 offset:{word*4} sc1")
            L(l)
        em(4, 3); em(4, 6, True)
        em(100, 9); em(100, 10, True)
        a = self.lab("da"); b = self.lab("db")
        A("s_cmp_lt_u32 s89, 16")
        A(f"s_cbranch_scc0 {a}")
        em(6, 7); em(42, 11)
        L(a)
        A("s_cmp_ge_u32 s89, 48")
        A(f"s_cbranch_scc0 {b}")
        em(6, 8); em(42, 12)
        L(b)
        A("s_mov_b64 exec, -1")

    def bar(self):
        if not self.dry:
            self.A("s_barrier")
            return
        l = self.lab("nb")
        self.A("s_cmp_eq_u32 s69, 0")
        self.A(f"s_cbranch_scc0 {l}")
        self.A("s_barrier")
        self.L(l)

    def poll_head(self):
        l = self.lab("poll")
        self.L(l)
        return l

    def poll_tail(self, l, sleep=None):
        A = self.A
        d = self.lab("pdone")
        A(f"s_cbranch_vccz {d}")
        A("s_cmp_eq_u32 s88, 0")
        A(f"s_cbranch_scc1 {d}")
        A("s_sub_u32 s88, s88, 1")
        if (self.sleep if sleep is None else sleep):
            A(f"s_sleep {self.sleep if sleep is None else sleep}")
        A(f"s_branch {l}")
        self.L(d)

    def poll_multi(self, loads, t):
        A, L = self.A, self.L
        n = len(loads)
        if not self.pm:
            pl = self.poll_head()
            for lines, regs in loads:
                for x in lines:
                    A(x)
            A("s_waitcnt vmcnt(0)")
            self.check_sent([r for lines, regs in loads for r in regs], t)
            self.poll_tail(pl)
            return
        A(f"s_mov_b32 s95, {(1 << n) - 1}")
        first = True
        top = self.lab("mp")
        done = self.lab("mpd")
        for lines, regs in loads:
            for x in lines:
                A(x)
        chk = self.lab("mpc")
        A(f"s_branch {chk}")
        L(top)
        for r, (lines, regs) in enumerate(loads):
            sk = self.lab("mps")
            A(f"s_bitcmp1_b32 s95, {r}")
            A(f"s_cbranch_scc0 {sk}")
            for x in lines:
                A(x)
            L(sk)
        L(chk)
        A("s_waitcnt vmcnt(0)")
        for r, (lines, regs) in enumerate(loads):
            sk = self.lab("mpk")
            A(f"s_bitcmp1_b32 s95, {r}")
            A(f"s_cbranch_scc0 {sk}")
            self.check_sent(regs, t)
            A(f"s_cbranch_vccnz {sk}")
            A(f"s_bitset0_b32 s95, {r}")
            L(sk)
        A("s_cmp_eq_u32 s95, 0")
        A(f"s_cbranch_scc1 {done}")
        A("s_cmp_eq_u32 s88, 0")
        A(f"s_cbranch_scc1 {done}")
        A("s_sub_u32 s88, s88, 1")
        if self.sleep:
            A(f"s_sleep {self.sleep}")
        A(f"s_branch {top}")
        L(done)

    def check_sent(self, regs, t):
        A = self.A
        regs = list(regs)
        if len(regs) >= 3:
            A(f"v_max3_u32 v{t}, v{regs[0]}, v{regs[1]}, v{regs[2]}")
            regs = regs[3:]
        else:
            A(f"v_max_u32 v{t}, v{regs[0]}, v{regs[1]}")
            regs = regs[2:]
        while len(regs) >= 2:
            A(f"v_max3_u32 v{t}, v{t}, v{regs[0]}, v{regs[1]}")
            regs = regs[2:]
        if regs:
            A(f"v_max_u32 v{t}, v{t}, v{regs[0]}")
        A(f"v_cmp_eq_u32 vcc, -1, v{t}")

    def check_tags(self, regs, t):
        A = self.A
        A(f"v_xor_b32 v{t}, s80, v{regs[0]}")
        for r in regs[1:]:
            A(f"v_xor_b32 v{t+1}, s80, v{r}")
            A(f"v_or_b32 v{t}, v{t}, v{t+1}")
        A(f"v_cmp_ne_u32 vcc, 0, v{t}")

    def dma_weights(self, srd, nins, voff, row_step_bytes, lds_base_s, soff0=0, pol="nt", skip=""):
        A = self.A
        if "notaildma" in self.dbg and getattr(self, "intail", False):
            return
        if "noprodma" in self.dbg and not getattr(self, "intail", False):
            nins = 16
            A(f"s_mov_b32 s{srd+2}, 0")
        A(f"s_mov_b32 s70, {soff0}")
        A(f"s_add_u32 s71, s{lds_base_s}, {L_W}")
        intail = getattr(self, "intail", False)
        if intail:
            pol = self.tpol
            if skip and skip in self.dbg:
                return
        for i in range(nins):
            if intail and self.pace and i >= self.pace:
                A(f"s_waitcnt vmcnt({self.pace-1})")
            A("s_mov_b32 m0, s71")
            A(f"s_add_u32 s71, s71, 1024")
            A(f"buffer_load_dwordx4 v{voff}, s[{srd}:{srd+3}], s70 offen {pol} lds")
            A(f"s_add_u32 s70, s70, {row_step_bytes}")

    def tr_reads(self, vaddr, breg, nk, cgs, rowb):
        for t in range(nk):
            for ci, cgoff in enumerate(cgs):
                r = breg + (t * len(cgs) + ci) * 4
                off = t * 32 * rowb + cgoff
                self.A(f"ds_read_b64_tr_b16 v[{r}:{r+1}], v{vaddr} offset:{off}")
                self.A(f"ds_read_b64_tr_b16 v[{r+2}:{r+3}], v{vaddr} offset:{off + 4*rowb}")

    def mfmas(self, areg, breg, dreg, nk, ncg, lgkm=False):
        for t in range(nk):
            if lgkm:
                self.A(f"s_waitcnt lgkmcnt({nk-1-t})")
            for c in range(ncg):
                a = areg + 4 * t
                b = breg + (t * ncg + c) * 4
                d = dreg + 4 * c
                src = "0" if t == 0 else f"v[{d}:{d+3}]"
                self.A(f"v_mfma_f32_16x16x32_bf16 v[{d}:{d+3}], v[{a}:{a+3}], v[{b}:{b+3}], {src}")

    def d_to_lds(self, dreg, ncg, x0, x1, vaddr):
        A = self.A
        self.nop(8)
        for c in range(ncg):
            A(f"v_mov_b32_dpp v{x0}, v{dreg+4*c} quad_perm:[0,1,2,3] row_mask:{1<<c:#x} bank_mask:0xf")
            A(f"v_mov_b32_dpp v{x1}, v{dreg+4*c+1} quad_perm:[0,1,2,3] row_mask:{1<<c:#x} bank_mask:0xf")
        A(f"ds_write_b32 v{vaddr}, v{x0}")
        A(f"ds_write_b32 v{vaddr}, v{x1} offset:256")

    def a_frags_from_stage(self, vaddr, areg):
        for t in range(4):
            self.A(f"ds_read_b128 v[{areg+4*t}:{areg+4*t+3}], v{vaddr} offset:{t*64}")

    def build(self):
        A, L = self.A, self.L
        o = self.o
        o.append(f"; @launch grid=(256,1,1) block=(768,1,1) lds={LDS_BYTES}")
        o.append('.amdgcn_target "amdgcn-amd-amdhsa--gfx950"')
        o.append(".text")
        o.append(f".globl {NAME}_kernel")
        o.append(".p2align 8")
        o.append(f".type {NAME}_kernel,@function")
        L(f"{NAME}_kernel")
        if self.stamps:
            A("s_memrealtime s[100:101]")
        A("s_cmp_ge_u32 s2, 256")
        A("s_cbranch_scc1 L_end")
        A("s_load_dwordx4 s[4:7], s[0:1], 8")
        A("s_load_dwordx4 s[96:99], s[0:1], 96")
        A("v_lshrrev_b32 v1, 6, v0")
        A("v_and_b32 v2, 63, v0")
        A("v_readfirstlane_b32 s3, v1")
        if self.grp == "pair":
            A("s_and_b32 s40, s2, 7")
            A("s_lshr_b32 s40, s40, 1")
            A("s_lshr_b32 s43, s2, 4")
            A("s_lshl_b32 s43, s43, 2")
            A("s_add_u32 s40, s40, s43")
            A("s_and_b32 s41, s2, 1")
            A("s_lshr_b32 s43, s2, 3")
            A("s_and_b32 s43, s43, 1")
            A("s_lshl_b32 s43, s43, 1")
            A("s_add_u32 s41, s41, s43")
        else:
            A("s_lshr_b32 s41, s2, 1")
            A("s_xor_b32 s40, s41, s2")
            A("s_and_b32 s40, s40, 1")
            A("s_and_b32 s41, s41, 3")
            A("s_lshr_b32 s43, s2, 3")
            A("s_lshl_b32 s43, s43, 1")
            A("s_add_u32 s40, s40, s43")
        A("s_lshr_b32 s89, s40, 1")
        A("s_add_u32 s89, s89, s41")
        A("s_and_b32 s89, s89, 3")
        A("s_lshl_b32 s89, s89, 6")
        A("s_add_u32 s89, s89, s40")
        A("s_cmp_ge_u32 s3, 8")
        A("s_cbranch_scc1 L_helper")
        self.streamer()
        L("L_helper")
        self.helper()
        L("L_end")
        A("s_endpgm")
        o.append('.section .rodata,"a"')
        o.append(".p2align 6")
        o.append(f".amdhsa_kernel {NAME}_kernel")
        o.append("  .amdhsa_next_free_vgpr 168")
        o.append("  .amdhsa_next_free_sgpr 102")
        o.append("  .amdhsa_accum_offset 168")
        o.append("  .amdhsa_group_segment_fixed_size 0")
        o.append("  .amdhsa_kernarg_size 112")
        o.append("  .amdhsa_user_sgpr_count 2")
        o.append("  .amdhsa_user_sgpr_kernarg_segment_ptr 1")
        o.append("  .amdhsa_system_sgpr_workgroup_id_x 1")
        o.append("  .amdhsa_float_denorm_mode_32 3")
        o.append(".end_amdhsa_kernel")
        return "\n".join(o) + "\n"

    def streamer(self):
        A, L = self.A, self.L
        R, B, NS, R0 = self.R, self.B, self.NS, self.R0
        VOFF, QF, MK, D, M, MN, LS = 1, 2, 6, 10, 14, 15, 16
        AC, T0, T1, S, PP = 17, 21, 22, 23, 24
        AS = 26
        LANE = 34
        EP, CLM = 35, 25
        RING = 168 - 4 * B - (2 if self.stamps else 0)
        RING -= RING % 2
        assert RING >= 36
        A(f"v_mov_b32 v{LANE}, v2")
        A("s_lshl_b32 s44, s41, 3")
        A("s_add_u32 s44, s44, s3")
        A("s_lshl_b32 s44, s44, 12")
        A(f"s_mul_i32 s45, s40, {self.rot}")
        A("s_lshl_b32 s45, s45, 15")
        A("s_add_u32 s44, s44, s45")
        A("s_lshl_b32 s33, s40, 21")
        A(f"v_lshlrev_b32 v{VOFF}, 4, v2")
        A("s_waitcnt lgkmcnt(0)")
        self.srd(8, 4, 0x8000000)
        self.srd(12, 6, 0x8000000)
        N = (NS - 1) * 8 + R
        NC = (NS - 1) * 8

        def issue(p):
            i, j = divmod(p, 8)
            t, j = divmod(j, 4)
            r = RING + 4 * (p % B)
            srd = "s[8:11]" if t == 0 else "s[12:15]"
            if j == 0 and t == 0:
                A(f"s_add_u32 s16, s44, {i * 32 * 4096}")
                A("s_and_b32 s16, s16, 0x1fffff")
                A("s_add_u32 s16, s16, s33")
                if self.stamps and i < 12:
                    A(f"s_memrealtime s[{48+2*i}:{49+2*i}]")
            A(f"buffer_load_dwordx4 v[{r}:{r+3}], v{VOFF}, {srd}, s16 offen offset:{j*1024} {self.kvpol}")

        if self.hold:
            A("s_cmp_lt_u32 s89, 16")
            A("s_cbranch_scc0 L_nohold")
            A("s_barrier")
            L("L_nohold")
        for p in range(R0):
            issue(p)
        if self.stamps:
            A("s_memrealtime s[30:31]")
        self.srd(84, 98, 0x20000000)
        if self.hold:
            A("s_cmp_lt_u32 s89, 16")
            A("s_cbranch_scc1 L_nohold2")
        A("s_barrier")
        if self.hold:
            L("L_nohold2")
        if self.H == 2:
            A(f"s_xor_b32 s43, s40, {self.px}")
            A("s_min_u32 s43, s43, s40")
            A(f"s_xor_b32 s39, s43, {self.px}")
            A("s_lshl_b32 s39, s39, 21")
        else:
            A("s_mov_b32 s43, s40")
        A("s_lshl_b32 s45, s43, 3")
        A("s_add_u32 s45, s45, s3")
        A(f"s_mul_i32 s45, s45, {self.cstr}")
        A(f"s_add_u32 s45, s45, {CTR_OFF}")
        A("s_lshl_b32 s42, s3, 12")
        A(f"s_mul_i32 s38, s43, {self.rot}")
        A("s_lshl_b32 s38, s38, 15")
        A("s_add_u32 s42, s42, s38")
        A("s_lshl_b32 s43, s43, 21")
        if self.H == 2:
            A("s_lshr_b32 s32, s40, 5")
        else:
            A("s_mov_b32 s32, 0")
        A("s_mov_b32 s28, s32")
        A("s_mov_b32 s29, s32")
        A("s_add_u32 s26, s98, s45")
        A("s_addc_u32 s27, s99, 0")
        A(f"v_and_b32 v{T0}, 15, v{LANE}")
        A(f"v_and_b32 v{T1}, 1, v{LANE}")
        A(f"v_lshlrev_b32 v{T1}, 4, v{T1}")
        A(f"s_mov_b32 s17, 0xffff")
        A(f"v_mov_b32 v{S}, s17")
        A(f"v_lshlrev_b32 v{T1}, v{T1}, v{S}")
        A(f"v_lshrrev_b32 v{T0}, 1, v{T0}")
        for k in range(4):
            A(f"v_cmp_eq_u32 vcc, {k}, v{T0}")
            self.nop(2)
            A(f"v_cndmask_b32 v{MK+k}, 0, v{T1}, vcc")
        for k in range(4):
            A(f"v_mov_b32 v{D+k}, 0")
        A(f"v_mov_b32 v{M}, {f32(-3.0e38)}")
        A(f"v_mov_b32 v{MN}, 0")
        A(f"v_mov_b32 v{LS}, 0")
        A(f"v_and_b32 v35, 15, v{LANE}")
        A(f"v_lshlrev_b32 v35, 5, v35")
        A(f"v_lshrrev_b32 v{T1}, 4, v{LANE}")
        A(f"v_and_b32 v{S}, 1, v{T1}")
        A(f"v_lshl_add_u32 v35, v{S}, 4, v35")
        A(f"v_lshrrev_b32 v{T1}, 1, v{T1}")
        A(f"v_lshl_add_u32 v35, v{T1}, 9, v35")
        A("s_lshl_b32 s20, s3, 10")
        A(f"v_add_u32 v35, s20, v35")
        A("s_lshl_b32 s20, s3, 3")
        A(f"v_mov_b32 v25, s20")
        A(f"s_mov_b32 s18, {f32(SCALE)}")
        A(f"s_mov_b32 s19, {f32(LOG2E)}")
        for p in range(R0, B):
            A(f"s_waitcnt vmcnt({R0-1 if p < 8 else R-1})")
            issue(p)
        self.stamp(1)
        self.stamp(11, "s[100:101]")
        self.stamp(12, "s[30:31]")
        A(f"v_and_b32 v{T0}, 15, v{LANE}")
        A(f"v_lshlrev_b32 v{T0}, 4, v{T0}")
        A("s_lshl_b32 s20, s32, 8")
        A(f"v_add_u32 v{T0}, s20, v{T0}")
        if not self.flagq:
            A("s_barrier")
            A(f"ds_read_b128 v[{QF}:{QF+3}], v{T0} offset:{L_Q}")
            A("s_waitcnt lgkmcnt(0)")
        else:
            A(f"v_mov_b32 v{T1}, 0")
            A("s_mov_b32 s88, 0x400000")
            pl = self.poll_head()
            A(f"ds_read_b32 v{AS}, v{T1} offset:{L_QF}")
            A(f"ds_read_b128 v[{QF}:{QF+3}], v{T0} offset:{L_Q}")
            A("s_waitcnt lgkmcnt(0)")
            A(f"v_cmp_eq_u32 vcc, 0, v{AS}")
            self.poll_tail(pl, sleep=1)
        if self.stamps:
            A("s_waitcnt vmcnt(0)")
        beta = [0, 2, 1, 3]
        st = {"I": B, "landed": (B if self.stamps else B - R)}

        def need(c):
            if c >= st["landed"]:
                A(f"s_waitcnt vmcnt({st['I'] - 1 - c})")
                st["landed"] = c + 1

        def paced_issue():
            I = st["I"]
            if I >= N:
                return
            if I - st["landed"] >= R:
                A(f"s_waitcnt vmcnt({R-1})")
                st["landed"] = I - (R - 1)
            issue(I)
            st["I"] = I + 1

        def consume(c):
            i, j = divmod(c, 8)
            t, j = divmod(j, 4)
            r = RING + 4 * (c % B)
            need(c)
            if "nocomp" in self.dbg:
                A(f"v_xor_b32 v{AC}, v{AC}, v{r}")
            elif t == 0:
                A(f"v_dot2_f32_bf16 v{AC+j}, v{r}, v{QF}, 0")
                for k in range(1, 4):
                    A(f"v_dot2_f32_bf16 v{AC+j}, v{r+k}, v{QF+k}, v{AC+j}")
            else:
                a = AS + 4 * (j & 1)
                for k in range(4):
                    A(f"v_and_b32_dpp v{a+k}, v{PP}, v{MK+k} row_newbcast:{4*beta[j]} row_mask:0xf bank_mask:0xf")
                self.nop(2)
                A(f"v_mfma_f32_16x16x32_bf16 v[{D}:{D+3}], v[{a}:{a+3}], v[{r}:{r+3}], v[{D}:{D+3}]")

        def softmax():
            if "nocomp" in self.dbg:
                return
            self.nop(3)
            A(f"v_add_f32_dpp v{T0}, v{AC}, v{AC} row_ror:8 row_mask:0xf bank_mask:0x3")
            A(f"v_add_f32_dpp v{T1}, v{AC+2}, v{AC+2} row_ror:8 row_mask:0xf bank_mask:0x3")
            A(f"v_add_f32_dpp v{T0}, v{AC+1}, v{AC+1} row_ror:8 row_mask:0xf bank_mask:0xc")
            A(f"v_add_f32_dpp v{T1}, v{AC+3}, v{AC+3} row_ror:8 row_mask:0xf bank_mask:0xc")
            self.nop(1)
            A(f"v_add_f32_dpp v{S}, v{T0}, v{T0} row_shl:4 row_mask:0xf bank_mask:0x5")
            A(f"v_add_f32_dpp v{S}, v{T1}, v{T1} row_shr:4 row_mask:0xf bank_mask:0xa")
            self.nop(2)
            A(f"v_add_f32_dpp v{S}, v{S}, v{S} quad_perm:[2,3,0,1] row_mask:0xf bank_mask:0xf")
            self.nop(2)
            A(f"v_add_f32_dpp v{S}, v{S}, v{S} quad_perm:[1,0,3,2] row_mask:0xf bank_mask:0xf")
            self.rnd1(S)
            A(f"v_mul_f32 v{S}, s18, v{S}")
            self.rnd1(S)
            A(f"v_cmp_gt_f32 vcc, v{S}, v{M}")
            bk = self.lab("back")
            A(f"s_cbranch_vccz {bk}")
            A("s_call_b64 s[46:47], L_rare")
            L(bk)
            A(f"v_sub_f32 v{T0}, v{S}, v{M}")
            A(f"v_mul_f32 v{T0}, s19, v{T0}")
            A(f"v_exp_f32 v{T0}, v{T0}")
            self.nop(1)
            A(f"v_add_f32 v{LS}, v{LS}, v{T0}")
            A(f"v_cvt_pk_bf16_f32 v{PP}, v{T0}, v{T0}")
            self.nop(2)

        c = 0
        while c < NC:
            lag = st["I"] - c
            ncons = 2 if lag > R + 1 else 1
            if st["I"] < N and st["I"] - B < c and lag <= R:
                paced_issue()
            for _ in range(ncons):
                if c >= NC:
                    break
                consume(c)
                c += 1
                if c % 8 == 4:
                    softmax()
            if st["I"] < N and st["I"] - B < c and (st["I"] - c) > R:
                paced_issue()
        assert st["I"] == N, (st, N)
        base = (NS - 1) * 8
        alt = (base + 8) % B
        st["landed"] = 1 << 30

        def ld(pos, sl, soff):
            t, jl = divmod(pos, 4)
            r = RING + 4 * (sl % B)
            srd = "s[8:11]" if t == 0 else "s[12:15]"
            A(f"buffer_load_dwordx4 v[{r}:{r+3}], v{VOFF}, {srd}, {soff} offen offset:{jl*1024} {self.kvpol}")

        CP = self.CP

        def claim():
            if "fake" in self.dbg:
                A("s_add_u32 s39, s39, 4")
                A("s_mov_b32 s24, s39")
                if "fakeld" in self.dbg:
                    A("s_load_dword s38, s[26:27], 0 glc")
                if "fakeat" in self.dbg:
                    A("s_mov_b32 s38, 1")
                    A("s_atomic_add s38, s[26:27], 0 glc")
                return
            A("s_mov_b32 s24, 1")
            A("s_atomic_add s24, s[26:27], 0 glc")

        def eat(sl, j_from, younger):
            for j in range(j_from, 8):
                A(f"s_waitcnt vmcnt({younger + 7 - j})")
                consume(sl + j)
                if j == 3:
                    softmax()

        CX = RING + 4 * ((base + 16) % B)
        ACT = [QF, QF + 1, QF + 2, QF + 3, D, D + 1, D + 2, D + 3, M, MN, LS]
        SAV = [CX + k for k in range(11)]
        self.ctx = (ACT, SAV)
        if self.H == 2:
            A(f"v_and_b32 v{T0}, 15, v{LANE}")
            A(f"v_lshlrev_b32 v{T0}, 4, v{T0}")
            A("s_xor_b32 s20, s32, 1")
            A("s_lshl_b32 s20, s20, 8")
            A(f"v_add_u32 v{T0}, s20, v{T0}")
            A(f"ds_read_b128 v[{CX}:{CX+3}], v{T0} offset:{L_Q}")
            for k in range(4, 8):
                A(f"v_mov_b32 v{CX+k}, 0")
            A(f"v_mov_b32 v{CX+8}, {f32(-3.0e38)}")
            A(f"v_mov_b32 v{CX+9}, 0")
            A(f"v_mov_b32 v{CX+10}, 0")

        def decode(dst, hd, src=24):
            if self.H == 1:
                A(f"s_lshl_b32 s{dst}, s{src}, 15")
                A(f"s_add_u32 s{dst}, s{dst}, s42")
                if self.rot:
                    A(f"s_and_b32 s{dst}, s{dst}, 0x1fffff")
                A(f"s_add_u32 s{dst}, s{dst}, s43")
                return
            A(f"s_and_b32 s{hd}, s{src}, 1")
            A(f"s_lshr_b32 s{dst}, s{src}, 1")
            A(f"s_lshl_b32 s{dst}, s{dst}, 15")
            A(f"s_add_u32 s{dst}, s{dst}, s42")
            A(f"s_mul_i32 s21, s{hd}, {((32 * self.rot) & 63) << 15}")
            A(f"s_add_u32 s{dst}, s{dst}, s21")
            A(f"s_and_b32 s{dst}, s{dst}, 0x1fffff")
            A(f"s_lshl_b32 s21, s{hd}, 26")
            A(f"s_add_u32 s{dst}, s{dst}, s21")
            A(f"s_add_u32 s{dst}, s{dst}, s43")

        def switch(hd):
            if self.H == 1:
                return
            l = self.lab("nosw")
            A(f"s_cmp_eq_u32 s32, s{hd}")
            A(f"s_cbranch_scc1 {l}")
            A("s_call_b64 s[46:47], L_swap")
            L(l)

        if self.stamps:
            A("s_mov_b32 s78, 0")
            A("s_mov_b32 s79, 0")
        j0 = 8 - R
        assert CP < j0
        RLA, RLV, NDV, ZA = CX + 12, CX + 13, CX + 14, CX + 15
        END = 64 * self.H + 1
        A(f"v_mov_b32 v{RLA}, 0")
        A(f"v_mov_b32 v{ZA}, 0")
        A(f"v_mov_b32 v{NDV}, 1")
        if CP < 0:
            A(f"ds_max_u32 v{ZA}, v{NDV} offset:{L_NEED}")
        if self.H == 1:
            A("s_sub_u32 s42, s42, 0x8000")
            A("s_add_u32 s42, s42, s43")
        else:
            A("s_add_u32 s43, s43, s42")
            A("s_add_u32 s39, s39, s42")

        def rl_read():
            A(f"ds_read_b32 v{RLV}, v{RLA} offset:{L_RL}")

        def rl_get():
            got = self.lab("got")
            A("s_waitcnt lgkmcnt(0)")
            A(f"v_readfirstlane_b32 s24, v{RLV}")
            A("s_cmp_lg_u32 s24, 0")
            A(f"s_cbranch_scc1 {got}")
            A("s_call_b64 s[46:47], L_rlspin")
            L(got)

        def rl_next(dst, hd, ann=True):
            A(f"v_add_u32 v{NDV}, 1, v{NDV}")
            A(f"v_add_u32 v{RLA}, 4, v{RLA}")
            if ann:
                A(f"ds_max_u32 v{ZA}, v{NDV} offset:{L_NEED}")
            if self.H == 1:
                A(f"s_lshl_b32 s{dst}, s24, 15")
                A(f"s_add_u32 s{dst}, s{dst}, s42")
            else:
                A("s_sub_u32 s24, s24, 1")
                A(f"s_and_b32 s{hd}, s24, 1")
                A("s_cselect_b32 s21, s39, s43")
                A(f"s_lshr_b32 s{dst}, s24, 1")
                A(f"s_lshl_b32 s{dst}, s{dst}, 15")
                A(f"s_add_u32 s{dst}, s{dst}, s21")

        L("L_dyn")
        if self.stamps:
            A("s_add_u32 s78, s78, 1")
        switch(28)
        for j in range(8):
            if j == CP:
                A(f"ds_max_u32 v{ZA}, v{NDV} offset:{L_NEED}")
            if j == j0 - 1:
                rl_read()
            if j == j0:
                if self.stamps:
                    A("s_memrealtime s[34:35]")
                rl_get()
                if self.stamps:
                    A("s_mov_b32 m0, s78")
                    A("v_writelane_b32 v36, s34, m0")
                    A("s_add_u32 m0, s78, 32")
                    A("s_sub_u32 s35, s24, 1")
                    A("v_writelane_b32 v36, s35, m0")
                A(f"s_cmp_ge_u32 s24, {self.TH * self.H // 8 + 1}")
                A("s_cbranch_scc1 L_fin")
                rl_next(16, 28, CP < 0)
            A(f"s_waitcnt vmcnt({R-1})")
            jj = j + R
            ld(jj % 8, base + jj % 8, "s16")
            consume(base + j)
            if j == 3:
                softmax()
        A("s_branch L_dyn")
        L("L_rlspin")
        pl = self.poll_head()
        rl_read()
        A("s_waitcnt lgkmcnt(0)")
        A(f"v_cmp_eq_u32 vcc, 0, v{RLV}")
        self.poll_tail(pl, sleep=1)
        A(f"v_readfirstlane_b32 s24, v{RLV}")
        A("s_cmp_eq_u32 s24, 0")
        A(f"s_cselect_b32 s24, {END}, s24")
        A("s_setpc_b64 s[46:47]")
        L("L_fin")
        if self.stamps:
            A("s_memrealtime s[76:77]")
        if self.TH < 512:
            A(f"s_cmp_ge_u32 s24, {END}")
            A("s_cbranch_scc1 L_fin_last")
            rl_next(25, 29)
            for jj in range(8):
                ld(jj, alt + jj, "s25")
            eat(base, j0, 8)
            for (P, Q, hp, hq, me) in ((alt, base, 29, 28, "A"), (base, alt, 28, 29, "B")):
                L(f"L_eg{me}")
                if self.egw:
                    A(f"s_waitcnt vmcnt({8 - self.egw})")
                rl_read()
                rl_get()
                A(f"s_cmp_ge_u32 s24, {END}")
                A(f"s_cbranch_scc1 L_drain{me}")
                rl_next(25, hq)
                for jj in range(8):
                    ld(jj, Q + jj, "s25")
                switch(hp)
                eat(P, 0, 8)
                if me == "B":
                    A("s_branch L_egA")
            L("L_drainA")
            switch(29)
            eat(alt, 0, 0)
            A("s_branch L_done")
            L("L_drainB")
            switch(28)
            eat(base, 0, 0)
            A("s_branch L_done")
            L("L_fin_last")
        eat(base, j0, 0)
        L("L_done")
        self.stamp(2)
        if self.stamps:
            A("s_lshl_b32 s36, s2, 11")
            A("s_lshl_b32 s37, s3, 8")
            A("s_add_u32 s36, s36, s37")
            A(f"s_add_u32 s36, s36, {STAMP_OFF + 0x40000}")
            A(f"v_lshlrev_b32 v37, 2, v{LANE}")
            A("buffer_store_dword v36, v37, s[84:87], s36 offen")
        self.stamp(32, wave=True)
        self.stamp(33, "s[76:77]", wave=True)
        self.stamp(34, "s[78:79]", wave=True)
        if self.stamps:
            A("s_cmp_eq_u32 s3, 0")
            A("s_cbranch_scc0 L_noprof")
            for i in range(min(NS, 12)):
                self.stamp(16 + i, f"s[{48+2*i}:{49+2*i}]")
            self.stamp(16 + 14)
            L("L_noprof")
        if self.H == 1:
            for ctl, msk in (("row_ror:4", "0xf"), ("row_ror:8", "0xf"), ("row_bcast:15", "0xa"), ("row_bcast:31", "0xc")):
                A(f"v_add_f32_dpp v{LS}, v{LS}, v{LS} {ctl} row_mask:{msk} bank_mask:0xf")
                self.nop(2)
            A(f"ds_write_b128 v35, v[{D}:{D+3}] offset:{L_P}")
            A(f"v_mov_b32 v{MN}, v{LS}")
            A("s_mov_b32 exec_lo, 0")
            A("s_mov_b32 exec_hi, 0x80000000")
            A(f"ds_write_b64 v25, v[{M}:{M+1}] offset:{L_ML}")
            A("s_waitcnt lgkmcnt(0)")
            A("s_barrier")
            A("s_endpgm")
        else:
            LS2, M2, D2 = CX + 10, CX + 8, CX + 4
            for ctl, msk in (("row_ror:4", "0xf"), ("row_ror:8", "0xf"), ("row_bcast:15", "0xa"), ("row_bcast:31", "0xc")):
                A(f"v_add_f32_dpp v{LS}, v{LS}, v{LS} {ctl} row_mask:{msk} bank_mask:0xf")
                A(f"v_add_f32_dpp v{LS2}, v{LS2}, v{LS2} {ctl} row_mask:{msk} bank_mask:0xf")
                self.nop(1)
            A("s_lshl_b32 s20, s32, 13")
            A("s_xor_b32 s21, s20, 8192")
            A(f"v_add_u32 v{T0}, s20, v35")
            A(f"v_add_u32 v{T1}, s21, v35")
            A(f"ds_write_b128 v{T0}, v[{D}:{D+3}] offset:{L_P}")
            A(f"ds_write_b128 v{T1}, v[{D2}:{D2+3}] offset:{L_P}")
            A(f"v_mov_b32 v{MN}, v{LS}")
            A(f"v_mov_b32 v{M2+1}, v{LS2}")
            A("s_lshl_b32 s20, s32, 6")
            A("s_xor_b32 s21, s20, 64")
            A(f"v_add_u32 v{T0}, s20, v25")
            A(f"v_add_u32 v{T1}, s21, v25")
            A("s_mov_b32 exec_lo, 0")
            A("s_mov_b32 exec_hi, 0x80000000")
            A(f"ds_write_b64 v{T0}, v[{M}:{M+1}] offset:{L_ML}")
            A(f"ds_write_b64 v{T1}, v[{M2}:{M2+1}] offset:{L_ML}")
            A("s_waitcnt lgkmcnt(0)")
            A("s_barrier")
            A("s_endpgm")
            L("L_swap")
            self.nop(8)
            for a, b in zip(ACT, SAV):
                A(f"v_swap_b32 v{a}, v{b}")
            A("s_xor_b32 s32, s32, 1")
            A("s_setpc_b64 s[46:47]")

        L("L_rare")
        A(f"v_max_f32_dpp v{T0}, v{S}, v{S} row_ror:4 row_mask:0xf bank_mask:0xf")
        self.nop(2)
        A(f"v_max_f32_dpp v{T0}, v{T0}, v{T0} row_ror:8 row_mask:0xf bank_mask:0xf")
        self.nop(1)
        A(f"v_readlane_b32 s20, v{T0}, 0")
        A(f"v_readlane_b32 s21, v{T0}, 16")
        A(f"v_readlane_b32 s22, v{T0}, 32")
        A(f"v_readlane_b32 s23, v{T0}, 48")
        A(f"v_max_f32 v{T1}, s20, v{M}")
        A(f"v_max_f32 v{T1}, s21, v{T1}")
        A(f"v_max_f32 v{T1}, s22, v{T1}")
        A(f"v_max_f32 v{T1}, s23, v{T1}")
        A(f"v_sub_f32 v{T0}, v{M}, v{T1}")
        A(f"v_mul_f32 v{T0}, s19, v{T0}")
        A(f"v_exp_f32 v{T0}, v{T0}")
        A(f"v_mov_b32 v{M}, v{T1}")
        for k in range(4):
            A(f"v_mul_f32 v{D+k}, v{D+k}, v{T0}")
        A(f"v_mul_f32 v{LS}, v{LS}, v{T0}")
        A("s_setpc_b64 s[46:47]")

    def helper(self):
        A, L = self.A, self.L
        A("s_setprio 2")
        A("s_sub_u32 s3, s3, 8")
        A("s_load_dwordx2 s[24:25], s[0:1], 0")
        A("s_load_dwordx4 s[28:31], s[0:1], 24")
        A("s_load_dwordx4 s[32:35], s[0:1], 48")
        A("s_load_dwordx4 s[36:39], s[0:1], 64")
        A("s_load_dwordx4 s[48:51], s[0:1], 80")
        A("s_memrealtime s[66:67]")
        A("s_mov_b32 s88, 0x80000")
        A("v_mov_b32 v12, 0")
        A("v_mov_b32 v13, 0")
        A("v_mov_b32 v14, 0")
        A("v_mov_b32 v15, 0")
        A("v_lshlrev_b32 v14, 2, v2")
        A(f"ds_write_b32 v14, v12 offset:{L_Z}")
        A(f"ds_write_b32 v14, v12 offset:{L_Z+256}")
        HB, HI, G, TT = 3, 4, 5, 6
        A(f"v_lshrrev_b32 v{HB}, 5, v2")
        A(f"v_and_b32 v{HI}, 31, v2")
        A(f"v_lshrrev_b32 v{G}, 4, v2")
        A(f"v_and_b32 v{TT}, 15, v2")
        VAW, VAR, VDW, VTR = 7, 8, 9, 10
        A("s_lshl_b32 s52, s3, 9")
        A(f"v_lshlrev_b32 v{VAW}, 8, v{HB}")
        A(f"v_lshl_add_u32 v{VAW}, v{HI}, 3, v{VAW}")
        A(f"s_add_u32 s53, s52, {L_A}")
        A(f"v_add_u32 v{VAW}, s53, v{VAW}")
        A(f"v_and_b32 v{VAR}, 1, v2")
        A(f"v_lshlrev_b32 v{VAR}, 8, v{VAR}")
        A(f"v_lshl_add_u32 v{VAR}, v{G}, 4, v{VAR}")
        A(f"v_add_u32 v{VAR}, s53, v{VAR}")
        A(f"s_add_u32 s53, s52, {L_D}")
        A(f"v_lshlrev_b32 v{VDW}, 2, v2")
        A(f"v_add_u32 v{VDW}, s53, v{VDW}")
        A("s_waitcnt lgkmcnt(0)")
        self.srd(84, 98, 0x20000000)
        self.srd(76, 96, 256)
        A("s_or_b32 s54, s2, s3")
        A("s_cmp_eq_u32 s54, 0")
        A("s_cbranch_scc0 L_notagw")
        A("s_or_b32 s66, s66, 1")
        A("v_mov_b32 v12, s66")
        A("s_mov_b64 exec, 1")
        A("buffer_atomic_cmpswap v[12:13], off, s[76:79], 0 sc1")
        A("s_mov_b64 exec, -1")
        L("L_notagw")
        self.srd(20, 24, 2048)
        A(f"s_add_u32 s16, s98, {HH_OFF}")
        A("s_addc_u32 s17, s99, 0")
        A(f"s_mov_b32 s18, {43*128}")
        A("s_mov_b32 s19, 0x20000")
        self.srd(72, 50, 2048)
        for r in range(10, 24):
            A(f"v_mov_b32 v{r}, 0")
        for r in (54, 55, 56, 57, 59, 60, 61, 62):
            A(f"s_mov_b32 s{r}, 0")
        if self.H == 1:
            A("s_lshl_b32 s83, s40, 3")
            A("s_add_u32 s83, s83, s41")
            A("s_lshl_b32 s83, s83, 10")
            A(f"s_add_u32 s83, s83, {PART_OFF}")
            A("s_mov_b32 s82, s40")
            A("s_mov_b32 s81, s41")
            A("s_mov_b32 s67, s83")
        else:
            A(f"s_xor_b32 s82, s40, {self.px}")
            A("s_min_u32 s82, s82, s40")
            A("s_lshr_b32 s54, s40, 5")
            A("s_lshl_b32 s54, s54, 2")
            A("s_add_u32 s54, s54, s41")
            A("s_lshl_b32 s54, s54, 10")
            A(f"s_add_u32 s54, s54, {PART_OFF}")
            A("s_lshl_b32 s83, s82, 13")
            A("s_add_u32 s83, s83, s54")
            A(f"s_xor_b32 s67, s82, {self.px}")
            A("s_lshl_b32 s67, s67, 13")
            A("s_add_u32 s67, s67, s54")
            A("s_lshr_b32 s81, s40, 5")
            A("s_or_b32 s81, s81, s41")
        A("s_mov_b32 s45, s82")
        A("s_lshl_b32 s82, s82, 7")
        A(f"s_add_u32 s82, s82, {CNT_OFF}")
        if "dpro" in self.dbg:
            for r in (4, 6, 100, 42):
                A(f"s_mov_b32 s{r}, 0")
        self.stamp(0)
        A("s_mov_b32 s44, 0")
        A(f"s_cmp_lt_u32 s89, {16 if self.late else R_Q0}")
        A("s_cbranch_scc1 L_pro_mod")
        A(f"s_sub_u32 s54, s89, {R_Q0}")
        A(f"s_cmp_lt_u32 s54, {R_WO0 - R_Q0}")
        A("s_cbranch_scc1 L_pro_q")
        A("s_barrier")
        A("s_branch L_common1")

        BF, AF, DT = 40, 24, 12
        DT = 104
        TMP = 120

        def wide_voff(rowbytes, colbyte_s):
            A("s_lshl_b32 s54, s3, 7")
            A("v_lshrrev_b32 v11, 3, v2")
            A("v_add_u32 v11, s54, v11")
            A(f"s_mov_b32 s55, {rowbytes}")
            A("v_mul_lo_u32 v11, v11, s55")
            A(f"v_and_b32 v{TMP}, 7, v2")
            A(f"v_lshl_add_u32 v11, v{TMP}, 4, v11")
            A(f"v_add_u32 v11, s{colbyte_s}, v11")

        def wide_tr_base():
            A(f"v_lshrrev_b32 v{VTR}, 2, v{TT}")
            A(f"v_lshl_add_u32 v{VTR}, v{G}, 3, v{VTR}")
            A(f"v_lshlrev_b32 v{VTR}, 7, v{VTR}")
            A(f"v_and_b32 v{TMP}, 3, v{TT}")
            A(f"v_lshl_add_u32 v{VTR}, v{TMP}, 3, v{VTR}")
            A("s_lshl_b32 s54, s3, 14")
            A(f"s_add_u32 s54, s54, {L_W}")
            A(f"v_add_u32 v{VTR}, s54, v{VTR}")

        L("L_pro_mod")
        self.srd(12, 38, 2048)
        A(f"v_lshlrev_b32 v{TMP}, 10, v{HB}")
        A(f"v_lshl_add_u32 v{TMP}, v{HI}, 3, v{TMP}")
        A("s_lshl_b32 s54, s3, 8")
        A(f"buffer_load_dwordx2 v[{TMP+2}:{TMP+3}], v{TMP}, s[12:15], s54 offen")
        self.srd(8, 48, 512 * 6144)
        A("s_lshl_b32 s56, s89, 7")
        wide_voff(6144, 56)
        A("s_lshl_b32 s57, s3, 14")
        self.dma_weights(8, 16, 11, 8 * 6144, 57)
        if self.late or self.hold:
            if self.late and self.hold:
                A("s_branch L_mod_nob1")
            elif self.late:
                A("s_cmp_eq_u32 s44, 0")
                A("s_cbranch_scc0 L_mod_nob1")
            else:
                A("s_cmp_lt_u32 s89, 16")
                A("s_cbranch_scc1 L_mod_nob1")
        A("s_barrier")
        L("L_mod_nob1")
        wide_tr_base()
        A("s_waitcnt vmcnt(16)")
        X = TMP + 4
        self.unpack2(TMP + 2, X, X + 1)
        self.unpack2(TMP + 3, X + 2, X + 3)
        A(f"s_mov_b32 s58, {f32(-LOG2E)}")
        for k in range(4):
            A(f"v_mul_f32 v{X+4+k}, s58, v{X+k}")
        for k in range(4):
            A(f"v_exp_f32 v{X+4+k}, v{X+4+k}")
        self.nop(1)
        for k in range(4):
            A(f"v_add_f32 v{X+4+k}, 1.0, v{X+4+k}")
        for k in range(4):
            A(f"v_rcp_f32 v{X+4+k}, v{X+4+k}")
        self.nop(1)
        for k in range(4):
            A(f"v_mul_f32 v{X+k}, v{X+k}, v{X+4+k}")
        A(f"v_cvt_pk_bf16_f32 v{X+8}, v{X}, v{X+1}")
        A(f"v_cvt_pk_bf16_f32 v{X+9}, v{X+2}, v{X+3}")
        A(f"ds_write_b64 v{VAW}, v[{X+8}:{X+9}]")
        A("s_lshr_b32 s60, s89, 3")
        A("s_lshl_b32 s60, s60, 12")
        A("s_and_b32 s61, s89, 7")
        A("s_lshl_b32 s61, s61, 8")
        A("s_add_u32 s60, s60, s61")
        A(f"s_add_u32 s60, s60, {MOD_OFF}")
        A("s_mov_b32 s61, 2048")
        A("s_mov_b32 s62, 0")
        if self.late:
            A("s_cmp_eq_u32 s44, 0")
            A("s_cbranch_scc1 L_common1")
            A("s_waitcnt vmcnt(0)")
            A("s_branch L_gemv0")
        else:
            A("s_branch L_common1")

        L("L_pro_q")
        A(f"v_lshlrev_b32 v{TMP}, 10, v{HB}")
        A(f"v_lshl_add_u32 v{TMP+1}, v{HI}, 5, v{TMP}")
        A(f"buffer_load_dwordx4 v[{TMP+4}:{TMP+7}], v{TMP+1}, s[20:23], 0 offen")
        A(f"buffer_load_dwordx4 v[{TMP+8}:{TMP+11}], v{TMP+1}, s[20:23], 0 offen offset:16")
        A(f"v_lshl_add_u32 v{TMP}, v{HI}, 3, v{TMP}")
        A("s_lshl_b32 s54, s3, 8")
        A(f"buffer_load_dwordx2 v[{TMP+2}:{TMP+3}], v{TMP}, s[20:23], s54 offen")
        self.srd(8, 28, 512 * 8192)
        A(f"s_sub_u32 s59, s89, {R_Q0}")
        A("s_lshl_b32 s56, s59, 7")
        wide_voff(8192, 56)
        A("s_lshl_b32 s57, s3, 14")
        self.dma_weights(8, 16, 11, 8 * 8192, 57)
        A("s_barrier")
        wide_tr_base()
        A("s_waitcnt vmcnt(16)")
        S1, S2, U0, U1 = TMP + 12, TMP + 13, TMP + 14, TMP + 15
        A(f"v_mov_b32 v{S1}, 0")
        A(f"v_mov_b32 v{S2}, 0")
        for k in range(8):
            self.unpack2(TMP + 4 + k, U0, U1)
            A(f"v_add_f32 v{S1}, v{S1}, v{U0}")
            A(f"v_fmac_f32 v{S2}, v{U0}, v{U0}")
            A(f"v_add_f32 v{S1}, v{S1}, v{U1}")
            A(f"v_fmac_f32 v{S2}, v{U1}, v{U1}")
        self.allred32([S1, S2], [U0, U1])
        NX = TMP + 16
        self.unpack2(TMP + 2, NX, NX + 1)
        self.unpack2(TMP + 3, NX + 2, NX + 3)
        self.ln_norm(S1, S2, NX, U0, U1)
        A("s_lshl_b32 s60, s59, 8")
        A(f"s_add_u32 s60, s60, {Q_OFF}")
        A("s_mov_b32 s61, 16384")
        A("s_mov_b32 s62, 1")
        L("L_common1")
        A("buffer_load_dword v165, off, s[76:79], 0 sc1")
        CL = TMP + 24
        for k in range(4):
            A(f"v_mov_b32 v{CL+k}, -1")
        A("s_cmp_eq_u32 s3, 3")
        A("s_cbranch_scc0 L_noclear")
        A(f"v_lshlrev_b32 v{CL+4}, 4, v2")
        A("s_mov_b32 exec_lo, -1")
        A("s_mov_b32 exec_hi, 1")
        A(f"buffer_store_dwordx4 v[{CL}:{CL+3}], v{CL+4}, s[84:87], s83 offen sc1")
        if self.H == 2:
            A(f"buffer_store_dwordx4 v[{CL}:{CL+3}], v{CL+4}, s[84:87], s67 offen sc1")
        A("s_mov_b64 exec, -1")
        A(f"s_sub_u32 s64, s89, {R_WO0}")
        A("s_cmp_lt_u32 s64, 64")
        A("s_cbranch_scc0 L_noclr_wo")
        self.slice_of(64, R_WO0, 64)
        A("s_lshr_b32 s65, s64, 3")
        A("s_lshl_b32 s65, s65, 12")
        A("s_and_b32 s66, s64, 7")
        A("s_lshl_b32 s66, s66, 8")
        A("s_add_u32 s65, s65, s66")
        A(f"s_add_u32 s65, s65, {ATT_OFF}")
        A(f"v_lshlrev_b32 v{CL+4}, 11, v{G}")
        A(f"v_lshl_add_u32 v{CL+4}, v{TT}, 4, v{CL+4}")
        A("s_mov_b32 exec_hi, 0")
        A(f"buffer_store_dwordx4 v[{CL}:{CL+3}], v{CL+4}, s[84:87], s65 offen sc1")
        A("s_mov_b64 exec, -1")
        L("L_noclr_wo")
        A(f"s_sub_u32 s64, s89, {R_UP0}")
        A("s_cmp_lt_u32 s64, 43")
        A("s_cbranch_scc0 L_noclr_up")
        self.slice_of(64, R_UP0, 43)
        A("s_lshl_b32 s65, s64, 7")
        A(f"s_add_u32 s65, s65, {HH_OFF}")
        A(f"v_lshlrev_b32 v{CL+4}, 4, v2")
        A("s_mov_b64 exec, 0xff")
        A(f"buffer_store_dwordx4 v[{CL}:{CL+3}], v{CL+4}, s[84:87], s65 offen sc1")
        A("s_mov_b64 exec, -1")
        L("L_noclr_up")
        A("s_cmp_eq_u32 s81, 0")
        A("s_cbranch_scc0 L_noclr_cnt")
        A(f"v_mov_b32 v{CL+4}, {self.NS*4*self.H}")
        A(f"s_mul_i32 s65, s45, {self.cstr}")
        A(f"s_add_u32 s65, s65, {CTR_OFF}")
        A("s_mov_b64 exec, 1")
        A(f"buffer_store_dword v{CL+4}, off, s[84:87], s65 sc1")
        A("s_mov_b64 exec, -1")
        L("L_noclr_cnt")
        L("L_noclear")
        A("s_waitcnt vmcnt(0)")
        if self.hold:
            A("s_cmp_lt_u32 s89, 16")
            A("s_cbranch_scc0 L_nohold3")
            A("s_barrier")
            L("L_nohold3")
        A("v_cmp_eq_u32 vcc, 0, v165")
        A("s_cbranch_vccz L_gottag")
        pl = self.poll_head()
        A("buffer_load_dword v165, off, s[76:79], 0 sc1")
        A("s_waitcnt vmcnt(0)")
        A("v_cmp_eq_u32 vcc, 0, v165")
        self.poll_tail(pl, sleep=2)
        L("L_gottag")
        A("v_readfirstlane_b32 s80, v165")
        self.dmark(3)
        self.stamp(10)
        A("s_cmp_eq_u32 s3, 3")
        A("s_cbranch_scc0 L_nocount")
        A("s_and_b32 s63, s2, 3")
        A("s_lshl_b32 s63, s63, 2")
        A("s_add_u32 s63, s63, 128")
        A(f"v_mov_b32 v{CL+5}, 1")
        A("s_mov_b64 exec, 1")
        A(f"buffer_atomic_add v{CL+5}, off, s[76:79], s63 sc1")
        A("s_cmp_eq_u32 s81, 0")
        A("s_cbranch_scc0 L_nocnttag")
        A(f"v_mov_b32 v{CL+4}, s80")
        A(f"buffer_store_dword v{CL+4}, off, s[84:87], s82 offset:64 sc1")
        L("L_nocnttag")
        A("s_mov_b64 exec, -1")
        L("L_nocount")
        A(f"s_cmp_lt_u32 s89, {R_WO0}")
        A("s_cbranch_scc0 L_qgather")
        if self.late:
            A("s_sub_u32 s54, s89, 16")
            A("s_cmp_lt_u32 s54, 32")
            A("s_cbranch_scc1 L_qgather")
        L("L_gemv0")
        self.tr_reads(VTR, BF, 4, [0, 32, 64, 96], 128)
        A("s_cmp_eq_u32 s62, 0")
        A("s_cbranch_scc1 L_pro_gemv")
        GA = TMP + 4
        A(f"v_lshlrev_b32 v{TMP}, 11, v{HB}")
        A(f"v_lshl_add_u32 v{TMP}, v{HI}, 4, v{TMP}")
        A("s_lshl_b32 s54, s3, 9")
        A(f"s_add_u32 s54, s54, {MOD_OFF}")
        A(f"s_add_u32 s55, s54, 4096")
        pl = self.poll_head()
        A(f"buffer_load_dwordx4 v[{GA}:{GA+3}], v{TMP}, s[84:87], s55 offen sc1")
        A(f"buffer_load_dwordx4 v[{GA+4}:{GA+7}], v{TMP}, s[84:87], s54 offen sc1")
        A("s_waitcnt vmcnt(0)")
        self.check_tags([GA + 1, GA + 3, GA + 5, GA + 7], TMP + 1)
        self.poll_tail(pl, sleep=self.ps1)
        self.stamp(3)
        self.dmark(2)
        T4 = TMP + 20
        self.unpack2(GA, T4, T4 + 1)
        self.unpack2(GA + 2, T4 + 2, T4 + 3)
        for k in range(4):
            A(f"v_add_f32 v{T4+k}, 1.0, v{T4+k}")
        self.rnd2(T4, T4 + 1, TMP + 1)
        self.rnd2(T4 + 2, T4 + 3, TMP + 2)
        self.modulate(NX, T4, GA + 4, GA + 6, TMP + 1, TMP + 24, VAW)
        L("L_pro_gemv")
        self.a_frags_from_stage(VAR, AF)
        self.mfmas(AF, BF, DT, 4, 4, lgkm=True)
        self.d_to_lds(DT, 4, TMP, TMP + 1, VDW)
        A(f"v_mov_b32 v{TMP+2}, {L_CNT}")
        A(f"v_mov_b32 v{TMP+3}, 1")
        A("s_mov_b64 exec, 1")
        A(f"ds_add_rtn_u32 v{TMP+4}, v{TMP+2}, v{TMP+3}")
        A("s_mov_b64 exec, -1")
        A("s_waitcnt lgkmcnt(0)")
        A(f"v_readfirstlane_b32 s54, v{TMP+4}")
        A("s_cmp_eq_u32 s54, 3")
        A("s_cbranch_scc0 L_qgather")
        self.d_sum(G, TT, TMP)
        A(f"v_cvt_pk_bf16_f32 v{TMP+8}, v{TMP+4}, v{TMP+5}")
        A(f"v_mov_b32 v{TMP+9}, s80")
        A(f"v_cvt_pk_bf16_f32 v{TMP+10}, v{TMP+6}, v{TMP+7}")
        A(f"v_mov_b32 v{TMP+11}, s80")
        A(f"v_mul_lo_u32 v{TMP}, v{G}, s61")
        A(f"v_lshl_add_u32 v{TMP}, v{TT}, 4, v{TMP}")
        A("s_mov_b32 exec_hi, 0")
        A(f"buffer_store_dwordx4 v[{TMP+8}:{TMP+11}], v{TMP}, s[84:87], s60 offen sc1")
        A("s_mov_b64 exec, -1")
        self.stamp(4)
        self.dmark(1)
        L("L_qgather")
        if self.late:
            A("s_cmp_eq_u32 s44, 0")
            A("s_cbranch_scc0 L_b3")
        A("s_cmp_eq_u32 s3, 3")
        A("s_cbranch_scc0 L_qg2")
        pl = self.poll_head()
        A(f"buffer_load_dword v{TMP}, off, s[84:87], s82 offset:64 sc1")
        A("s_waitcnt vmcnt(0)")
        A(f"v_cmp_ne_u32 vcc, s80, v{TMP}")
        self.poll_tail(pl, sleep=8)
        if self.flagq:
            A(f"v_mov_b32 v{TMP}, 0")
            A(f"v_mov_b32 v{TMP+1}, 1")
            A(f"ds_write_b32 v{TMP}, v{TMP+1} offset:{L_QF+4}")
        L("L_qg2")
        A("s_cmp_eq_u32 s3, 0")
        A("s_cbranch_scc0 L_b2")
        A("s_lshl_b32 s54, s45, 9")
        A(f"s_add_u32 s54, s54, {Q_OFF}")
        A(f"s_xor_b32 s55, s45, {self.px}")
        A("s_lshl_b32 s55, s55, 9")
        A(f"s_add_u32 s55, s55, {Q_OFF}")
        A(f"v_lshlrev_b32 v{TMP}, 3, v2")
        pl = self.poll_head()
        A(f"buffer_load_dwordx2 v[{TMP+2}:{TMP+3}], v{TMP}, s[84:87], s54 offen sc1")
        if self.H == 2:
            A(f"buffer_load_dwordx2 v[{TMP+4}:{TMP+5}], v{TMP}, s[84:87], s55 offen sc1")
        A("s_waitcnt vmcnt(0)")
        self.check_tags([TMP + 3, TMP + 5][:self.H], TMP + 6)
        self.poll_tail(pl, sleep=self.ps2)
        A(f"v_lshlrev_b32 v{TMP}, 2, v2")
        A(f"ds_write_b32 v{TMP}, v{TMP+2} offset:{L_Q}")
        if self.H == 2:
            A(f"ds_write_b32 v{TMP}, v{TMP+4} offset:{L_Q+256}")
        if self.flagq:
            A(f"v_mov_b32 v{TMP}, 0")
            A(f"v_mov_b32 v{TMP+1}, 1")
            A(f"ds_write_b32 v{TMP}, v{TMP+1} offset:{L_QF}")
        A("s_waitcnt lgkmcnt(0)")
        self.stamp(5)
        self.dmark(0)
        L("L_b2")
        if not self.flagq:
            A("s_barrier")
        else:
            A(f"v_mov_b32 v{TMP}, 0")
            pl = self.poll_head()
            A(f"ds_read_b32 v{TMP+1}, v{TMP} offset:{L_QF}")
            A("s_waitcnt lgkmcnt(0)")
            A(f"v_cmp_eq_u32 vcc, 0, v{TMP+1}")
            self.poll_tail(pl, sleep=4)
        if self.late:
            A("s_sub_u32 s54, s89, 16")
            A("s_cmp_lt_u32 s54, 32")
            A("s_cselect_b32 s44, 1, 0")
            A("s_cbranch_scc1 L_pro_mod")
        A(f"s_cmp_lt_u32 s89, {R_WO0}")
        A("s_cbranch_scc1 L_b3")
        A(f"s_cmp_lt_u32 s89, {R_WO1}")
        A("s_cbranch_scc1 L_prep_wo")
        A(f"s_cmp_ge_u32 s89, {R_DN0}")
        A("s_cbranch_scc1 L_prep_dn")
        A(f"s_cmp_lt_u32 s89, {R_UP0}")
        A("s_cbranch_scc1 L_b3")
        A(f"s_cmp_lt_u32 s89, {R_UP1}")
        A("s_cbranch_scc1 L_prep_up")
        A("s_branch L_b3")

        def narrow_voff(rowbytes, rows_per_wave, colbyte_s):
            A(f"s_mul_i32 s54, s3, {rows_per_wave}")
            A("v_lshrrev_b32 v11, 2, v2")
            A("v_add_u32 v11, s54, v11")
            A(f"s_mov_b32 s55, {rowbytes}")
            A("v_mul_lo_u32 v11, v11, s55")
            A(f"v_and_b32 v{VTR}, 3, v2")
            A(f"v_lshl_add_u32 v11, v{VTR}, 4, v11")
            A(f"v_add_u32 v11, s{colbyte_s}, v11")

        def narrow_tr_base(rows_per_wave):
            A(f"v_lshrrev_b32 v{VTR}, 2, v{TT}")
            A(f"v_lshl_add_u32 v{VTR}, v{G}, 3, v{VTR}")
            A(f"v_lshlrev_b32 v{VTR}, 6, v{VTR}")
            A(f"v_and_b32 v12, 3, v{TT}")
            A(f"v_lshl_add_u32 v{VTR}, v12, 3, v{VTR}")
            A(f"s_mul_i32 s54, s3, {rows_per_wave*64}")
            A(f"s_add_u32 s54, s54, {L_W}")
            A(f"v_add_u32 v{VTR}, s54, v{VTR}")

        def wait_cleared(t):
            pl = self.poll_head()
            A(f"buffer_load_dwordx4 v[{t}:{t+3}], off, s[76:79], 0 offset:128 sc1")
            A("s_waitcnt vmcnt(0)")
            A(f"v_add_u32 v{t}, v{t}, v{t+1}")
            A(f"v_add3_u32 v{t}, v{t}, v{t+2}, v{t+3}")
            A(f"v_cmp_gt_u32 vcc, 256, v{t}")
            self.poll_tail(pl, sleep=16)

        self.intail = True
        L("L_prep_wo")
        self.slice_of(59, R_WO0, 64)
        self.srd(8, 30, 4096 * 1024)
        A("s_lshr_b32 s56, s59, 3")
        A("s_lshl_b32 s56, s56, 19")
        A("s_and_b32 s57, s59, 7")
        A("s_lshl_b32 s57, s57, 7")
        A("s_add_u32 s56, s56, s57")
        wide_voff(1024, 56)
        A("s_lshl_b32 s57, s3, 14")
        self.dma_weights(8, 16, 11, 8 * 1024, 57, skip='nowo')
        wide_tr_base()
        wait_cleared(TMP)
        self.tr_reads(VTR, BF, 4, [0, 32, 64, 96], 128)
        A(f"v_lshlrev_b32 v11, 18, v{HB}")
        A(f"v_lshl_add_u32 v12, v{HI}, 4, v11")
        A(f"v_and_b32 v{TMP}, {4*self.H-1}, v2")
        A(f"v_lshl_add_u32 v11, v{TMP}, 10, v11")
        A("s_lshr_b32 s56, s59, 3")
        A("s_lshl_b32 s60, s56, 12")
        A("s_lshl_b32 s56, s56, 2")
        A("s_add_u32 s56, s56, s3")
        A("s_lshl_b32 s56, s56, 13")
        A(f"s_add_u32 s56, s56, {PART_OFF}")
        A("s_add_u32 s55, s56, 4096")
        A("s_and_b32 s57, s59, 7")
        A("s_lshl_b32 s57, s57, 8")
        A("s_add_u32 s60, s60, s57")
        A(f"s_add_u32 s60, s60, {ATT_OFF}")
        A("s_waitcnt lgkmcnt(0)")
        A("s_branch L_b3")

        XV, GAV, T4U, SBV = TMP + 28, TMP + 32, TMP + 36, TMP + 40
        L("L_prep_up")
        self.slice_of(59, R_UP0, 43)
        self.srd(8, 32, 512 * 2752)
        self.srd(12, 34, 512 * 2752)
        A("s_lshl_b32 s56, s59, 6")
        narrow_voff(2752, 128, 56)
        A("s_lshl_b32 s57, s3, 13")
        self.dma_weights(8, 8, 11, 16 * 2752, 57, skip='noup')
        A("s_add_u32 s57, s57, 32768")
        self.dma_weights(12, 8, 11, 16 * 2752, 57, skip='noup')
        narrow_tr_base(128)
        A(f"v_lshlrev_b32 v{TMP}, 10, v{HB}")
        A(f"v_lshl_add_u32 v{TMP}, v{HI}, 3, v{TMP}")
        A("s_lshl_b32 s54, s3, 8")
        A(f"buffer_load_dwordx2 v[{TMP+2}:{TMP+3}], v{TMP}, s[20:23], s54 offen")
        A(f"v_lshlrev_b32 v{TMP}, 11, v{HB}")
        A(f"v_lshl_add_u32 v{TMP}, v{HI}, 4, v{TMP}")
        A("s_lshl_b32 s54, s3, 9")
        A(f"s_add_u32 s54, s54, {MOD_OFF + 2*4096}")
        A(f"s_add_u32 s55, s54, 4096")
        A(f"s_add_u32 s56, s54, 8192")
        GA = TMP + 4
        pl = self.poll_head()
        A(f"buffer_load_dwordx4 v[{GA}:{GA+3}], v{TMP}, s[84:87], s54 offen sc1")
        A(f"buffer_load_dwordx4 v[{GA+4}:{GA+7}], v{TMP}, s[84:87], s55 offen sc1")
        A(f"buffer_load_dwordx4 v[{GA+8}:{GA+11}], v{TMP}, s[84:87], s56 offen sc1")
        A("s_waitcnt vmcnt(0)")
        self.check_tags([GA + 1, GA + 3, GA + 5, GA + 7, GA + 9, GA + 11], TMP + 16)
        self.poll_tail(pl)
        self.unpack2(TMP + 2, XV, XV + 1)
        self.unpack2(TMP + 3, XV + 2, XV + 3)
        self.unpack2(GA, GAV, GAV + 1)
        self.unpack2(GA + 2, GAV + 2, GAV + 3)
        A(f"v_mov_b32 v{SBV}, v{GA+4}")
        A(f"v_mov_b32 v{SBV+1}, v{GA+6}")
        self.unpack2(GA + 8, T4U, T4U + 1)
        self.unpack2(GA + 10, T4U + 2, T4U + 3)
        for k in range(4):
            A(f"v_add_f32 v{T4U+k}, 1.0, v{T4U+k}")
        self.rnd2(T4U, T4U + 1, TMP + 1)
        self.rnd2(T4U + 2, T4U + 3, TMP + 1)
        wait_cleared(TMP)
        self.tr_reads(VTR, BF, 4, [0, 32, 32768, 32768 + 32], 64)
        A(f"v_lshlrev_b32 v12, 11, v{HB}")
        A(f"v_lshl_add_u32 v12, v{HI}, 4, v12")
        A("s_lshl_b32 s56, s3, 9")
        A(f"s_add_u32 s56, s56, {ATT_OFF}")
        A("s_lshl_b32 s60, s59, 7")
        A(f"s_add_u32 s60, s60, {HH_OFF}")
        A("s_waitcnt lgkmcnt(0)")
        A("s_branch L_b3")

        DBF, DAF, DDT = 32, 120, 24
        L("L_prep_dn")
        self.slice_of(59, R_DN0, 16)
        self.srd(8, 36, 1376 * 1024)
        A("s_lshl_b32 s56, s59, 6")
        narrow_voff(1024, 352, 56)
        A(f"s_mul_i32 s57, s3, {352*64}")
        self.dma_weights(8, 22, 11, 16 * 1024, 57, skip='nodn')
        narrow_tr_base(352)
        A("v_lshrrev_b32 v13, 3, v2")
        A("v_and_b32 v13, 1, v13")
        A("v_and_b32 v14, 7, v2")
        A("v_lshlrev_b32 v15, 10, v13")
        A("v_lshl_add_u32 v15, v14, 3, v15")
        A("buffer_load_dwordx2 v[16:17], v15, s[20:23], s56 offen")
        A("v_lshlrev_b32 v15, 11, v13")
        A("v_lshl_add_u32 v15, v14, 4, v15")
        A("s_lshl_b32 s54, s59, 7")
        A(f"s_add_u32 s55, s54, {MOD_OFF + 5*4096}")
        A(f"s_add_u32 s54, s54, {MOD_OFF + 2*4096}")
        pl = self.poll_head()
        A(f"buffer_load_dwordx4 v[{DAF}:{DAF+3}], v15, s[84:87], s54 offen sc1")
        A(f"buffer_load_dwordx4 v[{DAF+4}:{DAF+7}], v15, s[84:87], s55 offen sc1")
        A("s_waitcnt vmcnt(0)")
        self.check_tags([DAF + 1, DAF + 3, DAF + 5, DAF + 7], DAF + 8)
        self.poll_tail(pl)
        A(f"v_mov_b32 v18, v{DAF}")
        A(f"v_mov_b32 v19, v{DAF+2}")
        A(f"v_mov_b32 v20, v{DAF+4}")
        A(f"v_mov_b32 v21, v{DAF+6}")
        wait_cleared(DAF)
        self.tr_reads(VTR, DBF, 11, [0, 32], 64)
        A("s_lshl_b32 s56, s59, 7")
        A(f"s_add_u32 s56, s56, {ATT_OFF}")
        A("v_and_b32 v12, 1, v2")
        A("v_lshlrev_b32 v12, 6, v12")
        A(f"v_lshl_add_u32 v12, v{G}, 4, v12")
        A(f"s_mul_i32 s57, s3, {352*64}")
        A(f"s_add_u32 s57, s57, {L_W}")
        A("v_add_u32 v12, s57, v12")
        A("v_lshlrev_b32 v7, 4, v2")
        A("v_add_u32 v8, s57, v7")
        A(f"s_mul_i32 s57, s3, {11*128}")
        A("s_waitcnt lgkmcnt(0)")
        L("L_b3")
        A("s_cmp_eq_u32 s3, 2")
        A("s_cbranch_scc0 L_b3x")
        A("s_setprio 1")
        A(f"s_mul_i32 s65, s45, {self.cstr}")
        A(f"s_add_u32 s65, s65, {CTR_OFF}")
        A("s_add_u32 s26, s98, s65")
        A("s_addc_u32 s27, s99, 0")
        A("v_mov_b32 v22, 0")
        pl = self.poll_head()
        A(f"ds_read_b32 v23, v22 offset:{L_QF+4}")
        A("s_waitcnt lgkmcnt(0)")
        A("v_cmp_eq_u32 vcc, 0, v23")
        self.poll_tail(pl, sleep=8)
        A("s_mov_b32 s64, 0")
        L("L_disp")
        A(f"ds_read_b32 v23, v22 offset:{L_NEED}")
        A("s_waitcnt lgkmcnt(0)")
        A("v_readfirstlane_b32 s65, v23")
        A("s_cmp_lt_u32 s64, s65")
        A("s_cbranch_scc1 L_disp_go")
        A("s_cmp_eq_u32 s88, 0")
        A("s_cbranch_scc1 L_disp_end")
        A("s_sub_u32 s88, s88, 1")
        A("s_sleep 1")
        A("s_branch L_disp")
        L("L_disp_go")
        A("s_mov_b32 s66, 1")
        A("s_atomic_add s66, s[26:27], 0 glc")
        A("s_lshl_b32 s65, s64, 2")
        A("v_mov_b32 v24, s65")
        A("s_waitcnt lgkmcnt(0)")
        A(f"s_cmp_ge_u32 s66, {64 * self.H}")
        A("s_cbranch_scc1 L_disp_end")
        A("s_add_u32 s66, s66, 1")
        A("v_mov_b32 v23, s66")
        A(f"ds_write_b32 v24, v23 offset:{L_RL}")
        A("s_add_u32 s64, s64, 1")
        A("s_cmp_lt_u32 s64, 63")
        A("s_cbranch_scc1 L_disp")
        L("L_disp_end")
        A("v_lshlrev_b32 v24, 2, v2")
        A(f"v_mov_b32 v23, {64 * self.H + 1}")
        A("v_cmp_le_u32 vcc, s64, v2")
        A("s_mov_b64 exec, vcc")
        A(f"ds_write_b32 v24, v23 offset:{L_RL}")
        A("s_mov_b64 exec, -1")
        A("s_setprio 2")
        L("L_b3x")
        if self.dry:
            A("s_mov_b32 s69, 1")
            A("s_mov_b32 s86, 0")
            A("s_mov_b32 s18, 0")
            A("s_mov_b32 s74, 0")
            A("s_branch L_after_b3")
            L("L_exit")
            A("s_cmp_eq_u32 s69, 0")
            A("s_cbranch_scc1 L_end")
            A("s_mov_b64 exec, -1")
            A("s_mov_b32 s69, 0")
            A("s_mov_b32 s86, 0x20000000")
            A(f"s_mov_b32 s18, {43*128}")
            A("s_mov_b32 s74, 2048")
            A("s_waitcnt vmcnt(0) lgkmcnt(0)")
        A("s_barrier")
        L("L_after_b3")
        self.demit()
        EX = "L_exit" if self.dry else "L_end"
        self.stamp(6)
        A(f"s_cmp_lt_u32 s3, {self.H}")
        A("s_cbranch_scc0 L_tail")
        C = 120
        A(f"v_and_b32 v{C}, 7, v2")
        A(f"v_lshlrev_b32 v{C}, 3, v{C}")
        A("s_lshl_b32 s63, s3, 6")
        A(f"v_add_u32 v{C}, s63, v{C}")
        A(f"ds_read_b64 v[{C+2}:{C+3}], v{C} offset:{L_ML}")
        A(f"v_lshlrev_b32 v{C+1}, 3, v2")
        A("s_lshl_b32 s63, s3, 13")
        A(f"v_add_u32 v{C+7}, s63, v{C+1}")
        for w in range(8):
            A(f"ds_read_b64 v[{C+8+2*w}:{C+9+2*w}], v{C+7} offset:{L_P + w*1024}")
        A("s_waitcnt lgkmcnt(8)")
        A(f"v_max_f32_dpp v{C+4}, v{C+2}, v{C+2} row_ror:1 row_mask:0xf bank_mask:0xf")
        self.nop(2)
        A(f"v_max_f32_dpp v{C+4}, v{C+4}, v{C+4} row_ror:2 row_mask:0xf bank_mask:0xf")
        self.nop(2)
        A(f"v_max_f32_dpp v{C+4}, v{C+4}, v{C+4} row_ror:4 row_mask:0xf bank_mask:0xf")
        A(f"s_mov_b32 s58, {f32(LOG2E)}")
        A(f"v_sub_f32 v{C+6}, v{C+2}, v{C+4}")
        A(f"v_mul_f32 v{C+6}, s58, v{C+6}")
        A(f"v_exp_f32 v{C+6}, v{C+6}")
        self.nop(1)
        A(f"v_mul_f32 v{C+5}, v{C+6}, v{C+3}")
        self.nop(2)
        A(f"v_add_f32_dpp v{C+5}, v{C+5}, v{C+5} row_ror:1 row_mask:0xf bank_mask:0xf")
        self.nop(2)
        A(f"v_add_f32_dpp v{C+5}, v{C+5}, v{C+5} row_ror:2 row_mask:0xf bank_mask:0xf")
        self.nop(2)
        A(f"v_add_f32_dpp v{C+5}, v{C+5}, v{C+5} row_ror:4 row_mask:0xf bank_mask:0xf")
        A("s_waitcnt lgkmcnt(0)")
        A(f"v_mul_f32_dpp v{C+24}, v{C+6}, v{C+8} row_newbcast:0 row_mask:0xf bank_mask:0xf")
        A(f"v_mul_f32_dpp v{C+25}, v{C+6}, v{C+9} row_newbcast:0 row_mask:0xf bank_mask:0xf")
        for w in range(1, 8):
            A(f"v_fmac_f32_dpp v{C+24}, v{C+6}, v{C+8+2*w} row_newbcast:{w} row_mask:0xf bank_mask:0xf")
            A(f"v_fmac_f32_dpp v{C+25}, v{C+6}, v{C+9+2*w} row_newbcast:{w} row_mask:0xf bank_mask:0xf")
        for r in (C + 24, C + 25, C + 4, C + 5):
            A(f"v_min_u32 v{r}, -2, v{r}")
        A("s_cmp_eq_u32 s3, 0")
        A("s_cselect_b32 s63, s83, s67")
        A(f"v_mov_b32_dpp v{C+26}, v{C+24} quad_perm:[1,1,3,3] row_mask:0xf bank_mask:0xf")
        A(f"v_mov_b32_dpp v{C+27}, v{C+25} quad_perm:[1,1,3,3] row_mask:0xf bank_mask:0xf")
        A("s_mov_b32 exec_lo, 0x55555555")
        A("s_mov_b32 exec_hi, 0x55555555")
        A(f"buffer_store_dwordx4 v[{C+24}:{C+27}], v{C+1}, s[84:87], s63 offen sc1")
        A("s_mov_b64 exec, 1")
        A(f"buffer_store_dwordx2 v[{C+4}:{C+5}], off, s[84:87], s63 offset:512 sc1")
        A("s_mov_b64 exec, -1")
        self.stamp(7)
        self.dstamp(2)
        L("L_tail")
        A(f"s_cmp_lt_u32 s89, {R_WO0}")
        A(f"s_cbranch_scc1 {EX}")
        A(f"s_cmp_lt_u32 s89, {R_WO1}")
        A("s_cbranch_scc1 L_tail_wo")
        A(f"s_cmp_ge_u32 s89, {R_DN0}")
        A("s_cbranch_scc1 L_tail_dn")
        A(f"s_cmp_lt_u32 s89, {R_UP0}")
        A(f"s_cbranch_scc1 {EX}")
        A(f"s_cmp_lt_u32 s89, {R_UP1}")
        A("s_cbranch_scc1 L_tail_up")
        A(f"s_branch {EX}")

        L("L_tail_wo")
        regs = [AF + 4 * i for i in range(4)] + [DT + 4 * i for i in range(4)]
        O = TMP
        lds_ = [([f"buffer_load_dwordx4 v[{regs[r]}:{regs[r]+3}], v12, s[84:87], {'s56' if r < 4 else 's55'} offen offset:{(r & 3)*1024} sc1"],
                 [regs[r] + k for k in range(4)]) for r in range(4 * self.H)]
        lds_.append(([f"buffer_load_dwordx2 v[{O}:{O+1}], v11, s[84:87], s56 offen offset:512 sc1"], [O, O + 1]))
        self.poll_multi(lds_, O + 2)
        self.stamp(8)
        MM, FF, LL = O + 2, O + 3, O + 6
        A(f"v_max_f32_dpp v{MM}, v{O}, v{O} row_ror:1 row_mask:0xf bank_mask:0xf")
        A(f"s_mov_b32 s58, {f32(LOG2E)}")
        self.nop(1)
        A(f"v_max_f32_dpp v{MM}, v{MM}, v{MM} row_ror:2 row_mask:0xf bank_mask:0xf")
        if self.H == 2:
            self.nop(2)
            A(f"v_max_f32_dpp v{MM}, v{MM}, v{MM} row_ror:4 row_mask:0xf bank_mask:0xf")
        A(f"v_sub_f32 v{FF}, v{O}, v{MM}")
        A(f"v_mul_f32 v{FF}, s58, v{FF}")
        A(f"v_exp_f32 v{FF}, v{FF}")
        self.nop(1)
        A(f"v_mul_f32 v{LL}, v{FF}, v{O+1}")
        self.nop(1)
        for k in range(4):
            A(f"v_mul_f32_dpp v{O+8+k}, v{FF}, v{regs[0]+k} row_newbcast:0 row_mask:0xf bank_mask:0xf")
        A(f"v_add_f32_dpp v{LL}, v{LL}, v{LL} row_ror:1 row_mask:0xf bank_mask:0xf")
        for r in range(1, 4 * self.H):
            for k in range(4):
                A(f"v_fmac_f32_dpp v{O+8+k}, v{FF}, v{regs[r]+k} row_newbcast:{r} row_mask:0xf bank_mask:0xf")
            if r == 1:
                A(f"v_add_f32_dpp v{LL}, v{LL}, v{LL} row_ror:2 row_mask:0xf bank_mask:0xf")
            if r == 2 and self.H == 2:
                A(f"v_add_f32_dpp v{LL}, v{LL}, v{LL} row_ror:4 row_mask:0xf bank_mask:0xf")
            if r == 1 + self.H:
                A(f"v_rcp_f32 v{LL}, v{LL}")
        for k in range(4):
            A(f"v_mul_f32 v{O+8+k}, v{LL}, v{O+8+k}")
        A(f"v_cvt_pk_bf16_f32 v{O+4}, v{O+8}, v{O+9}")
        A(f"v_cvt_pk_bf16_f32 v{O+5}, v{O+10}, v{O+11}")
        A(f"ds_write_b64 v{VAW}, v[{O+4}:{O+5}]")
        self.a_frags_from_stage(VAR, AF)
        self.mfmas(AF, BF, DT, 4, 4, lgkm=True)
        self.d_to_lds(DT, 4, TMP, TMP + 1, VDW)
        A("s_waitcnt lgkmcnt(0)")
        self.bar()
        A("s_cmp_eq_u32 s3, 0")
        A(f"s_cbranch_scc0 {EX}")
        self.d_sum(G, TT, TMP)
        for k in range(4):
            A(f"v_min_u32 v{TMP+4+k}, -2, v{TMP+4+k}")
        A(f"v_lshlrev_b32 v{TMP}, 11, v{G}")
        A(f"v_lshl_add_u32 v{TMP}, v{TT}, 4, v{TMP}")
        A("s_mov_b32 exec_hi, 0")
        A(f"buffer_store_dwordx4 v[{TMP+4}:{TMP+7}], v{TMP}, s[84:87], s60 offen sc1")
        self.stamp(9)
        self.dstamp(4)
        A(f"s_branch {EX}")

        L("L_tail_up")
        P = 12
        P = DT
        regs = [AF + 4 * i for i in range(4)] + [DT + 4 * i for i in range(4)]
        self.poll_multi([([f"s_add_u32 s57, s56, {hg*4096}", f"buffer_load_dwordx4 v[{regs[hg]}:{regs[hg]+3}], v12, s[84:87], s57 offen sc1"],
                          [regs[hg] + k for k in range(4)]) for hg in range(8)], TMP)
        self.stamp(8)
        X1 = TMP + 4
        self.sum8_x1(regs, X1, XV, GAV, TMP)
        S1, S2, U0, U1 = TMP + 8, TMP + 9, TMP + 10, TMP + 11
        A(f"v_add_f32 v{S1}, v{X1}, v{X1+1}")
        A(f"v_mul_f32 v{S2}, v{X1}, v{X1}")
        A(f"v_add_f32 v{U0}, v{X1+2}, v{X1+3}")
        A(f"v_fmac_f32 v{S2}, v{X1+1}, v{X1+1}")
        A(f"v_add_f32 v{S1}, v{S1}, v{U0}")
        A(f"v_fmac_f32 v{S2}, v{X1+2}, v{X1+2}")
        A(f"v_fmac_f32 v{S2}, v{X1+3}, v{X1+3}")
        self.allred32([S1, S2], [U0, U1])
        A(f"v_lshlrev_b32 v{U0}, 5, v{HB}")
        A("s_lshl_b32 s54, s3, 3")
        A(f"v_add_u32 v{U1}, s54, v{U0}")
        A(f"ds_write_b64 v{U1}, v[{S1}:{S2}] offset:{L_ST}")
        A("s_waitcnt lgkmcnt(0)")
        self.bar()
        Q8 = TMP + 12
        A(f"ds_read_b128 v[{Q8}:{Q8+3}], v{U0} offset:{L_ST}")
        A(f"ds_read_b128 v[{Q8+4}:{Q8+7}], v{U0} offset:{L_ST+16}")
        A("s_waitcnt lgkmcnt(0)")
        A(f"v_add_f32 v{S1}, v{Q8}, v{Q8+2}")
        A(f"v_add_f32 v{S2}, v{Q8+1}, v{Q8+3}")
        A(f"v_add_f32 v{U0}, v{Q8+4}, v{Q8+6}")
        A(f"v_add_f32 v{U1}, v{Q8+5}, v{Q8+7}")
        A(f"v_add_f32 v{S1}, v{S1}, v{U0}")
        A(f"v_add_f32 v{S2}, v{S2}, v{U1}")
        self.ln_norm(S1, S2, X1, U0, U1)
        self.modulate(X1, T4U, SBV, SBV + 1, TMP, TMP + 12, VAW)
        self.a_frags_from_stage(VAR, AF)
        self.mfmas(AF, BF, DT, 4, 4, lgkm=True)
        self.d_to_lds(DT, 4, TMP, TMP + 1, VDW)
        A("s_waitcnt lgkmcnt(0)")
        self.bar()
        A("s_cmp_eq_u32 s3, 0")
        A(f"s_cbranch_scc0 {EX}")
        A(f"v_lshrrev_b32 v{TMP}, 3, v2")
        A(f"v_and_b32 v{TMP}, 1, v{TMP}")
        A(f"v_and_b32 v{TMP+1}, 7, v2")
        A(f"v_lshlrev_b32 v{TMP+2}, 8, v{TMP}")
        A(f"v_lshl_add_u32 v{TMP+2}, v{TMP+1}, 4, v{TMP+2}")
        GT = AF
        for j in range(4):
            A(f"ds_read_b128 v[{AF+4*j}:{AF+4*j+3}], v{TMP+2} offset:{L_D + j*512}")
            A(f"ds_read_b128 v[{DT+4*j}:{DT+4*j+3}], v{TMP+2} offset:{L_D + j*512 + 128}")
        A(f"v_lshlrev_b32 v{TMP+3}, 6, v{TMP}")
        A(f"v_lshl_add_u32 v{TMP+3}, v{TMP+1}, 3, v{TMP+3}")
        A("s_waitcnt lgkmcnt(0)")
        for base in (AF, DT):
            for k in range(4):
                A(f"v_add_f32 v{base+k}, v{base+k}, v{base+4+k}")
                A(f"v_add_f32 v{base+8+k}, v{base+8+k}, v{base+12+k}")
            for k in range(4):
                A(f"v_add_f32 v{base+k}, v{base+k}, v{base+8+k}")
            self.rnd2(base, base + 1, base + 4)
            self.rnd2(base + 2, base + 3, base + 5)
        A(f"s_mov_b32 s58, {f32(-LOG2E)}")
        for k in range(4):
            A(f"v_mul_f32 v{AF+4+k}, s58, v{AF+k}")
        for k in range(4):
            A(f"v_exp_f32 v{AF+4+k}, v{AF+4+k}")
        self.nop(1)
        for k in range(4):
            A(f"v_add_f32 v{AF+4+k}, 1.0, v{AF+4+k}")
        for k in range(4):
            A(f"v_rcp_f32 v{AF+4+k}, v{AF+4+k}")
        self.nop(1)
        for k in range(4):
            A(f"v_mul_f32 v{AF+k}, v{AF+k}, v{AF+4+k}")
        self.rnd2(AF, AF + 1, AF + 4)
        self.rnd2(AF + 2, AF + 3, AF + 5)
        for k in range(4):
            A(f"v_mul_f32 v{AF+k}, v{AF+k}, v{DT+k}")
        A(f"v_cvt_pk_bf16_f32 v{AF+8}, v{AF}, v{AF+1}")
        A(f"v_cvt_pk_bf16_f32 v{AF+9}, v{AF+2}, v{AF+3}")
        A(f"v_min_u32 v{AF+8}, -2, v{AF+8}")
        A(f"v_min_u32 v{AF+9}, -2, v{AF+9}")
        self.nop(1)
        A(f"v_mov_b32_dpp v{AF+10}, v{AF+8} quad_perm:[1,1,3,3] row_mask:0xf bank_mask:0xf")
        A(f"v_mov_b32_dpp v{AF+11}, v{AF+9} quad_perm:[1,1,3,3] row_mask:0xf bank_mask:0xf")
        A("s_mov_b64 exec, 0x5555")
        A(f"buffer_store_dwordx4 v[{AF+8}:{AF+11}], v{TMP+3}, s[84:87], s60 offen sc1")
        self.stamp(9)
        self.dstamp(5)
        A(f"s_branch {EX}")

        L("L_tail_dn")
        A("s_cmp_eq_u32 s3, 0")
        A("s_cbranch_scc0 L_dn_hh")
        regs = [DAF + 4 * i for i in range(8)]
        self.poll_multi([([f"s_add_u32 s54, s56, {hg*4096}", f"buffer_load_dwordx4 v[{regs[hg]}:{regs[hg]+3}], v15, s[84:87], s54 offen sc1"],
                          [regs[hg] + k for k in range(4)]) for hg in range(8)], DAF + 32)
        self.unpack2(16, DAF + 32, DAF + 33)
        self.unpack2(17, DAF + 34, DAF + 35)
        self.unpack2(18, DAF + 36, DAF + 37)
        self.unpack2(19, DAF + 38, DAF + 39)
        self.sum8_x1(regs, DAF + 40, DAF + 32, DAF + 36, 22)
        A(f"v_cvt_pk_bf16_f32 v10, v{DAF+40}, v{DAF+41}")
        A(f"v_cvt_pk_bf16_f32 v11, v{DAF+42}, v{DAF+43}")
        L("L_dn_hh")
        self.poll_multi([([f"buffer_load_dwordx4 v[{DAF+36+4*t}:{DAF+39+4*t}], v7, s[16:19], s57 offen offset:{t*1024} sc1"],
                          [DAF + 36 + 4 * t + k for k in range(4)]) for t in range(2)], 22)
        self.stamp(8)
        A(f"ds_write_b128 v8, v[{DAF+36}:{DAF+39}]")
        A(f"ds_write_b128 v8, v[{DAF+40}:{DAF+43}] offset:1024")
        for t in range(11):
            A(f"ds_read_b128 v[{DAF+4*t}:{DAF+4*t+3}], v12 offset:{t*128}")
        self.mfmas(DAF, DBF, DDT, 11, 2, lgkm=True)
        self.d_to_lds(DDT, 2, 22, 23, VDW)
        A("s_waitcnt lgkmcnt(0)")
        self.bar()
        A("s_cmp_eq_u32 s3, 0")
        A(f"s_cbranch_scc0 {EX}")
        A("v_lshlrev_b32 v22, 8, v13")
        A("v_lshl_add_u32 v22, v14, 4, v22")
        F = DAF
        for j in range(4):
            A(f"ds_read_b128 v[{F+4*j}:{F+4*j+3}], v22 offset:{L_D + j*512}")
        self.unpack2(20, F + 16, F + 17)
        self.unpack2(21, F + 18, F + 19)
        self.unpack2(10, F + 20, F + 21)
        self.unpack2(11, F + 22, F + 23)
        A("v_lshlrev_b32 v23, 10, v13")
        A("v_lshl_add_u32 v23, v14, 3, v23")
        A("s_lshl_b32 s54, s59, 6")
        A("s_waitcnt lgkmcnt(0)")
        for k in range(4):
            A(f"v_add_f32 v{F+k}, v{F+k}, v{F+4+k}")
            A(f"v_add_f32 v{F+8+k}, v{F+8+k}, v{F+12+k}")
        for k in range(4):
            A(f"v_add_f32 v{F+k}, v{F+k}, v{F+8+k}")
        self.rnd2(F, F + 1, F + 4)
        self.rnd2(F + 2, F + 3, F + 5)
        for k in range(4):
            A(f"v_mul_f32 v{F+k}, v{F+k}, v{F+16+k}")
        self.rnd2(F, F + 1, F + 4)
        self.rnd2(F + 2, F + 3, F + 5)
        for k in range(4):
            A(f"v_add_f32 v{F+k}, v{F+k}, v{F+20+k}")
        A(f"v_cvt_pk_bf16_f32 v{F+8}, v{F}, v{F+1}")
        A(f"v_cvt_pk_bf16_f32 v{F+9}, v{F+2}, v{F+3}")
        A("s_mov_b64 exec, 0xffff")
        A(f"buffer_store_dwordx2 v[{F+8}:{F+9}], v23, s[72:75], s54 offen")
        self.stamp(9)
        self.dstamp(1)
        A(f"s_branch {EX}")

    def d_sum(self, G, TT, t):
        A = self.A
        A(f"v_and_b32 v{t}, 1, v{G}")
        A(f"v_lshlrev_b32 v{t}, 8, v{t}")
        A(f"v_lshl_add_u32 v{t}, v{TT}, 4, v{t}")
        for j in range(4):
            A(f"ds_read_b128 v[{t+4+4*j}:{t+7+4*j}], v{t} offset:{L_D + j*512}")
        A("s_waitcnt lgkmcnt(0)")
        for k in range(4):
            A(f"v_add_f32 v{t+4+k}, v{t+4+k}, v{t+8+k}")
            A(f"v_add_f32 v{t+12+k}, v{t+12+k}, v{t+16+k}")
        for k in range(4):
            A(f"v_add_f32 v{t+4+k}, v{t+4+k}, v{t+12+k}")

    def sum8_x1(self, regs, X1, XV, GAV, t):
        A = self.A
        for a, b in ((0, 1), (2, 3), (4, 5), (6, 7), (0, 2), (4, 6)):
            for k in range(4):
                A(f"v_add_f32 v{regs[a]+k}, v{regs[a]+k}, v{regs[b]+k}")
        for k in range(4):
            A(f"v_add_f32 v{X1+k}, v{regs[0]+k}, v{regs[4]+k}")
        self.rnd2(X1, X1 + 1, t)
        self.rnd2(X1 + 2, X1 + 3, t + 1)
        for k in range(4):
            A(f"v_mul_f32 v{X1+k}, v{X1+k}, v{GAV+k}")
        self.rnd2(X1, X1 + 1, t)
        self.rnd2(X1 + 2, X1 + 3, t + 1)
        for k in range(4):
            A(f"v_add_f32 v{X1+k}, v{X1+k}, v{XV+k}")
        self.rnd2(X1, X1 + 1, t)
        self.rnd2(X1 + 2, X1 + 3, t + 1)

    def ln_norm(self, S1, S2, X, U0, U1):
        A = self.A
        A(f"s_mov_b32 s58, {f32(1.0/512)}")
        A(f"v_mul_f32 v{S1}, s58, v{S1}")
        A(f"v_mul_f32 v{S2}, s58, v{S2}")
        A(f"v_fma_f32 v{S2}, -v{S1}, v{S1}, v{S2}")
        A(f"v_max_f32 v{S2}, 0, v{S2}")
        self.rnd2(S1, S2, U0)
        A(f"v_add_f32 v{S2}, {f32(1e-5)}, v{S2}")
        self.rnd1(S2)
        A(f"v_sqrt_f32 v{S2}, v{S2}")
        for k in range(4):
            A(f"v_sub_f32 v{X+k}, v{X+k}, v{S1}")
        self.rnd1(S2)
        A(f"v_rcp_f32 v{S2}, v{S2}")
        self.rnd2(X, X + 1, U0)
        self.rnd2(X + 2, X + 3, U1)
        for k in range(4):
            A(f"v_mul_f32 v{X+k}, v{X+k}, v{S2}")
        self.rnd2(X, X + 1, U0)
        self.rnd2(X + 2, X + 3, U1)

    def modulate(self, N, T4, sp0, sp1, t0, w, VAW):
        A = self.A
        for k in range(4):
            A(f"v_mul_f32 v{N+k}, v{N+k}, v{T4+k}")
        self.rnd2(N, N + 1, t0)
        self.rnd2(N + 2, N + 3, t0 + 1)
        self.unpack2(sp0, w, w + 1)
        self.unpack2(sp1, w + 2, w + 3)
        for k in range(4):
            A(f"v_add_f32 v{N+k}, v{N+k}, v{w+k}")
        A(f"v_cvt_pk_bf16_f32 v{w+4}, v{N}, v{N+1}")
        A(f"v_cvt_pk_bf16_f32 v{w+5}, v{N+2}, v{N+3}")
        A(f"ds_write_b64 v{VAW}, v[{w+4}:{w+5}]")


HEADER = open("cdna_kernels/%s.s.ref" % NAME).read().split("; Override launch geometry")[0] if True else ""

if __name__ == "__main__":
    import argparse
    ap = argparse.ArgumentParser()
    ap.add_argument("-o", default="k.s")
    ap.add_argument("--R", type=int, default=3)
    ap.add_argument("--B", type=int, default=32)
    ap.add_argument("--stamps", action="store_true")
    ap.add_argument("--sleep", type=int, default=1)
    ap.add_argument("--NS", type=int, default=12)
    ap.add_argument("--R0", type=int, default=3)
    ap.add_argument("--grp", default="iod")
    ap.add_argument("--CP", type=int, default=0)
    ap.add_argument("--dbg", default="")
    ap.add_argument("--pace", type=int, default=0)
    ap.add_argument("--tpol", default="nt")
    ap.add_argument("--xmap", action="store_true")
    ap.add_argument("--flagq", action="store_true")
    ap.add_argument("--TH", type=int, default=480)
    ap.add_argument("--kvpol", default="nt")
    ap.add_argument("--dry", action="store_true")
    ap.add_argument("--pm", action="store_true")
    ap.add_argument("--rot", type=int, default=0)
    ap.add_argument("--H", type=int, default=1)
    ap.add_argument("--late", action="store_true")
    ap.add_argument("--hold", action="store_true")
    ap.add_argument("--px", type=int, default=33)
    ap.add_argument("--egw", type=int, default=0)
    ap.add_argument("--cstr", type=int, default=4224)
    ap.add_argument("--ps1", type=int, default=1)
    ap.add_argument("--ps2", type=int, default=1)
    a = ap.parse_args()
    B = a.B
    if a.stamps and B > 32:
        B = 32
    g = Gen(R=a.R, B=B, stamps=a.stamps, sleep=a.sleep, NS=a.NS, R0=a.R0, grp=a.grp, CP=a.CP, dbg=a.dbg, pace=a.pace, tpol=a.tpol, xmap=a.xmap, flagq=a.flagq, ps1=a.ps1, ps2=a.ps2, TH=a.TH, kvpol=a.kvpol, dry=a.dry, pm=a.pm, rot=a.rot, H=a.H, cstr=a.cstr, egw=a.egw, px=a.px, late=a.late, hold=a.hold)
    open(a.o, "w").write(HEADER + g.build())
```

```python
import sys, struct

NAME = "adaLN_cond__mha_block_cached__glu_gated_swiglu__decode"

def f32(x):
    return "0x%08x" % struct.unpack("<I", struct.pack("<f", x))[0]

LOG2E = 1.4426950408889634
SCALE = 128 ** -0.5

MOD_OFF = 0x0000
Q_OFF = 0x8000
PART_OFF = 0x10000
ATT_OFF = 0x90000
HH_OFF = 0x98000
CNT_OFF = 0x9A000
CTR_OFF = 0x100000
WS_USED = 0x9C000
STAMP_OFF = 0x10000000
L_A = 0
L_D = L_A + 2048
L_ST = L_D + 2048
L_Q = L_ST + 64
L_Z = L_Q + 512
L_CNT = L_Z
L_QF = L_Z + 16
L_NEED = L_Z + 32
L_RL = L_Z + 256
L_ML = L_Z + 512
L_P = 5376
L_W = L_P + 16384
LDS_BYTES = L_W + 90112
assert L_ML + 128 <= L_P and L_P % 128 == 0

R_MOD0, R_Q0, R_WO0, R_WO1, R_UP0, R_UP1, R_DN0 = 0, 48, 112, 176, 192, 235, 240
SENT = 0xFFFFFFFF


class Gen:
    def __init__(self, R=3, B=32, stamps=False, NS=12, sleep=1, R0=3, grp='iod', CP=0, dbg='', pace=0, tpol='nt', xmap=False, flagq=False, ps1=1, ps2=1, TH=480, kvpol='nt', dry=False, pm=False, rot=0, H=1, cstr=4224, egw=0, px=33, late=False, hold=False, cpf=0):
        self.o = []
        self.R, self.B, self.stamps, self.NS, self.sleep, self.R0, self.grp = R, B, stamps, NS, sleep, R0, grp
        self.uid = 0
        self.CP = CP
        self.dbg = dbg
        self.cpf = cpf
        self.late, self.hold = late, hold
        self.px = px
        self.egw = egw
        self.cstr = cstr
        self.H = H
        self.rot = rot
        self.pm = pm
        self.dry = dry
        self.kvpol = kvpol
        self.TH = TH
        self.ps1, self.ps2 = ps1, ps2
        self.pace, self.tpol, self.xmap, self.flagq = pace, tpol, xmap, flagq

    def A(self, s):
        self.o.append("    " + s)

    def L(self, s):
        self.o.append(s + ":")

    def lab(self, p):
        self.uid += 1
        return f"L_{p}_{self.uid}"

    def nop(self, n):
        while n > 0:
            k = min(n, 16)
            self.A(f"s_nop {k-1}")
            n -= k

    def srd(self, d, b, nbytes):
        self.A(f"s_mov_b32 s{d}, s{b}")
        self.A(f"s_mov_b32 s{d+1}, s{b+1}")
        self.A(f"s_mov_b32 s{d+2}, {nbytes}")
        self.A(f"s_mov_b32 s{d+3}, 0x20000")

    def stamp(self, idx, src=None, wave=False):
        if not self.stamps:
            return
        A = self.A
        if src is None:
            A("s_memrealtime s[90:91]")
        else:
            A(f"s_mov_b64 s[90:91], {src}")
        A("s_mov_b64 s[92:93], exec")
        A("s_mov_b64 exec, 1")
        A("s_lshl_b32 s94, s2, 9")
        if wave:
            A("s_lshl_b32 s95, s3, 5")
            A("s_add_u32 s94, s94, s95")
        A(f"s_add_u32 s94, s94, {STAMP_OFF + idx*8}")
        A("s_waitcnt lgkmcnt(0)")
        A("v_mov_b32 v166, s90")
        A("v_mov_b32 v167, s91")
        A("buffer_store_dwordx2 v[166:167], off, s[84:87], s94")
        A("s_mov_b64 exec, s[92:93]")

    def rnd2(self, a, b, t):
        self.A(f"v_cvt_pk_bf16_f32 v{t}, v{a}, v{b}")
        self.A(f"v_lshlrev_b32 v{a}, 16, v{t}")
        self.A(f"v_and_b32 v{b}, 0xffff0000, v{t}")

    def pk4(self, op, d, a, b):
        assert d % 2 == 0 and a % 2 == 0 and b % 2 == 0
        for k in (0, 2):
            self.A(f"v_pk_{op}_f32 v[{d+k}:{d+k+1}], v[{a+k}:{a+k+1}], v[{b+k}:{b+k+1}]")

    def rnd1(self, a):
        self.A(f"v_cvt_pk_bf16_f32 v{a}, v{a}, v{a}")
        self.A(f"v_and_b32 v{a}, 0xffff0000, v{a}")

    def unpack2(self, src, lo, hi):
        self.A(f"v_lshlrev_b32 v{lo}, 16, v{src}")
        self.A(f"v_and_b32 v{hi}, 0xffff0000, v{src}")

    def allred32(self, regs, tmps):
        A = self.A
        for rot in (8, 4, 2, 1):
            self.nop(2 if len(regs) < 2 else max(0, 2 - (len(regs) - 1)))
            for r in regs:
                A(f"v_add_f32_dpp v{r}, v{r}, v{r} row_ror:{rot} row_mask:0xf bank_mask:0xf")
        for r, t in zip(regs, tmps):
            A(f"v_mov_b32 v{t}, v{r}")
        self.nop(2)
        for r, t in zip(regs, tmps):
            A(f"v_permlane16_swap_b32 v{r}, v{t}")
        self.nop(1)
        for r, t in zip(regs, tmps):
            A(f"v_add_f32 v{r}, v{r}, v{t}")

    def slice_of(self, dst, r0, n):
        A = self.A
        A(f"s_sub_u32 s{dst}, s89, {r0}")
        if not self.xmap:
            return
        q, rem = divmod(n, 8)
        A(f"s_and_b32 s68, s{dst}, 7")
        A(f"s_lshr_b32 s{dst}, s{dst}, 3")
        A(f"s_min_u32 s69, s68, {rem}")
        A(f"s_mul_i32 s68, s68, {q}")
        A(f"s_add_u32 s{dst}, s{dst}, s68")
        A(f"s_add_u32 s{dst}, s{dst}, s69")

    def dstamp(self, word, mn=False, tagreg=80, srd=76):
        if "dtime" not in self.dbg:
            return
        A = self.A
        A("s_memrealtime s[90:91]")
        A("s_mov_b64 s[92:93], exec")
        A("s_mov_b64 exec, 1")
        A("s_waitcnt lgkmcnt(0)")
        A(f"s_sub_u32 s90, s90, s{tagreg}")
        if mn:
            A("s_sub_u32 s90, 100000, s90")
        A("v_mov_b32 v166, s90")
        A(f"buffer_atomic_umax v166, off, s[{srd}:{srd+3}], 0 offset:{word*4} sc1")
        A("s_mov_b64 exec, s[92:93]")

    def dmark(self, k):
        if "dpro" in self.dbg:
            r = [4, 6, 100, 42][k]
            self.A(f"s_memrealtime s[{r}:{r+1}]")

    def demit(self):
        if "dpro" not in self.dbg:
            return
        A, L = self.A, self.L
        A("s_waitcnt lgkmcnt(0)")
        A("s_mov_b64 exec, 1")
        def em(reg, word, mn=False):
            l = self.lab("de")
            A(f"s_cmp_eq_u32 s{reg}, 0")
            A(f"s_cbranch_scc1 {l}")
            A(f"s_sub_u32 s90, s{reg}, s80")
            if mn:
                A("s_sub_u32 s90, 100000, s90")
            A("v_mov_b32 v166, s90")
            A(f"buffer_atomic_umax v166, off, s[76:79], 0 offset:{word*4} sc1")
            L(l)
        em(4, 3); em(4, 6, True)
        em(100, 9); em(100, 10, True)
        a = self.lab("da"); b = self.lab("db")
        A("s_cmp_lt_u32 s89, 16")
        A(f"s_cbranch_scc0 {a}")
        em(6, 7); em(42, 11)
        L(a)
        A("s_cmp_ge_u32 s89, 48")
        A(f"s_cbranch_scc0 {b}")
        em(6, 8); em(42, 12)
        L(b)
        A("s_mov_b64 exec, -1")

    def bar(self):
        if not self.dry:
            self.A("s_barrier")
            return
        l = self.lab("nb")
        self.A("s_cmp_eq_u32 s69, 0")
        self.A(f"s_cbranch_scc0 {l}")
        self.A("s_barrier")
        self.L(l)

    def poll_head(self):
        l = self.lab("poll")
        self.L(l)
        return l

    def poll_tail(self, l, sleep=None):
        A = self.A
        d = self.lab("pdone")
        A(f"s_cbranch_vccz {d}")
        A("s_cmp_eq_u32 s88, 0")
        A(f"s_cbranch_scc1 {d}")
        A("s_sub_u32 s88, s88, 1")
        if (self.sleep if sleep is None else sleep):
            A(f"s_sleep {self.sleep if sleep is None else sleep}")
        A(f"s_branch {l}")
        self.L(d)

    def poll_multi(self, loads, t):
        A, L = self.A, self.L
        n = len(loads)
        if not self.pm:
            pl = self.poll_head()
            for lines, regs in loads:
                for x in lines:
                    A(x)
            A("s_waitcnt vmcnt(0)")
            self.check_sent([r for lines, regs in loads for r in regs], t)
            self.poll_tail(pl)
            return
        A(f"s_mov_b32 s95, {(1 << n) - 1}")
        first = True
        top = self.lab("mp")
        done = self.lab("mpd")
        for lines, regs in loads:
            for x in lines:
                A(x)
        chk = self.lab("mpc")
        A(f"s_branch {chk}")
        L(top)
        for r, (lines, regs) in enumerate(loads):
            sk = self.lab("mps")
            A(f"s_bitcmp1_b32 s95, {r}")
            A(f"s_cbranch_scc0 {sk}")
            for x in lines:
                A(x)
            L(sk)
        L(chk)
        A("s_waitcnt vmcnt(0)")
        for r, (lines, regs) in enumerate(loads):
            sk = self.lab("mpk")
            A(f"s_bitcmp1_b32 s95, {r}")
            A(f"s_cbranch_scc0 {sk}")
            self.check_sent(regs, t)
            A(f"s_cbranch_vccnz {sk}")
            A(f"s_bitset0_b32 s95, {r}")
            L(sk)
        A("s_cmp_eq_u32 s95, 0")
        A(f"s_cbranch_scc1 {done}")
        A("s_cmp_eq_u32 s88, 0")
        A(f"s_cbranch_scc1 {done}")
        A("s_sub_u32 s88, s88, 1")
        if self.sleep:
            A(f"s_sleep {self.sleep}")
        A(f"s_branch {top}")
        L(done)

    def check_sent(self, regs, t):
        A = self.A
        regs = list(regs)
        if len(regs) >= 3:
            A(f"v_max3_u32 v{t}, v{regs[0]}, v{regs[1]}, v{regs[2]}")
            regs = regs[3:]
        else:
            A(f"v_max_u32 v{t}, v{regs[0]}, v{regs[1]}")
            regs = regs[2:]
        while len(regs) >= 2:
            A(f"v_max3_u32 v{t}, v{t}, v{regs[0]}, v{regs[1]}")
            regs = regs[2:]
        if regs:
            A(f"v_max_u32 v{t}, v{t}, v{regs[0]}")
        A(f"v_cmp_eq_u32 vcc, -1, v{t}")

    def check_tags(self, regs, t):
        A = self.A
        A(f"v_xor_b32 v{t}, s80, v{regs[0]}")
        for r in regs[1:]:
            A(f"v_xor_b32 v{t+1}, s80, v{r}")
            A(f"v_or_b32 v{t}, v{t}, v{t+1}")
        A(f"v_cmp_ne_u32 vcc, 0, v{t}")

    def dma_weights(self, srd, nins, voff, row_step_bytes, lds_base_s, soff0=0, pol="nt", skip=""):
        A = self.A
        if "notaildma" in self.dbg and getattr(self, "intail", False):
            return
        if "noprodma" in self.dbg and not getattr(self, "intail", False):
            nins = 16
            A(f"s_mov_b32 s{srd+2}, 0")
        A(f"s_mov_b32 s70, {soff0}")
        A(f"s_add_u32 s71, s{lds_base_s}, {L_W}")
        intail = getattr(self, "intail", False)
        if intail:
            pol = self.tpol
            if skip and skip in self.dbg:
                return
        for i in range(nins):
            if intail and self.pace and i >= self.pace:
                A(f"s_waitcnt vmcnt({self.pace-1})")
            A("s_mov_b32 m0, s71")
            A(f"s_add_u32 s71, s71, 1024")
            A(f"buffer_load_dwordx4 v{voff}, s[{srd}:{srd+3}], s70 offen {pol} lds")
            A(f"s_add_u32 s70, s70, {row_step_bytes}")

    def tr_reads(self, vaddr, breg, nk, cgs, rowb):
        for t in range(nk):
            for ci, cgoff in enumerate(cgs):
                r = breg + (t * len(cgs) + ci) * 4
                off = t * 32 * rowb + cgoff
                self.A(f"ds_read_b64_tr_b16 v[{r}:{r+1}], v{vaddr} offset:{off}")
                self.A(f"ds_read_b64_tr_b16 v[{r+2}:{r+3}], v{vaddr} offset:{off + 4*rowb}")

    def mfmas(self, areg, breg, dreg, nk, ncg, lgkm=False):
        for t in range(nk):
            if lgkm:
                self.A(f"s_waitcnt lgkmcnt({nk-1-t})")
            for c in range(ncg):
                a = areg + 4 * t
                b = breg + (t * ncg + c) * 4
                d = dreg + 4 * c
                src = "0" if t == 0 else f"v[{d}:{d+3}]"
                self.A(f"v_mfma_f32_16x16x32_bf16 v[{d}:{d+3}], v[{a}:{a+3}], v[{b}:{b+3}], {src}")

    def d_to_lds(self, dreg, ncg, x0, x1, vaddr):
        A = self.A
        self.nop(8)
        for c in range(ncg):
            A(f"v_mov_b32_dpp v{x0}, v{dreg+4*c} quad_perm:[0,1,2,3] row_mask:{1<<c:#x} bank_mask:0xf")
            A(f"v_mov_b32_dpp v{x1}, v{dreg+4*c+1} quad_perm:[0,1,2,3] row_mask:{1<<c:#x} bank_mask:0xf")
        A(f"ds_write_b32 v{vaddr}, v{x0}")
        A(f"ds_write_b32 v{vaddr}, v{x1} offset:256")

    def a_frags_from_stage(self, vaddr, areg):
        for t in range(4):
            self.A(f"ds_read_b128 v[{areg+4*t}:{areg+4*t+3}], v{vaddr} offset:{t*64}")

    def build(self):
        A, L = self.A, self.L
        o = self.o
        o.append(f"; @launch grid=(256,1,1) block=(768,1,1) lds={LDS_BYTES}")
        o.append('.amdgcn_target "amdgcn-amd-amdhsa--gfx950"')
        o.append(".text")
        o.append(f".globl {NAME}_kernel")
        o.append(".p2align 8")
        o.append(f".type {NAME}_kernel,@function")
        L(f"{NAME}_kernel")
        if self.stamps:
            A("s_memrealtime s[100:101]")
        A("s_cmp_ge_u32 s2, 256")
        A("s_cbranch_scc1 L_end")
        A("s_load_dwordx4 s[4:7], s[0:1], 8")
        A("s_load_dwordx4 s[96:99], s[0:1], 96")
        A("v_lshrrev_b32 v1, 6, v0")
        A("v_and_b32 v2, 63, v0")
        A("v_readfirstlane_b32 s3, v1")
        if self.grp == "pair":
            A("s_and_b32 s40, s2, 7")
            A("s_lshr_b32 s40, s40, 1")
            A("s_lshr_b32 s43, s2, 4")
            A("s_lshl_b32 s43, s43, 2")
            A("s_add_u32 s40, s40, s43")
            A("s_and_b32 s41, s2, 1")
            A("s_lshr_b32 s43, s2, 3")
            A("s_and_b32 s43, s43, 1")
            A("s_lshl_b32 s43, s43, 1")
            A("s_add_u32 s41, s41, s43")
        else:
            A("s_lshr_b32 s41, s2, 1")
            A("s_xor_b32 s40, s41, s2")
            A("s_and_b32 s40, s40, 1")
            A("s_and_b32 s41, s41, 3")
            A("s_lshr_b32 s43, s2, 3")
            A("s_lshl_b32 s43, s43, 1")
            A("s_add_u32 s40, s40, s43")
        A("s_lshr_b32 s89, s40, 1")
        A("s_add_u32 s89, s89, s41")
        A("s_and_b32 s89, s89, 3")
        A("s_lshl_b32 s89, s89, 6")
        A("s_add_u32 s89, s89, s40")
        A("s_cmp_ge_u32 s3, 8")
        A("s_cbranch_scc1 L_helper")
        self.streamer()
        L("L_helper")
        self.helper()
        L("L_end")
        A("s_endpgm")
        L("L_codeend")
        o.append('.section .rodata,"a"')
        o.append(".p2align 6")
        o.append(f".amdhsa_kernel {NAME}_kernel")
        o.append("  .amdhsa_next_free_vgpr 168")
        o.append("  .amdhsa_next_free_sgpr 102")
        o.append("  .amdhsa_accum_offset 168")
        o.append("  .amdhsa_group_segment_fixed_size 0")
        o.append("  .amdhsa_kernarg_size 112")
        o.append("  .amdhsa_user_sgpr_count 2")
        o.append("  .amdhsa_user_sgpr_kernarg_segment_ptr 1")
        o.append("  .amdhsa_system_sgpr_workgroup_id_x 1")
        o.append("  .amdhsa_float_denorm_mode_32 3")
        o.append(".end_amdhsa_kernel")
        return "\n".join(o) + "\n"

    def streamer(self):
        A, L = self.A, self.L
        R, B, NS, R0 = self.R, self.B, self.NS, self.R0
        VOFF, QF, MK, D, M, MN, LS = 1, 2, 6, 10, 14, 15, 16
        AC, T0, T1, S, PP = 17, 21, 22, 23, 24
        AS = 26
        LANE = 34
        EP, CLM = 35, 25
        RING = 168 - 4 * B - (2 if self.stamps else 0)
        RING -= RING % 2
        assert RING >= 36
        A(f"v_mov_b32 v{LANE}, v2")
        A("s_lshl_b32 s44, s41, 3")
        A("s_add_u32 s44, s44, s3")
        A("s_lshl_b32 s44, s44, 12")
        A(f"s_mul_i32 s45, s40, {self.rot}")
        A("s_lshl_b32 s45, s45, 15")
        A("s_add_u32 s44, s44, s45")
        A("s_lshl_b32 s33, s40, 21")
        A(f"v_lshlrev_b32 v{VOFF}, 4, v2")
        A("s_waitcnt lgkmcnt(0)")
        self.srd(8, 4, 0x8000000)
        self.srd(12, 6, 0x8000000)
        N = (NS - 1) * 8 + R
        NC = (NS - 1) * 8

        def issue(p):
            i, j = divmod(p, 8)
            t, j = divmod(j, 4)
            r = RING + 4 * (p % B)
            srd = "s[8:11]" if t == 0 else "s[12:15]"
            if j == 0 and t == 0:
                A(f"s_add_u32 s16, s44, {i * 32 * 4096}")
                A("s_and_b32 s16, s16, 0x1fffff")
                A("s_add_u32 s16, s16, s33")
                if self.stamps and i < 12:
                    A(f"s_memrealtime s[{48+2*i}:{49+2*i}]")
            A(f"buffer_load_dwordx4 v[{r}:{r+3}], v{VOFF}, {srd}, s16 offen offset:{j*1024} {self.kvpol}")

        if self.hold:
            A("s_cmp_lt_u32 s89, 16")
            A("s_cbranch_scc0 L_nohold")
            A("s_barrier")
            L("L_nohold")
        for p in range(R0):
            issue(p)
        if self.stamps:
            A("s_memrealtime s[30:31]")
        self.srd(84, 98, 0x20000000)
        if self.hold:
            A("s_cmp_lt_u32 s89, 16")
            A("s_cbranch_scc1 L_nohold2")
        A("s_barrier")
        if self.hold:
            L("L_nohold2")
        if self.H == 2:
            A(f"s_xor_b32 s43, s40, {self.px}")
            A("s_min_u32 s43, s43, s40")
            A(f"s_xor_b32 s39, s43, {self.px}")
            A("s_lshl_b32 s39, s39, 21")
        else:
            A("s_mov_b32 s43, s40")
        A("s_lshl_b32 s45, s43, 3")
        A("s_add_u32 s45, s45, s3")
        A(f"s_mul_i32 s45, s45, {self.cstr}")
        A(f"s_add_u32 s45, s45, {CTR_OFF}")
        A("s_lshl_b32 s42, s3, 12")
        A(f"s_mul_i32 s38, s43, {self.rot}")
        A("s_lshl_b32 s38, s38, 15")
        A("s_add_u32 s42, s42, s38")
        A("s_lshl_b32 s43, s43, 21")
        if self.H == 2:
            A("s_lshr_b32 s32, s40, 5")
        else:
            A("s_mov_b32 s32, 0")
        A("s_mov_b32 s28, s32")
        A("s_mov_b32 s29, s32")
        A("s_add_u32 s26, s98, s45")
        A("s_addc_u32 s27, s99, 0")
        A(f"v_and_b32 v{T0}, 15, v{LANE}")
        A(f"v_and_b32 v{T1}, 1, v{LANE}")
        A(f"v_lshlrev_b32 v{T1}, 4, v{T1}")
        A(f"s_mov_b32 s17, 0xffff")
        A(f"v_mov_b32 v{S}, s17")
        A(f"v_lshlrev_b32 v{T1}, v{T1}, v{S}")
        A(f"v_lshrrev_b32 v{T0}, 1, v{T0}")
        for k in range(4):
            A(f"v_cmp_eq_u32 vcc, {k}, v{T0}")
            self.nop(2)
            A(f"v_cndmask_b32 v{MK+k}, 0, v{T1}, vcc")
        for k in range(4):
            A(f"v_mov_b32 v{D+k}, 0")
        A(f"v_mov_b32 v{M}, {f32(-3.0e38)}")
        A(f"v_mov_b32 v{MN}, 0")
        A(f"v_mov_b32 v{LS}, 0")
        A(f"v_and_b32 v35, 15, v{LANE}")
        A(f"v_lshlrev_b32 v35, 5, v35")
        A(f"v_lshrrev_b32 v{T1}, 4, v{LANE}")
        A(f"v_and_b32 v{S}, 1, v{T1}")
        A(f"v_lshl_add_u32 v35, v{S}, 4, v35")
        A(f"v_lshrrev_b32 v{T1}, 1, v{T1}")
        A(f"v_lshl_add_u32 v35, v{T1}, 9, v35")
        A("s_lshl_b32 s20, s3, 10")
        A(f"v_add_u32 v35, s20, v35")
        A("s_lshl_b32 s20, s3, 3")
        A(f"v_mov_b32 v25, s20")
        A(f"s_mov_b32 s18, {f32(SCALE)}")
        A(f"s_mov_b32 s19, {f32(LOG2E)}")
        for p in range(R0, B):
            A(f"s_waitcnt vmcnt({R0-1 if p < 8 else R-1})")
            issue(p)
        self.stamp(1)
        self.stamp(11, "s[100:101]")
        self.stamp(12, "s[30:31]")
        A(f"v_and_b32 v{T0}, 15, v{LANE}")
        A(f"v_lshlrev_b32 v{T0}, 4, v{T0}")
        A("s_lshl_b32 s20, s32, 8")
        A(f"v_add_u32 v{T0}, s20, v{T0}")
        if not self.flagq:
            A("s_barrier")
            A(f"ds_read_b128 v[{QF}:{QF+3}], v{T0} offset:{L_Q}")
            A("s_waitcnt lgkmcnt(0)")
        else:
            A(f"v_mov_b32 v{T1}, 0")
            A("s_mov_b32 s88, 0x400000")
            pl = self.poll_head()
            A(f"ds_read_b32 v{AS}, v{T1} offset:{L_QF}")
            A(f"ds_read_b128 v[{QF}:{QF+3}], v{T0} offset:{L_Q}")
            A("s_waitcnt lgkmcnt(0)")
            A(f"v_cmp_eq_u32 vcc, 0, v{AS}")
            self.poll_tail(pl, sleep=1)
        if self.stamps:
            A("s_waitcnt vmcnt(0)")
        beta = [0, 2, 1, 3]
        st = {"I": B, "landed": (B if self.stamps else B - R)}

        def need(c):
            if c >= st["landed"]:
                A(f"s_waitcnt vmcnt({st['I'] - 1 - c})")
                st["landed"] = c + 1

        def paced_issue():
            I = st["I"]
            if I >= N:
                return
            if I - st["landed"] >= R:
                A(f"s_waitcnt vmcnt({R-1})")
                st["landed"] = I - (R - 1)
            issue(I)
            st["I"] = I + 1

        def consume(c):
            i, j = divmod(c, 8)
            t, j = divmod(j, 4)
            r = RING + 4 * (c % B)
            need(c)
            if "nocomp" in self.dbg:
                A(f"v_xor_b32 v{AC}, v{AC}, v{r}")
            elif t == 0:
                A(f"v_dot2_f32_bf16 v{AC+j}, v{r}, v{QF}, 0")
                for k in range(1, 4):
                    A(f"v_dot2_f32_bf16 v{AC+j}, v{r+k}, v{QF+k}, v{AC+j}")
            else:
                a = AS + 4 * (j & 1)
                for k in range(4):
                    A(f"v_and_b32_dpp v{a+k}, v{PP}, v{MK+k} row_newbcast:{4*beta[j]} row_mask:0xf bank_mask:0xf")
                self.nop(2)
                A(f"v_mfma_f32_16x16x32_bf16 v[{D}:{D+3}], v[{a}:{a+3}], v[{r}:{r+3}], v[{D}:{D+3}]")

        def softmax():
            if "nocomp" in self.dbg:
                return
            self.nop(3)
            A(f"v_add_f32_dpp v{T0}, v{AC}, v{AC} row_ror:8 row_mask:0xf bank_mask:0x3")
            A(f"v_add_f32_dpp v{T1}, v{AC+2}, v{AC+2} row_ror:8 row_mask:0xf bank_mask:0x3")
            A(f"v_add_f32_dpp v{T0}, v{AC+1}, v{AC+1} row_ror:8 row_mask:0xf bank_mask:0xc")
            A(f"v_add_f32_dpp v{T1}, v{AC+3}, v{AC+3} row_ror:8 row_mask:0xf bank_mask:0xc")
            self.nop(1)
            A(f"v_add_f32_dpp v{S}, v{T0}, v{T0} row_shl:4 row_mask:0xf bank_mask:0x5")
            A(f"v_add_f32_dpp v{S}, v{T1}, v{T1} row_shr:4 row_mask:0xf bank_mask:0xa")
            self.nop(2)
            A(f"v_add_f32_dpp v{S}, v{S}, v{S} quad_perm:[2,3,0,1] row_mask:0xf bank_mask:0xf")
            self.nop(2)
            A(f"v_add_f32_dpp v{S}, v{S}, v{S} quad_perm:[1,0,3,2] row_mask:0xf bank_mask:0xf")
            self.rnd1(S)
            A(f"v_mul_f32 v{S}, s18, v{S}")
            self.rnd1(S)
            A(f"v_cmp_gt_f32 vcc, v{S}, v{M}")
            bk = self.lab("back")
            A(f"s_cbranch_vccz {bk}")
            A("s_call_b64 s[46:47], L_rare")
            L(bk)
            A(f"v_sub_f32 v{T0}, v{S}, v{M}")
            A(f"v_mul_f32 v{T0}, s19, v{T0}")
            A(f"v_exp_f32 v{T0}, v{T0}")
            self.nop(1)
            A(f"v_add_f32 v{LS}, v{LS}, v{T0}")
            A(f"v_cvt_pk_bf16_f32 v{PP}, v{T0}, v{T0}")
            self.nop(2)

        c = 0
        while c < NC:
            lag = st["I"] - c
            ncons = 2 if lag > R + 1 else 1
            if st["I"] < N and st["I"] - B < c and lag <= R:
                paced_issue()
            for _ in range(ncons):
                if c >= NC:
                    break
                consume(c)
                c += 1
                if c % 8 == 4:
                    softmax()
            if st["I"] < N and st["I"] - B < c and (st["I"] - c) > R:
                paced_issue()
        assert st["I"] == N, (st, N)
        base = (NS - 1) * 8
        alt = (base + 8) % B
        st["landed"] = 1 << 30

        def ld(pos, sl, soff):
            t, jl = divmod(pos, 4)
            r = RING + 4 * (sl % B)
            srd = "s[8:11]" if t == 0 else "s[12:15]"
            A(f"buffer_load_dwordx4 v[{r}:{r+3}], v{VOFF}, {srd}, {soff} offen offset:{jl*1024} {self.kvpol}")

        CP = self.CP

        def claim():
            if "fake" in self.dbg:
                A("s_add_u32 s39, s39, 4")
                A("s_mov_b32 s24, s39")
                if "fakeld" in self.dbg:
                    A("s_load_dword s38, s[26:27], 0 glc")
                if "fakeat" in self.dbg:
                    A("s_mov_b32 s38, 1")
                    A("s_atomic_add s38, s[26:27], 0 glc")
                return
            A("s_mov_b32 s24, 1")
            A("s_atomic_add s24, s[26:27], 0 glc")

        def eat(sl, j_from, younger):
            for j in range(j_from, 8):
                A(f"s_waitcnt vmcnt({younger + 7 - j})")
                consume(sl + j)
                if j == 3:
                    softmax()

        CX = RING + 4 * ((base + 16) % B)
        ACT = [QF, QF + 1, QF + 2, QF + 3, D, D + 1, D + 2, D + 3, M, MN, LS]
        SAV = [CX + k for k in range(11)]
        self.ctx = (ACT, SAV)
        if self.H == 2:
            A(f"v_and_b32 v{T0}, 15, v{LANE}")
            A(f"v_lshlrev_b32 v{T0}, 4, v{T0}")
            A("s_xor_b32 s20, s32, 1")
            A("s_lshl_b32 s20, s20, 8")
            A(f"v_add_u32 v{T0}, s20, v{T0}")
            A(f"ds_read_b128 v[{CX}:{CX+3}], v{T0} offset:{L_Q}")
            for k in range(4, 8):
                A(f"v_mov_b32 v{CX+k}, 0")
            A(f"v_mov_b32 v{CX+8}, {f32(-3.0e38)}")
            A(f"v_mov_b32 v{CX+9}, 0")
            A(f"v_mov_b32 v{CX+10}, 0")

        def decode(dst, hd, src=24):
            if self.H == 1:
                A(f"s_lshl_b32 s{dst}, s{src}, 15")
                A(f"s_add_u32 s{dst}, s{dst}, s42")
                if self.rot:
                    A(f"s_and_b32 s{dst}, s{dst}, 0x1fffff")
                A(f"s_add_u32 s{dst}, s{dst}, s43")
                return
            A(f"s_and_b32 s{hd}, s{src}, 1")
            A(f"s_lshr_b32 s{dst}, s{src}, 1")
            A(f"s_lshl_b32 s{dst}, s{dst}, 15")
            A(f"s_add_u32 s{dst}, s{dst}, s42")
            A(f"s_mul_i32 s21, s{hd}, {((32 * self.rot) & 63) << 15}")
            A(f"s_add_u32 s{dst}, s{dst}, s21")
            A(f"s_and_b32 s{dst}, s{dst}, 0x1fffff")
            A(f"s_lshl_b32 s21, s{hd}, 26")
            A(f"s_add_u32 s{dst}, s{dst}, s21")
            A(f"s_add_u32 s{dst}, s{dst}, s43")

        def switch(hd):
            if self.H == 1:
                return
            l = self.lab("nosw")
            A(f"s_cmp_eq_u32 s32, s{hd}")
            A(f"s_cbranch_scc1 {l}")
            A("s_call_b64 s[46:47], L_swap")
            L(l)

        if self.stamps:
            A("s_mov_b32 s78, 0")
            A("s_mov_b32 s79, 0")
        j0 = 8 - R
        assert CP < j0
        RLA, RLV, NDV, ZA = CX + 12, CX + 13, CX + 14, CX + 15
        END = 64 * self.H + 1
        A(f"v_mov_b32 v{RLA}, 0")
        A(f"v_mov_b32 v{ZA}, 0")
        A(f"v_mov_b32 v{NDV}, 1")
        if CP < 0:
            A(f"ds_max_u32 v{ZA}, v{NDV} offset:{L_NEED}")
        if self.H == 1:
            A("s_sub_u32 s42, s42, 0x8000")
            A("s_add_u32 s42, s42, s43")
        else:
            A("s_add_u32 s43, s43, s42")
            A("s_add_u32 s39, s39, s42")

        def rl_read():
            A(f"ds_read_b32 v{RLV}, v{RLA} offset:{L_RL}")

        def rl_get():
            got = self.lab("got")
            A("s_waitcnt lgkmcnt(0)")
            A(f"v_readfirstlane_b32 s24, v{RLV}")
            A("s_cmp_lg_u32 s24, 0")
            A(f"s_cbranch_scc1 {got}")
            A("s_call_b64 s[46:47], L_rlspin")
            L(got)

        def rl_next(dst, hd, ann=True):
            A(f"v_add_u32 v{NDV}, 1, v{NDV}")
            A(f"v_add_u32 v{RLA}, 4, v{RLA}")
            if ann:
                A(f"ds_max_u32 v{ZA}, v{NDV} offset:{L_NEED}")
            if self.H == 1:
                A(f"s_lshl_b32 s{dst}, s24, 15")
                A(f"s_add_u32 s{dst}, s{dst}, s42")
            else:
                A("s_sub_u32 s24, s24, 1")
                A(f"s_and_b32 s{hd}, s24, 1")
                A("s_cselect_b32 s21, s39, s43")
                A(f"s_lshr_b32 s{dst}, s24, 1")
                A(f"s_lshl_b32 s{dst}, s{dst}, 15")
                A(f"s_add_u32 s{dst}, s{dst}, s21")

        L("L_dyn")
        if self.stamps:
            A("s_add_u32 s78, s78, 1")
        switch(28)
        for j in range(8):
            if j == CP:
                A(f"ds_max_u32 v{ZA}, v{NDV} offset:{L_NEED}")
            if j == j0 - 1:
                rl_read()
            if j == j0:
                if self.stamps:
                    A("s_memrealtime s[34:35]")
                rl_get()
                if self.stamps:
                    A("s_mov_b32 m0, s78")
                    A("v_writelane_b32 v36, s34, m0")
                    A("s_add_u32 m0, s78, 32")
                    A("s_sub_u32 s35, s24, 1")
                    A("v_writelane_b32 v36, s35, m0")
                A(f"s_cmp_ge_u32 s24, {self.TH * self.H // 8 + 1}")
                A("s_cbranch_scc1 L_fin")
                rl_next(16, 28, CP < 0)
            A(f"s_waitcnt vmcnt({R-1})")
            jj = j + R
            ld(jj % 8, base + jj % 8, "s16")
            consume(base + j)
            if j == 3:
                softmax()
        A("s_branch L_dyn")
        L("L_rlspin")
        pl = self.poll_head()
        rl_read()
        A("s_waitcnt lgkmcnt(0)")
        A(f"v_cmp_eq_u32 vcc, 0, v{RLV}")
        self.poll_tail(pl, sleep=1)
        A(f"v_readfirstlane_b32 s24, v{RLV}")
        A("s_cmp_eq_u32 s24, 0")
        A(f"s_cselect_b32 s24, {END}, s24")
        A("s_setpc_b64 s[46:47]")
        L("L_fin")
        if self.stamps:
            A("s_memrealtime s[76:77]")
        if self.TH < 512:
            A(f"s_cmp_ge_u32 s24, {END}")
            A("s_cbranch_scc1 L_fin_last")
            rl_next(25, 29)
            for jj in range(8):
                ld(jj, alt + jj, "s25")
            eat(base, j0, 8)
            for (P, Q, hp, hq, me) in ((alt, base, 29, 28, "A"), (base, alt, 28, 29, "B")):
                L(f"L_eg{me}")
                if self.egw:
                    A(f"s_waitcnt vmcnt({8 - self.egw})")
                rl_read()
                rl_get()
                A(f"s_cmp_ge_u32 s24, {END}")
                A(f"s_cbranch_scc1 L_drain{me}")
                rl_next(25, hq)
                for jj in range(8):
                    ld(jj, Q + jj, "s25")
                switch(hp)
                eat(P, 0, 8)
                if me == "B":
                    A("s_branch L_egA")
            L("L_drainA")
            switch(29)
            eat(alt, 0, 0)
            A("s_branch L_done")
            L("L_drainB")
            switch(28)
            eat(base, 0, 0)
            A("s_branch L_done")
            L("L_fin_last")
        eat(base, j0, 0)
        L("L_done")
        self.stamp(2)
        if self.stamps:
            A("s_lshl_b32 s36, s2, 11")
            A("s_lshl_b32 s37, s3, 8")
            A("s_add_u32 s36, s36, s37")
            A(f"s_add_u32 s36, s36, {STAMP_OFF + 0x40000}")
            A(f"v_lshlrev_b32 v37, 2, v{LANE}")
            A("buffer_store_dword v36, v37, s[84:87], s36 offen")
        self.stamp(32, wave=True)
        self.stamp(33, "s[76:77]", wave=True)
        self.stamp(34, "s[78:79]", wave=True)
        if self.stamps:
            A("s_cmp_eq_u32 s3, 0")
            A("s_cbranch_scc0 L_noprof")
            for i in range(min(NS, 12)):
                self.stamp(16 + i, f"s[{48+2*i}:{49+2*i}]")
            self.stamp(16 + 14)
            L("L_noprof")
        if self.H == 1:
            for ctl, msk in (("row_ror:4", "0xf"), ("row_ror:8", "0xf"), ("row_bcast:15", "0xa"), ("row_bcast:31", "0xc")):
                A(f"v_add_f32_dpp v{LS}, v{LS}, v{LS} {ctl} row_mask:{msk} bank_mask:0xf")
                self.nop(2)
            A(f"ds_write_b128 v35, v[{D}:{D+3}] offset:{L_P}")
            A(f"v_mov_b32 v{MN}, v{LS}")
            A("s_mov_b32 exec_lo, 0")
            A("s_mov_b32 exec_hi, 0x80000000")
            A(f"ds_write_b64 v25, v[{M}:{M+1}] offset:{L_ML}")
            A("s_waitcnt lgkmcnt(0)")
            A("s_barrier")
            A("s_endpgm")
        else:
            LS2, M2, D2 = CX + 10, CX + 8, CX + 4
            for ctl, msk in (("row_ror:4", "0xf"), ("row_ror:8", "0xf"), ("row_bcast:15", "0xa"), ("row_bcast:31", "0xc")):
                A(f"v_add_f32_dpp v{LS}, v{LS}, v{LS} {ctl} row_mask:{msk} bank_mask:0xf")
                A(f"v_add_f32_dpp v{LS2}, v{LS2}, v{LS2} {ctl} row_mask:{msk} bank_mask:0xf")
                self.nop(1)
            A("s_lshl_b32 s20, s32, 13")
            A("s_xor_b32 s21, s20, 8192")
            A(f"v_add_u32 v{T0}, s20, v35")
            A(f"v_add_u32 v{T1}, s21, v35")
            A(f"ds_write_b128 v{T0}, v[{D}:{D+3}] offset:{L_P}")
            A(f"ds_write_b128 v{T1}, v[{D2}:{D2+3}] offset:{L_P}")
            A(f"v_mov_b32 v{MN}, v{LS}")
            A(f"v_mov_b32 v{M2+1}, v{LS2}")
            A("s_lshl_b32 s20, s32, 6")
            A("s_xor_b32 s21, s20, 64")
            A(f"v_add_u32 v{T0}, s20, v25")
            A(f"v_add_u32 v{T1}, s21, v25")
            A("s_mov_b32 exec_lo, 0")
            A("s_mov_b32 exec_hi, 0x80000000")
            A(f"ds_write_b64 v{T0}, v[{M}:{M+1}] offset:{L_ML}")
            A(f"ds_write_b64 v{T1}, v[{M2}:{M2+1}] offset:{L_ML}")
            A("s_waitcnt lgkmcnt(0)")
            A("s_barrier")
            A("s_endpgm")
            L("L_swap")
            self.nop(8)
            for a, b in zip(ACT, SAV):
                A(f"v_swap_b32 v{a}, v{b}")
            A("s_xor_b32 s32, s32, 1")
            A("s_setpc_b64 s[46:47]")

        L("L_rare")
        A(f"v_max_f32_dpp v{T0}, v{S}, v{S} row_ror:4 row_mask:0xf bank_mask:0xf")
        self.nop(2)
        A(f"v_max_f32_dpp v{T0}, v{T0}, v{T0} row_ror:8 row_mask:0xf bank_mask:0xf")
        self.nop(1)
        A(f"v_readlane_b32 s20, v{T0}, 0")
        A(f"v_readlane_b32 s21, v{T0}, 16")
        A(f"v_readlane_b32 s22, v{T0}, 32")
        A(f"v_readlane_b32 s23, v{T0}, 48")
        A(f"v_max_f32 v{T1}, s20, v{M}")
        A(f"v_max_f32 v{T1}, s21, v{T1}")
        A(f"v_max_f32 v{T1}, s22, v{T1}")
        A(f"v_max_f32 v{T1}, s23, v{T1}")
        A(f"v_sub_f32 v{T0}, v{M}, v{T1}")
        A(f"v_mul_f32 v{T0}, s19, v{T0}")
        A(f"v_exp_f32 v{T0}, v{T0}")
        A(f"v_mov_b32 v{M}, v{T1}")
        for k in range(4):
            A(f"v_mul_f32 v{D+k}, v{D+k}, v{T0}")
        A(f"v_mul_f32 v{LS}, v{LS}, v{T0}")
        A("s_setpc_b64 s[46:47]")

    def helper(self):
        A, L = self.A, self.L
        A("s_setprio 2")
        A("s_sub_u32 s3, s3, 8")
        A("s_load_dwordx2 s[24:25], s[0:1], 0")
        A("s_load_dwordx4 s[28:31], s[0:1], 24")
        A("s_load_dwordx4 s[32:35], s[0:1], 48")
        A("s_load_dwordx4 s[36:39], s[0:1], 64")
        A("s_load_dwordx4 s[48:51], s[0:1], 80")
        A("s_memrealtime s[66:67]")
        A("s_mov_b32 s88, 0x80000")
        A("v_mov_b32 v12, 0")
        A("v_mov_b32 v13, 0")
        A("v_mov_b32 v14, 0")
        A("v_mov_b32 v15, 0")
        A("v_lshlrev_b32 v14, 2, v2")
        A(f"ds_write_b32 v14, v12 offset:{L_Z}")
        A(f"ds_write_b32 v14, v12 offset:{L_Z+256}")
        HB, HI, G, TT = 3, 4, 5, 6
        A(f"v_lshrrev_b32 v{HB}, 5, v2")
        A(f"v_and_b32 v{HI}, 31, v2")
        A(f"v_lshrrev_b32 v{G}, 4, v2")
        A(f"v_and_b32 v{TT}, 15, v2")
        VAW, VAR, VDW, VTR = 7, 8, 9, 10
        A("s_lshl_b32 s52, s3, 9")
        A(f"v_lshlrev_b32 v{VAW}, 8, v{HB}")
        A(f"v_lshl_add_u32 v{VAW}, v{HI}, 3, v{VAW}")
        A(f"s_add_u32 s53, s52, {L_A}")
        A(f"v_add_u32 v{VAW}, s53, v{VAW}")
        A(f"v_and_b32 v{VAR}, 1, v2")
        A(f"v_lshlrev_b32 v{VAR}, 8, v{VAR}")
        A(f"v_lshl_add_u32 v{VAR}, v{G}, 4, v{VAR}")
        A(f"v_add_u32 v{VAR}, s53, v{VAR}")
        A(f"s_add_u32 s53, s52, {L_D}")
        A(f"v_lshlrev_b32 v{VDW}, 2, v2")
        A(f"v_add_u32 v{VDW}, s53, v{VDW}")
        A("s_waitcnt lgkmcnt(0)")
        self.srd(84, 98, 0x20000000)
        self.srd(76, 96, 256)
        A("s_or_b32 s54, s2, s3")
        A("s_cmp_eq_u32 s54, 0")
        A("s_cbranch_scc0 L_notagw")
        A("s_or_b32 s66, s66, 1")
        A("v_mov_b32 v12, s66")
        A("s_mov_b64 exec, 1")
        A("buffer_atomic_cmpswap v[12:13], off, s[76:79], 0 sc1")
        A("s_mov_b64 exec, -1")
        L("L_notagw")
        self.srd(20, 24, 2048)
        A(f"s_add_u32 s16, s98, {HH_OFF}")
        A("s_addc_u32 s17, s99, 0")
        A(f"s_mov_b32 s18, {43*128}")
        A("s_mov_b32 s19, 0x20000")
        self.srd(72, 50, 2048)
        for r in range(10, 24):
            A(f"v_mov_b32 v{r}, 0")
        for r in (54, 55, 56, 57, 59, 60, 61, 62):
            A(f"s_mov_b32 s{r}, 0")
        if self.H == 1:
            A("s_lshl_b32 s83, s40, 3")
            A("s_add_u32 s83, s83, s41")
            A("s_lshl_b32 s83, s83, 10")
            A(f"s_add_u32 s83, s83, {PART_OFF}")
            A("s_mov_b32 s82, s40")
            A("s_mov_b32 s81, s41")
            A("s_mov_b32 s67, s83")
        else:
            A(f"s_xor_b32 s82, s40, {self.px}")
            A("s_min_u32 s82, s82, s40")
            A("s_lshr_b32 s54, s40, 5")
            A("s_lshl_b32 s54, s54, 2")
            A("s_add_u32 s54, s54, s41")
            A("s_lshl_b32 s54, s54, 10")
            A(f"s_add_u32 s54, s54, {PART_OFF}")
            A("s_lshl_b32 s83, s82, 13")
            A("s_add_u32 s83, s83, s54")
            A(f"s_xor_b32 s67, s82, {self.px}")
            A("s_lshl_b32 s67, s67, 13")
            A("s_add_u32 s67, s67, s54")
            A("s_lshr_b32 s81, s40, 5")
            A("s_or_b32 s81, s81, s41")
        A("s_mov_b32 s45, s82")
        A("s_lshl_b32 s82, s82, 7")
        A(f"s_add_u32 s82, s82, {CNT_OFF}")
        if "dpro" in self.dbg:
            for r in (4, 6, 100, 42):
                A(f"s_mov_b32 s{r}, 0")
        self.stamp(0)
        A("s_mov_b32 s44, 0")
        A(f"s_cmp_lt_u32 s89, {16 if self.late else R_Q0}")
        A("s_cbranch_scc1 L_pro_mod")
        A(f"s_sub_u32 s54, s89, {R_Q0}")
        A(f"s_cmp_lt_u32 s54, {R_WO0 - R_Q0}")
        A("s_cbranch_scc1 L_pro_q")
        if self.cpf:
            A(f"s_cmp_lt_u32 s2, {self.cpf}")
            A("s_cbranch_scc0 L_nocpf")
            A("s_getpc_b64 s[8:9]")
            L("L_pc")
            A(f"s_sub_u32 s8, s8, L_pc-{NAME}_kernel")
            A("s_subb_u32 s9, s9, 0")
            A(f"s_mov_b32 s10, L_codeend-{NAME}_kernel")
            A("s_mov_b32 s11, 0x20000")
            A("v_lshlrev_b32 v11, 4, v2")
            A("s_lshl_b32 s54, s3, 10")
            for i in range(9):
                A(f"buffer_load_dwordx4 v[{40+4*i}:{43+4*i}], v11, s[8:11], s54 offen")
                A("s_add_u32 s54, s54, 4096")
            L("L_nocpf")
        A("s_barrier")
        A("s_branch L_common1")

        BF, AF, DT = 40, 24, 12
        DT = 104
        TMP = 120

        def wide_voff(rowbytes, colbyte_s):
            A("s_lshl_b32 s54, s3, 7")
            A("v_lshrrev_b32 v11, 3, v2")
            A("v_add_u32 v11, s54, v11")
            A(f"s_mov_b32 s55, {rowbytes}")
            A("v_mul_lo_u32 v11, v11, s55")
            A(f"v_and_b32 v{TMP}, 7, v2")
            A(f"v_lshl_add_u32 v11, v{TMP}, 4, v11")
            A(f"v_add_u32 v11, s{colbyte_s}, v11")

        def wide_tr_base():
            A(f"v_lshrrev_b32 v{VTR}, 2, v{TT}")
            A(f"v_lshl_add_u32 v{VTR}, v{G}, 3, v{VTR}")
            A(f"v_lshlrev_b32 v{VTR}, 7, v{VTR}")
            A(f"v_and_b32 v{TMP}, 3, v{TT}")
            A(f"v_lshl_add_u32 v{VTR}, v{TMP}, 3, v{VTR}")
            A("s_lshl_b32 s54, s3, 14")
            A(f"s_add_u32 s54, s54, {L_W}")
            A(f"v_add_u32 v{VTR}, s54, v{VTR}")

        L("L_pro_mod")
        self.srd(12, 38, 2048)
        A(f"v_lshlrev_b32 v{TMP}, 10, v{HB}")
        A(f"v_lshl_add_u32 v{TMP}, v{HI}, 3, v{TMP}")
        A("s_lshl_b32 s54, s3, 8")
        A(f"buffer_load_dwordx2 v[{TMP+2}:{TMP+3}], v{TMP}, s[12:15], s54 offen")
        self.srd(8, 48, 512 * 6144)
        A("s_lshl_b32 s56, s89, 7")
        wide_voff(6144, 56)
        A("s_lshl_b32 s57, s3, 14")
        self.dma_weights(8, 16, 11, 8 * 6144, 57)
        if self.late or self.hold:
            if self.late and self.hold:
                A("s_branch L_mod_nob1")
            elif self.late:
                A("s_cmp_eq_u32 s44, 0")
                A("s_cbranch_scc0 L_mod_nob1")
            else:
                A("s_cmp_lt_u32 s89, 16")
                A("s_cbranch_scc1 L_mod_nob1")
        A("s_barrier")
        L("L_mod_nob1")
        wide_tr_base()
        A("s_waitcnt vmcnt(16)")
        X = TMP + 4
        self.unpack2(TMP + 2, X, X + 1)
        self.unpack2(TMP + 3, X + 2, X + 3)
        A(f"s_mov_b32 s58, {f32(-LOG2E)}")
        for k in range(4):
            A(f"v_mul_f32 v{X+4+k}, s58, v{X+k}")
        for k in range(4):
            A(f"v_exp_f32 v{X+4+k}, v{X+4+k}")
        self.nop(1)
        for k in range(4):
            A(f"v_add_f32 v{X+4+k}, 1.0, v{X+4+k}")
        for k in range(4):
            A(f"v_rcp_f32 v{X+4+k}, v{X+4+k}")
        self.nop(1)
        for k in range(4):
            A(f"v_mul_f32 v{X+k}, v{X+k}, v{X+4+k}")
        A(f"v_cvt_pk_bf16_f32 v{X+8}, v{X}, v{X+1}")
        A(f"v_cvt_pk_bf16_f32 v{X+9}, v{X+2}, v{X+3}")
        A(f"ds_write_b64 v{VAW}, v[{X+8}:{X+9}]")
        A("s_lshr_b32 s60, s89, 3")
        A("s_lshl_b32 s60, s60, 12")
        A("s_and_b32 s61, s89, 7")
        A("s_lshl_b32 s61, s61, 8")
        A("s_add_u32 s60, s60, s61")
        A(f"s_add_u32 s60, s60, {MOD_OFF}")
        A("s_mov_b32 s61, 2048")
        A("s_mov_b32 s62, 0")
        if self.late:
            A("s_cmp_eq_u32 s44, 0")
            A("s_cbranch_scc1 L_common1")
            A("s_waitcnt vmcnt(0)")
            A("s_branch L_gemv0")
        else:
            A("s_branch L_common1")

        L("L_pro_q")
        A(f"v_lshlrev_b32 v{TMP}, 10, v{HB}")
        A(f"v_lshl_add_u32 v{TMP+1}, v{HI}, 5, v{TMP}")
        A(f"buffer_load_dwordx4 v[{TMP+4}:{TMP+7}], v{TMP+1}, s[20:23], 0 offen")
        A(f"buffer_load_dwordx4 v[{TMP+8}:{TMP+11}], v{TMP+1}, s[20:23], 0 offen offset:16")
        A(f"v_lshl_add_u32 v{TMP}, v{HI}, 3, v{TMP}")
        A("s_lshl_b32 s54, s3, 8")
        A(f"buffer_load_dwordx2 v[{TMP+2}:{TMP+3}], v{TMP}, s[20:23], s54 offen")
        self.srd(8, 28, 512 * 8192)
        A(f"s_sub_u32 s59, s89, {R_Q0}")
        A("s_lshl_b32 s56, s59, 7")
        wide_voff(8192, 56)
        A("s_lshl_b32 s57, s3, 14")
        self.dma_weights(8, 16, 11, 8 * 8192, 57)
        A("s_barrier")
        wide_tr_base()
        A("s_waitcnt vmcnt(16)")
        S1, S2, U0, U1 = TMP + 12, TMP + 13, TMP + 14, TMP + 15
        A(f"v_mov_b32 v{S1}, 0")
        A(f"v_mov_b32 v{S2}, 0")
        for k in range(8):
            self.unpack2(TMP + 4 + k, U0, U1)
            A(f"v_add_f32 v{S1}, v{S1}, v{U0}")
            A(f"v_fmac_f32 v{S2}, v{U0}, v{U0}")
            A(f"v_add_f32 v{S1}, v{S1}, v{U1}")
            A(f"v_fmac_f32 v{S2}, v{U1}, v{U1}")
        self.allred32([S1, S2], [U0, U1])
        NX = TMP + 16
        self.unpack2(TMP + 2, NX, NX + 1)
        self.unpack2(TMP + 3, NX + 2, NX + 3)
        self.ln_norm(S1, S2, NX, U0, U1)
        A("s_lshl_b32 s60, s59, 8")
        A(f"s_add_u32 s60, s60, {Q_OFF}")
        A("s_mov_b32 s61, 16384")
        A("s_mov_b32 s62, 1")
        L("L_common1")
        A("buffer_load_dword v165, off, s[76:79], 0 sc1")
        CL = TMP + 24
        for k in range(4):
            A(f"v_mov_b32 v{CL+k}, -1")
        A("s_cmp_eq_u32 s3, 3")
        A("s_cbranch_scc0 L_noclear")
        A(f"v_lshlrev_b32 v{CL+4}, 4, v2")
        A("s_mov_b32 exec_lo, -1")
        A("s_mov_b32 exec_hi, 1")
        A(f"buffer_store_dwordx4 v[{CL}:{CL+3}], v{CL+4}, s[84:87], s83 offen sc1")
        if self.H == 2:
            A(f"buffer_store_dwordx4 v[{CL}:{CL+3}], v{CL+4}, s[84:87], s67 offen sc1")
        A("s_mov_b64 exec, -1")
        A(f"s_sub_u32 s64, s89, {R_WO0}")
        A("s_cmp_lt_u32 s64, 64")
        A("s_cbranch_scc0 L_noclr_wo")
        self.slice_of(64, R_WO0, 64)
        A("s_lshr_b32 s65, s64, 3")
        A("s_lshl_b32 s65, s65, 12")
        A("s_and_b32 s66, s64, 7")
        A("s_lshl_b32 s66, s66, 8")
        A("s_add_u32 s65, s65, s66")
        A(f"s_add_u32 s65, s65, {ATT_OFF}")
        A(f"v_lshlrev_b32 v{CL+4}, 11, v{G}")
        A(f"v_lshl_add_u32 v{CL+4}, v{TT}, 4, v{CL+4}")
        A("s_mov_b32 exec_hi, 0")
        A(f"buffer_store_dwordx4 v[{CL}:{CL+3}], v{CL+4}, s[84:87], s65 offen sc1")
        A("s_mov_b64 exec, -1")
        L("L_noclr_wo")
        A(f"s_sub_u32 s64, s89, {R_UP0}")
        A("s_cmp_lt_u32 s64, 43")
        A("s_cbranch_scc0 L_noclr_up")
        self.slice_of(64, R_UP0, 43)
        A("s_lshl_b32 s65, s64, 7")
        A(f"s_add_u32 s65, s65, {HH_OFF}")
        A(f"v_lshlrev_b32 v{CL+4}, 4, v2")
        A("s_mov_b64 exec, 0xff")
        A(f"buffer_store_dwordx4 v[{CL}:{CL+3}], v{CL+4}, s[84:87], s65 offen sc1")
        A("s_mov_b64 exec, -1")
        L("L_noclr_up")
        A("s_cmp_eq_u32 s81, 0")
        A("s_cbranch_scc0 L_noclr_cnt")
        A(f"v_mov_b32 v{CL+4}, {self.NS*4*self.H}")
        A(f"s_mul_i32 s65, s45, {self.cstr}")
        A(f"s_add_u32 s65, s65, {CTR_OFF}")
        A("s_mov_b64 exec, 1")
        A(f"buffer_store_dword v{CL+4}, off, s[84:87], s65 sc1")
        A("s_mov_b64 exec, -1")
        L("L_noclr_cnt")
        L("L_noclear")
        A("s_waitcnt vmcnt(0)")
        if self.hold:
            A("s_cmp_lt_u32 s89, 16")
            A("s_cbranch_scc0 L_nohold3")
            A("s_barrier")
            L("L_nohold3")
        A("v_cmp_eq_u32 vcc, 0, v165")
        A("s_cbranch_vccz L_gottag")
        pl = self.poll_head()
        A("buffer_load_dword v165, off, s[76:79], 0 sc1")
        A("s_waitcnt vmcnt(0)")
        A("v_cmp_eq_u32 vcc, 0, v165")
        self.poll_tail(pl, sleep=2)
        L("L_gottag")
        A("v_readfirstlane_b32 s80, v165")
        self.dmark(3)
        self.stamp(10)
        A("s_cmp_eq_u32 s3, 3")
        A("s_cbranch_scc0 L_nocount")
        A("s_and_b32 s63, s2, 3")
        A("s_lshl_b32 s63, s63, 2")
        A("s_add_u32 s63, s63, 128")
        A(f"v_mov_b32 v{CL+5}, 1")
        A("s_mov_b64 exec, 1")
        A(f"buffer_atomic_add v{CL+5}, off, s[76:79], s63 sc1")
        A("s_cmp_eq_u32 s81, 0")
        A("s_cbranch_scc0 L_nocnttag")
        A(f"v_mov_b32 v{CL+4}, s80")
        A(f"buffer_store_dword v{CL+4}, off, s[84:87], s82 offset:64 sc1")
        L("L_nocnttag")
        A("s_mov_b64 exec, -1")
        L("L_nocount")
        A(f"s_cmp_lt_u32 s89, {R_WO0}")
        A("s_cbranch_scc0 L_qgather")
        if self.late:
            A("s_sub_u32 s54, s89, 16")
            A("s_cmp_lt_u32 s54, 32")
            A("s_cbranch_scc1 L_qgather")
        L("L_gemv0")
        self.tr_reads(VTR, BF, 4, [0, 32, 64, 96], 128)
        A("s_cmp_eq_u32 s62, 0")
        A("s_cbranch_scc1 L_pro_gemv")
        GA = TMP + 4
        A(f"v_lshlrev_b32 v{TMP}, 11, v{HB}")
        A(f"v_lshl_add_u32 v{TMP}, v{HI}, 4, v{TMP}")
        A("s_lshl_b32 s54, s3, 9")
        A(f"s_add_u32 s54, s54, {MOD_OFF}")
        A(f"s_add_u32 s55, s54, 4096")
        pl = self.poll_head()
        A(f"buffer_load_dwordx4 v[{GA}:{GA+3}], v{TMP}, s[84:87], s55 offen sc1")
        A(f"buffer_load_dwordx4 v[{GA+4}:{GA+7}], v{TMP}, s[84:87], s54 offen sc1")
        A("s_waitcnt vmcnt(0)")
        self.check_tags([GA + 1, GA + 3, GA + 5, GA + 7], TMP + 1)
        self.poll_tail(pl, sleep=self.ps1)
        self.stamp(3)
        self.dmark(2)
        T4 = TMP + 20
        self.unpack2(GA, T4, T4 + 1)
        self.unpack2(GA + 2, T4 + 2, T4 + 3)
        for k in range(4):
            A(f"v_add_f32 v{T4+k}, 1.0, v{T4+k}")
        self.rnd2(T4, T4 + 1, TMP + 1)
        self.rnd2(T4 + 2, T4 + 3, TMP + 2)
        self.modulate(NX, T4, GA + 4, GA + 6, TMP + 1, TMP + 24, VAW)
        L("L_pro_gemv")
        self.a_frags_from_stage(VAR, AF)
        self.mfmas(AF, BF, DT, 4, 4, lgkm=True)
        self.d_to_lds(DT, 4, TMP, TMP + 1, VDW)
        A(f"v_mov_b32 v{TMP+2}, {L_CNT}")
        A(f"v_mov_b32 v{TMP+3}, 1")
        A("s_mov_b64 exec, 1")
        A(f"ds_add_rtn_u32 v{TMP+4}, v{TMP+2}, v{TMP+3}")
        A("s_mov_b64 exec, -1")
        A("s_waitcnt lgkmcnt(0)")
        A(f"v_readfirstlane_b32 s54, v{TMP+4}")
        A("s_cmp_eq_u32 s54, 3")
        A("s_cbranch_scc0 L_qgather")
        self.d_sum(G, TT, TMP)
        A(f"v_cvt_pk_bf16_f32 v{TMP+8}, v{TMP+4}, v{TMP+5}")
        A(f"v_mov_b32 v{TMP+9}, s80")
        A(f"v_cvt_pk_bf16_f32 v{TMP+10}, v{TMP+6}, v{TMP+7}")
        A(f"v_mov_b32 v{TMP+11}, s80")
        A(f"v_mul_lo_u32 v{TMP}, v{G}, s61")
        A(f"v_lshl_add_u32 v{TMP}, v{TT}, 4, v{TMP}")
        A("s_mov_b32 exec_hi, 0")
        A(f"buffer_store_dwordx4 v[{TMP+8}:{TMP+11}], v{TMP}, s[84:87], s60 offen sc1")
        A("s_mov_b64 exec, -1")
        self.stamp(4)
        self.dmark(1)
        L("L_qgather")
        if self.late:
            A("s_cmp_eq_u32 s44, 0")
            A("s_cbranch_scc0 L_b3")
        A("s_cmp_eq_u32 s3, 3")
        A("s_cbranch_scc0 L_qg2")
        pl = self.poll_head()
        A(f"buffer_load_dword v{TMP}, off, s[84:87], s82 offset:64 sc1")
        A("s_waitcnt vmcnt(0)")
        A(f"v_cmp_ne_u32 vcc, s80, v{TMP}")
        self.poll_tail(pl, sleep=8)
        if self.flagq:
            A(f"v_mov_b32 v{TMP}, 0")
            A(f"v_mov_b32 v{TMP+1}, 1")
            A(f"ds_write_b32 v{TMP}, v{TMP+1} offset:{L_QF+4}")
        L("L_qg2")
        A("s_cmp_eq_u32 s3, 0")
        A("s_cbranch_scc0 L_b2")
        A("s_lshl_b32 s54, s45, 9")
        A(f"s_add_u32 s54, s54, {Q_OFF}")
        A(f"s_xor_b32 s55, s45, {self.px}")
        A("s_lshl_b32 s55, s55, 9")
        A(f"s_add_u32 s55, s55, {Q_OFF}")
        A(f"v_lshlrev_b32 v{TMP}, 3, v2")
        pl = self.poll_head()
        A(f"buffer_load_dwordx2 v[{TMP+2}:{TMP+3}], v{TMP}, s[84:87], s54 offen sc1")
        if self.H == 2:
            A(f"buffer_load_dwordx2 v[{TMP+4}:{TMP+5}], v{TMP}, s[84:87], s55 offen sc1")
        A("s_waitcnt vmcnt(0)")
        self.check_tags([TMP + 3, TMP + 5][:self.H], TMP + 6)
        self.poll_tail(pl, sleep=self.ps2)
        A(f"v_lshlrev_b32 v{TMP}, 2, v2")
        A(f"ds_write_b32 v{TMP}, v{TMP+2} offset:{L_Q}")
        if self.H == 2:
            A(f"ds_write_b32 v{TMP}, v{TMP+4} offset:{L_Q+256}")
        if self.flagq:
            A(f"v_mov_b32 v{TMP}, 0")
            A(f"v_mov_b32 v{TMP+1}, 1")
            A(f"ds_write_b32 v{TMP}, v{TMP+1} offset:{L_QF}")
        A("s_waitcnt lgkmcnt(0)")
        self.stamp(5)
        self.dmark(0)
        L("L_b2")
        if not self.flagq:
            A("s_barrier")
        else:
            A(f"v_mov_b32 v{TMP}, 0")
            pl = self.poll_head()
            A(f"ds_read_b32 v{TMP+1}, v{TMP} offset:{L_QF}")
            A("s_waitcnt lgkmcnt(0)")
            A(f"v_cmp_eq_u32 vcc, 0, v{TMP+1}")
            self.poll_tail(pl, sleep=4)
        if self.late:
            A("s_sub_u32 s54, s89, 16")
            A("s_cmp_lt_u32 s54, 32")
            A("s_cselect_b32 s44, 1, 0")
            A("s_cbranch_scc1 L_pro_mod")
        A(f"s_cmp_lt_u32 s89, {R_WO0}")
        A("s_cbranch_scc1 L_b3")
        A(f"s_cmp_lt_u32 s89, {R_WO1}")
        A("s_cbranch_scc1 L_prep_wo")
        A(f"s_cmp_ge_u32 s89, {R_DN0}")
        A("s_cbranch_scc1 L_prep_dn")
        A(f"s_cmp_lt_u32 s89, {R_UP0}")
        A("s_cbranch_scc1 L_b3")
        A(f"s_cmp_lt_u32 s89, {R_UP1}")
        A("s_cbranch_scc1 L_prep_up")
        A("s_branch L_b3")

        def narrow_voff(rowbytes, rows_per_wave, colbyte_s):
            A(f"s_mul_i32 s54, s3, {rows_per_wave}")
            A("v_lshrrev_b32 v11, 2, v2")
            A("v_add_u32 v11, s54, v11")
            A(f"s_mov_b32 s55, {rowbytes}")
            A("v_mul_lo_u32 v11, v11, s55")
            A(f"v_and_b32 v{VTR}, 3, v2")
            A(f"v_lshl_add_u32 v11, v{VTR}, 4, v11")
            A(f"v_add_u32 v11, s{colbyte_s}, v11")

        def narrow_tr_base(rows_per_wave):
            A(f"v_lshrrev_b32 v{VTR}, 2, v{TT}")
            A(f"v_lshl_add_u32 v{VTR}, v{G}, 3, v{VTR}")
            A(f"v_lshlrev_b32 v{VTR}, 6, v{VTR}")
            A(f"v_and_b32 v12, 3, v{TT}")
            A(f"v_lshl_add_u32 v{VTR}, v12, 3, v{VTR}")
            A(f"s_mul_i32 s54, s3, {rows_per_wave*64}")
            A(f"s_add_u32 s54, s54, {L_W}")
            A(f"v_add_u32 v{VTR}, s54, v{VTR}")

        def wait_cleared(t):
            pl = self.poll_head()
            A(f"buffer_load_dwordx4 v[{t}:{t+3}], off, s[76:79], 0 offset:128 sc1")
            A("s_waitcnt vmcnt(0)")
            A(f"v_add_u32 v{t}, v{t}, v{t+1}")
            A(f"v_add3_u32 v{t}, v{t}, v{t+2}, v{t+3}")
            A(f"v_cmp_gt_u32 vcc, 256, v{t}")
            self.poll_tail(pl, sleep=16)

        self.intail = True
        L("L_prep_wo")
        self.slice_of(59, R_WO0, 64)
        self.srd(8, 30, 4096 * 1024)
        A("s_lshr_b32 s56, s59, 3")
        A("s_lshl_b32 s56, s56, 19")
        A("s_and_b32 s57, s59, 7")
        A("s_lshl_b32 s57, s57, 7")
        A("s_add_u32 s56, s56, s57")
        wide_voff(1024, 56)
        A("s_lshl_b32 s57, s3, 14")
        self.dma_weights(8, 16, 11, 8 * 1024, 57, skip='nowo')
        wide_tr_base()
        wait_cleared(TMP)
        self.tr_reads(VTR, BF, 4, [0, 32, 64, 96], 128)
        A(f"v_lshlrev_b32 v11, 18, v{HB}")
        A(f"v_lshl_add_u32 v12, v{HI}, 4, v11")
        A(f"v_and_b32 v{TMP}, {4*self.H-1}, v2")
        A(f"v_lshl_add_u32 v11, v{TMP}, 10, v11")
        A("s_lshr_b32 s56, s59, 3")
        A("s_lshl_b32 s60, s56, 12")
        A("s_lshl_b32 s56, s56, 2")
        A("s_add_u32 s56, s56, s3")
        A("s_lshl_b32 s56, s56, 13")
        A(f"s_add_u32 s56, s56, {PART_OFF}")
        A("s_add_u32 s55, s56, 4096")
        A("s_and_b32 s57, s59, 7")
        A("s_lshl_b32 s57, s57, 8")
        A("s_add_u32 s60, s60, s57")
        A(f"s_add_u32 s60, s60, {ATT_OFF}")
        A("s_waitcnt lgkmcnt(0)")
        A("s_branch L_b3")

        XV, GAV, T4U, SBV = TMP + 28, TMP + 32, TMP + 36, TMP + 40
        L("L_prep_up")
        self.slice_of(59, R_UP0, 43)
        self.srd(8, 32, 512 * 2752)
        self.srd(12, 34, 512 * 2752)
        A("s_lshl_b32 s56, s59, 6")
        narrow_voff(2752, 128, 56)
        A("s_lshl_b32 s57, s3, 13")
        self.dma_weights(8, 8, 11, 16 * 2752, 57, skip='noup')
        A("s_add_u32 s57, s57, 32768")
        self.dma_weights(12, 8, 11, 16 * 2752, 57, skip='noup')
        narrow_tr_base(128)
        A(f"v_lshlrev_b32 v{TMP}, 10, v{HB}")
        A(f"v_lshl_add_u32 v{TMP}, v{HI}, 3, v{TMP}")
        A("s_lshl_b32 s54, s3, 8")
        A(f"buffer_load_dwordx2 v[{TMP+2}:{TMP+3}], v{TMP}, s[20:23], s54 offen")
        A(f"v_lshlrev_b32 v{TMP}, 11, v{HB}")
        A(f"v_lshl_add_u32 v{TMP}, v{HI}, 4, v{TMP}")
        A("s_lshl_b32 s54, s3, 9")
        A(f"s_add_u32 s54, s54, {MOD_OFF + 2*4096}")
        A(f"s_add_u32 s55, s54, 4096")
        A(f"s_add_u32 s56, s54, 8192")
        GA = TMP + 4
        pl = self.poll_head()
        A(f"buffer_load_dwordx4 v[{GA}:{GA+3}], v{TMP}, s[84:87], s54 offen sc1")
        A(f"buffer_load_dwordx4 v[{GA+4}:{GA+7}], v{TMP}, s[84:87], s55 offen sc1")
        A(f"buffer_load_dwordx4 v[{GA+8}:{GA+11}], v{TMP}, s[84:87], s56 offen sc1")
        A("s_waitcnt vmcnt(0)")
        self.check_tags([GA + 1, GA + 3, GA + 5, GA + 7, GA + 9, GA + 11], TMP + 16)
        self.poll_tail(pl)
        self.unpack2(TMP + 2, XV, XV + 1)
        self.unpack2(TMP + 3, XV + 2, XV + 3)
        self.unpack2(GA, GAV, GAV + 1)
        self.unpack2(GA + 2, GAV + 2, GAV + 3)
        A(f"v_mov_b32 v{SBV}, v{GA+4}")
        A(f"v_mov_b32 v{SBV+1}, v{GA+6}")
        self.unpack2(GA + 8, T4U, T4U + 1)
        self.unpack2(GA + 10, T4U + 2, T4U + 3)
        for k in range(4):
            A(f"v_add_f32 v{T4U+k}, 1.0, v{T4U+k}")
        self.rnd2(T4U, T4U + 1, TMP + 1)
        self.rnd2(T4U + 2, T4U + 3, TMP + 1)
        wait_cleared(TMP)
        self.tr_reads(VTR, BF, 4, [0, 32, 32768, 32768 + 32], 64)
        A(f"v_lshlrev_b32 v12, 11, v{HB}")
        A(f"v_lshl_add_u32 v12, v{HI}, 4, v12")
        A("s_lshl_b32 s56, s3, 9")
        A(f"s_add_u32 s56, s56, {ATT_OFF}")
        A("s_lshl_b32 s60, s59, 7")
        A(f"s_add_u32 s60, s60, {HH_OFF}")
        A("s_waitcnt lgkmcnt(0)")
        A("s_branch L_b3")

        DBF, DAF, DDT = 32, 120, 24
        L("L_prep_dn")
        self.slice_of(59, R_DN0, 16)
        self.srd(8, 36, 1376 * 1024)
        A("s_lshl_b32 s56, s59, 6")
        narrow_voff(1024, 352, 56)
        A(f"s_mul_i32 s57, s3, {352*64}")
        self.dma_weights(8, 22, 11, 16 * 1024, 57, skip='nodn')
        narrow_tr_base(352)
        A("v_lshrrev_b32 v13, 3, v2")
        A("v_and_b32 v13, 1, v13")
        A("v_and_b32 v14, 7, v2")
        A("v_lshlrev_b32 v15, 10, v13")
        A("v_lshl_add_u32 v15, v14, 3, v15")
        A("buffer_load_dwordx2 v[16:17], v15, s[20:23], s56 offen")
        A("v_lshlrev_b32 v15, 11, v13")
        A("v_lshl_add_u32 v15, v14, 4, v15")
        A("s_lshl_b32 s54, s59, 7")
        A(f"s_add_u32 s55, s54, {MOD_OFF + 5*4096}")
        A(f"s_add_u32 s54, s54, {MOD_OFF + 2*4096}")
        pl = self.poll_head()
        A(f"buffer_load_dwordx4 v[{DAF}:{DAF+3}], v15, s[84:87], s54 offen sc1")
        A(f"buffer_load_dwordx4 v[{DAF+4}:{DAF+7}], v15, s[84:87], s55 offen sc1")
        A("s_waitcnt vmcnt(0)")
        self.check_tags([DAF + 1, DAF + 3, DAF + 5, DAF + 7], DAF + 8)
        self.poll_tail(pl)
        A(f"v_mov_b32 v18, v{DAF}")
        A(f"v_mov_b32 v19, v{DAF+2}")
        A(f"v_mov_b32 v20, v{DAF+4}")
        A(f"v_mov_b32 v21, v{DAF+6}")
        wait_cleared(DAF)
        self.tr_reads(VTR, DBF, 11, [0, 32], 64)
        A("s_lshl_b32 s56, s59, 7")
        A(f"s_add_u32 s56, s56, {ATT_OFF}")
        A("v_and_b32 v12, 1, v2")
        A("v_lshlrev_b32 v12, 6, v12")
        A(f"v_lshl_add_u32 v12, v{G}, 4, v12")
        A(f"s_mul_i32 s57, s3, {352*64}")
        A(f"s_add_u32 s57, s57, {L_W}")
        A("v_add_u32 v12, s57, v12")
        A("v_lshlrev_b32 v7, 4, v2")
        A("v_add_u32 v8, s57, v7")
        A(f"s_mul_i32 s57, s3, {11*128}")
        A("s_waitcnt lgkmcnt(0)")
        L("L_b3")
        A("s_cmp_eq_u32 s3, 2")
        A("s_cbranch_scc0 L_b3x")
        A("s_setprio 1")
        A(f"s_mul_i32 s65, s45, {self.cstr}")
        A(f"s_add_u32 s65, s65, {CTR_OFF}")
        A("s_add_u32 s26, s98, s65")
        A("s_addc_u32 s27, s99, 0")
        A("v_mov_b32 v22, 0")
        pl = self.poll_head()
        A(f"ds_read_b32 v23, v22 offset:{L_QF+4}")
        A("s_waitcnt lgkmcnt(0)")
        A("v_cmp_eq_u32 vcc, 0, v23")
        self.poll_tail(pl, sleep=8)
        A("s_mov_b32 s64, 0")
        L("L_disp")
        A(f"ds_read_b32 v23, v22 offset:{L_NEED}")
        A("s_waitcnt lgkmcnt(0)")
        A("v_readfirstlane_b32 s65, v23")
        A("s_cmp_lt_u32 s64, s65")
        A("s_cbranch_scc1 L_disp_go")
        A("s_cmp_eq_u32 s88, 0")
        A("s_cbranch_scc1 L_disp_end")
        A("s_sub_u32 s88, s88, 1")
        A("s_sleep 1")
        A("s_branch L_disp")
        L("L_disp_go")
        A("s_mov_b32 s66, 1")
        A("s_atomic_add s66, s[26:27], 0 glc")
        A("s_lshl_b32 s65, s64, 2")
        A("v_mov_b32 v24, s65")
        A("s_waitcnt lgkmcnt(0)")
        A(f"s_cmp_ge_u32 s66, {64 * self.H}")
        A("s_cbranch_scc1 L_disp_end")
        A("s_add_u32 s66, s66, 1")
        A("v_mov_b32 v23, s66")
        A(f"ds_write_b32 v24, v23 offset:{L_RL}")
        A("s_add_u32 s64, s64, 1")
        A("s_cmp_lt_u32 s64, 63")
        A("s_cbranch_scc1 L_disp")
        L("L_disp_end")
        A("v_lshlrev_b32 v24, 2, v2")
        A(f"v_mov_b32 v23, {64 * self.H + 1}")
        A("v_cmp_le_u32 vcc, s64, v2")
        A("s_mov_b64 exec, vcc")
        A(f"ds_write_b32 v24, v23 offset:{L_RL}")
        A("s_mov_b64 exec, -1")
        A("s_setprio 2")
        L("L_b3x")
        if self.dry:
            A("s_mov_b32 s69, 1")
            A("s_mov_b32 s86, 0")
            A("s_mov_b32 s18, 0")
            A("s_mov_b32 s74, 0")
            A("s_branch L_after_b3")
            L("L_exit")
            A("s_cmp_eq_u32 s69, 0")
            A("s_cbranch_scc1 L_end")
            A("s_mov_b64 exec, -1")
            A("s_mov_b32 s69, 0")
            A("s_mov_b32 s86, 0x20000000")
            A(f"s_mov_b32 s18, {43*128}")
            A("s_mov_b32 s74, 2048")
            A("s_waitcnt vmcnt(0) lgkmcnt(0)")
        A("s_barrier")
        L("L_after_b3")
        self.demit()
        EX = "L_exit" if self.dry else "L_end"
        self.stamp(6)
        A(f"s_cmp_lt_u32 s3, {self.H}")
        A("s_cbranch_scc0 L_tail")
        C = 120
        A(f"v_and_b32 v{C}, 7, v2")
        A(f"v_lshlrev_b32 v{C}, 3, v{C}")
        A("s_lshl_b32 s63, s3, 6")
        A(f"v_add_u32 v{C}, s63, v{C}")
        A(f"ds_read_b64 v[{C+2}:{C+3}], v{C} offset:{L_ML}")
        A(f"v_lshlrev_b32 v{C+1}, 3, v2")
        A("s_lshl_b32 s63, s3, 13")
        A(f"v_add_u32 v{C+7}, s63, v{C+1}")
        for w in range(8):
            A(f"ds_read_b64 v[{C+8+2*w}:{C+9+2*w}], v{C+7} offset:{L_P + w*1024}")
        A("s_waitcnt lgkmcnt(8)")
        A(f"v_max_f32_dpp v{C+4}, v{C+2}, v{C+2} row_ror:1 row_mask:0xf bank_mask:0xf")
        self.nop(2)
        A(f"v_max_f32_dpp v{C+4}, v{C+4}, v{C+4} row_ror:2 row_mask:0xf bank_mask:0xf")
        self.nop(2)
        A(f"v_max_f32_dpp v{C+4}, v{C+4}, v{C+4} row_ror:4 row_mask:0xf bank_mask:0xf")
        A(f"s_mov_b32 s58, {f32(LOG2E)}")
        A(f"v_sub_f32 v{C+6}, v{C+2}, v{C+4}")
        A(f"v_mul_f32 v{C+6}, s58, v{C+6}")
        A(f"v_exp_f32 v{C+6}, v{C+6}")
        self.nop(1)
        A(f"v_mul_f32 v{C+5}, v{C+6}, v{C+3}")
        self.nop(2)
        A(f"v_add_f32_dpp v{C+5}, v{C+5}, v{C+5} row_ror:1 row_mask:0xf bank_mask:0xf")
        self.nop(2)
        A(f"v_add_f32_dpp v{C+5}, v{C+5}, v{C+5} row_ror:2 row_mask:0xf bank_mask:0xf")
        self.nop(2)
        A(f"v_add_f32_dpp v{C+5}, v{C+5}, v{C+5} row_ror:4 row_mask:0xf bank_mask:0xf")
        A("s_waitcnt lgkmcnt(0)")
        A(f"v_mul_f32_dpp v{C+24}, v{C+6}, v{C+8} row_newbcast:0 row_mask:0xf bank_mask:0xf")
        A(f"v_mul_f32_dpp v{C+25}, v{C+6}, v{C+9} row_newbcast:0 row_mask:0xf bank_mask:0xf")
        for w in range(1, 8):
            A(f"v_fmac_f32_dpp v{C+24}, v{C+6}, v{C+8+2*w} row_newbcast:{w} row_mask:0xf bank_mask:0xf")
            A(f"v_fmac_f32_dpp v{C+25}, v{C+6}, v{C+9+2*w} row_newbcast:{w} row_mask:0xf bank_mask:0xf")
        for r in (C + 24, C + 25, C + 4, C + 5):
            A(f"v_min_u32 v{r}, -2, v{r}")
        A("s_cmp_eq_u32 s3, 0")
        A("s_cselect_b32 s63, s83, s67")
        A(f"v_mov_b32_dpp v{C+26}, v{C+24} quad_perm:[1,1,3,3] row_mask:0xf bank_mask:0xf")
        A(f"v_mov_b32_dpp v{C+27}, v{C+25} quad_perm:[1,1,3,3] row_mask:0xf bank_mask:0xf")
        A("s_mov_b32 exec_lo, 0x55555555")
        A("s_mov_b32 exec_hi, 0x55555555")
        A(f"buffer_store_dwordx4 v[{C+24}:{C+27}], v{C+1}, s[84:87], s63 offen sc1")
        A("s_mov_b64 exec, 1")
        A(f"buffer_store_dwordx2 v[{C+4}:{C+5}], off, s[84:87], s63 offset:512 sc1")
        A("s_mov_b64 exec, -1")
        self.stamp(7)
        self.dstamp(2)
        L("L_tail")
        A(f"s_cmp_lt_u32 s89, {R_WO0}")
        A(f"s_cbranch_scc1 {EX}")
        A(f"s_cmp_lt_u32 s89, {R_WO1}")
        A("s_cbranch_scc1 L_tail_wo")
        A(f"s_cmp_ge_u32 s89, {R_DN0}")
        A("s_cbranch_scc1 L_tail_dn")
        A(f"s_cmp_lt_u32 s89, {R_UP0}")
        A(f"s_cbranch_scc1 {EX}")
        A(f"s_cmp_lt_u32 s89, {R_UP1}")
        A("s_cbranch_scc1 L_tail_up")
        A(f"s_branch {EX}")

        L("L_tail_wo")
        regs = [AF + 4 * i for i in range(4)] + [DT + 4 * i for i in range(4)]
        O = TMP
        lds_ = [([f"buffer_load_dwordx4 v[{regs[r]}:{regs[r]+3}], v12, s[84:87], {'s56' if r < 4 else 's55'} offen offset:{(r & 3)*1024} sc1"],
                 [regs[r] + k for k in range(4)]) for r in range(4 * self.H)]
        lds_.append(([f"buffer_load_dwordx2 v[{O}:{O+1}], v11, s[84:87], s56 offen offset:512 sc1"], [O, O + 1]))
        self.poll_multi(lds_, O + 2)
        self.stamp(8)
        MM, FF, LL = O + 2, O + 3, O + 6
        A(f"v_max_f32_dpp v{MM}, v{O}, v{O} row_ror:1 row_mask:0xf bank_mask:0xf")
        A(f"s_mov_b32 s58, {f32(LOG2E)}")
        self.nop(1)
        A(f"v_max_f32_dpp v{MM}, v{MM}, v{MM} row_ror:2 row_mask:0xf bank_mask:0xf")
        if self.H == 2:
            self.nop(2)
            A(f"v_max_f32_dpp v{MM}, v{MM}, v{MM} row_ror:4 row_mask:0xf bank_mask:0xf")
        A(f"v_sub_f32 v{FF}, v{O}, v{MM}")
        A(f"v_mul_f32 v{FF}, s58, v{FF}")
        A(f"v_exp_f32 v{FF}, v{FF}")
        self.nop(1)
        A(f"v_mul_f32 v{LL}, v{FF}, v{O+1}")
        self.nop(1)
        for k in range(4):
            A(f"v_mul_f32_dpp v{O+8+k}, v{FF}, v{regs[0]+k} row_newbcast:0 row_mask:0xf bank_mask:0xf")
        A(f"v_add_f32_dpp v{LL}, v{LL}, v{LL} row_ror:1 row_mask:0xf bank_mask:0xf")
        for r in range(1, 4 * self.H):
            for k in range(4):
                A(f"v_fmac_f32_dpp v{O+8+k}, v{FF}, v{regs[r]+k} row_newbcast:{r} row_mask:0xf bank_mask:0xf")
            if r == 1:
                A(f"v_add_f32_dpp v{LL}, v{LL}, v{LL} row_ror:2 row_mask:0xf bank_mask:0xf")
            if r == 2 and self.H == 2:
                A(f"v_add_f32_dpp v{LL}, v{LL}, v{LL} row_ror:4 row_mask:0xf bank_mask:0xf")
            if r == 1 + self.H:
                A(f"v_rcp_f32 v{LL}, v{LL}")
        for k in range(4):
            A(f"v_mul_f32 v{O+8+k}, v{LL}, v{O+8+k}")
        A(f"v_cvt_pk_bf16_f32 v{O+4}, v{O+8}, v{O+9}")
        A(f"v_cvt_pk_bf16_f32 v{O+5}, v{O+10}, v{O+11}")
        A(f"ds_write_b64 v{VAW}, v[{O+4}:{O+5}]")
        self.a_frags_from_stage(VAR, AF)
        self.mfmas(AF, BF, DT, 4, 4, lgkm=True)
        self.d_to_lds(DT, 4, TMP, TMP + 1, VDW)
        A("s_waitcnt lgkmcnt(0)")
        self.bar()
        A("s_cmp_eq_u32 s3, 0")
        A(f"s_cbranch_scc0 {EX}")
        self.d_sum(G, TT, TMP)
        for k in range(4):
            A(f"v_min_u32 v{TMP+4+k}, -2, v{TMP+4+k}")
        A(f"v_lshlrev_b32 v{TMP}, 11, v{G}")
        A(f"v_lshl_add_u32 v{TMP}, v{TT}, 4, v{TMP}")
        A("s_mov_b32 exec_hi, 0")
        A(f"buffer_store_dwordx4 v[{TMP+4}:{TMP+7}], v{TMP}, s[84:87], s60 offen sc1")
        self.stamp(9)
        self.dstamp(4)
        A(f"s_branch {EX}")

        L("L_tail_up")
        P = 12
        P = DT
        regs = [AF + 4 * i for i in range(4)] + [DT + 4 * i for i in range(4)]
        self.poll_multi([([f"s_add_u32 s57, s56, {hg*4096}", f"buffer_load_dwordx4 v[{regs[hg]}:{regs[hg]+3}], v12, s[84:87], s57 offen sc1"],
                          [regs[hg] + k for k in range(4)]) for hg in range(8)], TMP)
        self.stamp(8)
        X1 = TMP + 4
        self.sum8_x1(regs, X1, XV, GAV, TMP)
        S1, S2, U0, U1 = TMP + 8, TMP + 9, TMP + 10, TMP + 11
        A(f"v_add_f32 v{S1}, v{X1}, v{X1+1}")
        A(f"v_mul_f32 v{S2}, v{X1}, v{X1}")
        A(f"v_add_f32 v{U0}, v{X1+2}, v{X1+3}")
        A(f"v_fmac_f32 v{S2}, v{X1+1}, v{X1+1}")
        A(f"v_add_f32 v{S1}, v{S1}, v{U0}")
        A(f"v_fmac_f32 v{S2}, v{X1+2}, v{X1+2}")
        A(f"v_fmac_f32 v{S2}, v{X1+3}, v{X1+3}")
        self.allred32([S1, S2], [U0, U1])
        A(f"v_lshlrev_b32 v{U0}, 5, v{HB}")
        A("s_lshl_b32 s54, s3, 3")
        A(f"v_add_u32 v{U1}, s54, v{U0}")
        A(f"ds_write_b64 v{U1}, v[{S1}:{S2}] offset:{L_ST}")
        A("s_waitcnt lgkmcnt(0)")
        self.bar()
        Q8 = TMP + 12
        A(f"ds_read_b128 v[{Q8}:{Q8+3}], v{U0} offset:{L_ST}")
        A(f"ds_read_b128 v[{Q8+4}:{Q8+7}], v{U0} offset:{L_ST+16}")
        A("s_waitcnt lgkmcnt(0)")
        A(f"v_add_f32 v{S1}, v{Q8}, v{Q8+2}")
        A(f"v_add_f32 v{S2}, v{Q8+1}, v{Q8+3}")
        A(f"v_add_f32 v{U0}, v{Q8+4}, v{Q8+6}")
        A(f"v_add_f32 v{U1}, v{Q8+5}, v{Q8+7}")
        A(f"v_add_f32 v{S1}, v{S1}, v{U0}")
        A(f"v_add_f32 v{S2}, v{S2}, v{U1}")
        self.ln_norm(S1, S2, X1, U0, U1)
        self.modulate(X1, T4U, SBV, SBV + 1, TMP, TMP + 12, VAW)
        self.a_frags_from_stage(VAR, AF)
        self.mfmas(AF, BF, DT, 4, 4, lgkm=True)
        self.d_to_lds(DT, 4, TMP, TMP + 1, VDW)
        A("s_waitcnt lgkmcnt(0)")
        self.bar()
        A("s_cmp_eq_u32 s3, 0")
        A(f"s_cbranch_scc0 {EX}")
        A(f"v_lshrrev_b32 v{TMP}, 3, v2")
        A(f"v_and_b32 v{TMP}, 1, v{TMP}")
        A(f"v_and_b32 v{TMP+1}, 7, v2")
        A(f"v_lshlrev_b32 v{TMP+2}, 8, v{TMP}")
        A(f"v_lshl_add_u32 v{TMP+2}, v{TMP+1}, 4, v{TMP+2}")
        GT = AF
        for j in range(4):
            A(f"ds_read_b128 v[{AF+4*j}:{AF+4*j+3}], v{TMP+2} offset:{L_D + j*512}")
            A(f"ds_read_b128 v[{DT+4*j}:{DT+4*j+3}], v{TMP+2} offset:{L_D + j*512 + 128}")
        A(f"v_lshlrev_b32 v{TMP+3}, 6, v{TMP}")
        A(f"v_lshl_add_u32 v{TMP+3}, v{TMP+1}, 3, v{TMP+3}")
        A("s_waitcnt lgkmcnt(0)")
        for base in (AF, DT):
            self.pk4("add", base, base, base + 4)
            self.pk4("add", base + 8, base + 8, base + 12)
            self.pk4("add", base, base, base + 8)
            self.rnd2(base, base + 1, base + 4)
            self.rnd2(base + 2, base + 3, base + 5)
        A(f"s_mov_b32 s58, {f32(-LOG2E)}")
        for k in range(4):
            A(f"v_mul_f32 v{AF+4+k}, s58, v{AF+k}")
        for k in range(4):
            A(f"v_exp_f32 v{AF+4+k}, v{AF+4+k}")
        self.nop(1)
        for k in range(4):
            A(f"v_add_f32 v{AF+4+k}, 1.0, v{AF+4+k}")
        for k in range(4):
            A(f"v_rcp_f32 v{AF+4+k}, v{AF+4+k}")
        self.nop(1)
        self.pk4("mul", AF, AF, AF + 4)
        self.rnd2(AF, AF + 1, AF + 4)
        self.rnd2(AF + 2, AF + 3, AF + 5)
        self.pk4("mul", AF, AF, DT)
        A(f"v_cvt_pk_bf16_f32 v{AF+8}, v{AF}, v{AF+1}")
        A(f"v_cvt_pk_bf16_f32 v{AF+9}, v{AF+2}, v{AF+3}")
        A(f"v_min_u32 v{AF+8}, -2, v{AF+8}")
        A(f"v_min_u32 v{AF+9}, -2, v{AF+9}")
        self.nop(1)
        A(f"v_mov_b32_dpp v{AF+10}, v{AF+8} quad_perm:[1,1,3,3] row_mask:0xf bank_mask:0xf")
        A(f"v_mov_b32_dpp v{AF+11}, v{AF+9} quad_perm:[1,1,3,3] row_mask:0xf bank_mask:0xf")
        A("s_mov_b64 exec, 0x5555")
        A(f"buffer_store_dwordx4 v[{AF+8}:{AF+11}], v{TMP+3}, s[84:87], s60 offen sc1")
        self.stamp(9)
        self.dstamp(5)
        A(f"s_branch {EX}")

        L("L_tail_dn")
        A("s_cmp_eq_u32 s3, 0")
        A("s_cbranch_scc0 L_dn_hh")
        regs = [DAF + 4 * i for i in range(8)]
        self.poll_multi([([f"s_add_u32 s54, s56, {hg*4096}", f"buffer_load_dwordx4 v[{regs[hg]}:{regs[hg]+3}], v15, s[84:87], s54 offen sc1"],
                          [regs[hg] + k for k in range(4)]) for hg in range(8)], DAF + 32)
        self.unpack2(16, DAF + 32, DAF + 33)
        self.unpack2(17, DAF + 34, DAF + 35)
        self.unpack2(18, DAF + 36, DAF + 37)
        self.unpack2(19, DAF + 38, DAF + 39)
        self.sum8_x1(regs, DAF + 40, DAF + 32, DAF + 36, 22)
        A(f"v_cvt_pk_bf16_f32 v10, v{DAF+40}, v{DAF+41}")
        A(f"v_cvt_pk_bf16_f32 v11, v{DAF+42}, v{DAF+43}")
        L("L_dn_hh")
        self.poll_multi([([f"buffer_load_dwordx4 v[{DAF+36+4*t}:{DAF+39+4*t}], v7, s[16:19], s57 offen offset:{t*1024} sc1"],
                          [DAF + 36 + 4 * t + k for k in range(4)]) for t in range(2)], 22)
        self.stamp(8)
        A(f"ds_write_b128 v8, v[{DAF+36}:{DAF+39}]")
        A(f"ds_write_b128 v8, v[{DAF+40}:{DAF+43}] offset:1024")
        for t in range(11):
            A(f"ds_read_b128 v[{DAF+4*t}:{DAF+4*t+3}], v12 offset:{t*128}")
        self.mfmas(DAF, DBF, DDT, 11, 2, lgkm=True)
        self.d_to_lds(DDT, 2, 22, 23, VDW)
        A("s_waitcnt lgkmcnt(0)")
        self.bar()
        A("s_cmp_eq_u32 s3, 0")
        A(f"s_cbranch_scc0 {EX}")
        A("v_lshlrev_b32 v22, 8, v13")
        A("v_lshl_add_u32 v22, v14, 4, v22")
        F = DAF
        for j in range(4):
            A(f"ds_read_b128 v[{F+4*j}:{F+4*j+3}], v22 offset:{L_D + j*512}")
        self.unpack2(20, F + 16, F + 17)
        self.unpack2(21, F + 18, F + 19)
        self.unpack2(10, F + 20, F + 21)
        self.unpack2(11, F + 22, F + 23)
        A("v_lshlrev_b32 v23, 10, v13")
        A("v_lshl_add_u32 v23, v14, 3, v23")
        A("s_lshl_b32 s54, s59, 6")
        A("s_waitcnt lgkmcnt(0)")
        self.pk4("add", F, F, F + 4)
        self.pk4("add", F + 8, F + 8, F + 12)
        self.pk4("add", F, F, F + 8)
        self.rnd2(F, F + 1, F + 4)
        self.rnd2(F + 2, F + 3, F + 5)
        self.pk4("mul", F, F, F + 16)
        self.rnd2(F, F + 1, F + 4)
        self.rnd2(F + 2, F + 3, F + 5)
        self.pk4("add", F, F, F + 20)
        A(f"v_cvt_pk_bf16_f32 v{F+8}, v{F}, v{F+1}")
        A(f"v_cvt_pk_bf16_f32 v{F+9}, v{F+2}, v{F+3}")
        A("s_mov_b64 exec, 0xffff")
        A(f"buffer_store_dwordx2 v[{F+8}:{F+9}], v23, s[72:75], s54 offen")
        self.stamp(9)
        self.dstamp(1)
        A(f"s_branch {EX}")

    def d_sum(self, G, TT, t):
        A = self.A
        A(f"v_and_b32 v{t}, 1, v{G}")
        A(f"v_lshlrev_b32 v{t}, 8, v{t}")
        A(f"v_lshl_add_u32 v{t}, v{TT}, 4, v{t}")
        for j in range(4):
            A(f"ds_read_b128 v[{t+4+4*j}:{t+7+4*j}], v{t} offset:{L_D + j*512}")
        A("s_waitcnt lgkmcnt(0)")
        self.pk4("add", t + 4, t + 4, t + 8)
        self.pk4("add", t + 12, t + 12, t + 16)
        self.pk4("add", t + 4, t + 4, t + 12)

    def sum8_x1(self, regs, X1, XV, GAV, t):
        A = self.A
        for a, b in ((0, 1), (2, 3), (4, 5), (6, 7), (0, 2), (4, 6)):
            self.pk4("add", regs[a], regs[a], regs[b])
        self.pk4("add", X1, regs[0], regs[4])
        self.rnd2(X1, X1 + 1, t)
        self.rnd2(X1 + 2, X1 + 3, t + 1)
        self.pk4("mul", X1, X1, GAV)
        self.rnd2(X1, X1 + 1, t)
        self.rnd2(X1 + 2, X1 + 3, t + 1)
        self.pk4("add", X1, X1, XV)
        self.rnd2(X1, X1 + 1, t)
        self.rnd2(X1 + 2, X1 + 3, t + 1)

    def ln_norm(self, S1, S2, X, U0, U1):
        A = self.A
        A(f"s_mov_b32 s58, {f32(1.0/512)}")
        A(f"v_mul_f32 v{S1}, s58, v{S1}")
        A(f"v_mul_f32 v{S2}, s58, v{S2}")
        A(f"v_fma_f32 v{S2}, -v{S1}, v{S1}, v{S2}")
        A(f"v_max_f32 v{S2}, 0, v{S2}")
        self.rnd2(S1, S2, U0)
        A(f"v_add_f32 v{S2}, {f32(1e-5)}, v{S2}")
        self.rnd1(S2)
        A(f"v_sqrt_f32 v{S2}, v{S2}")
        for k in range(4):
            A(f"v_sub_f32 v{X+k}, v{X+k}, v{S1}")
        self.rnd1(S2)
        A(f"v_rcp_f32 v{S2}, v{S2}")
        self.rnd2(X, X + 1, U0)
        self.rnd2(X + 2, X + 3, U1)
        for k in range(4):
            A(f"v_mul_f32 v{X+k}, v{X+k}, v{S2}")
        self.rnd2(X, X + 1, U0)
        self.rnd2(X + 2, X + 3, U1)

    def modulate(self, N, T4, sp0, sp1, t0, w, VAW):
        A = self.A
        self.pk4("mul", N, N, T4)
        self.rnd2(N, N + 1, t0)
        self.rnd2(N + 2, N + 3, t0 + 1)
        self.unpack2(sp0, w, w + 1)
        self.unpack2(sp1, w + 2, w + 3)
        self.pk4("add", N, N, w)
        A(f"v_cvt_pk_bf16_f32 v{w+4}, v{N}, v{N+1}")
        A(f"v_cvt_pk_bf16_f32 v{w+5}, v{N+2}, v{N+3}")
        A(f"ds_write_b64 v{VAW}, v[{w+4}:{w+5}]")


HEADER = open("cdna_kernels/%s.s.ref" % NAME).read().split("; Override launch geometry")[0] if True else ""

if __name__ == "__main__":
    import argparse
    ap = argparse.ArgumentParser()
    ap.add_argument("-o", default="k.s")
    ap.add_argument("--R", type=int, default=3)
    ap.add_argument("--B", type=int, default=32)
    ap.add_argument("--stamps", action="store_true")
    ap.add_argument("--sleep", type=int, default=1)
    ap.add_argument("--NS", type=int, default=12)
    ap.add_argument("--R0", type=int, default=3)
    ap.add_argument("--grp", default="iod")
    ap.add_argument("--CP", type=int, default=0)
    ap.add_argument("--dbg", default="")
    ap.add_argument("--pace", type=int, default=0)
    ap.add_argument("--tpol", default="nt")
    ap.add_argument("--xmap", action="store_true")
    ap.add_argument("--flagq", action="store_true")
    ap.add_argument("--TH", type=int, default=480)
    ap.add_argument("--kvpol", default="nt")
    ap.add_argument("--dry", action="store_true")
    ap.add_argument("--pm", action="store_true")
    ap.add_argument("--rot", type=int, default=0)
    ap.add_argument("--H", type=int, default=1)
    ap.add_argument("--cpf", type=int, default=0)
    ap.add_argument("--late", action="store_true")
    ap.add_argument("--hold", action="store_true")
    ap.add_argument("--px", type=int, default=33)
    ap.add_argument("--egw", type=int, default=0)
    ap.add_argument("--cstr", type=int, default=4224)
    ap.add_argument("--ps1", type=int, default=1)
    ap.add_argument("--ps2", type=int, default=1)
    a = ap.parse_args()
    B = a.B
    if a.stamps and B > 32:
        B = 32
    g = Gen(R=a.R, B=B, stamps=a.stamps, sleep=a.sleep, NS=a.NS, R0=a.R0, grp=a.grp, CP=a.CP, dbg=a.dbg, pace=a.pace, tpol=a.tpol, xmap=a.xmap, flagq=a.flagq, ps1=a.ps1, ps2=a.ps2, TH=a.TH, kvpol=a.kvpol, dry=a.dry, pm=a.pm, rot=a.rot, H=a.H, cstr=a.cstr, egw=a.egw, px=a.px, late=a.late, hold=a.hold, cpf=a.cpf)
    open(a.o, "w").write(HEADER + g.build())
```

```python
import sys, struct

NAME = "adaLN_cond__mha_block_cached__glu_gated_swiglu__decode"

def f32(x):
    return "0x%08x" % struct.unpack("<I", struct.pack("<f", x))[0]

LOG2E = 1.4426950408889634
SCALE = 128 ** -0.5

MOD_OFF = 0x0000
Q_OFF = 0x8000
PART_OFF = 0x10000
ATT_OFF = 0x90000
HH_OFF = 0x98000
CNT_OFF = 0x9A000
CTR_OFF = 0x100000
WS_USED = 0x9C000
STAMP_OFF = 0x10000000
L_A = 0
L_D = L_A + 2048
L_ST = L_D + 2048
L_Q = L_ST + 64
L_Z = L_Q + 512
L_CNT = L_Z
L_QF = L_Z + 16
L_NEED = L_Z + 32
L_RL = L_Z + 256
L_ML = L_Z + 512
L_P = 5376
L_W = L_P + 16384
LDS_BYTES = L_W + 90112
assert L_ML + 128 <= L_P and L_P % 128 == 0

R_MOD0, R_Q0, R_WO0, R_WO1, R_UP0, R_UP1, R_DN0 = 0, 48, 112, 176, 192, 235, 240
SENT = 0xFFFFFFFF


class Gen:
    def __init__(self, R=3, B=32, stamps=False, NS=12, sleep=1, R0=3, grp='iod', CP=0, dbg='', pace=0, tpol='nt', xmap=False, flagq=False, ps1=1, ps2=1, TH=480, kvpol='nt', dry=False, pm=False, rot=0, H=1, cstr=4224, egw=0, px=33, late=False, hold=False, cpf=0, npol=None):
        self.o = []
        self.R, self.B, self.stamps, self.NS, self.sleep, self.R0, self.grp = R, B, stamps, NS, sleep, R0, grp
        self.uid = 0
        self.CP = CP
        self.dbg = dbg
        self.npol = npol
        self.cpf = cpf
        self.late, self.hold = late, hold
        self.px = px
        self.egw = egw
        self.cstr = cstr
        self.H = H
        self.rot = rot
        self.pm = pm
        self.dry = dry
        self.kvpol = kvpol
        self.TH = TH
        self.ps1, self.ps2 = ps1, ps2
        self.pace, self.tpol, self.xmap, self.flagq = pace, tpol, xmap, flagq

    def A(self, s):
        self.o.append("    " + s)

    def L(self, s):
        self.o.append(s + ":")

    def lab(self, p):
        self.uid += 1
        return f"L_{p}_{self.uid}"

    def nop(self, n):
        while n > 0:
            k = min(n, 16)
            self.A(f"s_nop {k-1}")
            n -= k

    def srd(self, d, b, nbytes):
        self.A(f"s_mov_b32 s{d}, s{b}")
        self.A(f"s_mov_b32 s{d+1}, s{b+1}")
        self.A(f"s_mov_b32 s{d+2}, {nbytes}")
        self.A(f"s_mov_b32 s{d+3}, 0x20000")

    def stamp(self, idx, src=None, wave=False):
        if not self.stamps:
            return
        A = self.A
        if src is None:
            A("s_memrealtime s[90:91]")
        else:
            A(f"s_mov_b64 s[90:91], {src}")
        A("s_mov_b64 s[92:93], exec")
        A("s_mov_b64 exec, 1")
        A("s_lshl_b32 s94, s2, 9")
        if wave:
            A("s_lshl_b32 s95, s3, 5")
            A("s_add_u32 s94, s94, s95")
        A(f"s_add_u32 s94, s94, {STAMP_OFF + idx*8}")
        A("s_waitcnt lgkmcnt(0)")
        A("v_mov_b32 v166, s90")
        A("v_mov_b32 v167, s91")
        A("buffer_store_dwordx2 v[166:167], off, s[84:87], s94")
        A("s_mov_b64 exec, s[92:93]")

    def rnd2(self, a, b, t):
        self.A(f"v_cvt_pk_bf16_f32 v{t}, v{a}, v{b}")
        self.A(f"v_lshlrev_b32 v{a}, 16, v{t}")
        self.A(f"v_and_b32 v{b}, 0xffff0000, v{t}")

    def pk4(self, op, d, a, b):
        assert d % 2 == 0 and a % 2 == 0 and b % 2 == 0
        for k in (0, 2):
            self.A(f"v_pk_{op}_f32 v[{d+k}:{d+k+1}], v[{a+k}:{a+k+1}], v[{b+k}:{b+k+1}]")

    def rnd1(self, a):
        self.A(f"v_cvt_pk_bf16_f32 v{a}, v{a}, v{a}")
        self.A(f"v_and_b32 v{a}, 0xffff0000, v{a}")

    def unpack2(self, src, lo, hi):
        self.A(f"v_lshlrev_b32 v{lo}, 16, v{src}")
        self.A(f"v_and_b32 v{hi}, 0xffff0000, v{src}")

    def allred32(self, regs, tmps):
        A = self.A
        for rot in (8, 4, 2, 1):
            self.nop(2 if len(regs) < 2 else max(0, 2 - (len(regs) - 1)))
            for r in regs:
                A(f"v_add_f32_dpp v{r}, v{r}, v{r} row_ror:{rot} row_mask:0xf bank_mask:0xf")
        for r, t in zip(regs, tmps):
            A(f"v_mov_b32 v{t}, v{r}")
        self.nop(2)
        for r, t in zip(regs, tmps):
            A(f"v_permlane16_swap_b32 v{r}, v{t}")
        self.nop(1)
        for r, t in zip(regs, tmps):
            A(f"v_add_f32 v{r}, v{r}, v{t}")

    def slice_of(self, dst, r0, n):
        A = self.A
        A(f"s_sub_u32 s{dst}, s89, {r0}")
        if not self.xmap:
            return
        q, rem = divmod(n, 8)
        A(f"s_and_b32 s68, s{dst}, 7")
        A(f"s_lshr_b32 s{dst}, s{dst}, 3")
        A(f"s_min_u32 s69, s68, {rem}")
        A(f"s_mul_i32 s68, s68, {q}")
        A(f"s_add_u32 s{dst}, s{dst}, s68")
        A(f"s_add_u32 s{dst}, s{dst}, s69")

    def dstamp(self, word, mn=False, tagreg=80, srd=76):
        if "dtime" not in self.dbg:
            return
        A = self.A
        A("s_memrealtime s[90:91]")
        A("s_mov_b64 s[92:93], exec")
        A("s_mov_b64 exec, 1")
        A("s_waitcnt lgkmcnt(0)")
        A(f"s_sub_u32 s90, s90, s{tagreg}")
        if mn:
            A("s_sub_u32 s90, 100000, s90")
        A("v_mov_b32 v166, s90")
        A(f"buffer_atomic_umax v166, off, s[{srd}:{srd+3}], 0 offset:{word*4} sc1")
        A("s_mov_b64 exec, s[92:93]")

    def dmark(self, k):
        if "dpro" in self.dbg:
            r = [4, 6, 100, 42][k]
            self.A(f"s_memrealtime s[{r}:{r+1}]")

    def demit(self):
        if "dpro" not in self.dbg:
            return
        A, L = self.A, self.L
        A("s_waitcnt lgkmcnt(0)")
        A("s_mov_b64 exec, 1")
        def em(reg, word, mn=False):
            l = self.lab("de")
            A(f"s_cmp_eq_u32 s{reg}, 0")
            A(f"s_cbranch_scc1 {l}")
            A(f"s_sub_u32 s90, s{reg}, s80")
            if mn:
                A("s_sub_u32 s90, 100000, s90")
            A("v_mov_b32 v166, s90")
            A(f"buffer_atomic_umax v166, off, s[76:79], 0 offset:{word*4} sc1")
            L(l)
        em(4, 3); em(4, 6, True)
        em(100, 9); em(100, 10, True)
        a = self.lab("da"); b = self.lab("db")
        A("s_cmp_lt_u32 s89, 16")
        A(f"s_cbranch_scc0 {a}")
        em(6, 7); em(42, 11)
        L(a)
        A("s_cmp_ge_u32 s89, 48")
        A(f"s_cbranch_scc0 {b}")
        em(6, 8); em(42, 12)
        L(b)
        A("s_mov_b64 exec, -1")

    def bar(self):
        if not self.dry:
            self.A("s_barrier")
            return
        l = self.lab("nb")
        self.A("s_cmp_eq_u32 s69, 0")
        self.A(f"s_cbranch_scc0 {l}")
        self.A("s_barrier")
        self.L(l)

    def poll_head(self):
        l = self.lab("poll")
        self.L(l)
        return l

    def poll_tail(self, l, sleep=None):
        A = self.A
        d = self.lab("pdone")
        A(f"s_cbranch_vccz {d}")
        A("s_cmp_eq_u32 s88, 0")
        A(f"s_cbranch_scc1 {d}")
        A("s_sub_u32 s88, s88, 1")
        if (self.sleep if sleep is None else sleep):
            A(f"s_sleep {self.sleep if sleep is None else sleep}")
        A(f"s_branch {l}")
        self.L(d)

    def poll_multi(self, loads, t):
        A, L = self.A, self.L
        n = len(loads)
        if not self.pm:
            pl = self.poll_head()
            for lines, regs in loads:
                for x in lines:
                    A(x)
            A("s_waitcnt vmcnt(0)")
            self.check_sent([r for lines, regs in loads for r in regs], t)
            self.poll_tail(pl)
            return
        A(f"s_mov_b32 s95, {(1 << n) - 1}")
        first = True
        top = self.lab("mp")
        done = self.lab("mpd")
        for lines, regs in loads:
            for x in lines:
                A(x)
        chk = self.lab("mpc")
        A(f"s_branch {chk}")
        L(top)
        for r, (lines, regs) in enumerate(loads):
            sk = self.lab("mps")
            A(f"s_bitcmp1_b32 s95, {r}")
            A(f"s_cbranch_scc0 {sk}")
            for x in lines:
                A(x)
            L(sk)
        L(chk)
        A("s_waitcnt vmcnt(0)")
        for r, (lines, regs) in enumerate(loads):
            sk = self.lab("mpk")
            A(f"s_bitcmp1_b32 s95, {r}")
            A(f"s_cbranch_scc0 {sk}")
            self.check_sent(regs, t)
            A(f"s_cbranch_vccnz {sk}")
            A(f"s_bitset0_b32 s95, {r}")
            L(sk)
        A("s_cmp_eq_u32 s95, 0")
        A(f"s_cbranch_scc1 {done}")
        A("s_cmp_eq_u32 s88, 0")
        A(f"s_cbranch_scc1 {done}")
        A("s_sub_u32 s88, s88, 1")
        if self.sleep:
            A(f"s_sleep {self.sleep}")
        A(f"s_branch {top}")
        L(done)

    def check_sent(self, regs, t):
        A = self.A
        regs = list(regs)
        if len(regs) >= 3:
            A(f"v_max3_u32 v{t}, v{regs[0]}, v{regs[1]}, v{regs[2]}")
            regs = regs[3:]
        else:
            A(f"v_max_u32 v{t}, v{regs[0]}, v{regs[1]}")
            regs = regs[2:]
        while len(regs) >= 2:
            A(f"v_max3_u32 v{t}, v{t}, v{regs[0]}, v{regs[1]}")
            regs = regs[2:]
        if regs:
            A(f"v_max_u32 v{t}, v{t}, v{regs[0]}")
        A(f"v_cmp_eq_u32 vcc, -1, v{t}")

    def check_tags(self, regs, t):
        A = self.A
        A(f"v_xor_b32 v{t}, s80, v{regs[0]}")
        for r in regs[1:]:
            A(f"v_xor_b32 v{t+1}, s80, v{r}")
            A(f"v_or_b32 v{t}, v{t}, v{t+1}")
        A(f"v_cmp_ne_u32 vcc, 0, v{t}")

    def dma_weights(self, srd, nins, voff, row_step_bytes, lds_base_s, soff0=0, pol="nt", skip=""):
        A = self.A
        if "notaildma" in self.dbg and getattr(self, "intail", False):
            return
        if "noprodma" in self.dbg and not getattr(self, "intail", False):
            nins = 16
            A(f"s_mov_b32 s{srd+2}, 0")
        A(f"s_mov_b32 s70, {soff0}")
        A(f"s_add_u32 s71, s{lds_base_s}, {L_W}")
        intail = getattr(self, "intail", False)
        if intail:
            pol = self.tpol
            if skip in ("noup", "nodn") and self.npol is not None:
                pol = self.npol
            if skip and skip in self.dbg:
                return
        for i in range(nins):
            if intail and self.pace and i >= self.pace:
                A(f"s_waitcnt vmcnt({self.pace-1})")
            A("s_mov_b32 m0, s71")
            A(f"s_add_u32 s71, s71, 1024")
            A(f"buffer_load_dwordx4 v{voff}, s[{srd}:{srd+3}], s70 offen {pol} lds")
            A(f"s_add_u32 s70, s70, {row_step_bytes}")

    def tr_reads(self, vaddr, breg, nk, cgs, rowb):
        for t in range(nk):
            for ci, cgoff in enumerate(cgs):
                r = breg + (t * len(cgs) + ci) * 4
                off = t * 32 * rowb + cgoff
                self.A(f"ds_read_b64_tr_b16 v[{r}:{r+1}], v{vaddr} offset:{off}")
                self.A(f"ds_read_b64_tr_b16 v[{r+2}:{r+3}], v{vaddr} offset:{off + 4*rowb}")

    def mfmas(self, areg, breg, dreg, nk, ncg, lgkm=False):
        for t in range(nk):
            if lgkm:
                self.A(f"s_waitcnt lgkmcnt({nk-1-t})")
            for c in range(ncg):
                a = areg + 4 * t
                b = breg + (t * ncg + c) * 4
                d = dreg + 4 * c
                src = "0" if t == 0 else f"v[{d}:{d+3}]"
                self.A(f"v_mfma_f32_16x16x32_bf16 v[{d}:{d+3}], v[{a}:{a+3}], v[{b}:{b+3}], {src}")

    def d_to_lds(self, dreg, ncg, x0, x1, vaddr):
        A = self.A
        self.nop(8)
        for c in range(ncg):
            A(f"v_mov_b32_dpp v{x0}, v{dreg+4*c} quad_perm:[0,1,2,3] row_mask:{1<<c:#x} bank_mask:0xf")
            A(f"v_mov_b32_dpp v{x1}, v{dreg+4*c+1} quad_perm:[0,1,2,3] row_mask:{1<<c:#x} bank_mask:0xf")
        A(f"ds_write_b32 v{vaddr}, v{x0}")
        A(f"ds_write_b32 v{vaddr}, v{x1} offset:256")

    def a_frags_from_stage(self, vaddr, areg):
        for t in range(4):
            self.A(f"ds_read_b128 v[{areg+4*t}:{areg+4*t+3}], v{vaddr} offset:{t*64}")

    def build(self):
        A, L = self.A, self.L
        o = self.o
        o.append(f"; @launch grid=(256,1,1) block=(768,1,1) lds={LDS_BYTES}")
        o.append('.amdgcn_target "amdgcn-amd-amdhsa--gfx950"')
        o.append(".text")
        o.append(f".globl {NAME}_kernel")
        o.append(".p2align 8")
        o.append(f".type {NAME}_kernel,@function")
        L(f"{NAME}_kernel")
        if self.stamps:
            A("s_memrealtime s[100:101]")
        A("s_cmp_ge_u32 s2, 256")
        A("s_cbranch_scc1 L_end")
        A("s_load_dwordx4 s[4:7], s[0:1], 8")
        A("s_load_dwordx4 s[96:99], s[0:1], 96")
        A("v_lshrrev_b32 v1, 6, v0")
        A("v_and_b32 v2, 63, v0")
        A("v_readfirstlane_b32 s3, v1")
        if self.grp == "pair":
            A("s_and_b32 s40, s2, 7")
            A("s_lshr_b32 s40, s40, 1")
            A("s_lshr_b32 s43, s2, 4")
            A("s_lshl_b32 s43, s43, 2")
            A("s_add_u32 s40, s40, s43")
            A("s_and_b32 s41, s2, 1")
            A("s_lshr_b32 s43, s2, 3")
            A("s_and_b32 s43, s43, 1")
            A("s_lshl_b32 s43, s43, 1")
            A("s_add_u32 s41, s41, s43")
        else:
            A("s_lshr_b32 s41, s2, 1")
            A("s_xor_b32 s40, s41, s2")
            A("s_and_b32 s40, s40, 1")
            A("s_and_b32 s41, s41, 3")
            A("s_lshr_b32 s43, s2, 3")
            A("s_lshl_b32 s43, s43, 1")
            A("s_add_u32 s40, s40, s43")
        A("s_lshr_b32 s89, s40, 1")
        A("s_add_u32 s89, s89, s41")
        A("s_and_b32 s89, s89, 3")
        A("s_lshl_b32 s89, s89, 6")
        A("s_add_u32 s89, s89, s40")
        A("s_cmp_ge_u32 s3, 8")
        A("s_cbranch_scc1 L_helper")
        self.streamer()
        L("L_helper")
        self.helper()
        L("L_end")
        A("s_endpgm")
        L("L_codeend")
        o.append('.section .rodata,"a"')
        o.append(".p2align 6")
        o.append(f".amdhsa_kernel {NAME}_kernel")
        o.append("  .amdhsa_next_free_vgpr 168")
        o.append("  .amdhsa_next_free_sgpr 102")
        o.append("  .amdhsa_accum_offset 168")
        o.append("  .amdhsa_group_segment_fixed_size 0")
        o.append("  .amdhsa_kernarg_size 112")
        o.append("  .amdhsa_user_sgpr_count 2")
        o.append("  .amdhsa_user_sgpr_kernarg_segment_ptr 1")
        o.append("  .amdhsa_system_sgpr_workgroup_id_x 1")
        o.append("  .amdhsa_float_denorm_mode_32 3")
        o.append(".end_amdhsa_kernel")
        return "\n".join(o) + "\n"

    def streamer(self):
        A, L = self.A, self.L
        R, B, NS, R0 = self.R, self.B, self.NS, self.R0
        VOFF, QF, MK, D, M, MN, LS = 1, 2, 6, 10, 14, 15, 16
        AC, T0, T1, S, PP = 17, 21, 22, 23, 24
        AS = 26
        LANE = 34
        EP, CLM = 35, 25
        RING = 168 - 4 * B - (2 if self.stamps else 0)
        RING -= RING % 2
        assert RING >= 36
        A(f"v_mov_b32 v{LANE}, v2")
        A("s_lshl_b32 s44, s41, 3")
        A("s_add_u32 s44, s44, s3")
        A("s_lshl_b32 s44, s44, 12")
        A(f"s_mul_i32 s45, s40, {self.rot}")
        A("s_lshl_b32 s45, s45, 15")
        A("s_add_u32 s44, s44, s45")
        A("s_lshl_b32 s33, s40, 21")
        A(f"v_lshlrev_b32 v{VOFF}, 4, v2")
        A("s_waitcnt lgkmcnt(0)")
        self.srd(8, 4, 0x8000000)
        self.srd(12, 6, 0x8000000)
        N = (NS - 1) * 8 + R
        NC = (NS - 1) * 8

        def issue(p):
            i, j = divmod(p, 8)
            t, j = divmod(j, 4)
            r = RING + 4 * (p % B)
            srd = "s[8:11]" if t == 0 else "s[12:15]"
            if j == 0 and t == 0:
                A(f"s_add_u32 s16, s44, {i * 32 * 4096}")
                A("s_and_b32 s16, s16, 0x1fffff")
                A("s_add_u32 s16, s16, s33")
                if self.stamps and i < 12:
                    A(f"s_memrealtime s[{48+2*i}:{49+2*i}]")
            A(f"buffer_load_dwordx4 v[{r}:{r+3}], v{VOFF}, {srd}, s16 offen offset:{j*1024} {self.kvpol}")

        if self.hold:
            A("s_cmp_lt_u32 s89, 16")
            A("s_cbranch_scc0 L_nohold")
            A("s_barrier")
            L("L_nohold")
        for p in range(R0):
            issue(p)
        if self.stamps:
            A("s_memrealtime s[30:31]")
        self.srd(84, 98, 0x20000000)
        if self.hold:
            A("s_cmp_lt_u32 s89, 16")
            A("s_cbranch_scc1 L_nohold2")
        A("s_barrier")
        if self.hold:
            L("L_nohold2")
        if self.H == 2:
            A(f"s_xor_b32 s43, s40, {self.px}")
            A("s_min_u32 s43, s43, s40")
            A(f"s_xor_b32 s39, s43, {self.px}")
            A("s_lshl_b32 s39, s39, 21")
        else:
            A("s_mov_b32 s43, s40")
        A("s_lshl_b32 s45, s43, 3")
        A("s_add_u32 s45, s45, s3")
        A(f"s_mul_i32 s45, s45, {self.cstr}")
        A(f"s_add_u32 s45, s45, {CTR_OFF}")
        A("s_lshl_b32 s42, s3, 12")
        A(f"s_mul_i32 s38, s43, {self.rot}")
        A("s_lshl_b32 s38, s38, 15")
        A("s_add_u32 s42, s42, s38")
        A("s_lshl_b32 s43, s43, 21")
        if self.H == 2:
            A("s_lshr_b32 s32, s40, 5")
        else:
            A("s_mov_b32 s32, 0")
        A("s_mov_b32 s28, s32")
        A("s_mov_b32 s29, s32")
        A("s_add_u32 s26, s98, s45")
        A("s_addc_u32 s27, s99, 0")
        A(f"v_and_b32 v{T0}, 15, v{LANE}")
        A(f"v_and_b32 v{T1}, 1, v{LANE}")
        A(f"v_lshlrev_b32 v{T1}, 4, v{T1}")
        A(f"s_mov_b32 s17, 0xffff")
        A(f"v_mov_b32 v{S}, s17")
        A(f"v_lshlrev_b32 v{T1}, v{T1}, v{S}")
        A(f"v_lshrrev_b32 v{T0}, 1, v{T0}")
        for k in range(4):
            A(f"v_cmp_eq_u32 vcc, {k}, v{T0}")
            self.nop(2)
            A(f"v_cndmask_b32 v{MK+k}, 0, v{T1}, vcc")
        for k in range(4):
            A(f"v_mov_b32 v{D+k}, 0")
        A(f"v_mov_b32 v{M}, {f32(-3.0e38)}")
        A(f"v_mov_b32 v{MN}, 0")
        A(f"v_mov_b32 v{LS}, 0")
        A(f"v_and_b32 v35, 15, v{LANE}")
        A(f"v_lshlrev_b32 v35, 5, v35")
        A(f"v_lshrrev_b32 v{T1}, 4, v{LANE}")
        A(f"v_and_b32 v{S}, 1, v{T1}")
        A(f"v_lshl_add_u32 v35, v{S}, 4, v35")
        A(f"v_lshrrev_b32 v{T1}, 1, v{T1}")
        A(f"v_lshl_add_u32 v35, v{T1}, 9, v35")
        A("s_lshl_b32 s20, s3, 10")
        A(f"v_add_u32 v35, s20, v35")
        A("s_lshl_b32 s20, s3, 3")
        A(f"v_mov_b32 v25, s20")
        A(f"s_mov_b32 s18, {f32(SCALE)}")
        A(f"s_mov_b32 s19, {f32(LOG2E)}")
        for p in range(R0, B):
            A(f"s_waitcnt vmcnt({R0-1 if p < 8 else R-1})")
            issue(p)
        self.stamp(1)
        self.stamp(11, "s[100:101]")
        self.stamp(12, "s[30:31]")
        A(f"v_and_b32 v{T0}, 15, v{LANE}")
        A(f"v_lshlrev_b32 v{T0}, 4, v{T0}")
        A("s_lshl_b32 s20, s32, 8")
        A(f"v_add_u32 v{T0}, s20, v{T0}")
        if not self.flagq:
            A("s_barrier")
            A(f"ds_read_b128 v[{QF}:{QF+3}], v{T0} offset:{L_Q}")
            A("s_waitcnt lgkmcnt(0)")
        else:
            A(f"v_mov_b32 v{T1}, 0")
            A("s_mov_b32 s88, 0x400000")
            pl = self.poll_head()
            A(f"ds_read_b32 v{AS}, v{T1} offset:{L_QF}")
            A(f"ds_read_b128 v[{QF}:{QF+3}], v{T0} offset:{L_Q}")
            A("s_waitcnt lgkmcnt(0)")
            A(f"v_cmp_eq_u32 vcc, 0, v{AS}")
            self.poll_tail(pl, sleep=1)
        if self.stamps:
            A("s_waitcnt vmcnt(0)")
        beta = [0, 2, 1, 3]
        st = {"I": B, "landed": (B if self.stamps else B - R)}

        def need(c):
            if c >= st["landed"]:
                A(f"s_waitcnt vmcnt({st['I'] - 1 - c})")
                st["landed"] = c + 1

        def paced_issue():
            I = st["I"]
            if I >= N:
                return
            if I - st["landed"] >= R:
                A(f"s_waitcnt vmcnt({R-1})")
                st["landed"] = I - (R - 1)
            issue(I)
            st["I"] = I + 1

        def consume(c):
            i, j = divmod(c, 8)
            t, j = divmod(j, 4)
            r = RING + 4 * (c % B)
            need(c)
            if "nocomp" in self.dbg:
                A(f"v_xor_b32 v{AC}, v{AC}, v{r}")
            elif t == 0:
                A(f"v_dot2_f32_bf16 v{AC+j}, v{r}, v{QF}, 0")
                for k in range(1, 4):
                    A(f"v_dot2_f32_bf16 v{AC+j}, v{r+k}, v{QF+k}, v{AC+j}")
            else:
                a = AS + 4 * (j & 1)
                for k in range(4):
                    A(f"v_and_b32_dpp v{a+k}, v{PP}, v{MK+k} row_newbcast:{4*beta[j]} row_mask:0xf bank_mask:0xf")
                self.nop(2)
                A(f"v_mfma_f32_16x16x32_bf16 v[{D}:{D+3}], v[{a}:{a+3}], v[{r}:{r+3}], v[{D}:{D+3}]")

        def softmax():
            if "nocomp" in self.dbg:
                return
            self.nop(3)
            A(f"v_add_f32_dpp v{T0}, v{AC}, v{AC} row_ror:8 row_mask:0xf bank_mask:0x3")
            A(f"v_add_f32_dpp v{T1}, v{AC+2}, v{AC+2} row_ror:8 row_mask:0xf bank_mask:0x3")
            A(f"v_add_f32_dpp v{T0}, v{AC+1}, v{AC+1} row_ror:8 row_mask:0xf bank_mask:0xc")
            A(f"v_add_f32_dpp v{T1}, v{AC+3}, v{AC+3} row_ror:8 row_mask:0xf bank_mask:0xc")
            self.nop(1)
            A(f"v_add_f32_dpp v{S}, v{T0}, v{T0} row_shl:4 row_mask:0xf bank_mask:0x5")
            A(f"v_add_f32_dpp v{S}, v{T1}, v{T1} row_shr:4 row_mask:0xf bank_mask:0xa")
            self.nop(2)
            A(f"v_add_f32_dpp v{S}, v{S}, v{S} quad_perm:[2,3,0,1] row_mask:0xf bank_mask:0xf")
            self.nop(2)
            A(f"v_add_f32_dpp v{S}, v{S}, v{S} quad_perm:[1,0,3,2] row_mask:0xf bank_mask:0xf")
            self.rnd1(S)
            A(f"v_mul_f32 v{S}, s18, v{S}")
            self.rnd1(S)
            A(f"v_cmp_gt_f32 vcc, v{S}, v{M}")
            bk = self.lab("back")
            A(f"s_cbranch_vccz {bk}")
            A("s_call_b64 s[46:47], L_rare")
            L(bk)
            A(f"v_sub_f32 v{T0}, v{S}, v{M}")
            A(f"v_mul_f32 v{T0}, s19, v{T0}")
            A(f"v_exp_f32 v{T0}, v{T0}")
            self.nop(1)
            A(f"v_add_f32 v{LS}, v{LS}, v{T0}")
            A(f"v_cvt_pk_bf16_f32 v{PP}, v{T0}, v{T0}")
            self.nop(2)

        c = 0
        while c < NC:
            lag = st["I"] - c
            ncons = 2 if lag > R + 1 else 1
            if st["I"] < N and st["I"] - B < c and lag <= R:
                paced_issue()
            for _ in range(ncons):
                if c >= NC:
                    break
                consume(c)
                c += 1
                if c % 8 == 4:
                    softmax()
            if st["I"] < N and st["I"] - B < c and (st["I"] - c) > R:
                paced_issue()
        assert st["I"] == N, (st, N)
        base = (NS - 1) * 8
        alt = base + 8
        st["landed"] = 1 << 30

        def ld(pos, sl, soff):
            t, jl = divmod(pos, 4)
            r = RING + 4 * (sl % B)
            srd = "s[8:11]" if t == 0 else "s[12:15]"
            A(f"buffer_load_dwordx4 v[{r}:{r+3}], v{VOFF}, {srd}, {soff} offen offset:{jl*1024} {self.kvpol}")

        CP = self.CP

        def claim():
            if "fake" in self.dbg:
                A("s_add_u32 s39, s39, 4")
                A("s_mov_b32 s24, s39")
                if "fakeld" in self.dbg:
                    A("s_load_dword s38, s[26:27], 0 glc")
                if "fakeat" in self.dbg:
                    A("s_mov_b32 s38, 1")
                    A("s_atomic_add s38, s[26:27], 0 glc")
                return
            A("s_mov_b32 s24, 1")
            A("s_atomic_add s24, s[26:27], 0 glc")

        def eat(sl, j_from, younger):
            for j in range(j_from, 8):
                A(f"s_waitcnt vmcnt({younger + 7 - j})")
                consume(sl + j)
                if j == 3:
                    softmax()

        CX = RING + 4 * ((base + 16) % B)
        assert (base + 16) % B + 4 <= B
        ACT = [QF, QF + 1, QF + 2, QF + 3, D, D + 1, D + 2, D + 3, M, MN, LS]
        SAV = [CX + k for k in range(11)]
        self.ctx = (ACT, SAV)
        if self.H == 2:
            A(f"v_and_b32 v{T0}, 15, v{LANE}")
            A(f"v_lshlrev_b32 v{T0}, 4, v{T0}")
            A("s_xor_b32 s20, s32, 1")
            A("s_lshl_b32 s20, s20, 8")
            A(f"v_add_u32 v{T0}, s20, v{T0}")
            A(f"ds_read_b128 v[{CX}:{CX+3}], v{T0} offset:{L_Q}")
            for k in range(4, 8):
                A(f"v_mov_b32 v{CX+k}, 0")
            A(f"v_mov_b32 v{CX+8}, {f32(-3.0e38)}")
            A(f"v_mov_b32 v{CX+9}, 0")
            A(f"v_mov_b32 v{CX+10}, 0")

        def decode(dst, hd, src=24):
            if self.H == 1:
                A(f"s_lshl_b32 s{dst}, s{src}, 15")
                A(f"s_add_u32 s{dst}, s{dst}, s42")
                if self.rot:
                    A(f"s_and_b32 s{dst}, s{dst}, 0x1fffff")
                A(f"s_add_u32 s{dst}, s{dst}, s43")
                return
            A(f"s_and_b32 s{hd}, s{src}, 1")
            A(f"s_lshr_b32 s{dst}, s{src}, 1")
            A(f"s_lshl_b32 s{dst}, s{dst}, 15")
            A(f"s_add_u32 s{dst}, s{dst}, s42")
            A(f"s_mul_i32 s21, s{hd}, {((32 * self.rot) & 63) << 15}")
            A(f"s_add_u32 s{dst}, s{dst}, s21")
            A(f"s_and_b32 s{dst}, s{dst}, 0x1fffff")
            A(f"s_lshl_b32 s21, s{hd}, 26")
            A(f"s_add_u32 s{dst}, s{dst}, s21")
            A(f"s_add_u32 s{dst}, s{dst}, s43")

        def switch(hd):
            if self.H == 1:
                return
            l = self.lab("nosw")
            A(f"s_cmp_eq_u32 s32, s{hd}")
            A(f"s_cbranch_scc1 {l}")
            A("s_call_b64 s[46:47], L_swap")
            L(l)

        if self.stamps:
            A("s_mov_b32 s78, 0")
            A("s_mov_b32 s79, 0")
        j0 = 8 - R
        assert CP < j0
        RLA, RLV, NDV, ZA = CX + 12, CX + 13, CX + 14, CX + 15
        END = 64 * self.H + 1
        A(f"v_mov_b32 v{RLA}, 0")
        A(f"v_mov_b32 v{ZA}, 0")
        A(f"v_mov_b32 v{NDV}, 1")
        if CP < 0:
            A(f"ds_max_u32 v{ZA}, v{NDV} offset:{L_NEED}")
        if self.H == 1:
            A("s_sub_u32 s42, s42, 0x8000")
            A("s_add_u32 s42, s42, s43")
        else:
            A("s_add_u32 s43, s43, s42")
            A("s_add_u32 s39, s39, s42")

        def rl_read():
            A(f"ds_read_b32 v{RLV}, v{RLA} offset:{L_RL}")

        def rl_get():
            got = self.lab("got")
            A("s_waitcnt lgkmcnt(0)")
            A(f"v_readfirstlane_b32 s24, v{RLV}")
            A("s_cmp_lg_u32 s24, 0")
            A(f"s_cbranch_scc1 {got}")
            A("s_call_b64 s[46:47], L_rlspin")
            L(got)

        def rl_next(dst, hd, ann=True):
            A(f"v_add_u32 v{NDV}, 1, v{NDV}")
            A(f"v_add_u32 v{RLA}, 4, v{RLA}")
            if ann:
                A(f"ds_max_u32 v{ZA}, v{NDV} offset:{L_NEED}")
            if self.H == 1:
                A(f"s_lshl_b32 s{dst}, s24, 15")
                A(f"s_add_u32 s{dst}, s{dst}, s42")
            else:
                A("s_sub_u32 s24, s24, 1")
                A(f"s_and_b32 s{hd}, s24, 1")
                A("s_cselect_b32 s21, s39, s43")
                A(f"s_lshr_b32 s{dst}, s24, 1")
                A(f"s_lshl_b32 s{dst}, s{dst}, 15")
                A(f"s_add_u32 s{dst}, s{dst}, s21")

        L("L_dyn")
        if self.stamps:
            A("s_add_u32 s78, s78, 1")
        switch(28)
        for j in range(8):
            if j == CP:
                A(f"ds_max_u32 v{ZA}, v{NDV} offset:{L_NEED}")
            if j == j0 - 1:
                rl_read()
            if j == j0:
                if self.stamps:
                    A("s_memrealtime s[34:35]")
                rl_get()
                if self.stamps:
                    A("s_mov_b32 m0, s78")
                    A("v_writelane_b32 v36, s34, m0")
                    A("s_add_u32 m0, s78, 32")
                    A("s_sub_u32 s35, s24, 1")
                    A("v_writelane_b32 v36, s35, m0")
                A(f"s_cmp_ge_u32 s24, {self.TH * self.H // 8 + 1}")
                A("s_cbranch_scc1 L_fin")
                rl_next(16, 28, CP < 0)
            A(f"s_waitcnt vmcnt({R-1})")
            jj = j + R
            ld(jj % 8, base + jj % 8, "s16")
            consume(base + j)
            if j == 3:
                softmax()
        A("s_branch L_dyn")
        L("L_rlspin")
        pl = self.poll_head()
        rl_read()
        A("s_waitcnt lgkmcnt(0)")
        A(f"v_cmp_eq_u32 vcc, 0, v{RLV}")
        self.poll_tail(pl, sleep=1)
        A(f"v_readfirstlane_b32 s24, v{RLV}")
        A("s_cmp_eq_u32 s24, 0")
        A(f"s_cselect_b32 s24, {END}, s24")
        A("s_setpc_b64 s[46:47]")
        L("L_fin")
        if self.stamps:
            A("s_memrealtime s[76:77]")
        if self.TH < 512:
            A(f"s_cmp_ge_u32 s24, {END}")
            A("s_cbranch_scc1 L_fin_last")
            rl_next(25, 29)
            for jj in range(8):
                ld(jj, alt + jj, "s25")
            eat(base, j0, 8)
            for (P, Q, hp, hq, me) in ((alt, base, 29, 28, "A"), (base, alt, 28, 29, "B")):
                L(f"L_eg{me}")
                if self.egw:
                    A(f"s_waitcnt vmcnt({8 - self.egw})")
                rl_read()
                rl_get()
                A(f"s_cmp_ge_u32 s24, {END}")
                A(f"s_cbranch_scc1 L_drain{me}")
                rl_next(25, hq)
                for jj in range(8):
                    ld(jj, Q + jj, "s25")
                switch(hp)
                eat(P, 0, 8)
                if me == "B":
                    A("s_branch L_egA")
            L("L_drainA")
            switch(29)
            eat(alt, 0, 0)
            A("s_branch L_done")
            L("L_drainB")
            switch(28)
            eat(base, 0, 0)
            A("s_branch L_done")
            L("L_fin_last")
        eat(base, j0, 0)
        L("L_done")
        self.stamp(2)
        if self.stamps:
            A("s_lshl_b32 s36, s2, 11")
            A("s_lshl_b32 s37, s3, 8")
            A("s_add_u32 s36, s36, s37")
            A(f"s_add_u32 s36, s36, {STAMP_OFF + 0x40000}")
            A(f"v_lshlrev_b32 v37, 2, v{LANE}")
            A("buffer_store_dword v36, v37, s[84:87], s36 offen")
        self.stamp(32, wave=True)
        self.stamp(33, "s[76:77]", wave=True)
        self.stamp(34, "s[78:79]", wave=True)
        if self.stamps:
            A("s_cmp_eq_u32 s3, 0")
            A("s_cbranch_scc0 L_noprof")
            for i in range(min(NS, 12)):
                self.stamp(16 + i, f"s[{48+2*i}:{49+2*i}]")
            self.stamp(16 + 14)
            L("L_noprof")
        if self.H == 1:
            for ctl, msk in (("row_ror:4", "0xf"), ("row_ror:8", "0xf"), ("row_bcast:15", "0xa"), ("row_bcast:31", "0xc")):
                A(f"v_add_f32_dpp v{LS}, v{LS}, v{LS} {ctl} row_mask:{msk} bank_mask:0xf")
                self.nop(2)
            A(f"ds_write_b128 v35, v[{D}:{D+3}] offset:{L_P}")
            A(f"v_mov_b32 v{MN}, v{LS}")
            A("s_mov_b32 exec_lo, 0")
            A("s_mov_b32 exec_hi, 0x80000000")
            A(f"ds_write_b64 v25, v[{M}:{M+1}] offset:{L_ML}")
            A("s_waitcnt lgkmcnt(0)")
            A("s_barrier")
            A("s_endpgm")
        else:
            LS2, M2, D2 = CX + 10, CX + 8, CX + 4
            for ctl, msk in (("row_ror:4", "0xf"), ("row_ror:8", "0xf"), ("row_bcast:15", "0xa"), ("row_bcast:31", "0xc")):
                A(f"v_add_f32_dpp v{LS}, v{LS}, v{LS} {ctl} row_mask:{msk} bank_mask:0xf")
                A(f"v_add_f32_dpp v{LS2}, v{LS2}, v{LS2} {ctl} row_mask:{msk} bank_mask:0xf")
                self.nop(1)
            A("s_lshl_b32 s20, s32, 13")
            A("s_xor_b32 s21, s20, 8192")
            A(f"v_add_u32 v{T0}, s20, v35")
            A(f"v_add_u32 v{T1}, s21, v35")
            A(f"ds_write_b128 v{T0}, v[{D}:{D+3}] offset:{L_P}")
            A(f"ds_write_b128 v{T1}, v[{D2}:{D2+3}] offset:{L_P}")
            A(f"v_mov_b32 v{MN}, v{LS}")
            A(f"v_mov_b32 v{M2+1}, v{LS2}")
            A("s_lshl_b32 s20, s32, 6")
            A("s_xor_b32 s21, s20, 64")
            A(f"v_add_u32 v{T0}, s20, v25")
            A(f"v_add_u32 v{T1}, s21, v25")
            A("s_mov_b32 exec_lo, 0")
            A("s_mov_b32 exec_hi, 0x80000000")
            A(f"ds_write_b64 v{T0}, v[{M}:{M+1}] offset:{L_ML}")
            A(f"ds_write_b64 v{T1}, v[{M2}:{M2+1}] offset:{L_ML}")
            A("s_waitcnt lgkmcnt(0)")
            A("s_barrier")
            A("s_endpgm")
            L("L_swap")
            self.nop(8)
            for a, b in zip(ACT, SAV):
                A(f"v_swap_b32 v{a}, v{b}")
            A("s_xor_b32 s32, s32, 1")
            A("s_setpc_b64 s[46:47]")

        L("L_rare")
        A(f"v_max_f32_dpp v{T0}, v{S}, v{S} row_ror:4 row_mask:0xf bank_mask:0xf")
        self.nop(2)
        A(f"v_max_f32_dpp v{T0}, v{T0}, v{T0} row_ror:8 row_mask:0xf bank_mask:0xf")
        self.nop(1)
        A(f"v_readlane_b32 s20, v{T0}, 0")
        A(f"v_readlane_b32 s21, v{T0}, 16")
        A(f"v_readlane_b32 s22, v{T0}, 32")
        A(f"v_readlane_b32 s23, v{T0}, 48")
        A(f"v_max_f32 v{T1}, s20, v{M}")
        A(f"v_max_f32 v{T1}, s21, v{T1}")
        A(f"v_max_f32 v{T1}, s22, v{T1}")
        A(f"v_max_f32 v{T1}, s23, v{T1}")
        A(f"v_sub_f32 v{T0}, v{M}, v{T1}")
        A(f"v_mul_f32 v{T0}, s19, v{T0}")
        A(f"v_exp_f32 v{T0}, v{T0}")
        A(f"v_mov_b32 v{M}, v{T1}")
        for k in range(4):
            A(f"v_mul_f32 v{D+k}, v{D+k}, v{T0}")
        A(f"v_mul_f32 v{LS}, v{LS}, v{T0}")
        A("s_setpc_b64 s[46:47]")

    def helper(self):
        A, L = self.A, self.L
        A("s_setprio 2")
        A("s_sub_u32 s3, s3, 8")
        A("s_load_dwordx2 s[24:25], s[0:1], 0")
        A("s_load_dwordx4 s[28:31], s[0:1], 24")
        A("s_load_dwordx4 s[32:35], s[0:1], 48")
        A("s_load_dwordx4 s[36:39], s[0:1], 64")
        A("s_load_dwordx4 s[48:51], s[0:1], 80")
        A("s_memrealtime s[66:67]")
        A("s_mov_b32 s88, 0x80000")
        A("v_mov_b32 v12, 0")
        A("v_mov_b32 v13, 0")
        A("v_mov_b32 v14, 0")
        A("v_mov_b32 v15, 0")
        A("v_lshlrev_b32 v14, 2, v2")
        A(f"ds_write_b32 v14, v12 offset:{L_Z}")
        A(f"ds_write_b32 v14, v12 offset:{L_Z+256}")
        HB, HI, G, TT = 3, 4, 5, 6
        A(f"v_lshrrev_b32 v{HB}, 5, v2")
        A(f"v_and_b32 v{HI}, 31, v2")
        A(f"v_lshrrev_b32 v{G}, 4, v2")
        A(f"v_and_b32 v{TT}, 15, v2")
        VAW, VAR, VDW, VTR = 7, 8, 9, 10
        A("s_lshl_b32 s52, s3, 9")
        A(f"v_lshlrev_b32 v{VAW}, 8, v{HB}")
        A(f"v_lshl_add_u32 v{VAW}, v{HI}, 3, v{VAW}")
        A(f"s_add_u32 s53, s52, {L_A}")
        A(f"v_add_u32 v{VAW}, s53, v{VAW}")
        A(f"v_and_b32 v{VAR}, 1, v2")
        A(f"v_lshlrev_b32 v{VAR}, 8, v{VAR}")
        A(f"v_lshl_add_u32 v{VAR}, v{G}, 4, v{VAR}")
        A(f"v_add_u32 v{VAR}, s53, v{VAR}")
        A(f"s_add_u32 s53, s52, {L_D}")
        A(f"v_lshlrev_b32 v{VDW}, 2, v2")
        A(f"v_add_u32 v{VDW}, s53, v{VDW}")
        A("s_waitcnt lgkmcnt(0)")
        self.srd(84, 98, 0x20000000)
        self.srd(76, 96, 256)
        A("s_or_b32 s54, s2, s3")
        A("s_cmp_eq_u32 s54, 0")
        A("s_cbranch_scc0 L_notagw")
        A("s_or_b32 s66, s66, 1")
        A("v_mov_b32 v12, s66")
        A("s_mov_b64 exec, 1")
        A("buffer_atomic_cmpswap v[12:13], off, s[76:79], 0 sc1")
        A("s_mov_b64 exec, -1")
        L("L_notagw")
        self.srd(20, 24, 2048)
        A(f"s_add_u32 s16, s98, {HH_OFF}")
        A("s_addc_u32 s17, s99, 0")
        A(f"s_mov_b32 s18, {43*128}")
        A("s_mov_b32 s19, 0x20000")
        self.srd(72, 50, 2048)
        for r in range(10, 24):
            A(f"v_mov_b32 v{r}, 0")
        for r in (54, 55, 56, 57, 59, 60, 61, 62):
            A(f"s_mov_b32 s{r}, 0")
        if self.H == 1:
            A("s_lshl_b32 s83, s40, 3")
            A("s_add_u32 s83, s83, s41")
            A("s_lshl_b32 s83, s83, 10")
            A(f"s_add_u32 s83, s83, {PART_OFF}")
            A("s_mov_b32 s82, s40")
            A("s_mov_b32 s81, s41")
            A("s_mov_b32 s67, s83")
        else:
            A(f"s_xor_b32 s82, s40, {self.px}")
            A("s_min_u32 s82, s82, s40")
            A("s_lshr_b32 s54, s40, 5")
            A("s_lshl_b32 s54, s54, 2")
            A("s_add_u32 s54, s54, s41")
            A("s_lshl_b32 s54, s54, 10")
            A(f"s_add_u32 s54, s54, {PART_OFF}")
            A("s_lshl_b32 s83, s82, 13")
            A("s_add_u32 s83, s83, s54")
            A(f"s_xor_b32 s67, s82, {self.px}")
            A("s_lshl_b32 s67, s67, 13")
            A("s_add_u32 s67, s67, s54")
            A("s_lshr_b32 s81, s40, 5")
            A("s_or_b32 s81, s81, s41")
        A("s_mov_b32 s45, s82")
        A("s_lshl_b32 s82, s82, 7")
        A(f"s_add_u32 s82, s82, {CNT_OFF}")
        if "dpro" in self.dbg:
            for r in (4, 6, 100, 42):
                A(f"s_mov_b32 s{r}, 0")
        self.stamp(0)
        A("s_mov_b32 s44, 0")
        A(f"s_cmp_lt_u32 s89, {16 if self.late else R_Q0}")
        A("s_cbranch_scc1 L_pro_mod")
        A(f"s_sub_u32 s54, s89, {R_Q0}")
        A(f"s_cmp_lt_u32 s54, {R_WO0 - R_Q0}")
        A("s_cbranch_scc1 L_pro_q")
        if self.cpf:
            A(f"s_cmp_lt_u32 s2, {self.cpf}")
            A("s_cbranch_scc0 L_nocpf")
            A("s_getpc_b64 s[8:9]")
            L("L_pc")
            A(f"s_sub_u32 s8, s8, L_pc-{NAME}_kernel")
            A("s_subb_u32 s9, s9, 0")
            A(f"s_mov_b32 s10, L_codeend-{NAME}_kernel")
            A("s_mov_b32 s11, 0x20000")
            A("v_lshlrev_b32 v11, 4, v2")
            A("s_lshl_b32 s54, s3, 10")
            for i in range(9):
                A(f"buffer_load_dwordx4 v[{40+4*i}:{43+4*i}], v11, s[8:11], s54 offen")
                A("s_add_u32 s54, s54, 4096")
            L("L_nocpf")
        A("s_barrier")
        A("s_branch L_common1")

        BF, AF, DT = 40, 24, 12
        DT = 104
        TMP = 120

        def wide_voff(rowbytes, colbyte_s):
            A("s_lshl_b32 s54, s3, 7")
            A("v_lshrrev_b32 v11, 3, v2")
            A("v_add_u32 v11, s54, v11")
            A(f"s_mov_b32 s55, {rowbytes}")
            A("v_mul_lo_u32 v11, v11, s55")
            A(f"v_and_b32 v{TMP}, 7, v2")
            A(f"v_lshl_add_u32 v11, v{TMP}, 4, v11")
            A(f"v_add_u32 v11, s{colbyte_s}, v11")

        def wide_tr_base():
            A(f"v_lshrrev_b32 v{VTR}, 2, v{TT}")
            A(f"v_lshl_add_u32 v{VTR}, v{G}, 3, v{VTR}")
            A(f"v_lshlrev_b32 v{VTR}, 7, v{VTR}")
            A(f"v_and_b32 v{TMP}, 3, v{TT}")
            A(f"v_lshl_add_u32 v{VTR}, v{TMP}, 3, v{VTR}")
            A("s_lshl_b32 s54, s3, 14")
            A(f"s_add_u32 s54, s54, {L_W}")
            A(f"v_add_u32 v{VTR}, s54, v{VTR}")

        L("L_pro_mod")
        self.srd(12, 38, 2048)
        A(f"v_lshlrev_b32 v{TMP}, 10, v{HB}")
        A(f"v_lshl_add_u32 v{TMP}, v{HI}, 3, v{TMP}")
        A("s_lshl_b32 s54, s3, 8")
        A(f"buffer_load_dwordx2 v[{TMP+2}:{TMP+3}], v{TMP}, s[12:15], s54 offen")
        self.srd(8, 48, 512 * 6144)
        A("s_lshl_b32 s56, s89, 7")
        wide_voff(6144, 56)
        A("s_lshl_b32 s57, s3, 14")
        self.dma_weights(8, 16, 11, 8 * 6144, 57)
        if self.late or self.hold:
            if self.late and self.hold:
                A("s_branch L_mod_nob1")
            elif self.late:
                A("s_cmp_eq_u32 s44, 0")
                A("s_cbranch_scc0 L_mod_nob1")
            else:
                A("s_cmp_lt_u32 s89, 16")
                A("s_cbranch_scc1 L_mod_nob1")
        A("s_barrier")
        L("L_mod_nob1")
        wide_tr_base()
        A("s_waitcnt vmcnt(16)")
        X = TMP + 4
        self.unpack2(TMP + 2, X, X + 1)
        self.unpack2(TMP + 3, X + 2, X + 3)
        A(f"s_mov_b32 s58, {f32(-LOG2E)}")
        for k in range(4):
            A(f"v_mul_f32 v{X+4+k}, s58, v{X+k}")
        for k in range(4):
            A(f"v_exp_f32 v{X+4+k}, v{X+4+k}")
        self.nop(1)
        for k in range(4):
            A(f"v_add_f32 v{X+4+k}, 1.0, v{X+4+k}")
        for k in range(4):
            A(f"v_rcp_f32 v{X+4+k}, v{X+4+k}")
        self.nop(1)
        for k in range(4):
            A(f"v_mul_f32 v{X+k}, v{X+k}, v{X+4+k}")
        A(f"v_cvt_pk_bf16_f32 v{X+8}, v{X}, v{X+1}")
        A(f"v_cvt_pk_bf16_f32 v{X+9}, v{X+2}, v{X+3}")
        A(f"ds_write_b64 v{VAW}, v[{X+8}:{X+9}]")
        A("s_lshr_b32 s60, s89, 3")
        A("s_lshl_b32 s60, s60, 12")
        A("s_and_b32 s61, s89, 7")
        A("s_lshl_b32 s61, s61, 8")
        A("s_add_u32 s60, s60, s61")
        A(f"s_add_u32 s60, s60, {MOD_OFF}")
        A("s_mov_b32 s61, 2048")
        A("s_mov_b32 s62, 0")
        if self.late:
            A("s_cmp_eq_u32 s44, 0")
            A("s_cbranch_scc1 L_common1")
            A("s_waitcnt vmcnt(0)")
            A("s_branch L_gemv0")
        else:
            A("s_branch L_common1")

        L("L_pro_q")
        A(f"v_lshlrev_b32 v{TMP}, 10, v{HB}")
        A(f"v_lshl_add_u32 v{TMP+1}, v{HI}, 5, v{TMP}")
        A(f"buffer_load_dwordx4 v[{TMP+4}:{TMP+7}], v{TMP+1}, s[20:23], 0 offen")
        A(f"buffer_load_dwordx4 v[{TMP+8}:{TMP+11}], v{TMP+1}, s[20:23], 0 offen offset:16")
        A(f"v_lshl_add_u32 v{TMP}, v{HI}, 3, v{TMP}")
        A("s_lshl_b32 s54, s3, 8")
        A(f"buffer_load_dwordx2 v[{TMP+2}:{TMP+3}], v{TMP}, s[20:23], s54 offen")
        self.srd(8, 28, 512 * 8192)
        A(f"s_sub_u32 s59, s89, {R_Q0}")
        A("s_lshl_b32 s56, s59, 7")
        wide_voff(8192, 56)
        A("s_lshl_b32 s57, s3, 14")
        self.dma_weights(8, 16, 11, 8 * 8192, 57)
        A("s_barrier")
        wide_tr_base()
        A("s_waitcnt vmcnt(16)")
        S1, S2, U0, U1 = TMP + 12, TMP + 13, TMP + 14, TMP + 15
        A(f"v_mov_b32 v{S1}, 0")
        A(f"v_mov_b32 v{S2}, 0")
        for k in range(8):
            self.unpack2(TMP + 4 + k, U0, U1)
            A(f"v_add_f32 v{S1}, v{S1}, v{U0}")
            A(f"v_fmac_f32 v{S2}, v{U0}, v{U0}")
            A(f"v_add_f32 v{S1}, v{S1}, v{U1}")
            A(f"v_fmac_f32 v{S2}, v{U1}, v{U1}")
        self.allred32([S1, S2], [U0, U1])
        NX = TMP + 16
        self.unpack2(TMP + 2, NX, NX + 1)
        self.unpack2(TMP + 3, NX + 2, NX + 3)
        self.ln_norm(S1, S2, NX, U0, U1)
        A("s_lshl_b32 s60, s59, 8")
        A(f"s_add_u32 s60, s60, {Q_OFF}")
        A("s_mov_b32 s61, 16384")
        A("s_mov_b32 s62, 1")
        L("L_common1")
        A("buffer_load_dword v165, off, s[76:79], 0 sc1")
        CL = TMP + 24
        for k in range(4):
            A(f"v_mov_b32 v{CL+k}, -1")
        A("s_cmp_eq_u32 s3, 3")
        A("s_cbranch_scc0 L_noclear")
        A(f"v_lshlrev_b32 v{CL+4}, 4, v2")
        A("s_mov_b32 exec_lo, -1")
        A("s_mov_b32 exec_hi, 1")
        A(f"buffer_store_dwordx4 v[{CL}:{CL+3}], v{CL+4}, s[84:87], s83 offen sc1")
        if self.H == 2:
            A(f"buffer_store_dwordx4 v[{CL}:{CL+3}], v{CL+4}, s[84:87], s67 offen sc1")
        A("s_mov_b64 exec, -1")
        A(f"s_sub_u32 s64, s89, {R_WO0}")
        A("s_cmp_lt_u32 s64, 64")
        A("s_cbranch_scc0 L_noclr_wo")
        self.slice_of(64, R_WO0, 64)
        A("s_lshr_b32 s65, s64, 3")
        A("s_lshl_b32 s65, s65, 12")
        A("s_and_b32 s66, s64, 7")
        A("s_lshl_b32 s66, s66, 8")
        A("s_add_u32 s65, s65, s66")
        A(f"s_add_u32 s65, s65, {ATT_OFF}")
        A(f"v_lshlrev_b32 v{CL+4}, 11, v{G}")
        A(f"v_lshl_add_u32 v{CL+4}, v{TT}, 4, v{CL+4}")
        A("s_mov_b32 exec_hi, 0")
        A(f"buffer_store_dwordx4 v[{CL}:{CL+3}], v{CL+4}, s[84:87], s65 offen sc1")
        A("s_mov_b64 exec, -1")
        L("L_noclr_wo")
        A(f"s_sub_u32 s64, s89, {R_UP0}")
        A("s_cmp_lt_u32 s64, 43")
        A("s_cbranch_scc0 L_noclr_up")
        self.slice_of(64, R_UP0, 43)
        A("s_lshl_b32 s65, s64, 7")
        A(f"s_add_u32 s65, s65, {HH_OFF}")
        A(f"v_lshlrev_b32 v{CL+4}, 4, v2")
        A("s_mov_b64 exec, 0xff")
        A(f"buffer_store_dwordx4 v[{CL}:{CL+3}], v{CL+4}, s[84:87], s65 offen sc1")
        A("s_mov_b64 exec, -1")
        L("L_noclr_up")
        A("s_cmp_eq_u32 s81, 0")
        A("s_cbranch_scc0 L_noclr_cnt")
        A(f"v_mov_b32 v{CL+4}, {self.NS*4*self.H}")
        A(f"s_mul_i32 s65, s45, {self.cstr}")
        A(f"s_add_u32 s65, s65, {CTR_OFF}")
        A("s_mov_b64 exec, 1")
        A(f"buffer_store_dword v{CL+4}, off, s[84:87], s65 sc1")
        A("s_mov_b64 exec, -1")
        L("L_noclr_cnt")
        L("L_noclear")
        A("s_waitcnt vmcnt(0)")
        if self.hold:
            A("s_cmp_lt_u32 s89, 16")
            A("s_cbranch_scc0 L_nohold3")
            A("s_barrier")
            L("L_nohold3")
        A("v_cmp_eq_u32 vcc, 0, v165")
        A("s_cbranch_vccz L_gottag")
        pl = self.poll_head()
        A("buffer_load_dword v165, off, s[76:79], 0 sc1")
        A("s_waitcnt vmcnt(0)")
        A("v_cmp_eq_u32 vcc, 0, v165")
        self.poll_tail(pl, sleep=2)
        L("L_gottag")
        A("v_readfirstlane_b32 s80, v165")
        self.dmark(3)
        self.stamp(10)
        A("s_cmp_eq_u32 s3, 3")
        A("s_cbranch_scc0 L_nocount")
        A("s_and_b32 s63, s2, 3")
        A("s_lshl_b32 s63, s63, 2")
        A("s_add_u32 s63, s63, 128")
        A(f"v_mov_b32 v{CL+5}, 1")
        A("s_mov_b64 exec, 1")
        A(f"buffer_atomic_add v{CL+5}, off, s[76:79], s63 sc1")
        A("s_cmp_eq_u32 s81, 0")
        A("s_cbranch_scc0 L_nocnttag")
        A(f"v_mov_b32 v{CL+4}, s80")
        A(f"buffer_store_dword v{CL+4}, off, s[84:87], s82 offset:64 sc1")
        L("L_nocnttag")
        A("s_mov_b64 exec, -1")
        L("L_nocount")
        A(f"s_cmp_lt_u32 s89, {R_WO0}")
        A("s_cbranch_scc0 L_qgather")
        if self.late:
            A("s_sub_u32 s54, s89, 16")
            A("s_cmp_lt_u32 s54, 32")
            A("s_cbranch_scc1 L_qgather")
        L("L_gemv0")
        self.tr_reads(VTR, BF, 4, [0, 32, 64, 96], 128)
        A("s_cmp_eq_u32 s62, 0")
        A("s_cbranch_scc1 L_pro_gemv")
        GA = TMP + 4
        A(f"v_lshlrev_b32 v{TMP}, 11, v{HB}")
        A(f"v_lshl_add_u32 v{TMP}, v{HI}, 4, v{TMP}")
        A("s_lshl_b32 s54, s3, 9")
        A(f"s_add_u32 s54, s54, {MOD_OFF}")
        A(f"s_add_u32 s55, s54, 4096")
        pl = self.poll_head()
        A(f"buffer_load_dwordx4 v[{GA}:{GA+3}], v{TMP}, s[84:87], s55 offen sc1")
        A(f"buffer_load_dwordx4 v[{GA+4}:{GA+7}], v{TMP}, s[84:87], s54 offen sc1")
        A("s_waitcnt vmcnt(0)")
        self.check_tags([GA + 1, GA + 3, GA + 5, GA + 7], TMP + 1)
        self.poll_tail(pl, sleep=self.ps1)
        self.stamp(3)
        self.dmark(2)
        T4 = TMP + 20
        self.unpack2(GA, T4, T4 + 1)
        self.unpack2(GA + 2, T4 + 2, T4 + 3)
        for k in range(4):
            A(f"v_add_f32 v{T4+k}, 1.0, v{T4+k}")
        self.rnd2(T4, T4 + 1, TMP + 1)
        self.rnd2(T4 + 2, T4 + 3, TMP + 2)
        self.modulate(NX, T4, GA + 4, GA + 6, TMP + 1, TMP + 24, VAW)
        L("L_pro_gemv")
        self.a_frags_from_stage(VAR, AF)
        self.mfmas(AF, BF, DT, 4, 4, lgkm=True)
        self.d_to_lds(DT, 4, TMP, TMP + 1, VDW)
        A(f"v_mov_b32 v{TMP+2}, {L_CNT}")
        A(f"v_mov_b32 v{TMP+3}, 1")
        A("s_mov_b64 exec, 1")
        A(f"ds_add_rtn_u32 v{TMP+4}, v{TMP+2}, v{TMP+3}")
        A("s_mov_b64 exec, -1")
        A("s_waitcnt lgkmcnt(0)")
        A(f"v_readfirstlane_b32 s54, v{TMP+4}")
        A("s_cmp_eq_u32 s54, 3")
        A("s_cbranch_scc0 L_qgather")
        self.d_sum(G, TT, TMP)
        A(f"v_cvt_pk_bf16_f32 v{TMP+8}, v{TMP+4}, v{TMP+5}")
        A(f"v_mov_b32 v{TMP+9}, s80")
        A(f"v_cvt_pk_bf16_f32 v{TMP+10}, v{TMP+6}, v{TMP+7}")
        A(f"v_mov_b32 v{TMP+11}, s80")
        A(f"v_mul_lo_u32 v{TMP}, v{G}, s61")
        A(f"v_lshl_add_u32 v{TMP}, v{TT}, 4, v{TMP}")
        A("s_mov_b32 exec_hi, 0")
        A(f"buffer_store_dwordx4 v[{TMP+8}:{TMP+11}], v{TMP}, s[84:87], s60 offen sc1")
        A("s_mov_b64 exec, -1")
        self.stamp(4)
        self.dmark(1)
        L("L_qgather")
        if self.late:
            A("s_cmp_eq_u32 s44, 0")
            A("s_cbranch_scc0 L_b3")
        A("s_cmp_eq_u32 s3, 3")
        A("s_cbranch_scc0 L_qg2")
        pl = self.poll_head()
        A(f"buffer_load_dword v{TMP}, off, s[84:87], s82 offset:64 sc1")
        A("s_waitcnt vmcnt(0)")
        A(f"v_cmp_ne_u32 vcc, s80, v{TMP}")
        self.poll_tail(pl, sleep=8)
        if self.flagq:
            A(f"v_mov_b32 v{TMP}, 0")
            A(f"v_mov_b32 v{TMP+1}, 1")
            A(f"ds_write_b32 v{TMP}, v{TMP+1} offset:{L_QF+4}")
        L("L_qg2")
        A("s_cmp_eq_u32 s3, 0")
        A("s_cbranch_scc0 L_b2")
        A("s_lshl_b32 s54, s45, 9")
        A(f"s_add_u32 s54, s54, {Q_OFF}")
        A(f"s_xor_b32 s55, s45, {self.px}")
        A("s_lshl_b32 s55, s55, 9")
        A(f"s_add_u32 s55, s55, {Q_OFF}")
        A(f"v_lshlrev_b32 v{TMP}, 3, v2")
        pl = self.poll_head()
        A(f"buffer_load_dwordx2 v[{TMP+2}:{TMP+3}], v{TMP}, s[84:87], s54 offen sc1")
        if self.H == 2:
            A(f"buffer_load_dwordx2 v[{TMP+4}:{TMP+5}], v{TMP}, s[84:87], s55 offen sc1")
        A("s_waitcnt vmcnt(0)")
        self.check_tags([TMP + 3, TMP + 5][:self.H], TMP + 6)
        self.poll_tail(pl, sleep=self.ps2)
        A(f"v_lshlrev_b32 v{TMP}, 2, v2")
        A(f"ds_write_b32 v{TMP}, v{TMP+2} offset:{L_Q}")
        if self.H == 2:
            A(f"ds_write_b32 v{TMP}, v{TMP+4} offset:{L_Q+256}")
        if self.flagq:
            A(f"v_mov_b32 v{TMP}, 0")
            A(f"v_mov_b32 v{TMP+1}, 1")
            A(f"ds_write_b32 v{TMP}, v{TMP+1} offset:{L_QF}")
        A("s_waitcnt lgkmcnt(0)")
        self.stamp(5)
        self.dmark(0)
        L("L_b2")
        if not self.flagq:
            A("s_barrier")
        else:
            A(f"v_mov_b32 v{TMP}, 0")
            pl = self.poll_head()
            A(f"ds_read_b32 v{TMP+1}, v{TMP} offset:{L_QF}")
            A("s_waitcnt lgkmcnt(0)")
            A(f"v_cmp_eq_u32 vcc, 0, v{TMP+1}")
            self.poll_tail(pl, sleep=4)
        if self.late:
            A("s_sub_u32 s54, s89, 16")
            A("s_cmp_lt_u32 s54, 32")
            A("s_cselect_b32 s44, 1, 0")
            A("s_cbranch_scc1 L_pro_mod")
        A(f"s_cmp_lt_u32 s89, {R_WO0}")
        A("s_cbranch_scc1 L_b3")
        A(f"s_cmp_lt_u32 s89, {R_WO1}")
        A("s_cbranch_scc1 L_prep_wo")
        A(f"s_cmp_ge_u32 s89, {R_DN0}")
        A("s_cbranch_scc1 L_prep_dn")
        A(f"s_cmp_lt_u32 s89, {R_UP0}")
        A("s_cbranch_scc1 L_b3")
        A(f"s_cmp_lt_u32 s89, {R_UP1}")
        A("s_cbranch_scc1 L_prep_up")
        A("s_branch L_b3")

        def narrow_voff(rowbytes, rows_per_wave, colbyte_s):
            A(f"s_mul_i32 s54, s3, {rows_per_wave}")
            A("v_lshrrev_b32 v11, 2, v2")
            A("v_add_u32 v11, s54, v11")
            A(f"s_mov_b32 s55, {rowbytes}")
            A("v_mul_lo_u32 v11, v11, s55")
            A(f"v_and_b32 v{VTR}, 3, v2")
            A(f"v_lshl_add_u32 v11, v{VTR}, 4, v11")
            A(f"v_add_u32 v11, s{colbyte_s}, v11")

        def narrow_tr_base(rows_per_wave):
            A(f"v_lshrrev_b32 v{VTR}, 2, v{TT}")
            A(f"v_lshl_add_u32 v{VTR}, v{G}, 3, v{VTR}")
            A(f"v_lshlrev_b32 v{VTR}, 6, v{VTR}")
            A(f"v_and_b32 v12, 3, v{TT}")
            A(f"v_lshl_add_u32 v{VTR}, v12, 3, v{VTR}")
            A(f"s_mul_i32 s54, s3, {rows_per_wave*64}")
            A(f"s_add_u32 s54, s54, {L_W}")
            A(f"v_add_u32 v{VTR}, s54, v{VTR}")

        def wait_cleared(t):
            pl = self.poll_head()
            A(f"buffer_load_dwordx4 v[{t}:{t+3}], off, s[76:79], 0 offset:128 sc1")
            A("s_waitcnt vmcnt(0)")
            A(f"v_add_u32 v{t}, v{t}, v{t+1}")
            A(f"v_add3_u32 v{t}, v{t}, v{t+2}, v{t+3}")
            A(f"v_cmp_gt_u32 vcc, 256, v{t}")
            self.poll_tail(pl, sleep=16)

        self.intail = True
        L("L_prep_wo")
        self.slice_of(59, R_WO0, 64)
        self.srd(8, 30, 4096 * 1024)
        A("s_lshr_b32 s56, s59, 3")
        A("s_lshl_b32 s56, s56, 19")
        A("s_and_b32 s57, s59, 7")
        A("s_lshl_b32 s57, s57, 7")
        A("s_add_u32 s56, s56, s57")
        wide_voff(1024, 56)
        A("s_lshl_b32 s57, s3, 14")
        self.dma_weights(8, 16, 11, 8 * 1024, 57, skip='nowo')
        wide_tr_base()
        wait_cleared(TMP)
        self.tr_reads(VTR, BF, 4, [0, 32, 64, 96], 128)
        A(f"v_lshlrev_b32 v11, 18, v{HB}")
        A(f"v_lshl_add_u32 v12, v{HI}, 4, v11")
        A(f"v_and_b32 v{TMP}, {4*self.H-1}, v2")
        A(f"v_lshl_add_u32 v11, v{TMP}, 10, v11")
        A("s_lshr_b32 s56, s59, 3")
        A("s_lshl_b32 s60, s56, 12")
        A("s_lshl_b32 s56, s56, 2")
        A("s_add_u32 s56, s56, s3")
        A("s_lshl_b32 s56, s56, 13")
        A(f"s_add_u32 s56, s56, {PART_OFF}")
        A("s_add_u32 s55, s56, 4096")
        A("s_and_b32 s57, s59, 7")
        A("s_lshl_b32 s57, s57, 8")
        A("s_add_u32 s60, s60, s57")
        A(f"s_add_u32 s60, s60, {ATT_OFF}")
        A("s_waitcnt lgkmcnt(0)")
        A("s_branch L_b3")

        XV, GAV, T4U, SBV = TMP + 28, TMP + 32, TMP + 36, TMP + 40
        L("L_prep_up")
        self.slice_of(59, R_UP0, 43)
        self.srd(8, 32, 512 * 2752)
        self.srd(12, 34, 512 * 2752)
        A("s_lshl_b32 s56, s59, 6")
        narrow_voff(2752, 128, 56)
        A("s_lshl_b32 s57, s3, 13")
        self.dma_weights(8, 8, 11, 16 * 2752, 57, skip='noup')
        A("s_add_u32 s57, s57, 32768")
        self.dma_weights(12, 8, 11, 16 * 2752, 57, skip='noup')
        narrow_tr_base(128)
        A(f"v_lshlrev_b32 v{TMP}, 10, v{HB}")
        A(f"v_lshl_add_u32 v{TMP}, v{HI}, 3, v{TMP}")
        A("s_lshl_b32 s54, s3, 8")
        A(f"buffer_load_dwordx2 v[{TMP+2}:{TMP+3}], v{TMP}, s[20:23], s54 offen")
        A(f"v_lshlrev_b32 v{TMP}, 11, v{HB}")
        A(f"v_lshl_add_u32 v{TMP}, v{HI}, 4, v{TMP}")
        A("s_lshl_b32 s54, s3, 9")
        A(f"s_add_u32 s54, s54, {MOD_OFF + 2*4096}")
        A(f"s_add_u32 s55, s54, 4096")
        A(f"s_add_u32 s56, s54, 8192")
        GA = TMP + 4
        pl = self.poll_head()
        A(f"buffer_load_dwordx4 v[{GA}:{GA+3}], v{TMP}, s[84:87], s54 offen sc1")
        A(f"buffer_load_dwordx4 v[{GA+4}:{GA+7}], v{TMP}, s[84:87], s55 offen sc1")
        A(f"buffer_load_dwordx4 v[{GA+8}:{GA+11}], v{TMP}, s[84:87], s56 offen sc1")
        A("s_waitcnt vmcnt(0)")
        self.check_tags([GA + 1, GA + 3, GA + 5, GA + 7, GA + 9, GA + 11], TMP + 16)
        self.poll_tail(pl)
        self.unpack2(TMP + 2, XV, XV + 1)
        self.unpack2(TMP + 3, XV + 2, XV + 3)
        self.unpack2(GA, GAV, GAV + 1)
        self.unpack2(GA + 2, GAV + 2, GAV + 3)
        A(f"v_mov_b32 v{SBV}, v{GA+4}")
        A(f"v_mov_b32 v{SBV+1}, v{GA+6}")
        self.unpack2(GA + 8, T4U, T4U + 1)
        self.unpack2(GA + 10, T4U + 2, T4U + 3)
        for k in range(4):
            A(f"v_add_f32 v{T4U+k}, 1.0, v{T4U+k}")
        self.rnd2(T4U, T4U + 1, TMP + 1)
        self.rnd2(T4U + 2, T4U + 3, TMP + 1)
        wait_cleared(TMP)
        self.tr_reads(VTR, BF, 4, [0, 32, 32768, 32768 + 32], 64)
        A(f"v_lshlrev_b32 v12, 11, v{HB}")
        A(f"v_lshl_add_u32 v12, v{HI}, 4, v12")
        A("s_lshl_b32 s56, s3, 9")
        A(f"s_add_u32 s56, s56, {ATT_OFF}")
        A("s_lshl_b32 s60, s59, 7")
        A(f"s_add_u32 s60, s60, {HH_OFF}")
        A("s_waitcnt lgkmcnt(0)")
        A("s_branch L_b3")

        DBF, DAF, DDT = 32, 120, 24
        L("L_prep_dn")
        self.slice_of(59, R_DN0, 16)
        self.srd(8, 36, 1376 * 1024)
        A("s_lshl_b32 s56, s59, 6")
        narrow_voff(1024, 352, 56)
        A(f"s_mul_i32 s57, s3, {352*64}")
        self.dma_weights(8, 22, 11, 16 * 1024, 57, skip='nodn')
        narrow_tr_base(352)
        A("v_lshrrev_b32 v13, 3, v2")
        A("v_and_b32 v13, 1, v13")
        A("v_and_b32 v14, 7, v2")
        A("v_lshlrev_b32 v15, 10, v13")
        A("v_lshl_add_u32 v15, v14, 3, v15")
        A("buffer_load_dwordx2 v[16:17], v15, s[20:23], s56 offen")
        A("v_lshlrev_b32 v15, 11, v13")
        A("v_lshl_add_u32 v15, v14, 4, v15")
        A("s_lshl_b32 s54, s59, 7")
        A(f"s_add_u32 s55, s54, {MOD_OFF + 5*4096}")
        A(f"s_add_u32 s54, s54, {MOD_OFF + 2*4096}")
        pl = self.poll_head()
        A(f"buffer_load_dwordx4 v[{DAF}:{DAF+3}], v15, s[84:87], s54 offen sc1")
        A(f"buffer_load_dwordx4 v[{DAF+4}:{DAF+7}], v15, s[84:87], s55 offen sc1")
        A("s_waitcnt vmcnt(0)")
        self.check_tags([DAF + 1, DAF + 3, DAF + 5, DAF + 7], DAF + 8)
        self.poll_tail(pl)
        A(f"v_mov_b32 v18, v{DAF}")
        A(f"v_mov_b32 v19, v{DAF+2}")
        A(f"v_mov_b32 v20, v{DAF+4}")
        A(f"v_mov_b32 v21, v{DAF+6}")
        wait_cleared(DAF)
        self.tr_reads(VTR, DBF, 11, [0, 32], 64)
        A("s_lshl_b32 s56, s59, 7")
        A(f"s_add_u32 s56, s56, {ATT_OFF}")
        A("v_and_b32 v12, 1, v2")
        A("v_lshlrev_b32 v12, 6, v12")
        A(f"v_lshl_add_u32 v12, v{G}, 4, v12")
        A(f"s_mul_i32 s57, s3, {352*64}")
        A(f"s_add_u32 s57, s57, {L_W}")
        A("v_add_u32 v12, s57, v12")
        A("v_lshlrev_b32 v7, 4, v2")
        A("v_add_u32 v8, s57, v7")
        A(f"s_mul_i32 s57, s3, {11*128}")
        A("s_waitcnt lgkmcnt(0)")
        L("L_b3")
        A("s_cmp_eq_u32 s3, 2")
        A("s_cbranch_scc0 L_b3x")
        A("s_setprio 1")
        A(f"s_mul_i32 s65, s45, {self.cstr}")
        A(f"s_add_u32 s65, s65, {CTR_OFF}")
        A("s_add_u32 s26, s98, s65")
        A("s_addc_u32 s27, s99, 0")
        A("v_mov_b32 v22, 0")
        pl = self.poll_head()
        A(f"ds_read_b32 v23, v22 offset:{L_QF+4}")
        A("s_waitcnt lgkmcnt(0)")
        A("v_cmp_eq_u32 vcc, 0, v23")
        self.poll_tail(pl, sleep=8)
        A("s_mov_b32 s64, 0")
        L("L_disp")
        A(f"ds_read_b32 v23, v22 offset:{L_NEED}")
        A("s_waitcnt lgkmcnt(0)")
        A("v_readfirstlane_b32 s65, v23")
        A("s_cmp_lt_u32 s64, s65")
        A("s_cbranch_scc1 L_disp_go")
        A("s_cmp_eq_u32 s88, 0")
        A("s_cbranch_scc1 L_disp_end")
        A("s_sub_u32 s88, s88, 1")
        A("s_sleep 1")
        A("s_branch L_disp")
        L("L_disp_go")
        A("s_mov_b32 s66, 1")
        A("s_atomic_add s66, s[26:27], 0 glc")
        A("s_lshl_b32 s65, s64, 2")
        A("v_mov_b32 v24, s65")
        A("s_waitcnt lgkmcnt(0)")
        A(f"s_cmp_ge_u32 s66, {64 * self.H}")
        A("s_cbranch_scc1 L_disp_end")
        A("s_add_u32 s66, s66, 1")
        A("v_mov_b32 v23, s66")
        A(f"ds_write_b32 v24, v23 offset:{L_RL}")
        A("s_add_u32 s64, s64, 1")
        A("s_cmp_lt_u32 s64, 63")
        A("s_cbranch_scc1 L_disp")
        L("L_disp_end")
        A("v_lshlrev_b32 v24, 2, v2")
        A(f"v_mov_b32 v23, {64 * self.H + 1}")
        A("v_cmp_le_u32 vcc, s64, v2")
        A("s_mov_b64 exec, vcc")
        A(f"ds_write_b32 v24, v23 offset:{L_RL}")
        A("s_mov_b64 exec, -1")
        A("s_setprio 2")
        L("L_b3x")
        if self.dry:
            A("s_mov_b32 s69, 1")
            A("s_mov_b32 s86, 0")
            A("s_mov_b32 s18, 0")
            A("s_mov_b32 s74, 0")
            A("s_branch L_after_b3")
            L("L_exit")
            A("s_cmp_eq_u32 s69, 0")
            A("s_cbranch_scc1 L_end")
            A("s_mov_b64 exec, -1")
            A("s_mov_b32 s69, 0")
            A("s_mov_b32 s86, 0x20000000")
            A(f"s_mov_b32 s18, {43*128}")
            A("s_mov_b32 s74, 2048")
            A("s_waitcnt vmcnt(0) lgkmcnt(0)")
        A("s_barrier")
        L("L_after_b3")
        self.demit()
        EX = "L_exit" if self.dry else "L_end"
        self.stamp(6)
        A(f"s_cmp_lt_u32 s3, {self.H}")
        A("s_cbranch_scc0 L_tail")
        C = 120
        A(f"v_and_b32 v{C}, 7, v2")
        A(f"v_lshlrev_b32 v{C}, 3, v{C}")
        A("s_lshl_b32 s63, s3, 6")
        A(f"v_add_u32 v{C}, s63, v{C}")
        A(f"ds_read_b64 v[{C+2}:{C+3}], v{C} offset:{L_ML}")
        A(f"v_lshlrev_b32 v{C+1}, 3, v2")
        A("s_lshl_b32 s63, s3, 13")
        A(f"v_add_u32 v{C+7}, s63, v{C+1}")
        for w in range(8):
            A(f"ds_read_b64 v[{C+8+2*w}:{C+9+2*w}], v{C+7} offset:{L_P + w*1024}")
        A("s_waitcnt lgkmcnt(8)")
        A(f"v_max_f32_dpp v{C+4}, v{C+2}, v{C+2} row_ror:1 row_mask:0xf bank_mask:0xf")
        self.nop(2)
        A(f"v_max_f32_dpp v{C+4}, v{C+4}, v{C+4} row_ror:2 row_mask:0xf bank_mask:0xf")
        self.nop(2)
        A(f"v_max_f32_dpp v{C+4}, v{C+4}, v{C+4} row_ror:4 row_mask:0xf bank_mask:0xf")
        A(f"s_mov_b32 s58, {f32(LOG2E)}")
        A(f"v_sub_f32 v{C+6}, v{C+2}, v{C+4}")
        A(f"v_mul_f32 v{C+6}, s58, v{C+6}")
        A(f"v_exp_f32 v{C+6}, v{C+6}")
        self.nop(1)
        A(f"v_mul_f32 v{C+5}, v{C+6}, v{C+3}")
        self.nop(2)
        A(f"v_add_f32_dpp v{C+5}, v{C+5}, v{C+5} row_ror:1 row_mask:0xf bank_mask:0xf")
        self.nop(2)
        A(f"v_add_f32_dpp v{C+5}, v{C+5}, v{C+5} row_ror:2 row_mask:0xf bank_mask:0xf")
        self.nop(2)
        A(f"v_add_f32_dpp v{C+5}, v{C+5}, v{C+5} row_ror:4 row_mask:0xf bank_mask:0xf")
        A("s_waitcnt lgkmcnt(0)")
        A(f"v_mul_f32_dpp v{C+24}, v{C+6}, v{C+8} row_newbcast:0 row_mask:0xf bank_mask:0xf")
        A(f"v_mul_f32_dpp v{C+25}, v{C+6}, v{C+9} row_newbcast:0 row_mask:0xf bank_mask:0xf")
        for w in range(1, 8):
            A(f"v_fmac_f32_dpp v{C+24}, v{C+6}, v{C+8+2*w} row_newbcast:{w} row_mask:0xf bank_mask:0xf")
            A(f"v_fmac_f32_dpp v{C+25}, v{C+6}, v{C+9+2*w} row_newbcast:{w} row_mask:0xf bank_mask:0xf")
        for r in (C + 24, C + 25, C + 4, C + 5):
            A(f"v_min_u32 v{r}, -2, v{r}")
        A("s_cmp_eq_u32 s3, 0")
        A("s_cselect_b32 s63, s83, s67")
        A(f"v_mov_b32_dpp v{C+26}, v{C+24} quad_perm:[1,1,3,3] row_mask:0xf bank_mask:0xf")
        A(f"v_mov_b32_dpp v{C+27}, v{C+25} quad_perm:[1,1,3,3] row_mask:0xf bank_mask:0xf")
        A("s_mov_b32 exec_lo, 0x55555555")
        A("s_mov_b32 exec_hi, 0x55555555")
        A(f"buffer_store_dwordx4 v[{C+24}:{C+27}], v{C+1}, s[84:87], s63 offen sc1")
        A("s_mov_b64 exec, 1")
        A(f"buffer_store_dwordx2 v[{C+4}:{C+5}], off, s[84:87], s63 offset:512 sc1")
        A("s_mov_b64 exec, -1")
        self.stamp(7)
        self.dstamp(2)
        L("L_tail")
        A(f"s_cmp_lt_u32 s89, {R_WO0}")
        A(f"s_cbranch_scc1 {EX}")
        A(f"s_cmp_lt_u32 s89, {R_WO1}")
        A("s_cbranch_scc1 L_tail_wo")
        A(f"s_cmp_ge_u32 s89, {R_DN0}")
        A("s_cbranch_scc1 L_tail_dn")
        A(f"s_cmp_lt_u32 s89, {R_UP0}")
        A(f"s_cbranch_scc1 {EX}")
        A(f"s_cmp_lt_u32 s89, {R_UP1}")
        A("s_cbranch_scc1 L_tail_up")
        A(f"s_branch {EX}")

        L("L_tail_wo")
        regs = [AF + 4 * i for i in range(4)] + [DT + 4 * i for i in range(4)]
        O = TMP
        lds_ = [([f"buffer_load_dwordx4 v[{regs[r]}:{regs[r]+3}], v12, s[84:87], {'s56' if r < 4 else 's55'} offen offset:{(r & 3)*1024} sc1"],
                 [regs[r] + k for k in range(4)]) for r in range(4 * self.H)]
        lds_.append(([f"buffer_load_dwordx2 v[{O}:{O+1}], v11, s[84:87], s56 offen offset:512 sc1"], [O, O + 1]))
        self.poll_multi(lds_, O + 2)
        self.stamp(8)
        MM, FF, LL = O + 2, O + 3, O + 6
        A(f"v_max_f32_dpp v{MM}, v{O}, v{O} row_ror:1 row_mask:0xf bank_mask:0xf")
        A(f"s_mov_b32 s58, {f32(LOG2E)}")
        self.nop(1)
        A(f"v_max_f32_dpp v{MM}, v{MM}, v{MM} row_ror:2 row_mask:0xf bank_mask:0xf")
        if self.H == 2:
            self.nop(2)
            A(f"v_max_f32_dpp v{MM}, v{MM}, v{MM} row_ror:4 row_mask:0xf bank_mask:0xf")
        A(f"v_sub_f32 v{FF}, v{O}, v{MM}")
        A(f"v_mul_f32 v{FF}, s58, v{FF}")
        A(f"v_exp_f32 v{FF}, v{FF}")
        self.nop(1)
        A(f"v_mul_f32 v{LL}, v{FF}, v{O+1}")
        self.nop(1)
        for k in range(4):
            A(f"v_mul_f32_dpp v{O+8+k}, v{FF}, v{regs[0]+k} row_newbcast:0 row_mask:0xf bank_mask:0xf")
        A(f"v_add_f32_dpp v{LL}, v{LL}, v{LL} row_ror:1 row_mask:0xf bank_mask:0xf")
        for r in range(1, 4 * self.H):
            for k in range(4):
                A(f"v_fmac_f32_dpp v{O+8+k}, v{FF}, v{regs[r]+k} row_newbcast:{r} row_mask:0xf bank_mask:0xf")
            if r == 1:
                A(f"v_add_f32_dpp v{LL}, v{LL}, v{LL} row_ror:2 row_mask:0xf bank_mask:0xf")
            if r == 2 and self.H == 2:
                A(f"v_add_f32_dpp v{LL}, v{LL}, v{LL} row_ror:4 row_mask:0xf bank_mask:0xf")
            if r == 1 + self.H:
                A(f"v_rcp_f32 v{LL}, v{LL}")
        for k in range(4):
            A(f"v_mul_f32 v{O+8+k}, v{LL}, v{O+8+k}")
        A(f"v_cvt_pk_bf16_f32 v{O+4}, v{O+8}, v{O+9}")
        A(f"v_cvt_pk_bf16_f32 v{O+5}, v{O+10}, v{O+11}")
        A(f"ds_write_b64 v{VAW}, v[{O+4}:{O+5}]")
        self.a_frags_from_stage(VAR, AF)
        self.mfmas(AF, BF, DT, 4, 4, lgkm=True)
        self.d_to_lds(DT, 4, TMP, TMP + 1, VDW)
        A("s_waitcnt lgkmcnt(0)")
        self.bar()
        A("s_cmp_eq_u32 s3, 0")
        A(f"s_cbranch_scc0 {EX}")
        self.d_sum(G, TT, TMP)
        for k in range(4):
            A(f"v_min_u32 v{TMP+4+k}, -2, v{TMP+4+k}")
        A(f"v_lshlrev_b32 v{TMP}, 11, v{G}")
        A(f"v_lshl_add_u32 v{TMP}, v{TT}, 4, v{TMP}")
        A("s_mov_b32 exec_hi, 0")
        A(f"buffer_store_dwordx4 v[{TMP+4}:{TMP+7}], v{TMP}, s[84:87], s60 offen sc1")
        self.stamp(9)
        self.dstamp(4)
        A(f"s_branch {EX}")

        L("L_tail_up")
        P = 12
        P = DT
        regs = [AF + 4 * i for i in range(4)] + [DT + 4 * i for i in range(4)]
        self.poll_multi([([f"s_add_u32 s57, s56, {hg*4096}", f"buffer_load_dwordx4 v[{regs[hg]}:{regs[hg]+3}], v12, s[84:87], s57 offen sc1"],
                          [regs[hg] + k for k in range(4)]) for hg in range(8)], TMP)
        self.stamp(8)
        X1 = TMP + 4
        self.sum8_x1(regs, X1, XV, GAV, TMP)
        S1, S2, U0, U1 = TMP + 8, TMP + 9, TMP + 10, TMP + 11
        A(f"v_add_f32 v{S1}, v{X1}, v{X1+1}")
        A(f"v_mul_f32 v{S2}, v{X1}, v{X1}")
        A(f"v_add_f32 v{U0}, v{X1+2}, v{X1+3}")
        A(f"v_fmac_f32 v{S2}, v{X1+1}, v{X1+1}")
        A(f"v_add_f32 v{S1}, v{S1}, v{U0}")
        A(f"v_fmac_f32 v{S2}, v{X1+2}, v{X1+2}")
        A(f"v_fmac_f32 v{S2}, v{X1+3}, v{X1+3}")
        self.allred32([S1, S2], [U0, U1])
        A(f"v_lshlrev_b32 v{U0}, 5, v{HB}")
        A("s_lshl_b32 s54, s3, 3")
        A(f"v_add_u32 v{U1}, s54, v{U0}")
        A(f"ds_write_b64 v{U1}, v[{S1}:{S2}] offset:{L_ST}")
        A("s_waitcnt lgkmcnt(0)")
        self.bar()
        Q8 = TMP + 12
        A(f"ds_read_b128 v[{Q8}:{Q8+3}], v{U0} offset:{L_ST}")
        A(f"ds_read_b128 v[{Q8+4}:{Q8+7}], v{U0} offset:{L_ST+16}")
        A("s_waitcnt lgkmcnt(0)")
        A(f"v_add_f32 v{S1}, v{Q8}, v{Q8+2}")
        A(f"v_add_f32 v{S2}, v{Q8+1}, v{Q8+3}")
        A(f"v_add_f32 v{U0}, v{Q8+4}, v{Q8+6}")
        A(f"v_add_f32 v{U1}, v{Q8+5}, v{Q8+7}")
        A(f"v_add_f32 v{S1}, v{S1}, v{U0}")
        A(f"v_add_f32 v{S2}, v{S2}, v{U1}")
        self.ln_norm(S1, S2, X1, U0, U1)
        self.modulate(X1, T4U, SBV, SBV + 1, TMP, TMP + 12, VAW)
        self.a_frags_from_stage(VAR, AF)
        self.mfmas(AF, BF, DT, 4, 4, lgkm=True)
        self.d_to_lds(DT, 4, TMP, TMP + 1, VDW)
        A("s_waitcnt lgkmcnt(0)")
        self.bar()
        A("s_cmp_eq_u32 s3, 0")
        A(f"s_cbranch_scc0 {EX}")
        A(f"v_lshrrev_b32 v{TMP}, 3, v2")
        A(f"v_and_b32 v{TMP}, 1, v{TMP}")
        A(f"v_and_b32 v{TMP+1}, 7, v2")
        A(f"v_lshlrev_b32 v{TMP+2}, 8, v{TMP}")
        A(f"v_lshl_add_u32 v{TMP+2}, v{TMP+1}, 4, v{TMP+2}")
        GT = AF
        for j in range(4):
            A(f"ds_read_b128 v[{AF+4*j}:{AF+4*j+3}], v{TMP+2} offset:{L_D + j*512}")
            A(f"ds_read_b128 v[{DT+4*j}:{DT+4*j+3}], v{TMP+2} offset:{L_D + j*512 + 128}")
        A(f"v_lshlrev_b32 v{TMP+3}, 6, v{TMP}")
        A(f"v_lshl_add_u32 v{TMP+3}, v{TMP+1}, 3, v{TMP+3}")
        A("s_waitcnt lgkmcnt(0)")
        for base in (AF, DT):
            self.pk4("add", base, base, base + 4)
            self.pk4("add", base + 8, base + 8, base + 12)
            self.pk4("add", base, base, base + 8)
            self.rnd2(base, base + 1, base + 4)
            self.rnd2(base + 2, base + 3, base + 5)
        A(f"s_mov_b32 s58, {f32(-LOG2E)}")
        for k in range(4):
            A(f"v_mul_f32 v{AF+4+k}, s58, v{AF+k}")
        for k in range(4):
            A(f"v_exp_f32 v{AF+4+k}, v{AF+4+k}")
        self.nop(1)
        for k in range(4):
            A(f"v_add_f32 v{AF+4+k}, 1.0, v{AF+4+k}")
        for k in range(4):
            A(f"v_rcp_f32 v{AF+4+k}, v{AF+4+k}")
        self.nop(1)
        self.pk4("mul", AF, AF, AF + 4)
        self.rnd2(AF, AF + 1, AF + 4)
        self.rnd2(AF + 2, AF + 3, AF + 5)
        self.pk4("mul", AF, AF, DT)
        A(f"v_cvt_pk_bf16_f32 v{AF+8}, v{AF}, v{AF+1}")
        A(f"v_cvt_pk_bf16_f32 v{AF+9}, v{AF+2}, v{AF+3}")
        A(f"v_min_u32 v{AF+8}, -2, v{AF+8}")
        A(f"v_min_u32 v{AF+9}, -2, v{AF+9}")
        self.nop(1)
        A(f"v_mov_b32_dpp v{AF+10}, v{AF+8} quad_perm:[1,1,3,3] row_mask:0xf bank_mask:0xf")
        A(f"v_mov_b32_dpp v{AF+11}, v{AF+9} quad_perm:[1,1,3,3] row_mask:0xf bank_mask:0xf")
        A("s_mov_b64 exec, 0x5555")
        A(f"buffer_store_dwordx4 v[{AF+8}:{AF+11}], v{TMP+3}, s[84:87], s60 offen sc1")
        self.stamp(9)
        self.dstamp(5)
        A(f"s_branch {EX}")

        L("L_tail_dn")
        A("s_cmp_eq_u32 s3, 0")
        A("s_cbranch_scc0 L_dn_hh")
        regs = [DAF + 4 * i for i in range(8)]
        self.poll_multi([([f"s_add_u32 s54, s56, {hg*4096}", f"buffer_load_dwordx4 v[{regs[hg]}:{regs[hg]+3}], v15, s[84:87], s54 offen sc1"],
                          [regs[hg] + k for k in range(4)]) for hg in range(8)], DAF + 32)
        self.unpack2(16, DAF + 32, DAF + 33)
        self.unpack2(17, DAF + 34, DAF + 35)
        self.unpack2(18, DAF + 36, DAF + 37)
        self.unpack2(19, DAF + 38, DAF + 39)
        self.sum8_x1(regs, DAF + 40, DAF + 32, DAF + 36, 22)
        A(f"v_cvt_pk_bf16_f32 v10, v{DAF+40}, v{DAF+41}")
        A(f"v_cvt_pk_bf16_f32 v11, v{DAF+42}, v{DAF+43}")
        L("L_dn_hh")
        self.poll_multi([([f"buffer_load_dwordx4 v[{DAF+36+4*t}:{DAF+39+4*t}], v7, s[16:19], s57 offen offset:{t*1024} sc1"],
                          [DAF + 36 + 4 * t + k for k in range(4)]) for t in range(2)], 22)
        self.stamp(8)
        A(f"ds_write_b128 v8, v[{DAF+36}:{DAF+39}]")
        A(f"ds_write_b128 v8, v[{DAF+40}:{DAF+43}] offset:1024")
        for t in range(11):
            A(f"ds_read_b128 v[{DAF+4*t}:{DAF+4*t+3}], v12 offset:{t*128}")
        self.mfmas(DAF, DBF, DDT, 11, 2, lgkm=True)
        self.d_to_lds(DDT, 2, 22, 23, VDW)
        A("s_waitcnt lgkmcnt(0)")
        self.bar()
        A("s_cmp_eq_u32 s3, 0")
        A(f"s_cbranch_scc0 {EX}")
        A("v_lshlrev_b32 v22, 8, v13")
        A("v_lshl_add_u32 v22, v14, 4, v22")
        F = DAF
        for j in range(4):
            A(f"ds_read_b128 v[{F+4*j}:{F+4*j+3}], v22 offset:{L_D + j*512}")
        self.unpack2(20, F + 16, F + 17)
        self.unpack2(21, F + 18, F + 19)
        self.unpack2(10, F + 20, F + 21)
        self.unpack2(11, F + 22, F + 23)
        A("v_lshlrev_b32 v23, 10, v13")
        A("v_lshl_add_u32 v23, v14, 3, v23")
        A("s_lshl_b32 s54, s59, 6")
        A("s_waitcnt lgkmcnt(0)")
        self.pk4("add", F, F, F + 4)
        self.pk4("add", F + 8, F + 8, F + 12)
        self.pk4("add", F, F, F + 8)
        self.rnd2(F, F + 1, F + 4)
        self.rnd2(F + 2, F + 3, F + 5)
        self.pk4("mul", F, F, F + 16)
        self.rnd2(F, F + 1, F + 4)
        self.rnd2(F + 2, F + 3, F + 5)
        self.pk4("add", F, F, F + 20)
        A(f"v_cvt_pk_bf16_f32 v{F+8}, v{F}, v{F+1}")
        A(f"v_cvt_pk_bf16_f32 v{F+9}, v{F+2}, v{F+3}")
        A("s_mov_b64 exec, 0xffff")
        A(f"buffer_store_dwordx2 v[{F+8}:{F+9}], v23, s[72:75], s54 offen")
        self.stamp(9)
        self.dstamp(1)
        A(f"s_branch {EX}")

    def d_sum(self, G, TT, t):
        A = self.A
        A(f"v_and_b32 v{t}, 1, v{G}")
        A(f"v_lshlrev_b32 v{t}, 8, v{t}")
        A(f"v_lshl_add_u32 v{t}, v{TT}, 4, v{t}")
        for j in range(4):
            A(f"ds_read_b128 v[{t+4+4*j}:{t+7+4*j}], v{t} offset:{L_D + j*512}")
        A("s_waitcnt lgkmcnt(0)")
        self.pk4("add", t + 4, t + 4, t + 8)
        self.pk4("add", t + 12, t + 12, t + 16)
        self.pk4("add", t + 4, t + 4, t + 12)

    def sum8_x1(self, regs, X1, XV, GAV, t):
        A = self.A
        for a, b in ((0, 1), (2, 3), (4, 5), (6, 7), (0, 2), (4, 6)):
            self.pk4("add", regs[a], regs[a], regs[b])
        self.pk4("add", X1, regs[0], regs[4])
        self.rnd2(X1, X1 + 1, t)
        self.rnd2(X1 + 2, X1 + 3, t + 1)
        self.pk4("mul", X1, X1, GAV)
        self.rnd2(X1, X1 + 1, t)
        self.rnd2(X1 + 2, X1 + 3, t + 1)
        self.pk4("add", X1, X1, XV)
        self.rnd2(X1, X1 + 1, t)
        self.rnd2(X1 + 2, X1 + 3, t + 1)

    def ln_norm(self, S1, S2, X, U0, U1):
        A = self.A
        A(f"s_mov_b32 s58, {f32(1.0/512)}")
        A(f"v_mul_f32 v{S1}, s58, v{S1}")
        A(f"v_mul_f32 v{S2}, s58, v{S2}")
        A(f"v_fma_f32 v{S2}, -v{S1}, v{S1}, v{S2}")
        A(f"v_max_f32 v{S2}, 0, v{S2}")
        self.rnd2(S1, S2, U0)
        A(f"v_add_f32 v{S2}, {f32(1e-5)}, v{S2}")
        self.rnd1(S2)
        A(f"v_sqrt_f32 v{S2}, v{S2}")
        for k in range(4):
            A(f"v_sub_f32 v{X+k}, v{X+k}, v{S1}")
        self.rnd1(S2)
        A(f"v_rcp_f32 v{S2}, v{S2}")
        self.rnd2(X, X + 1, U0)
        self.rnd2(X + 2, X + 3, U1)
        for k in range(4):
            A(f"v_mul_f32 v{X+k}, v{X+k}, v{S2}")
        self.rnd2(X, X + 1, U0)
        self.rnd2(X + 2, X + 3, U1)

    def modulate(self, N, T4, sp0, sp1, t0, w, VAW):
        A = self.A
        self.pk4("mul", N, N, T4)
        self.rnd2(N, N + 1, t0)
        self.rnd2(N + 2, N + 3, t0 + 1)
        self.unpack2(sp0, w, w + 1)
        self.unpack2(sp1, w + 2, w + 3)
        self.pk4("add", N, N, w)
        A(f"v_cvt_pk_bf16_f32 v{w+4}, v{N}, v{N+1}")
        A(f"v_cvt_pk_bf16_f32 v{w+5}, v{N+2}, v{N+3}")
        A(f"ds_write_b64 v{VAW}, v[{w+4}:{w+5}]")


HEADER = open("cdna_kernels/%s.s.ref" % NAME).read().split("; Override launch geometry")[0] if True else ""

if __name__ == "__main__":
    import argparse
    ap = argparse.ArgumentParser()
    ap.add_argument("-o", default="k.s")
    ap.add_argument("--R", type=int, default=3)
    ap.add_argument("--B", type=int, default=32)
    ap.add_argument("--stamps", action="store_true")
    ap.add_argument("--sleep", type=int, default=1)
    ap.add_argument("--NS", type=int, default=12)
    ap.add_argument("--R0", type=int, default=3)
    ap.add_argument("--grp", default="iod")
    ap.add_argument("--CP", type=int, default=0)
    ap.add_argument("--dbg", default="")
    ap.add_argument("--pace", type=int, default=0)
    ap.add_argument("--tpol", default="nt")
    ap.add_argument("--xmap", action="store_true")
    ap.add_argument("--flagq", action="store_true")
    ap.add_argument("--TH", type=int, default=480)
    ap.add_argument("--kvpol", default="nt")
    ap.add_argument("--dry", action="store_true")
    ap.add_argument("--pm", action="store_true")
    ap.add_argument("--rot", type=int, default=0)
    ap.add_argument("--H", type=int, default=1)
    ap.add_argument("--npol", default=None)
    ap.add_argument("--cpf", type=int, default=0)
    ap.add_argument("--late", action="store_true")
    ap.add_argument("--hold", action="store_true")
    ap.add_argument("--px", type=int, default=33)
    ap.add_argument("--egw", type=int, default=0)
    ap.add_argument("--cstr", type=int, default=4224)
    ap.add_argument("--ps1", type=int, default=1)
    ap.add_argument("--ps2", type=int, default=1)
    a = ap.parse_args()
    B = a.B
    if a.stamps and B > 32:
        B = 32
    g = Gen(R=a.R, B=B, stamps=a.stamps, sleep=a.sleep, NS=a.NS, R0=a.R0, grp=a.grp, CP=a.CP, dbg=a.dbg, pace=a.pace, tpol=a.tpol, xmap=a.xmap, flagq=a.flagq, ps1=a.ps1, ps2=a.ps2, TH=a.TH, kvpol=a.kvpol, dry=a.dry, pm=a.pm, rot=a.rot, H=a.H, cstr=a.cstr, egw=a.egw, px=a.px, late=a.late, hold=a.hold, cpf=a.cpf, npol=a.npol)
    open(a.o, "w").write(HEADER + g.build())
```

```python
import sys, struct

NAME = "adaLN_cond__mha_block_cached__glu_gated_swiglu__decode"

def f32(x):
    return "0x%08x" % struct.unpack("<I", struct.pack("<f", x))[0]

LOG2E = 1.4426950408889634
SCALE = 128 ** -0.5

MOD_OFF = 0x0000
Q_OFF = 0x8000
PART_OFF = 0x10000
ATT_OFF = 0x90000
HH_OFF = 0x98000
CNT_OFF = 0x9A000
CTR_OFF = 0x100000
WS_USED = 0x9C000
STAMP_OFF = 0x10000000
L_A = 0
L_D = L_A + 2048
L_ST = L_D + 2048
L_Q = L_ST + 64
L_Z = L_Q + 512
L_CNT = L_Z
L_QF = L_Z + 16
L_PF = L_Z + 48
L_NEED = L_Z + 32
L_RL = L_Z + 256
L_ML = L_Z + 512
L_P = 5376
L_W = L_P + 16384
LDS_BYTES = L_W + 90112
assert L_ML + 128 <= L_P and L_P % 128 == 0

R_MOD0, R_Q0, R_WO0, R_WO1, R_UP0, R_UP1, R_DN0 = 0, 48, 112, 176, 192, 235, 240
SENT = 0xFFFFFFFF


class Gen:
    def __init__(self, R=3, B=32, stamps=False, NS=12, sleep=1, R0=3, grp='iod', CP=0, dbg='', pace=0, tpol='nt', xmap=False, flagq=False, ps1=1, ps2=1, TH=480, kvpol='nt', dry=False, pm=False, rot=0, H=1, cstr=4224, egw=0, px=33, late=False, hold=False, cpf=0, npol=None, xl=0):
        self.o = []
        self.R, self.B, self.stamps, self.NS, self.sleep, self.R0, self.grp = R, B, stamps, NS, sleep, R0, grp
        self.uid = 0
        self.CP = CP
        self.dbg = dbg
        self.xl = xl
        self.npol = npol
        self.cpf = cpf
        self.late, self.hold = late, hold
        self.px = px
        self.egw = egw
        self.cstr = cstr
        self.H = H
        self.rot = rot
        self.pm = pm
        self.dry = dry
        self.kvpol = kvpol
        self.TH = TH
        self.ps1, self.ps2 = ps1, ps2
        self.pace, self.tpol, self.xmap, self.flagq = pace, tpol, xmap, flagq

    def A(self, s):
        self.o.append("    " + s)

    def L(self, s):
        self.o.append(s + ":")

    def lab(self, p):
        self.uid += 1
        return f"L_{p}_{self.uid}"

    def nop(self, n):
        while n > 0:
            k = min(n, 16)
            self.A(f"s_nop {k-1}")
            n -= k

    def srd(self, d, b, nbytes):
        self.A(f"s_mov_b32 s{d}, s{b}")
        self.A(f"s_mov_b32 s{d+1}, s{b+1}")
        self.A(f"s_mov_b32 s{d+2}, {nbytes}")
        self.A(f"s_mov_b32 s{d+3}, 0x20000")

    def stamp(self, idx, src=None, wave=False):
        if not self.stamps:
            return
        A = self.A
        if src is None:
            A("s_memrealtime s[90:91]")
        else:
            A(f"s_mov_b64 s[90:91], {src}")
        A("s_mov_b64 s[92:93], exec")
        A("s_mov_b64 exec, 1")
        A("s_lshl_b32 s94, s2, 9")
        if wave:
            A("s_lshl_b32 s95, s3, 5")
            A("s_add_u32 s94, s94, s95")
        A(f"s_add_u32 s94, s94, {STAMP_OFF + idx*8}")
        A("s_waitcnt lgkmcnt(0)")
        A("v_mov_b32 v166, s90")
        A("v_mov_b32 v167, s91")
        A("buffer_store_dwordx2 v[166:167], off, s[84:87], s94")
        A("s_mov_b64 exec, s[92:93]")

    def rnd2(self, a, b, t):
        self.A(f"v_cvt_pk_bf16_f32 v{t}, v{a}, v{b}")
        self.A(f"v_lshlrev_b32 v{a}, 16, v{t}")
        self.A(f"v_and_b32 v{b}, 0xffff0000, v{t}")

    def pk4(self, op, d, a, b):
        assert d % 2 == 0 and a % 2 == 0 and b % 2 == 0
        for k in (0, 2):
            self.A(f"v_pk_{op}_f32 v[{d+k}:{d+k+1}], v[{a+k}:{a+k+1}], v[{b+k}:{b+k+1}]")

    def rnd1(self, a):
        self.A(f"v_cvt_pk_bf16_f32 v{a}, v{a}, v{a}")
        self.A(f"v_and_b32 v{a}, 0xffff0000, v{a}")

    def unpack2(self, src, lo, hi):
        self.A(f"v_lshlrev_b32 v{lo}, 16, v{src}")
        self.A(f"v_and_b32 v{hi}, 0xffff0000, v{src}")

    def allred32(self, regs, tmps):
        A = self.A
        for rot in (8, 4, 2, 1):
            self.nop(2 if len(regs) < 2 else max(0, 2 - (len(regs) - 1)))
            for r in regs:
                A(f"v_add_f32_dpp v{r}, v{r}, v{r} row_ror:{rot} row_mask:0xf bank_mask:0xf")
        for r, t in zip(regs, tmps):
            A(f"v_mov_b32 v{t}, v{r}")
        self.nop(2)
        for r, t in zip(regs, tmps):
            A(f"v_permlane16_swap_b32 v{r}, v{t}")
        self.nop(1)
        for r, t in zip(regs, tmps):
            A(f"v_add_f32 v{r}, v{r}, v{t}")

    def slice_of(self, dst, r0, n):
        A = self.A
        A(f"s_sub_u32 s{dst}, s89, {r0}")
        if not self.xmap:
            return
        q, rem = divmod(n, 8)
        A(f"s_and_b32 s68, s{dst}, 7")
        A(f"s_lshr_b32 s{dst}, s{dst}, 3")
        A(f"s_min_u32 s69, s68, {rem}")
        A(f"s_mul_i32 s68, s68, {q}")
        A(f"s_add_u32 s{dst}, s{dst}, s68")
        A(f"s_add_u32 s{dst}, s{dst}, s69")

    def dstamp(self, word, mn=False, tagreg=80, srd=76):
        if "dtime" not in self.dbg:
            return
        A = self.A
        A("s_memrealtime s[90:91]")
        A("s_mov_b64 s[92:93], exec")
        A("s_mov_b64 exec, 1")
        A("s_waitcnt lgkmcnt(0)")
        A(f"s_sub_u32 s90, s90, s{tagreg}")
        if mn:
            A("s_sub_u32 s90, 100000, s90")
        A("v_mov_b32 v166, s90")
        A(f"buffer_atomic_umax v166, off, s[{srd}:{srd+3}], 0 offset:{word*4} sc1")
        A("s_mov_b64 exec, s[92:93]")

    def dmark(self, k):
        if "dpro" in self.dbg:
            r = [4, 6, 100, 42][k]
            self.A(f"s_memrealtime s[{r}:{r+1}]")

    def demit(self):
        if "dpro" not in self.dbg:
            return
        A, L = self.A, self.L
        A("s_waitcnt lgkmcnt(0)")
        A("s_mov_b64 exec, 1")
        def em(reg, word, mn=False):
            l = self.lab("de")
            A(f"s_cmp_eq_u32 s{reg}, 0")
            A(f"s_cbranch_scc1 {l}")
            A(f"s_sub_u32 s90, s{reg}, s80")
            if mn:
                A("s_sub_u32 s90, 100000, s90")
            A("v_mov_b32 v166, s90")
            A(f"buffer_atomic_umax v166, off, s[76:79], 0 offset:{word*4} sc1")
            L(l)
        em(4, 3); em(4, 6, True)
        em(100, 9); em(100, 10, True)
        a = self.lab("da"); b = self.lab("db")
        A("s_cmp_lt_u32 s89, 16")
        A(f"s_cbranch_scc0 {a}")
        em(6, 7); em(42, 11)
        L(a)
        A("s_cmp_ge_u32 s89, 48")
        A(f"s_cbranch_scc0 {b}")
        em(6, 8); em(42, 12)
        L(b)
        A("s_mov_b64 exec, -1")

    def bar(self):
        if not self.dry:
            self.A("s_barrier")
            return
        l = self.lab("nb")
        self.A("s_cmp_eq_u32 s69, 0")
        self.A(f"s_cbranch_scc0 {l}")
        self.A("s_barrier")
        self.L(l)

    def poll_head(self):
        l = self.lab("poll")
        self.L(l)
        return l

    def poll_tail(self, l, sleep=None):
        A = self.A
        d = self.lab("pdone")
        A(f"s_cbranch_vccz {d}")
        A("s_cmp_eq_u32 s88, 0")
        A(f"s_cbranch_scc1 {d}")
        A("s_sub_u32 s88, s88, 1")
        if (self.sleep if sleep is None else sleep):
            A(f"s_sleep {self.sleep if sleep is None else sleep}")
        A(f"s_branch {l}")
        self.L(d)

    def poll_multi(self, loads, t):
        A, L = self.A, self.L
        n = len(loads)
        if not self.pm:
            pl = self.poll_head()
            for lines, regs in loads:
                for x in lines:
                    A(x)
            A("s_waitcnt vmcnt(0)")
            self.check_sent([r for lines, regs in loads for r in regs], t)
            self.poll_tail(pl)
            return
        A(f"s_mov_b32 s95, {(1 << n) - 1}")
        first = True
        top = self.lab("mp")
        done = self.lab("mpd")
        for lines, regs in loads:
            for x in lines:
                A(x)
        chk = self.lab("mpc")
        A(f"s_branch {chk}")
        L(top)
        for r, (lines, regs) in enumerate(loads):
            sk = self.lab("mps")
            A(f"s_bitcmp1_b32 s95, {r}")
            A(f"s_cbranch_scc0 {sk}")
            for x in lines:
                A(x)
            L(sk)
        L(chk)
        A("s_waitcnt vmcnt(0)")
        for r, (lines, regs) in enumerate(loads):
            sk = self.lab("mpk")
            A(f"s_bitcmp1_b32 s95, {r}")
            A(f"s_cbranch_scc0 {sk}")
            self.check_sent(regs, t)
            A(f"s_cbranch_vccnz {sk}")
            A(f"s_bitset0_b32 s95, {r}")
            L(sk)
        A("s_cmp_eq_u32 s95, 0")
        A(f"s_cbranch_scc1 {done}")
        A("s_cmp_eq_u32 s88, 0")
        A(f"s_cbranch_scc1 {done}")
        A("s_sub_u32 s88, s88, 1")
        if self.sleep:
            A(f"s_sleep {self.sleep}")
        A(f"s_branch {top}")
        L(done)

    def check_sent(self, regs, t):
        A = self.A
        regs = list(regs)
        if len(regs) >= 3:
            A(f"v_max3_u32 v{t}, v{regs[0]}, v{regs[1]}, v{regs[2]}")
            regs = regs[3:]
        else:
            A(f"v_max_u32 v{t}, v{regs[0]}, v{regs[1]}")
            regs = regs[2:]
        while len(regs) >= 2:
            A(f"v_max3_u32 v{t}, v{t}, v{regs[0]}, v{regs[1]}")
            regs = regs[2:]
        if regs:
            A(f"v_max_u32 v{t}, v{t}, v{regs[0]}")
        A(f"v_cmp_eq_u32 vcc, -1, v{t}")

    def check_tags(self, regs, t):
        A = self.A
        A(f"v_xor_b32 v{t}, s80, v{regs[0]}")
        for r in regs[1:]:
            A(f"v_xor_b32 v{t+1}, s80, v{r}")
            A(f"v_or_b32 v{t}, v{t}, v{t+1}")
        A(f"v_cmp_ne_u32 vcc, 0, v{t}")

    def dma_weights(self, srd, nins, voff, row_step_bytes, lds_base_s, soff0=0, pol="nt", skip=""):
        A = self.A
        if "notaildma" in self.dbg and getattr(self, "intail", False):
            return
        if "noprodma" in self.dbg and not getattr(self, "intail", False):
            nins = 16
            A(f"s_mov_b32 s{srd+2}, 0")
        A(f"s_mov_b32 s70, {soff0}")
        A(f"s_add_u32 s71, s{lds_base_s}, {L_W}")
        intail = getattr(self, "intail", False)
        if intail:
            pol = self.tpol
            if skip in ("noup", "nodn") and self.npol is not None:
                pol = self.npol
            if skip and skip in self.dbg:
                return
        for i in range(nins):
            if intail and self.pace and i >= self.pace:
                A(f"s_waitcnt vmcnt({self.pace-1})")
            A("s_mov_b32 m0, s71")
            A(f"s_add_u32 s71, s71, 1024")
            A(f"buffer_load_dwordx4 v{voff}, s[{srd}:{srd+3}], s70 offen {pol} lds")
            A(f"s_add_u32 s70, s70, {row_step_bytes}")

    def tr_reads(self, vaddr, breg, nk, cgs, rowb):
        for t in range(nk):
            for ci, cgoff in enumerate(cgs):
                r = breg + (t * len(cgs) + ci) * 4
                off = t * 32 * rowb + cgoff
                self.A(f"ds_read_b64_tr_b16 v[{r}:{r+1}], v{vaddr} offset:{off}")
                self.A(f"ds_read_b64_tr_b16 v[{r+2}:{r+3}], v{vaddr} offset:{off + 4*rowb}")

    def mfmas(self, areg, breg, dreg, nk, ncg, lgkm=False):
        for t in range(nk):
            if lgkm:
                self.A(f"s_waitcnt lgkmcnt({nk-1-t})")
            for c in range(ncg):
                a = areg + 4 * t
                b = breg + (t * ncg + c) * 4
                d = dreg + 4 * c
                src = "0" if t == 0 else f"v[{d}:{d+3}]"
                self.A(f"v_mfma_f32_16x16x32_bf16 v[{d}:{d+3}], v[{a}:{a+3}], v[{b}:{b+3}], {src}")

    def d_to_lds(self, dreg, ncg, x0, x1, vaddr):
        A = self.A
        self.nop(8)
        for c in range(ncg):
            A(f"v_mov_b32_dpp v{x0}, v{dreg+4*c} quad_perm:[0,1,2,3] row_mask:{1<<c:#x} bank_mask:0xf")
            A(f"v_mov_b32_dpp v{x1}, v{dreg+4*c+1} quad_perm:[0,1,2,3] row_mask:{1<<c:#x} bank_mask:0xf")
        A(f"ds_write_b32 v{vaddr}, v{x0}")
        A(f"ds_write_b32 v{vaddr}, v{x1} offset:256")

    def a_frags_from_stage(self, vaddr, areg):
        for t in range(4):
            self.A(f"ds_read_b128 v[{areg+4*t}:{areg+4*t+3}], v{vaddr} offset:{t*64}")

    def build(self):
        A, L = self.A, self.L
        o = self.o
        o.append(f"; @launch grid=(256,1,1) block=(768,1,1) lds={LDS_BYTES}")
        o.append(DOC.rstrip("\n"))
        o.append('.amdgcn_target "amdgcn-amd-amdhsa--gfx950"')
        o.append(".text")
        o.append(f".globl {NAME}_kernel")
        o.append(".p2align 8")
        o.append(f".type {NAME}_kernel,@function")
        L(f"{NAME}_kernel")
        if self.stamps:
            A("s_memrealtime s[100:101]")
        A("s_cmp_ge_u32 s2, 256")
        A("s_cbranch_scc1 L_end")
        A("s_load_dwordx4 s[4:7], s[0:1], 8")
        A("s_load_dwordx4 s[96:99], s[0:1], 96")
        A("v_lshrrev_b32 v1, 6, v0")
        A("v_and_b32 v2, 63, v0")
        A("v_readfirstlane_b32 s3, v1")
        if self.grp == "pair":
            A("s_and_b32 s40, s2, 7")
            A("s_lshr_b32 s40, s40, 1")
            A("s_lshr_b32 s43, s2, 4")
            A("s_lshl_b32 s43, s43, 2")
            A("s_add_u32 s40, s40, s43")
            A("s_and_b32 s41, s2, 1")
            A("s_lshr_b32 s43, s2, 3")
            A("s_and_b32 s43, s43, 1")
            A("s_lshl_b32 s43, s43, 1")
            A("s_add_u32 s41, s41, s43")
        else:
            A("s_lshr_b32 s41, s2, 1")
            A("s_xor_b32 s40, s41, s2")
            A("s_and_b32 s40, s40, 1")
            A("s_and_b32 s41, s41, 3")
            A("s_lshr_b32 s43, s2, 3")
            A("s_lshl_b32 s43, s43, 1")
            A("s_add_u32 s40, s40, s43")
        A("s_lshr_b32 s89, s40, 1")
        A("s_add_u32 s89, s89, s41")
        A("s_and_b32 s89, s89, 3")
        A("s_lshl_b32 s89, s89, 6")
        A("s_add_u32 s89, s89, s40")
        A("s_cmp_ge_u32 s3, 8")
        A("s_cbranch_scc1 L_helper")
        self.streamer()
        L("L_helper")
        self.helper()
        L("L_end")
        A("s_endpgm")
        L("L_codeend")
        o.append('.section .rodata,"a"')
        o.append(".p2align 6")
        o.append(f".amdhsa_kernel {NAME}_kernel")
        o.append("  .amdhsa_next_free_vgpr 168")
        o.append("  .amdhsa_next_free_sgpr 102")
        o.append("  .amdhsa_accum_offset 168")
        o.append("  .amdhsa_group_segment_fixed_size 0")
        o.append("  .amdhsa_kernarg_size 112")
        o.append("  .amdhsa_user_sgpr_count 2")
        o.append("  .amdhsa_user_sgpr_kernarg_segment_ptr 1")
        o.append("  .amdhsa_system_sgpr_workgroup_id_x 1")
        o.append("  .amdhsa_float_denorm_mode_32 3")
        o.append(".end_amdhsa_kernel")
        return "\n".join(o) + "\n"

    def streamer(self):
        A, L = self.A, self.L
        R, B, NS, R0 = self.R, self.B, self.NS, self.R0
        VOFF, QF, MK, D, M, MN, LS = 1, 2, 6, 10, 14, 15, 16
        AC, T0, T1, S, PP = 17, 21, 22, 23, 24
        AS = 26
        LANE = 34
        EP, CLM = 35, 25
        RING = 168 - 4 * B - (2 if self.stamps else 0)
        RING -= RING % 2
        assert RING >= 36
        A(f"v_mov_b32 v{LANE}, v2")
        A("s_lshl_b32 s44, s41, 3")
        A("s_add_u32 s44, s44, s3")
        A("s_lshl_b32 s44, s44, 12")
        A(f"s_mul_i32 s45, s40, {self.rot}")
        A("s_lshl_b32 s45, s45, 15")
        A("s_add_u32 s44, s44, s45")
        A("s_lshl_b32 s33, s40, 21")
        A(f"v_lshlrev_b32 v{VOFF}, 4, v2")
        A("s_waitcnt lgkmcnt(0)")
        self.srd(8, 4, 0x8000000)
        self.srd(12, 6, 0x8000000)
        N = (NS - 1) * 8 + R
        NC = (NS - 1) * 8

        def issue(p):
            i, j = divmod(p, 8)
            t, j = divmod(j, 4)
            r = RING + 4 * (p % B)
            srd = "s[8:11]" if t == 0 else "s[12:15]"
            if j == 0 and t == 0:
                A(f"s_add_u32 s16, s44, {i * 32 * 4096}")
                A("s_and_b32 s16, s16, 0x1fffff")
                A("s_add_u32 s16, s16, s33")
                if self.stamps and i < 12:
                    A(f"s_memrealtime s[{48+2*i}:{49+2*i}]")
            if B <= p < B + self.xl:
                a, b = self.lab("xa"), self.lab("xb")
                A(f"s_cmp_ge_u32 s89, {R_WO0}")
                A(f"s_cbranch_scc1 {a}")
                A(f"buffer_load_dwordx4 v[{r}:{r+3}], v{VOFF}, {srd}, s16 offen offset:{j*1024} {self.kvpol}")
                A(f"s_branch {b}")
                L(a)
                A(f"v_add_u32 v{T0}, s36, v{VOFF}")
                A("buffer_load_dword v37, off, s[8:11], s37")
                A(f"ds_read_b128 v[{r}:{r+3}], v{T0} offset:{(p-B)*1024}")
                L(b)
                return
            A(f"buffer_load_dwordx4 v[{r}:{r+3}], v{VOFF}, {srd}, s16 offen offset:{j*1024} {self.kvpol}")

        if self.hold:
            A("s_cmp_lt_u32 s89, 16")
            A("s_cbranch_scc0 L_nohold")
            A("s_barrier")
            L("L_nohold")
        for p in range(R0):
            issue(p)
        if self.stamps:
            A("s_memrealtime s[30:31]")
        self.srd(84, 98, 0x20000000)
        if self.hold:
            A("s_cmp_lt_u32 s89, 16")
            A("s_cbranch_scc1 L_nohold2")
        A("s_barrier")
        if self.hold:
            L("L_nohold2")
        if self.H == 2:
            A(f"s_xor_b32 s43, s40, {self.px}")
            A("s_min_u32 s43, s43, s40")
            A(f"s_xor_b32 s39, s43, {self.px}")
            A("s_lshl_b32 s39, s39, 21")
        else:
            A("s_mov_b32 s43, s40")
        A("s_lshl_b32 s45, s43, 3")
        A("s_add_u32 s45, s45, s3")
        A(f"s_mul_i32 s45, s45, {self.cstr}")
        A(f"s_add_u32 s45, s45, {CTR_OFF}")
        A("s_lshl_b32 s42, s3, 12")
        A(f"s_mul_i32 s38, s43, {self.rot}")
        A("s_lshl_b32 s38, s38, 15")
        A("s_add_u32 s42, s42, s38")
        A("s_lshl_b32 s43, s43, 21")
        if self.H == 2:
            A("s_lshr_b32 s32, s40, 5")
        else:
            A("s_mov_b32 s32, 0")
        A("s_mov_b32 s28, s32")
        A("s_mov_b32 s29, s32")
        A("s_add_u32 s26, s98, s45")
        A("s_addc_u32 s27, s99, 0")
        A(f"v_and_b32 v{T0}, 15, v{LANE}")
        A(f"v_and_b32 v{T1}, 1, v{LANE}")
        A(f"v_lshlrev_b32 v{T1}, 4, v{T1}")
        A(f"s_mov_b32 s17, 0xffff")
        A(f"v_mov_b32 v{S}, s17")
        A(f"v_lshlrev_b32 v{T1}, v{T1}, v{S}")
        A(f"v_lshrrev_b32 v{T0}, 1, v{T0}")
        for k in range(4):
            A(f"v_cmp_eq_u32 vcc, {k}, v{T0}")
            self.nop(2)
            A(f"v_cndmask_b32 v{MK+k}, 0, v{T1}, vcc")
        for k in range(4):
            A(f"v_mov_b32 v{D+k}, 0")
        A(f"v_mov_b32 v{M}, {f32(-3.0e38)}")
        A(f"v_mov_b32 v{MN}, 0")
        A(f"v_mov_b32 v{LS}, 0")
        A(f"v_and_b32 v35, 15, v{LANE}")
        A(f"v_lshlrev_b32 v35, 5, v35")
        A(f"v_lshrrev_b32 v{T1}, 4, v{LANE}")
        A(f"v_and_b32 v{S}, 1, v{T1}")
        A(f"v_lshl_add_u32 v35, v{S}, 4, v35")
        A(f"v_lshrrev_b32 v{T1}, 1, v{T1}")
        A(f"v_lshl_add_u32 v35, v{T1}, 9, v35")
        A("s_lshl_b32 s20, s3, 10")
        A(f"v_add_u32 v35, s20, v35")
        A("s_lshl_b32 s20, s3, 3")
        A(f"v_mov_b32 v25, s20")
        A("s_lshl_b32 s36, s3, 13")
        A(f"s_add_u32 s36, s36, {L_W}")
        A("s_mov_b32 s37, 0x7ffffff0")
        A(f"s_mov_b32 s18, {f32(SCALE)}")
        A(f"s_mov_b32 s19, {f32(LOG2E)}")
        for p in range(R0, B):
            A(f"s_waitcnt vmcnt({R0-1 if p < 8 else R-1})")
            issue(p)
        if self.xl:
            assert B % 8 == 0 and self.xl == 8 and not self.rot
            A(f"s_cmp_ge_u32 s89, {R_WO0}")
            A("s_cbranch_scc0 L_noxl")
            A(f"s_add_u32 s20, s44, {(B // 8) * 32 * 4096}")
            A("s_add_u32 s20, s20, s33")
            for q in range(8):
                t, j = divmod(q, 4)
                if j == 0:
                    A(f"s_add_u32 s21, s36, {t * 4096}")
                    A("s_mov_b32 m0, s21")
                A(f"s_waitcnt vmcnt({R-1})")
                A(f"buffer_load_dwordx4 v{VOFF}, {'s[8:11]' if t == 0 else 's[12:15]'}, s20 offen offset:{j*1024} {self.kvpol} lds")
            L("L_noxl")
        self.stamp(1)
        self.stamp(11, "s[100:101]")
        self.stamp(12, "s[30:31]")
        A(f"v_and_b32 v{T0}, 15, v{LANE}")
        A(f"v_lshlrev_b32 v{T0}, 4, v{T0}")
        A("s_lshl_b32 s20, s32, 8")
        A(f"v_add_u32 v{T0}, s20, v{T0}")
        if not self.flagq:
            A("s_barrier")
            A(f"ds_read_b128 v[{QF}:{QF+3}], v{T0} offset:{L_Q}")
            A("s_waitcnt lgkmcnt(0)")
        else:
            A(f"v_mov_b32 v{T1}, 0")
            A("s_mov_b32 s88, 0x400000")
            pl = self.poll_head()
            A(f"ds_read_b32 v{AS}, v{T1} offset:{L_QF}")
            A(f"ds_read_b128 v[{QF}:{QF+3}], v{T0} offset:{L_Q}")
            A("s_waitcnt lgkmcnt(0)")
            A(f"v_cmp_eq_u32 vcc, 0, v{AS}")
            self.poll_tail(pl, sleep=1)
        if self.stamps:
            A("s_waitcnt vmcnt(0)")
        beta = [0, 2, 1, 3]
        st = {"I": B, "landed": (B if self.stamps else B - R)}

        def need(c):
            if c >= st["landed"]:
                A(f"s_waitcnt vmcnt({st['I'] - 1 - c})")
                st["landed"] = c + 1

        def paced_issue():
            I = st["I"]
            if I >= N:
                return
            if I - st["landed"] >= R:
                A(f"s_waitcnt vmcnt({R-1})")
                st["landed"] = I - (R - 1)
            issue(I)
            st["I"] = I + 1

        def consume(c):
            i, j = divmod(c, 8)
            t, j = divmod(j, 4)
            r = RING + 4 * (c % B)
            need(c)
            if B <= c < B + self.xl:
                A("s_waitcnt lgkmcnt(0)")
            if "nocomp" in self.dbg:
                A(f"v_xor_b32 v{AC}, v{AC}, v{r}")
            elif t == 0:
                A(f"v_dot2_f32_bf16 v{AC+j}, v{r}, v{QF}, 0")
                for k in range(1, 4):
                    A(f"v_dot2_f32_bf16 v{AC+j}, v{r+k}, v{QF+k}, v{AC+j}")
            else:
                a = AS + 4 * (j & 1)
                for k in range(4):
                    A(f"v_and_b32_dpp v{a+k}, v{PP}, v{MK+k} row_newbcast:{4*beta[j]} row_mask:0xf bank_mask:0xf")
                self.nop(2)
                A(f"v_mfma_f32_16x16x32_bf16 v[{D}:{D+3}], v[{a}:{a+3}], v[{r}:{r+3}], v[{D}:{D+3}]")

        def softmax():
            if "nocomp" in self.dbg:
                return
            self.nop(3)
            A(f"v_add_f32_dpp v{T0}, v{AC}, v{AC} row_ror:8 row_mask:0xf bank_mask:0x3")
            A(f"v_add_f32_dpp v{T1}, v{AC+2}, v{AC+2} row_ror:8 row_mask:0xf bank_mask:0x3")
            A(f"v_add_f32_dpp v{T0}, v{AC+1}, v{AC+1} row_ror:8 row_mask:0xf bank_mask:0xc")
            A(f"v_add_f32_dpp v{T1}, v{AC+3}, v{AC+3} row_ror:8 row_mask:0xf bank_mask:0xc")
            self.nop(1)
            A(f"v_add_f32_dpp v{S}, v{T0}, v{T0} row_shl:4 row_mask:0xf bank_mask:0x5")
            A(f"v_add_f32_dpp v{S}, v{T1}, v{T1} row_shr:4 row_mask:0xf bank_mask:0xa")
            self.nop(2)
            A(f"v_add_f32_dpp v{S}, v{S}, v{S} quad_perm:[2,3,0,1] row_mask:0xf bank_mask:0xf")
            self.nop(2)
            A(f"v_add_f32_dpp v{S}, v{S}, v{S} quad_perm:[1,0,3,2] row_mask:0xf bank_mask:0xf")
            self.rnd1(S)
            A(f"v_mul_f32 v{S}, s18, v{S}")
            self.rnd1(S)
            A(f"v_cmp_gt_f32 vcc, v{S}, v{M}")
            bk = self.lab("back")
            A(f"s_cbranch_vccz {bk}")
            A("s_call_b64 s[46:47], L_rare")
            L(bk)
            A(f"v_sub_f32 v{T0}, v{S}, v{M}")
            A(f"v_mul_f32 v{T0}, s19, v{T0}")
            A(f"v_exp_f32 v{T0}, v{T0}")
            self.nop(1)
            A(f"v_add_f32 v{LS}, v{LS}, v{T0}")
            A(f"v_cvt_pk_bf16_f32 v{PP}, v{T0}, v{T0}")
            self.nop(2)

        c = 0
        while c < NC:
            lag = st["I"] - c
            ncons = 2 if lag > R + 1 else 1
            if st["I"] < N and st["I"] - B < c and lag <= R:
                paced_issue()
            for _ in range(ncons):
                if c >= NC:
                    break
                consume(c)
                c += 1
                if c % 8 == 4:
                    softmax()
                if self.xl and c == B + self.xl:
                    A(f"v_mov_b32 v{T0}, 0")
                    A(f"v_mov_b32 v{T1}, 1")
                    A("s_mov_b64 exec, 1")
                    A(f"ds_add_u32 v{T0}, v{T1} offset:{L_PF}")
                    A("s_mov_b64 exec, -1")
            if st["I"] < N and st["I"] - B < c and (st["I"] - c) > R:
                paced_issue()
        assert st["I"] == N, (st, N)
        base = (NS - 1) * 8
        alt = base + 8
        st["landed"] = 1 << 30

        def ld(pos, sl, soff):
            t, jl = divmod(pos, 4)
            r = RING + 4 * (sl % B)
            srd = "s[8:11]" if t == 0 else "s[12:15]"
            A(f"buffer_load_dwordx4 v[{r}:{r+3}], v{VOFF}, {srd}, {soff} offen offset:{jl*1024} {self.kvpol}")

        CP = self.CP

        def claim():
            if "fake" in self.dbg:
                A("s_add_u32 s39, s39, 4")
                A("s_mov_b32 s24, s39")
                if "fakeld" in self.dbg:
                    A("s_load_dword s38, s[26:27], 0 glc")
                if "fakeat" in self.dbg:
                    A("s_mov_b32 s38, 1")
                    A("s_atomic_add s38, s[26:27], 0 glc")
                return
            A("s_mov_b32 s24, 1")
            A("s_atomic_add s24, s[26:27], 0 glc")

        def eat(sl, j_from, younger):
            for j in range(j_from, 8):
                A(f"s_waitcnt vmcnt({younger + 7 - j})")
                consume(sl + j)
                if j == 3:
                    softmax()

        CX = RING + 4 * ((base + 16) % B)
        assert (base + 16) % B + 4 <= B
        ACT = [QF, QF + 1, QF + 2, QF + 3, D, D + 1, D + 2, D + 3, M, MN, LS]
        SAV = [CX + k for k in range(11)]
        self.ctx = (ACT, SAV)
        if self.H == 2:
            A(f"v_and_b32 v{T0}, 15, v{LANE}")
            A(f"v_lshlrev_b32 v{T0}, 4, v{T0}")
            A("s_xor_b32 s20, s32, 1")
            A("s_lshl_b32 s20, s20, 8")
            A(f"v_add_u32 v{T0}, s20, v{T0}")
            A(f"ds_read_b128 v[{CX}:{CX+3}], v{T0} offset:{L_Q}")
            for k in range(4, 8):
                A(f"v_mov_b32 v{CX+k}, 0")
            A(f"v_mov_b32 v{CX+8}, {f32(-3.0e38)}")
            A(f"v_mov_b32 v{CX+9}, 0")
            A(f"v_mov_b32 v{CX+10}, 0")

        def decode(dst, hd, src=24):
            if self.H == 1:
                A(f"s_lshl_b32 s{dst}, s{src}, 15")
                A(f"s_add_u32 s{dst}, s{dst}, s42")
                if self.rot:
                    A(f"s_and_b32 s{dst}, s{dst}, 0x1fffff")
                A(f"s_add_u32 s{dst}, s{dst}, s43")
                return
            A(f"s_and_b32 s{hd}, s{src}, 1")
            A(f"s_lshr_b32 s{dst}, s{src}, 1")
            A(f"s_lshl_b32 s{dst}, s{dst}, 15")
            A(f"s_add_u32 s{dst}, s{dst}, s42")
            A(f"s_mul_i32 s21, s{hd}, {((32 * self.rot) & 63) << 15}")
            A(f"s_add_u32 s{dst}, s{dst}, s21")
            A(f"s_and_b32 s{dst}, s{dst}, 0x1fffff")
            A(f"s_lshl_b32 s21, s{hd}, 26")
            A(f"s_add_u32 s{dst}, s{dst}, s21")
            A(f"s_add_u32 s{dst}, s{dst}, s43")

        def switch(hd):
            if self.H == 1:
                return
            l = self.lab("nosw")
            A(f"s_cmp_eq_u32 s32, s{hd}")
            A(f"s_cbranch_scc1 {l}")
            A("s_call_b64 s[46:47], L_swap")
            L(l)

        if self.stamps:
            A("s_mov_b32 s78, 0")
            A("s_mov_b32 s79, 0")
        j0 = 8 - R
        assert CP < j0
        RLA, RLV, NDV, ZA = CX + 12, CX + 13, CX + 14, CX + 15
        END = 64 * self.H + 1
        A(f"v_mov_b32 v{RLA}, 0")
        A(f"v_mov_b32 v{ZA}, 0")
        A(f"v_mov_b32 v{NDV}, 1")
        if CP < 0:
            A(f"ds_max_u32 v{ZA}, v{NDV} offset:{L_NEED}")
        if self.H == 1:
            A("s_sub_u32 s42, s42, 0x8000")
            A("s_add_u32 s42, s42, s43")
        else:
            A("s_add_u32 s43, s43, s42")
            A("s_add_u32 s39, s39, s42")

        def rl_read():
            A(f"ds_read_b32 v{RLV}, v{RLA} offset:{L_RL}")

        def rl_get():
            got = self.lab("got")
            A("s_waitcnt lgkmcnt(0)")
            A(f"v_readfirstlane_b32 s24, v{RLV}")
            A("s_cmp_lg_u32 s24, 0")
            A(f"s_cbranch_scc1 {got}")
            A("s_call_b64 s[46:47], L_rlspin")
            L(got)

        def rl_next(dst, hd, ann=True):
            A(f"v_add_u32 v{NDV}, 1, v{NDV}")
            A(f"v_add_u32 v{RLA}, 4, v{RLA}")
            if ann:
                A(f"ds_max_u32 v{ZA}, v{NDV} offset:{L_NEED}")
            if self.H == 1:
                A(f"s_lshl_b32 s{dst}, s24, 15")
                A(f"s_add_u32 s{dst}, s{dst}, s42")
            else:
                A("s_sub_u32 s24, s24, 1")
                A(f"s_and_b32 s{hd}, s24, 1")
                A("s_cselect_b32 s21, s39, s43")
                A(f"s_lshr_b32 s{dst}, s24, 1")
                A(f"s_lshl_b32 s{dst}, s{dst}, 15")
                A(f"s_add_u32 s{dst}, s{dst}, s21")

        L("L_dyn")
        if self.stamps:
            A("s_add_u32 s78, s78, 1")
        switch(28)
        for j in range(8):
            if j == CP:
                A(f"ds_max_u32 v{ZA}, v{NDV} offset:{L_NEED}")
            if j == j0 - 1:
                rl_read()
            if j == j0:
                if self.stamps:
                    A("s_memrealtime s[34:35]")
                rl_get()
                if self.stamps:
                    A("s_mov_b32 m0, s78")
                    A("v_writelane_b32 v36, s34, m0")
                    A("s_add_u32 m0, s78, 32")
                    A("s_sub_u32 s35, s24, 1")
                    A("v_writelane_b32 v36, s35, m0")
                A(f"s_cmp_ge_u32 s24, {self.TH * self.H // 8 + 1}")
                A("s_cbranch_scc1 L_fin")
                rl_next(16, 28, CP < 0)
            A(f"s_waitcnt vmcnt({R-1})")
            jj = j + R
            ld(jj % 8, base + jj % 8, "s16")
            consume(base + j)
            if j == 3:
                softmax()
        A("s_branch L_dyn")
        L("L_rlspin")
        pl = self.poll_head()
        rl_read()
        A("s_waitcnt lgkmcnt(0)")
        A(f"v_cmp_eq_u32 vcc, 0, v{RLV}")
        self.poll_tail(pl, sleep=1)
        A(f"v_readfirstlane_b32 s24, v{RLV}")
        A("s_cmp_eq_u32 s24, 0")
        A(f"s_cselect_b32 s24, {END}, s24")
        A("s_setpc_b64 s[46:47]")
        L("L_fin")
        if self.stamps:
            A("s_memrealtime s[76:77]")
        if self.TH < 512:
            A(f"s_cmp_ge_u32 s24, {END}")
            A("s_cbranch_scc1 L_fin_last")
            rl_next(25, 29)
            for jj in range(8):
                ld(jj, alt + jj, "s25")
            eat(base, j0, 8)
            for (P, Q, hp, hq, me) in ((alt, base, 29, 28, "A"), (base, alt, 28, 29, "B")):
                L(f"L_eg{me}")
                if self.egw:
                    A(f"s_waitcnt vmcnt({8 - self.egw})")
                rl_read()
                rl_get()
                A(f"s_cmp_ge_u32 s24, {END}")
                A(f"s_cbranch_scc1 L_drain{me}")
                rl_next(25, hq)
                for jj in range(8):
                    ld(jj, Q + jj, "s25")
                switch(hp)
                eat(P, 0, 8)
                if me == "B":
                    A("s_branch L_egA")
            L("L_drainA")
            switch(29)
            eat(alt, 0, 0)
            A("s_branch L_done")
            L("L_drainB")
            switch(28)
            eat(base, 0, 0)
            A("s_branch L_done")
            L("L_fin_last")
        eat(base, j0, 0)
        L("L_done")
        self.stamp(2)
        if self.stamps:
            A("s_lshl_b32 s36, s2, 11")
            A("s_lshl_b32 s37, s3, 8")
            A("s_add_u32 s36, s36, s37")
            A(f"s_add_u32 s36, s36, {STAMP_OFF + 0x40000}")
            A(f"v_lshlrev_b32 v37, 2, v{LANE}")
            A("buffer_store_dword v36, v37, s[84:87], s36 offen")
        self.stamp(32, wave=True)
        self.stamp(33, "s[76:77]", wave=True)
        self.stamp(34, "s[78:79]", wave=True)
        if self.stamps:
            A("s_cmp_eq_u32 s3, 0")
            A("s_cbranch_scc0 L_noprof")
            for i in range(min(NS, 12)):
                self.stamp(16 + i, f"s[{48+2*i}:{49+2*i}]")
            self.stamp(16 + 14)
            L("L_noprof")
        if self.H == 1:
            for ctl, msk in (("row_ror:4", "0xf"), ("row_ror:8", "0xf"), ("row_bcast:15", "0xa"), ("row_bcast:31", "0xc")):
                A(f"v_add_f32_dpp v{LS}, v{LS}, v{LS} {ctl} row_mask:{msk} bank_mask:0xf")
                self.nop(2)
            A(f"ds_write_b128 v35, v[{D}:{D+3}] offset:{L_P}")
            A(f"v_mov_b32 v{MN}, v{LS}")
            A("s_mov_b32 exec_lo, 0")
            A("s_mov_b32 exec_hi, 0x80000000")
            A(f"ds_write_b64 v25, v[{M}:{M+1}] offset:{L_ML}")
            A("s_waitcnt lgkmcnt(0)")
            A("s_barrier")
            A("s_endpgm")
        else:
            LS2, M2, D2 = CX + 10, CX + 8, CX + 4
            for ctl, msk in (("row_ror:4", "0xf"), ("row_ror:8", "0xf"), ("row_bcast:15", "0xa"), ("row_bcast:31", "0xc")):
                A(f"v_add_f32_dpp v{LS}, v{LS}, v{LS} {ctl} row_mask:{msk} bank_mask:0xf")
                A(f"v_add_f32_dpp v{LS2}, v{LS2}, v{LS2} {ctl} row_mask:{msk} bank_mask:0xf")
                self.nop(1)
            A("s_lshl_b32 s20, s32, 13")
            A("s_xor_b32 s21, s20, 8192")
            A(f"v_add_u32 v{T0}, s20, v35")
            A(f"v_add_u32 v{T1}, s21, v35")
            A(f"ds_write_b128 v{T0}, v[{D}:{D+3}] offset:{L_P}")
            A(f"ds_write_b128 v{T1}, v[{D2}:{D2+3}] offset:{L_P}")
            A(f"v_mov_b32 v{MN}, v{LS}")
            A(f"v_mov_b32 v{M2+1}, v{LS2}")
            A("s_lshl_b32 s20, s32, 6")
            A("s_xor_b32 s21, s20, 64")
            A(f"v_add_u32 v{T0}, s20, v25")
            A(f"v_add_u32 v{T1}, s21, v25")
            A("s_mov_b32 exec_lo, 0")
            A("s_mov_b32 exec_hi, 0x80000000")
            A(f"ds_write_b64 v{T0}, v[{M}:{M+1}] offset:{L_ML}")
            A(f"ds_write_b64 v{T1}, v[{M2}:{M2+1}] offset:{L_ML}")
            A("s_waitcnt lgkmcnt(0)")
            A("s_barrier")
            A("s_endpgm")
            L("L_swap")
            self.nop(8)
            for a, b in zip(ACT, SAV):
                A(f"v_swap_b32 v{a}, v{b}")
            A("s_xor_b32 s32, s32, 1")
            A("s_setpc_b64 s[46:47]")

        L("L_rare")
        A(f"v_max_f32_dpp v{T0}, v{S}, v{S} row_ror:4 row_mask:0xf bank_mask:0xf")
        self.nop(2)
        A(f"v_max_f32_dpp v{T0}, v{T0}, v{T0} row_ror:8 row_mask:0xf bank_mask:0xf")
        self.nop(1)
        A(f"v_readlane_b32 s20, v{T0}, 0")
        A(f"v_readlane_b32 s21, v{T0}, 16")
        A(f"v_readlane_b32 s22, v{T0}, 32")
        A(f"v_readlane_b32 s23, v{T0}, 48")
        A(f"v_max_f32 v{T1}, s20, v{M}")
        A(f"v_max_f32 v{T1}, s21, v{T1}")
        A(f"v_max_f32 v{T1}, s22, v{T1}")
        A(f"v_max_f32 v{T1}, s23, v{T1}")
        A(f"v_sub_f32 v{T0}, v{M}, v{T1}")
        A(f"v_mul_f32 v{T0}, s19, v{T0}")
        A(f"v_exp_f32 v{T0}, v{T0}")
        A(f"v_mov_b32 v{M}, v{T1}")
        for k in range(4):
            A(f"v_mul_f32 v{D+k}, v{D+k}, v{T0}")
        A(f"v_mul_f32 v{LS}, v{LS}, v{T0}")
        A("s_setpc_b64 s[46:47]")

    def helper(self):
        A, L = self.A, self.L
        A("s_setprio 2")
        A("s_sub_u32 s3, s3, 8")
        A("s_load_dwordx2 s[24:25], s[0:1], 0")
        A("s_load_dwordx4 s[28:31], s[0:1], 24")
        A("s_load_dwordx4 s[32:35], s[0:1], 48")
        A("s_load_dwordx4 s[36:39], s[0:1], 64")
        A("s_load_dwordx4 s[48:51], s[0:1], 80")
        A("s_memrealtime s[66:67]")
        A("s_mov_b32 s88, 0x80000")
        A("v_mov_b32 v12, 0")
        A("v_mov_b32 v13, 0")
        A("v_mov_b32 v14, 0")
        A("v_mov_b32 v15, 0")
        A("v_lshlrev_b32 v14, 2, v2")
        A(f"ds_write_b32 v14, v12 offset:{L_Z}")
        A(f"ds_write_b32 v14, v12 offset:{L_Z+256}")
        HB, HI, G, TT = 3, 4, 5, 6
        A(f"v_lshrrev_b32 v{HB}, 5, v2")
        A(f"v_and_b32 v{HI}, 31, v2")
        A(f"v_lshrrev_b32 v{G}, 4, v2")
        A(f"v_and_b32 v{TT}, 15, v2")
        VAW, VAR, VDW, VTR = 7, 8, 9, 10
        A("s_lshl_b32 s52, s3, 9")
        A(f"v_lshlrev_b32 v{VAW}, 8, v{HB}")
        A(f"v_lshl_add_u32 v{VAW}, v{HI}, 3, v{VAW}")
        A(f"s_add_u32 s53, s52, {L_A}")
        A(f"v_add_u32 v{VAW}, s53, v{VAW}")
        A(f"v_and_b32 v{VAR}, 1, v2")
        A(f"v_lshlrev_b32 v{VAR}, 8, v{VAR}")
        A(f"v_lshl_add_u32 v{VAR}, v{G}, 4, v{VAR}")
        A(f"v_add_u32 v{VAR}, s53, v{VAR}")
        A(f"s_add_u32 s53, s52, {L_D}")
        A(f"v_lshlrev_b32 v{VDW}, 2, v2")
        A(f"v_add_u32 v{VDW}, s53, v{VDW}")
        A("s_waitcnt lgkmcnt(0)")
        self.srd(84, 98, 0x20000000)
        self.srd(76, 96, 256)
        A("s_or_b32 s54, s2, s3")
        A("s_cmp_eq_u32 s54, 0")
        A("s_cbranch_scc0 L_notagw")
        A("s_or_b32 s66, s66, 1")
        A("v_mov_b32 v12, s66")
        A("s_mov_b64 exec, 1")
        A("buffer_atomic_cmpswap v[12:13], off, s[76:79], 0 sc1")
        A("s_mov_b64 exec, -1")
        L("L_notagw")
        self.srd(20, 24, 2048)
        A(f"s_add_u32 s16, s98, {HH_OFF}")
        A("s_addc_u32 s17, s99, 0")
        A(f"s_mov_b32 s18, {43*128}")
        A("s_mov_b32 s19, 0x20000")
        self.srd(72, 50, 2048)
        for r in range(10, 24):
            A(f"v_mov_b32 v{r}, 0")
        for r in (54, 55, 56, 57, 59, 60, 61, 62):
            A(f"s_mov_b32 s{r}, 0")
        if self.H == 1:
            A("s_lshl_b32 s83, s40, 3")
            A("s_add_u32 s83, s83, s41")
            A("s_lshl_b32 s83, s83, 10")
            A(f"s_add_u32 s83, s83, {PART_OFF}")
            A("s_mov_b32 s82, s40")
            A("s_mov_b32 s81, s41")
            A("s_mov_b32 s67, s83")
        else:
            A(f"s_xor_b32 s82, s40, {self.px}")
            A("s_min_u32 s82, s82, s40")
            A("s_lshr_b32 s54, s40, 5")
            A("s_lshl_b32 s54, s54, 2")
            A("s_add_u32 s54, s54, s41")
            A("s_lshl_b32 s54, s54, 10")
            A(f"s_add_u32 s54, s54, {PART_OFF}")
            A("s_lshl_b32 s83, s82, 13")
            A("s_add_u32 s83, s83, s54")
            A(f"s_xor_b32 s67, s82, {self.px}")
            A("s_lshl_b32 s67, s67, 13")
            A("s_add_u32 s67, s67, s54")
            A("s_lshr_b32 s81, s40, 5")
            A("s_or_b32 s81, s81, s41")
        A("s_mov_b32 s45, s82")
        A("s_lshl_b32 s82, s82, 7")
        A(f"s_add_u32 s82, s82, {CNT_OFF}")
        if "dpro" in self.dbg:
            for r in (4, 6, 100, 42):
                A(f"s_mov_b32 s{r}, 0")
        self.stamp(0)
        A("s_mov_b32 s44, 0")
        A(f"s_cmp_lt_u32 s89, {16 if self.late else R_Q0}")
        A("s_cbranch_scc1 L_pro_mod")
        A(f"s_sub_u32 s54, s89, {R_Q0}")
        A(f"s_cmp_lt_u32 s54, {R_WO0 - R_Q0}")
        A("s_cbranch_scc1 L_pro_q")
        if self.cpf:
            A(f"s_cmp_lt_u32 s2, {self.cpf}")
            A("s_cbranch_scc0 L_nocpf")
            A("s_getpc_b64 s[8:9]")
            L("L_pc")
            A(f"s_sub_u32 s8, s8, L_pc-{NAME}_kernel")
            A("s_subb_u32 s9, s9, 0")
            A(f"s_mov_b32 s10, L_codeend-{NAME}_kernel")
            A("s_mov_b32 s11, 0x20000")
            A("v_lshlrev_b32 v11, 4, v2")
            A("s_lshl_b32 s54, s3, 10")
            for i in range(9):
                A(f"buffer_load_dwordx4 v[{40+4*i}:{43+4*i}], v11, s[8:11], s54 offen")
                A("s_add_u32 s54, s54, 4096")
            L("L_nocpf")
        A("s_barrier")
        A("s_branch L_common1")

        BF, AF, DT = 40, 24, 12
        DT = 104
        TMP = 120

        def wide_voff(rowbytes, colbyte_s):
            A("s_lshl_b32 s54, s3, 7")
            A("v_lshrrev_b32 v11, 3, v2")
            A("v_add_u32 v11, s54, v11")
            A(f"s_mov_b32 s55, {rowbytes}")
            A("v_mul_lo_u32 v11, v11, s55")
            A(f"v_and_b32 v{TMP}, 7, v2")
            A(f"v_lshl_add_u32 v11, v{TMP}, 4, v11")
            A(f"v_add_u32 v11, s{colbyte_s}, v11")

        def wide_tr_base():
            A(f"v_lshrrev_b32 v{VTR}, 2, v{TT}")
            A(f"v_lshl_add_u32 v{VTR}, v{G}, 3, v{VTR}")
            A(f"v_lshlrev_b32 v{VTR}, 7, v{VTR}")
            A(f"v_and_b32 v{TMP}, 3, v{TT}")
            A(f"v_lshl_add_u32 v{VTR}, v{TMP}, 3, v{VTR}")
            A("s_lshl_b32 s54, s3, 14")
            A(f"s_add_u32 s54, s54, {L_W}")
            A(f"v_add_u32 v{VTR}, s54, v{VTR}")

        L("L_pro_mod")
        self.srd(12, 38, 2048)
        A(f"v_lshlrev_b32 v{TMP}, 10, v{HB}")
        A(f"v_lshl_add_u32 v{TMP}, v{HI}, 3, v{TMP}")
        A("s_lshl_b32 s54, s3, 8")
        A(f"buffer_load_dwordx2 v[{TMP+2}:{TMP+3}], v{TMP}, s[12:15], s54 offen")
        self.srd(8, 48, 512 * 6144)
        A("s_lshl_b32 s56, s89, 7")
        wide_voff(6144, 56)
        A("s_lshl_b32 s57, s3, 14")
        self.dma_weights(8, 16, 11, 8 * 6144, 57)
        if self.late or self.hold:
            if self.late and self.hold:
                A("s_branch L_mod_nob1")
            elif self.late:
                A("s_cmp_eq_u32 s44, 0")
                A("s_cbranch_scc0 L_mod_nob1")
            else:
                A("s_cmp_lt_u32 s89, 16")
                A("s_cbranch_scc1 L_mod_nob1")
        A("s_barrier")
        L("L_mod_nob1")
        wide_tr_base()
        A("s_waitcnt vmcnt(16)")
        X = TMP + 4
        self.unpack2(TMP + 2, X, X + 1)
        self.unpack2(TMP + 3, X + 2, X + 3)
        A(f"s_mov_b32 s58, {f32(-LOG2E)}")
        for k in range(4):
            A(f"v_mul_f32 v{X+4+k}, s58, v{X+k}")
        for k in range(4):
            A(f"v_exp_f32 v{X+4+k}, v{X+4+k}")
        self.nop(1)
        for k in range(4):
            A(f"v_add_f32 v{X+4+k}, 1.0, v{X+4+k}")
        for k in range(4):
            A(f"v_rcp_f32 v{X+4+k}, v{X+4+k}")
        self.nop(1)
        for k in range(4):
            A(f"v_mul_f32 v{X+k}, v{X+k}, v{X+4+k}")
        A(f"v_cvt_pk_bf16_f32 v{X+8}, v{X}, v{X+1}")
        A(f"v_cvt_pk_bf16_f32 v{X+9}, v{X+2}, v{X+3}")
        A(f"ds_write_b64 v{VAW}, v[{X+8}:{X+9}]")
        A("s_lshr_b32 s60, s89, 3")
        A("s_lshl_b32 s60, s60, 12")
        A("s_and_b32 s61, s89, 7")
        A("s_lshl_b32 s61, s61, 8")
        A("s_add_u32 s60, s60, s61")
        A(f"s_add_u32 s60, s60, {MOD_OFF}")
        A("s_mov_b32 s61, 2048")
        A("s_mov_b32 s62, 0")
        if self.late:
            A("s_cmp_eq_u32 s44, 0")
            A("s_cbranch_scc1 L_common1")
            A("s_waitcnt vmcnt(0)")
            A("s_branch L_gemv0")
        else:
            A("s_branch L_common1")

        L("L_pro_q")
        A(f"v_lshlrev_b32 v{TMP}, 10, v{HB}")
        A(f"v_lshl_add_u32 v{TMP+1}, v{HI}, 5, v{TMP}")
        A(f"buffer_load_dwordx4 v[{TMP+4}:{TMP+7}], v{TMP+1}, s[20:23], 0 offen")
        A(f"buffer_load_dwordx4 v[{TMP+8}:{TMP+11}], v{TMP+1}, s[20:23], 0 offen offset:16")
        A(f"v_lshl_add_u32 v{TMP}, v{HI}, 3, v{TMP}")
        A("s_lshl_b32 s54, s3, 8")
        A(f"buffer_load_dwordx2 v[{TMP+2}:{TMP+3}], v{TMP}, s[20:23], s54 offen")
        self.srd(8, 28, 512 * 8192)
        A(f"s_sub_u32 s59, s89, {R_Q0}")
        A("s_lshl_b32 s56, s59, 7")
        wide_voff(8192, 56)
        A("s_lshl_b32 s57, s3, 14")
        self.dma_weights(8, 16, 11, 8 * 8192, 57)
        A("s_barrier")
        wide_tr_base()
        A("s_waitcnt vmcnt(16)")
        S1, S2, U0, U1 = TMP + 12, TMP + 13, TMP + 14, TMP + 15
        A(f"v_mov_b32 v{S1}, 0")
        A(f"v_mov_b32 v{S2}, 0")
        for k in range(8):
            self.unpack2(TMP + 4 + k, U0, U1)
            A(f"v_add_f32 v{S1}, v{S1}, v{U0}")
            A(f"v_fmac_f32 v{S2}, v{U0}, v{U0}")
            A(f"v_add_f32 v{S1}, v{S1}, v{U1}")
            A(f"v_fmac_f32 v{S2}, v{U1}, v{U1}")
        self.allred32([S1, S2], [U0, U1])
        NX = TMP + 16
        self.unpack2(TMP + 2, NX, NX + 1)
        self.unpack2(TMP + 3, NX + 2, NX + 3)
        self.ln_norm(S1, S2, NX, U0, U1)
        A("s_lshl_b32 s60, s59, 8")
        A(f"s_add_u32 s60, s60, {Q_OFF}")
        A("s_mov_b32 s61, 16384")
        A("s_mov_b32 s62, 1")
        L("L_common1")
        A("buffer_load_dword v165, off, s[76:79], 0 sc1")
        CL = TMP + 24
        for k in range(4):
            A(f"v_mov_b32 v{CL+k}, -1")
        A("s_cmp_eq_u32 s3, 3")
        A("s_cbranch_scc0 L_noclear")
        A(f"v_lshlrev_b32 v{CL+4}, 4, v2")
        A("s_mov_b32 exec_lo, -1")
        A("s_mov_b32 exec_hi, 1")
        A(f"buffer_store_dwordx4 v[{CL}:{CL+3}], v{CL+4}, s[84:87], s83 offen sc1")
        if self.H == 2:
            A(f"buffer_store_dwordx4 v[{CL}:{CL+3}], v{CL+4}, s[84:87], s67 offen sc1")
        A("s_mov_b64 exec, -1")
        A(f"s_sub_u32 s64, s89, {R_WO0}")
        A("s_cmp_lt_u32 s64, 64")
        A("s_cbranch_scc0 L_noclr_wo")
        self.slice_of(64, R_WO0, 64)
        A("s_lshr_b32 s65, s64, 3")
        A("s_lshl_b32 s65, s65, 12")
        A("s_and_b32 s66, s64, 7")
        A("s_lshl_b32 s66, s66, 8")
        A("s_add_u32 s65, s65, s66")
        A(f"s_add_u32 s65, s65, {ATT_OFF}")
        A(f"v_lshlrev_b32 v{CL+4}, 11, v{G}")
        A(f"v_lshl_add_u32 v{CL+4}, v{TT}, 4, v{CL+4}")
        A("s_mov_b32 exec_hi, 0")
        A(f"buffer_store_dwordx4 v[{CL}:{CL+3}], v{CL+4}, s[84:87], s65 offen sc1")
        A("s_mov_b64 exec, -1")
        L("L_noclr_wo")
        A(f"s_sub_u32 s64, s89, {R_UP0}")
        A("s_cmp_lt_u32 s64, 43")
        A("s_cbranch_scc0 L_noclr_up")
        self.slice_of(64, R_UP0, 43)
        A("s_lshl_b32 s65, s64, 7")
        A(f"s_add_u32 s65, s65, {HH_OFF}")
        A(f"v_lshlrev_b32 v{CL+4}, 4, v2")
        A("s_mov_b64 exec, 0xff")
        A(f"buffer_store_dwordx4 v[{CL}:{CL+3}], v{CL+4}, s[84:87], s65 offen sc1")
        A("s_mov_b64 exec, -1")
        L("L_noclr_up")
        A("s_cmp_eq_u32 s81, 0")
        A("s_cbranch_scc0 L_noclr_cnt")
        A(f"v_mov_b32 v{CL+4}, {self.NS*4*self.H}")
        A(f"s_mul_i32 s65, s45, {self.cstr}")
        A(f"s_add_u32 s65, s65, {CTR_OFF}")
        A("s_mov_b64 exec, 1")
        A(f"buffer_store_dword v{CL+4}, off, s[84:87], s65 sc1")
        A("s_mov_b64 exec, -1")
        L("L_noclr_cnt")
        L("L_noclear")
        A("s_waitcnt vmcnt(0)")
        if self.hold:
            A("s_cmp_lt_u32 s89, 16")
            A("s_cbranch_scc0 L_nohold3")
            A("s_barrier")
            L("L_nohold3")
        A("v_cmp_eq_u32 vcc, 0, v165")
        A("s_cbranch_vccz L_gottag")
        pl = self.poll_head()
        A("buffer_load_dword v165, off, s[76:79], 0 sc1")
        A("s_waitcnt vmcnt(0)")
        A("v_cmp_eq_u32 vcc, 0, v165")
        self.poll_tail(pl, sleep=2)
        L("L_gottag")
        A("v_readfirstlane_b32 s80, v165")
        self.dmark(3)
        self.stamp(10)
        A("s_cmp_eq_u32 s3, 3")
        A("s_cbranch_scc0 L_nocount")
        A("s_and_b32 s63, s2, 3")
        A("s_lshl_b32 s63, s63, 2")
        A("s_add_u32 s63, s63, 128")
        A(f"v_mov_b32 v{CL+5}, 1")
        A("s_mov_b64 exec, 1")
        A(f"buffer_atomic_add v{CL+5}, off, s[76:79], s63 sc1")
        A("s_cmp_eq_u32 s81, 0")
        A("s_cbranch_scc0 L_nocnttag")
        A(f"v_mov_b32 v{CL+4}, s80")
        A(f"buffer_store_dword v{CL+4}, off, s[84:87], s82 offset:64 sc1")
        L("L_nocnttag")
        A("s_mov_b64 exec, -1")
        L("L_nocount")
        A(f"s_cmp_lt_u32 s89, {R_WO0}")
        A("s_cbranch_scc0 L_qgather")
        if self.late:
            A("s_sub_u32 s54, s89, 16")
            A("s_cmp_lt_u32 s54, 32")
            A("s_cbranch_scc1 L_qgather")
        L("L_gemv0")
        self.tr_reads(VTR, BF, 4, [0, 32, 64, 96], 128)
        A("s_cmp_eq_u32 s62, 0")
        A("s_cbranch_scc1 L_pro_gemv")
        GA = TMP + 4
        A(f"v_lshlrev_b32 v{TMP}, 11, v{HB}")
        A(f"v_lshl_add_u32 v{TMP}, v{HI}, 4, v{TMP}")
        A("s_lshl_b32 s54, s3, 9")
        A(f"s_add_u32 s54, s54, {MOD_OFF}")
        A(f"s_add_u32 s55, s54, 4096")
        pl = self.poll_head()
        A(f"buffer_load_dwordx4 v[{GA}:{GA+3}], v{TMP}, s[84:87], s55 offen sc1")
        A(f"buffer_load_dwordx4 v[{GA+4}:{GA+7}], v{TMP}, s[84:87], s54 offen sc1")
        A("s_waitcnt vmcnt(0)")
        self.check_tags([GA + 1, GA + 3, GA + 5, GA + 7], TMP + 1)
        self.poll_tail(pl, sleep=self.ps1)
        self.stamp(3)
        self.dmark(2)
        T4 = TMP + 20
        self.unpack2(GA, T4, T4 + 1)
        self.unpack2(GA + 2, T4 + 2, T4 + 3)
        for k in range(4):
            A(f"v_add_f32 v{T4+k}, 1.0, v{T4+k}")
        self.rnd2(T4, T4 + 1, TMP + 1)
        self.rnd2(T4 + 2, T4 + 3, TMP + 2)
        self.modulate(NX, T4, GA + 4, GA + 6, TMP + 1, TMP + 24, VAW)
        L("L_pro_gemv")
        self.a_frags_from_stage(VAR, AF)
        self.mfmas(AF, BF, DT, 4, 4, lgkm=True)
        self.d_to_lds(DT, 4, TMP, TMP + 1, VDW)
        A(f"v_mov_b32 v{TMP+2}, {L_CNT}")
        A(f"v_mov_b32 v{TMP+3}, 1")
        A("s_mov_b64 exec, 1")
        A(f"ds_add_rtn_u32 v{TMP+4}, v{TMP+2}, v{TMP+3}")
        A("s_mov_b64 exec, -1")
        A("s_waitcnt lgkmcnt(0)")
        A(f"v_readfirstlane_b32 s54, v{TMP+4}")
        A("s_cmp_eq_u32 s54, 3")
        A("s_cbranch_scc0 L_qgather")
        self.d_sum(G, TT, TMP)
        A(f"v_cvt_pk_bf16_f32 v{TMP+8}, v{TMP+4}, v{TMP+5}")
        A(f"v_mov_b32 v{TMP+9}, s80")
        A(f"v_cvt_pk_bf16_f32 v{TMP+10}, v{TMP+6}, v{TMP+7}")
        A(f"v_mov_b32 v{TMP+11}, s80")
        A(f"v_mul_lo_u32 v{TMP}, v{G}, s61")
        A(f"v_lshl_add_u32 v{TMP}, v{TT}, 4, v{TMP}")
        A("s_mov_b32 exec_hi, 0")
        A(f"buffer_store_dwordx4 v[{TMP+8}:{TMP+11}], v{TMP}, s[84:87], s60 offen sc1")
        A("s_mov_b64 exec, -1")
        self.stamp(4)
        self.dmark(1)
        L("L_qgather")
        if self.late:
            A("s_cmp_eq_u32 s44, 0")
            A("s_cbranch_scc0 L_b3")
        A("s_cmp_eq_u32 s3, 3")
        A("s_cbranch_scc0 L_qg2")
        pl = self.poll_head()
        A(f"buffer_load_dword v{TMP}, off, s[84:87], s82 offset:64 sc1")
        A("s_waitcnt vmcnt(0)")
        A(f"v_cmp_ne_u32 vcc, s80, v{TMP}")
        self.poll_tail(pl, sleep=8)
        if self.flagq:
            A(f"v_mov_b32 v{TMP}, 0")
            A(f"v_mov_b32 v{TMP+1}, 1")
            A(f"ds_write_b32 v{TMP}, v{TMP+1} offset:{L_QF+4}")
        L("L_qg2")
        A("s_cmp_eq_u32 s3, 0")
        A("s_cbranch_scc0 L_b2")
        A("s_lshl_b32 s54, s45, 9")
        A(f"s_add_u32 s54, s54, {Q_OFF}")
        A(f"s_xor_b32 s55, s45, {self.px}")
        A("s_lshl_b32 s55, s55, 9")
        A(f"s_add_u32 s55, s55, {Q_OFF}")
        A(f"v_lshlrev_b32 v{TMP}, 3, v2")
        pl = self.poll_head()
        A(f"buffer_load_dwordx2 v[{TMP+2}:{TMP+3}], v{TMP}, s[84:87], s54 offen sc1")
        if self.H == 2:
            A(f"buffer_load_dwordx2 v[{TMP+4}:{TMP+5}], v{TMP}, s[84:87], s55 offen sc1")
        A("s_waitcnt vmcnt(0)")
        self.check_tags([TMP + 3, TMP + 5][:self.H], TMP + 6)
        self.poll_tail(pl, sleep=self.ps2)
        A(f"v_lshlrev_b32 v{TMP}, 2, v2")
        A(f"ds_write_b32 v{TMP}, v{TMP+2} offset:{L_Q}")
        if self.H == 2:
            A(f"ds_write_b32 v{TMP}, v{TMP+4} offset:{L_Q+256}")
        if self.flagq:
            A(f"v_mov_b32 v{TMP}, 0")
            A(f"v_mov_b32 v{TMP+1}, 1")
            A(f"ds_write_b32 v{TMP}, v{TMP+1} offset:{L_QF}")
        A("s_waitcnt lgkmcnt(0)")
        self.stamp(5)
        self.dmark(0)
        L("L_b2")
        if not self.flagq:
            A("s_barrier")
        else:
            A(f"v_mov_b32 v{TMP}, 0")
            pl = self.poll_head()
            A(f"ds_read_b32 v{TMP+1}, v{TMP} offset:{L_PF if self.xl else L_QF}")
            A("s_waitcnt lgkmcnt(0)")
            A(f"v_cmp_gt_u32 vcc, {8 if self.xl else 1}, v{TMP+1}")
            self.poll_tail(pl, sleep=4)
        if self.late:
            A("s_sub_u32 s54, s89, 16")
            A("s_cmp_lt_u32 s54, 32")
            A("s_cselect_b32 s44, 1, 0")
            A("s_cbranch_scc1 L_pro_mod")
        A(f"s_cmp_lt_u32 s89, {R_WO0}")
        A("s_cbranch_scc1 L_b3")
        A(f"s_cmp_lt_u32 s89, {R_WO1}")
        A("s_cbranch_scc1 L_prep_wo")
        A(f"s_cmp_ge_u32 s89, {R_DN0}")
        A("s_cbranch_scc1 L_prep_dn")
        A(f"s_cmp_lt_u32 s89, {R_UP0}")
        A("s_cbranch_scc1 L_b3")
        A(f"s_cmp_lt_u32 s89, {R_UP1}")
        A("s_cbranch_scc1 L_prep_up")
        A("s_branch L_b3")

        def narrow_voff(rowbytes, rows_per_wave, colbyte_s):
            A(f"s_mul_i32 s54, s3, {rows_per_wave}")
            A("v_lshrrev_b32 v11, 2, v2")
            A("v_add_u32 v11, s54, v11")
            A(f"s_mov_b32 s55, {rowbytes}")
            A("v_mul_lo_u32 v11, v11, s55")
            A(f"v_and_b32 v{VTR}, 3, v2")
            A(f"v_lshl_add_u32 v11, v{VTR}, 4, v11")
            A(f"v_add_u32 v11, s{colbyte_s}, v11")

        def narrow_tr_base(rows_per_wave):
            A(f"v_lshrrev_b32 v{VTR}, 2, v{TT}")
            A(f"v_lshl_add_u32 v{VTR}, v{G}, 3, v{VTR}")
            A(f"v_lshlrev_b32 v{VTR}, 6, v{VTR}")
            A(f"v_and_b32 v12, 3, v{TT}")
            A(f"v_lshl_add_u32 v{VTR}, v12, 3, v{VTR}")
            A(f"s_mul_i32 s54, s3, {rows_per_wave*64}")
            A(f"s_add_u32 s54, s54, {L_W}")
            A(f"v_add_u32 v{VTR}, s54, v{VTR}")

        def wait_cleared(t):
            pl = self.poll_head()
            A(f"buffer_load_dwordx4 v[{t}:{t+3}], off, s[76:79], 0 offset:128 sc1")
            A("s_waitcnt vmcnt(0)")
            A(f"v_add_u32 v{t}, v{t}, v{t+1}")
            A(f"v_add3_u32 v{t}, v{t}, v{t+2}, v{t+3}")
            A(f"v_cmp_gt_u32 vcc, 256, v{t}")
            self.poll_tail(pl, sleep=16)

        self.intail = True
        L("L_prep_wo")
        self.slice_of(59, R_WO0, 64)
        self.srd(8, 30, 4096 * 1024)
        A("s_lshr_b32 s56, s59, 3")
        A("s_lshl_b32 s56, s56, 19")
        A("s_and_b32 s57, s59, 7")
        A("s_lshl_b32 s57, s57, 7")
        A("s_add_u32 s56, s56, s57")
        wide_voff(1024, 56)
        A("s_lshl_b32 s57, s3, 14")
        self.dma_weights(8, 16, 11, 8 * 1024, 57, skip='nowo')
        wide_tr_base()
        wait_cleared(TMP)
        self.tr_reads(VTR, BF, 4, [0, 32, 64, 96], 128)
        A(f"v_lshlrev_b32 v11, 18, v{HB}")
        A(f"v_lshl_add_u32 v12, v{HI}, 4, v11")
        A(f"v_and_b32 v{TMP}, {4*self.H-1}, v2")
        A(f"v_lshl_add_u32 v11, v{TMP}, 10, v11")
        A("s_lshr_b32 s56, s59, 3")
        A("s_lshl_b32 s60, s56, 12")
        A("s_lshl_b32 s56, s56, 2")
        A("s_add_u32 s56, s56, s3")
        A("s_lshl_b32 s56, s56, 13")
        A(f"s_add_u32 s56, s56, {PART_OFF}")
        A("s_add_u32 s55, s56, 4096")
        A("s_and_b32 s57, s59, 7")
        A("s_lshl_b32 s57, s57, 8")
        A("s_add_u32 s60, s60, s57")
        A(f"s_add_u32 s60, s60, {ATT_OFF}")
        A("s_waitcnt lgkmcnt(0)")
        A("s_branch L_b3")

        XV, GAV, T4U, SBV = TMP + 28, TMP + 32, TMP + 36, TMP + 40
        L("L_prep_up")
        self.slice_of(59, R_UP0, 43)
        self.srd(8, 32, 512 * 2752)
        self.srd(12, 34, 512 * 2752)
        A("s_lshl_b32 s56, s59, 6")
        narrow_voff(2752, 128, 56)
        A("s_lshl_b32 s57, s3, 13")
        self.dma_weights(8, 8, 11, 16 * 2752, 57, skip='noup')
        A("s_add_u32 s57, s57, 32768")
        self.dma_weights(12, 8, 11, 16 * 2752, 57, skip='noup')
        narrow_tr_base(128)
        A(f"v_lshlrev_b32 v{TMP}, 10, v{HB}")
        A(f"v_lshl_add_u32 v{TMP}, v{HI}, 3, v{TMP}")
        A("s_lshl_b32 s54, s3, 8")
        A(f"buffer_load_dwordx2 v[{TMP+2}:{TMP+3}], v{TMP}, s[20:23], s54 offen")
        A(f"v_lshlrev_b32 v{TMP}, 11, v{HB}")
        A(f"v_lshl_add_u32 v{TMP}, v{HI}, 4, v{TMP}")
        A("s_lshl_b32 s54, s3, 9")
        A(f"s_add_u32 s54, s54, {MOD_OFF + 2*4096}")
        A(f"s_add_u32 s55, s54, 4096")
        A(f"s_add_u32 s56, s54, 8192")
        GA = TMP + 4
        pl = self.poll_head()
        A(f"buffer_load_dwordx4 v[{GA}:{GA+3}], v{TMP}, s[84:87], s54 offen sc1")
        A(f"buffer_load_dwordx4 v[{GA+4}:{GA+7}], v{TMP}, s[84:87], s55 offen sc1")
        A(f"buffer_load_dwordx4 v[{GA+8}:{GA+11}], v{TMP}, s[84:87], s56 offen sc1")
        A("s_waitcnt vmcnt(0)")
        self.check_tags([GA + 1, GA + 3, GA + 5, GA + 7, GA + 9, GA + 11], TMP + 16)
        self.poll_tail(pl)
        self.unpack2(TMP + 2, XV, XV + 1)
        self.unpack2(TMP + 3, XV + 2, XV + 3)
        self.unpack2(GA, GAV, GAV + 1)
        self.unpack2(GA + 2, GAV + 2, GAV + 3)
        A(f"v_mov_b32 v{SBV}, v{GA+4}")
        A(f"v_mov_b32 v{SBV+1}, v{GA+6}")
        self.unpack2(GA + 8, T4U, T4U + 1)
        self.unpack2(GA + 10, T4U + 2, T4U + 3)
        for k in range(4):
            A(f"v_add_f32 v{T4U+k}, 1.0, v{T4U+k}")
        self.rnd2(T4U, T4U + 1, TMP + 1)
        self.rnd2(T4U + 2, T4U + 3, TMP + 1)
        wait_cleared(TMP)
        self.tr_reads(VTR, BF, 4, [0, 32, 32768, 32768 + 32], 64)
        A(f"v_lshlrev_b32 v12, 11, v{HB}")
        A(f"v_lshl_add_u32 v12, v{HI}, 4, v12")
        A("s_lshl_b32 s56, s3, 9")
        A(f"s_add_u32 s56, s56, {ATT_OFF}")
        A("s_lshl_b32 s60, s59, 7")
        A(f"s_add_u32 s60, s60, {HH_OFF}")
        A("s_waitcnt lgkmcnt(0)")
        A("s_branch L_b3")

        DBF, DAF, DDT = 32, 120, 24
        L("L_prep_dn")
        self.slice_of(59, R_DN0, 16)
        self.srd(8, 36, 1376 * 1024)
        A("s_lshl_b32 s56, s59, 6")
        narrow_voff(1024, 352, 56)
        A(f"s_mul_i32 s57, s3, {352*64}")
        self.dma_weights(8, 22, 11, 16 * 1024, 57, skip='nodn')
        narrow_tr_base(352)
        A("v_lshrrev_b32 v13, 3, v2")
        A("v_and_b32 v13, 1, v13")
        A("v_and_b32 v14, 7, v2")
        A("v_lshlrev_b32 v15, 10, v13")
        A("v_lshl_add_u32 v15, v14, 3, v15")
        A("buffer_load_dwordx2 v[16:17], v15, s[20:23], s56 offen")
        A("v_lshlrev_b32 v15, 11, v13")
        A("v_lshl_add_u32 v15, v14, 4, v15")
        A("s_lshl_b32 s54, s59, 7")
        A(f"s_add_u32 s55, s54, {MOD_OFF + 5*4096}")
        A(f"s_add_u32 s54, s54, {MOD_OFF + 2*4096}")
        pl = self.poll_head()
        A(f"buffer_load_dwordx4 v[{DAF}:{DAF+3}], v15, s[84:87], s54 offen sc1")
        A(f"buffer_load_dwordx4 v[{DAF+4}:{DAF+7}], v15, s[84:87], s55 offen sc1")
        A("s_waitcnt vmcnt(0)")
        self.check_tags([DAF + 1, DAF + 3, DAF + 5, DAF + 7], DAF + 8)
        self.poll_tail(pl)
        A(f"v_mov_b32 v18, v{DAF}")
        A(f"v_mov_b32 v19, v{DAF+2}")
        A(f"v_mov_b32 v20, v{DAF+4}")
        A(f"v_mov_b32 v21, v{DAF+6}")
        wait_cleared(DAF)
        self.tr_reads(VTR, DBF, 11, [0, 32], 64)
        A("s_lshl_b32 s56, s59, 7")
        A(f"s_add_u32 s56, s56, {ATT_OFF}")
        A("v_and_b32 v12, 1, v2")
        A("v_lshlrev_b32 v12, 6, v12")
        A(f"v_lshl_add_u32 v12, v{G}, 4, v12")
        A(f"s_mul_i32 s57, s3, {352*64}")
        A(f"s_add_u32 s57, s57, {L_W}")
        A("v_add_u32 v12, s57, v12")
        A("v_lshlrev_b32 v7, 4, v2")
        A("v_add_u32 v8, s57, v7")
        A(f"s_mul_i32 s57, s3, {11*128}")
        A("s_waitcnt lgkmcnt(0)")
        L("L_b3")
        A("s_cmp_eq_u32 s3, 2")
        A("s_cbranch_scc0 L_b3x")
        A("s_setprio 1")
        A(f"s_mul_i32 s65, s45, {self.cstr}")
        A(f"s_add_u32 s65, s65, {CTR_OFF}")
        A("s_add_u32 s26, s98, s65")
        A("s_addc_u32 s27, s99, 0")
        A("v_mov_b32 v22, 0")
        pl = self.poll_head()
        A(f"ds_read_b32 v23, v22 offset:{L_QF+4}")
        A("s_waitcnt lgkmcnt(0)")
        A("v_cmp_eq_u32 vcc, 0, v23")
        self.poll_tail(pl, sleep=8)
        A("s_mov_b32 s64, 0")
        L("L_disp")
        A(f"ds_read_b32 v23, v22 offset:{L_NEED}")
        A("s_waitcnt lgkmcnt(0)")
        A("v_readfirstlane_b32 s65, v23")
        A("s_cmp_lt_u32 s64, s65")
        A("s_cbranch_scc1 L_disp_go")
        A("s_cmp_eq_u32 s88, 0")
        A("s_cbranch_scc1 L_disp_end")
        A("s_sub_u32 s88, s88, 1")
        A("s_sleep 1")
        A("s_branch L_disp")
        L("L_disp_go")
        A("s_mov_b32 s66, 1")
        A("s_atomic_add s66, s[26:27], 0 glc")
        A("s_lshl_b32 s65, s64, 2")
        A("v_mov_b32 v24, s65")
        A("s_waitcnt lgkmcnt(0)")
        A(f"s_cmp_ge_u32 s66, {64 * self.H}")
        A("s_cbranch_scc1 L_disp_end")
        A("s_add_u32 s66, s66, 1")
        A("v_mov_b32 v23, s66")
        A(f"ds_write_b32 v24, v23 offset:{L_RL}")
        A("s_add_u32 s64, s64, 1")
        A("s_cmp_lt_u32 s64, 63")
        A("s_cbranch_scc1 L_disp")
        L("L_disp_end")
        A("v_lshlrev_b32 v24, 2, v2")
        A(f"v_mov_b32 v23, {64 * self.H + 1}")
        A("v_cmp_le_u32 vcc, s64, v2")
        A("s_mov_b64 exec, vcc")
        A(f"ds_write_b32 v24, v23 offset:{L_RL}")
        A("s_mov_b64 exec, -1")
        A("s_setprio 2")
        L("L_b3x")
        if self.dry:
            A("s_mov_b32 s69, 1")
            A("s_mov_b32 s86, 0")
            A("s_mov_b32 s18, 0")
            A("s_mov_b32 s74, 0")
            A("s_branch L_after_b3")
            L("L_exit")
            A("s_cmp_eq_u32 s69, 0")
            A("s_cbranch_scc1 L_end")
            A("s_mov_b64 exec, -1")
            A("s_mov_b32 s69, 0")
            A("s_mov_b32 s86, 0x20000000")
            A(f"s_mov_b32 s18, {43*128}")
            A("s_mov_b32 s74, 2048")
            A("s_waitcnt vmcnt(0) lgkmcnt(0)")
        A("s_barrier")
        L("L_after_b3")
        self.demit()
        EX = "L_exit" if self.dry else "L_end"
        self.stamp(6)
        A(f"s_cmp_lt_u32 s3, {self.H}")
        A("s_cbranch_scc0 L_tail")
        C = 120
        A(f"v_and_b32 v{C}, 7, v2")
        A(f"v_lshlrev_b32 v{C}, 3, v{C}")
        A("s_lshl_b32 s63, s3, 6")
        A(f"v_add_u32 v{C}, s63, v{C}")
        A(f"ds_read_b64 v[{C+2}:{C+3}], v{C} offset:{L_ML}")
        A(f"v_lshlrev_b32 v{C+1}, 3, v2")
        A("s_lshl_b32 s63, s3, 13")
        A(f"v_add_u32 v{C+7}, s63, v{C+1}")
        for w in range(8):
            A(f"ds_read_b64 v[{C+8+2*w}:{C+9+2*w}], v{C+7} offset:{L_P + w*1024}")
        A("s_waitcnt lgkmcnt(8)")
        A(f"v_max_f32_dpp v{C+4}, v{C+2}, v{C+2} row_ror:1 row_mask:0xf bank_mask:0xf")
        self.nop(2)
        A(f"v_max_f32_dpp v{C+4}, v{C+4}, v{C+4} row_ror:2 row_mask:0xf bank_mask:0xf")
        self.nop(2)
        A(f"v_max_f32_dpp v{C+4}, v{C+4}, v{C+4} row_ror:4 row_mask:0xf bank_mask:0xf")
        A(f"s_mov_b32 s58, {f32(LOG2E)}")
        A(f"v_sub_f32 v{C+6}, v{C+2}, v{C+4}")
        A(f"v_mul_f32 v{C+6}, s58, v{C+6}")
        A(f"v_exp_f32 v{C+6}, v{C+6}")
        self.nop(1)
        A(f"v_mul_f32 v{C+5}, v{C+6}, v{C+3}")
        self.nop(2)
        A(f"v_add_f32_dpp v{C+5}, v{C+5}, v{C+5} row_ror:1 row_mask:0xf bank_mask:0xf")
        self.nop(2)
        A(f"v_add_f32_dpp v{C+5}, v{C+5}, v{C+5} row_ror:2 row_mask:0xf bank_mask:0xf")
        self.nop(2)
        A(f"v_add_f32_dpp v{C+5}, v{C+5}, v{C+5} row_ror:4 row_mask:0xf bank_mask:0xf")
        A("s_waitcnt lgkmcnt(0)")
        A(f"v_mul_f32_dpp v{C+24}, v{C+6}, v{C+8} row_newbcast:0 row_mask:0xf bank_mask:0xf")
        A(f"v_mul_f32_dpp v{C+25}, v{C+6}, v{C+9} row_newbcast:0 row_mask:0xf bank_mask:0xf")
        for w in range(1, 8):
            A(f"v_fmac_f32_dpp v{C+24}, v{C+6}, v{C+8+2*w} row_newbcast:{w} row_mask:0xf bank_mask:0xf")
            A(f"v_fmac_f32_dpp v{C+25}, v{C+6}, v{C+9+2*w} row_newbcast:{w} row_mask:0xf bank_mask:0xf")
        for r in (C + 24, C + 25, C + 4, C + 5):
            A(f"v_min_u32 v{r}, -2, v{r}")
        A("s_cmp_eq_u32 s3, 0")
        A("s_cselect_b32 s63, s83, s67")
        A(f"v_mov_b32_dpp v{C+26}, v{C+24} quad_perm:[1,1,3,3] row_mask:0xf bank_mask:0xf")
        A(f"v_mov_b32_dpp v{C+27}, v{C+25} quad_perm:[1,1,3,3] row_mask:0xf bank_mask:0xf")
        A("s_mov_b32 exec_lo, 0x55555555")
        A("s_mov_b32 exec_hi, 0x55555555")
        A(f"buffer_store_dwordx4 v[{C+24}:{C+27}], v{C+1}, s[84:87], s63 offen sc1")
        A("s_mov_b64 exec, 1")
        A(f"buffer_store_dwordx2 v[{C+4}:{C+5}], off, s[84:87], s63 offset:512 sc1")
        A("s_mov_b64 exec, -1")
        self.stamp(7)
        self.dstamp(2)
        L("L_tail")
        A(f"s_cmp_lt_u32 s89, {R_WO0}")
        A(f"s_cbranch_scc1 {EX}")
        A(f"s_cmp_lt_u32 s89, {R_WO1}")
        A("s_cbranch_scc1 L_tail_wo")
        A(f"s_cmp_ge_u32 s89, {R_DN0}")
        A("s_cbranch_scc1 L_tail_dn")
        A(f"s_cmp_lt_u32 s89, {R_UP0}")
        A(f"s_cbranch_scc1 {EX}")
        A(f"s_cmp_lt_u32 s89, {R_UP1}")
        A("s_cbranch_scc1 L_tail_up")
        A(f"s_branch {EX}")

        L("L_tail_wo")
        regs = [AF + 4 * i for i in range(4)] + [DT + 4 * i for i in range(4)]
        O = TMP
        lds_ = [([f"buffer_load_dwordx4 v[{regs[r]}:{regs[r]+3}], v12, s[84:87], {'s56' if r < 4 else 's55'} offen offset:{(r & 3)*1024} sc1"],
                 [regs[r] + k for k in range(4)]) for r in range(4 * self.H)]
        lds_.append(([f"buffer_load_dwordx2 v[{O}:{O+1}], v11, s[84:87], s56 offen offset:512 sc1"], [O, O + 1]))
        self.poll_multi(lds_, O + 2)
        self.stamp(8)
        MM, FF, LL = O + 2, O + 3, O + 6
        A(f"v_max_f32_dpp v{MM}, v{O}, v{O} row_ror:1 row_mask:0xf bank_mask:0xf")
        A(f"s_mov_b32 s58, {f32(LOG2E)}")
        self.nop(1)
        A(f"v_max_f32_dpp v{MM}, v{MM}, v{MM} row_ror:2 row_mask:0xf bank_mask:0xf")
        if self.H == 2:
            self.nop(2)
            A(f"v_max_f32_dpp v{MM}, v{MM}, v{MM} row_ror:4 row_mask:0xf bank_mask:0xf")
        A(f"v_sub_f32 v{FF}, v{O}, v{MM}")
        A(f"v_mul_f32 v{FF}, s58, v{FF}")
        A(f"v_exp_f32 v{FF}, v{FF}")
        self.nop(1)
        A(f"v_mul_f32 v{LL}, v{FF}, v{O+1}")
        self.nop(1)
        for k in range(4):
            A(f"v_mul_f32_dpp v{O+8+k}, v{FF}, v{regs[0]+k} row_newbcast:0 row_mask:0xf bank_mask:0xf")
        A(f"v_add_f32_dpp v{LL}, v{LL}, v{LL} row_ror:1 row_mask:0xf bank_mask:0xf")
        for r in range(1, 4 * self.H):
            for k in range(4):
                A(f"v_fmac_f32_dpp v{O+8+k}, v{FF}, v{regs[r]+k} row_newbcast:{r} row_mask:0xf bank_mask:0xf")
            if r == 1:
                A(f"v_add_f32_dpp v{LL}, v{LL}, v{LL} row_ror:2 row_mask:0xf bank_mask:0xf")
            if r == 2 and self.H == 2:
                A(f"v_add_f32_dpp v{LL}, v{LL}, v{LL} row_ror:4 row_mask:0xf bank_mask:0xf")
            if r == 1 + self.H:
                A(f"v_rcp_f32 v{LL}, v{LL}")
        for k in range(4):
            A(f"v_mul_f32 v{O+8+k}, v{LL}, v{O+8+k}")
        A(f"v_cvt_pk_bf16_f32 v{O+4}, v{O+8}, v{O+9}")
        A(f"v_cvt_pk_bf16_f32 v{O+5}, v{O+10}, v{O+11}")
        A(f"ds_write_b64 v{VAW}, v[{O+4}:{O+5}]")
        self.a_frags_from_stage(VAR, AF)
        self.mfmas(AF, BF, DT, 4, 4, lgkm=True)
        self.d_to_lds(DT, 4, TMP, TMP + 1, VDW)
        A("s_waitcnt lgkmcnt(0)")
        self.bar()
        A("s_cmp_eq_u32 s3, 0")
        A(f"s_cbranch_scc0 {EX}")
        self.d_sum(G, TT, TMP)
        for k in range(4):
            A(f"v_min_u32 v{TMP+4+k}, -2, v{TMP+4+k}")
        A(f"v_lshlrev_b32 v{TMP}, 11, v{G}")
        A(f"v_lshl_add_u32 v{TMP}, v{TT}, 4, v{TMP}")
        A("s_mov_b32 exec_hi, 0")
        A(f"buffer_store_dwordx4 v[{TMP+4}:{TMP+7}], v{TMP}, s[84:87], s60 offen sc1")
        self.stamp(9)
        self.dstamp(4)
        A(f"s_branch {EX}")

        L("L_tail_up")
        P = 12
        P = DT
        regs = [AF + 4 * i for i in range(4)] + [DT + 4 * i for i in range(4)]
        self.poll_multi([([f"s_add_u32 s57, s56, {hg*4096}", f"buffer_load_dwordx4 v[{regs[hg]}:{regs[hg]+3}], v12, s[84:87], s57 offen sc1"],
                          [regs[hg] + k for k in range(4)]) for hg in range(8)], TMP)
        self.stamp(8)
        X1 = TMP + 4
        self.sum8_x1(regs, X1, XV, GAV, TMP)
        S1, S2, U0, U1 = TMP + 8, TMP + 9, TMP + 10, TMP + 11
        A(f"v_add_f32 v{S1}, v{X1}, v{X1+1}")
        A(f"v_mul_f32 v{S2}, v{X1}, v{X1}")
        A(f"v_add_f32 v{U0}, v{X1+2}, v{X1+3}")
        A(f"v_fmac_f32 v{S2}, v{X1+1}, v{X1+1}")
        A(f"v_add_f32 v{S1}, v{S1}, v{U0}")
        A(f"v_fmac_f32 v{S2}, v{X1+2}, v{X1+2}")
        A(f"v_fmac_f32 v{S2}, v{X1+3}, v{X1+3}")
        self.allred32([S1, S2], [U0, U1])
        A(f"v_lshlrev_b32 v{U0}, 5, v{HB}")
        A("s_lshl_b32 s54, s3, 3")
        A(f"v_add_u32 v{U1}, s54, v{U0}")
        A(f"ds_write_b64 v{U1}, v[{S1}:{S2}] offset:{L_ST}")
        A("s_waitcnt lgkmcnt(0)")
        self.bar()
        Q8 = TMP + 12
        A(f"ds_read_b128 v[{Q8}:{Q8+3}], v{U0} offset:{L_ST}")
        A(f"ds_read_b128 v[{Q8+4}:{Q8+7}], v{U0} offset:{L_ST+16}")
        A("s_waitcnt lgkmcnt(0)")
        A(f"v_add_f32 v{S1}, v{Q8}, v{Q8+2}")
        A(f"v_add_f32 v{S2}, v{Q8+1}, v{Q8+3}")
        A(f"v_add_f32 v{U0}, v{Q8+4}, v{Q8+6}")
        A(f"v_add_f32 v{U1}, v{Q8+5}, v{Q8+7}")
        A(f"v_add_f32 v{S1}, v{S1}, v{U0}")
        A(f"v_add_f32 v{S2}, v{S2}, v{U1}")
        self.ln_norm(S1, S2, X1, U0, U1)
        self.modulate(X1, T4U, SBV, SBV + 1, TMP, TMP + 12, VAW)
        self.a_frags_from_stage(VAR, AF)
        self.mfmas(AF, BF, DT, 4, 4, lgkm=True)
        self.d_to_lds(DT, 4, TMP, TMP + 1, VDW)
        A("s_waitcnt lgkmcnt(0)")
        self.bar()
        A("s_cmp_eq_u32 s3, 0")
        A(f"s_cbranch_scc0 {EX}")
        A(f"v_lshrrev_b32 v{TMP}, 3, v2")
        A(f"v_and_b32 v{TMP}, 1, v{TMP}")
        A(f"v_and_b32 v{TMP+1}, 7, v2")
        A(f"v_lshlrev_b32 v{TMP+2}, 8, v{TMP}")
        A(f"v_lshl_add_u32 v{TMP+2}, v{TMP+1}, 4, v{TMP+2}")
        GT = AF
        for j in range(4):
            A(f"ds_read_b128 v[{AF+4*j}:{AF+4*j+3}], v{TMP+2} offset:{L_D + j*512}")
            A(f"ds_read_b128 v[{DT+4*j}:{DT+4*j+3}], v{TMP+2} offset:{L_D + j*512 + 128}")
        A(f"v_lshlrev_b32 v{TMP+3}, 6, v{TMP}")
        A(f"v_lshl_add_u32 v{TMP+3}, v{TMP+1}, 3, v{TMP+3}")
        A("s_waitcnt lgkmcnt(0)")
        for base in (AF, DT):
            self.pk4("add", base, base, base + 4)
            self.pk4("add", base + 8, base + 8, base + 12)
            self.pk4("add", base, base, base + 8)
            self.rnd2(base, base + 1, base + 4)
            self.rnd2(base + 2, base + 3, base + 5)
        A(f"s_mov_b32 s58, {f32(-LOG2E)}")
        for k in range(4):
            A(f"v_mul_f32 v{AF+4+k}, s58, v{AF+k}")
        for k in range(4):
            A(f"v_exp_f32 v{AF+4+k}, v{AF+4+k}")
        self.nop(1)
        for k in range(4):
            A(f"v_add_f32 v{AF+4+k}, 1.0, v{AF+4+k}")
        for k in range(4):
            A(f"v_rcp_f32 v{AF+4+k}, v{AF+4+k}")
        self.nop(1)
        self.pk4("mul", AF, AF, AF + 4)
        self.rnd2(AF, AF + 1, AF + 4)
        self.rnd2(AF + 2, AF + 3, AF + 5)
        self.pk4("mul", AF, AF, DT)
        A(f"v_cvt_pk_bf16_f32 v{AF+8}, v{AF}, v{AF+1}")
        A(f"v_cvt_pk_bf16_f32 v{AF+9}, v{AF+2}, v{AF+3}")
        A(f"v_min_u32 v{AF+8}, -2, v{AF+8}")
        A(f"v_min_u32 v{AF+9}, -2, v{AF+9}")
        self.nop(1)
        A(f"v_mov_b32_dpp v{AF+10}, v{AF+8} quad_perm:[1,1,3,3] row_mask:0xf bank_mask:0xf")
        A(f"v_mov_b32_dpp v{AF+11}, v{AF+9} quad_perm:[1,1,3,3] row_mask:0xf bank_mask:0xf")
        A("s_mov_b64 exec, 0x5555")
        A(f"buffer_store_dwordx4 v[{AF+8}:{AF+11}], v{TMP+3}, s[84:87], s60 offen sc1")
        self.stamp(9)
        self.dstamp(5)
        A(f"s_branch {EX}")

        L("L_tail_dn")
        A("s_cmp_eq_u32 s3, 0")
        A("s_cbranch_scc0 L_dn_hh")
        regs = [DAF + 4 * i for i in range(8)]
        self.poll_multi([([f"s_add_u32 s54, s56, {hg*4096}", f"buffer_load_dwordx4 v[{regs[hg]}:{regs[hg]+3}], v15, s[84:87], s54 offen sc1"],
                          [regs[hg] + k for k in range(4)]) for hg in range(8)], DAF + 32)
        self.unpack2(16, DAF + 32, DAF + 33)
        self.unpack2(17, DAF + 34, DAF + 35)
        self.unpack2(18, DAF + 36, DAF + 37)
        self.unpack2(19, DAF + 38, DAF + 39)
        self.sum8_x1(regs, DAF + 40, DAF + 32, DAF + 36, 22)
        A(f"v_cvt_pk_bf16_f32 v10, v{DAF+40}, v{DAF+41}")
        A(f"v_cvt_pk_bf16_f32 v11, v{DAF+42}, v{DAF+43}")
        L("L_dn_hh")
        self.poll_multi([([f"buffer_load_dwordx4 v[{DAF+36+4*t}:{DAF+39+4*t}], v7, s[16:19], s57 offen offset:{t*1024} sc1"],
                          [DAF + 36 + 4 * t + k for k in range(4)]) for t in range(2)], 22)
        self.stamp(8)
        A(f"ds_write_b128 v8, v[{DAF+36}:{DAF+39}]")
        A(f"ds_write_b128 v8, v[{DAF+40}:{DAF+43}] offset:1024")
        for t in range(11):
            A(f"ds_read_b128 v[{DAF+4*t}:{DAF+4*t+3}], v12 offset:{t*128}")
        self.mfmas(DAF, DBF, DDT, 11, 2, lgkm=True)
        self.d_to_lds(DDT, 2, 22, 23, VDW)
        A("s_waitcnt lgkmcnt(0)")
        self.bar()
        A("s_cmp_eq_u32 s3, 0")
        A(f"s_cbranch_scc0 {EX}")
        A("v_lshlrev_b32 v22, 8, v13")
        A("v_lshl_add_u32 v22, v14, 4, v22")
        F = DAF
        for j in range(4):
            A(f"ds_read_b128 v[{F+4*j}:{F+4*j+3}], v22 offset:{L_D + j*512}")
        self.unpack2(20, F + 16, F + 17)
        self.unpack2(21, F + 18, F + 19)
        self.unpack2(10, F + 20, F + 21)
        self.unpack2(11, F + 22, F + 23)
        A("v_lshlrev_b32 v23, 10, v13")
        A("v_lshl_add_u32 v23, v14, 3, v23")
        A("s_lshl_b32 s54, s59, 6")
        A("s_waitcnt lgkmcnt(0)")
        self.pk4("add", F, F, F + 4)
        self.pk4("add", F + 8, F + 8, F + 12)
        self.pk4("add", F, F, F + 8)
        self.rnd2(F, F + 1, F + 4)
        self.rnd2(F + 2, F + 3, F + 5)
        self.pk4("mul", F, F, F + 16)
        self.rnd2(F, F + 1, F + 4)
        self.rnd2(F + 2, F + 3, F + 5)
        self.pk4("add", F, F, F + 20)
        A(f"v_cvt_pk_bf16_f32 v{F+8}, v{F}, v{F+1}")
        A(f"v_cvt_pk_bf16_f32 v{F+9}, v{F+2}, v{F+3}")
        A("s_mov_b64 exec, 0xffff")
        A(f"buffer_store_dwordx2 v[{F+8}:{F+9}], v23, s[72:75], s54 offen")
        self.stamp(9)
        self.dstamp(1)
        A(f"s_branch {EX}")

    def d_sum(self, G, TT, t):
        A = self.A
        A(f"v_and_b32 v{t}, 1, v{G}")
        A(f"v_lshlrev_b32 v{t}, 8, v{t}")
        A(f"v_lshl_add_u32 v{t}, v{TT}, 4, v{t}")
        for j in range(4):
            A(f"ds_read_b128 v[{t+4+4*j}:{t+7+4*j}], v{t} offset:{L_D + j*512}")
        A("s_waitcnt lgkmcnt(0)")
        self.pk4("add", t + 4, t + 4, t + 8)
        self.pk4("add", t + 12, t + 12, t + 16)
        self.pk4("add", t + 4, t + 4, t + 12)

    def sum8_x1(self, regs, X1, XV, GAV, t):
        A = self.A
        for a, b in ((0, 1), (2, 3), (4, 5), (6, 7), (0, 2), (4, 6)):
            self.pk4("add", regs[a], regs[a], regs[b])
        self.pk4("add", X1, regs[0], regs[4])
        self.rnd2(X1, X1 + 1, t)
        self.rnd2(X1 + 2, X1 + 3, t + 1)
        self.pk4("mul", X1, X1, GAV)
        self.rnd2(X1, X1 + 1, t)
        self.rnd2(X1 + 2, X1 + 3, t + 1)
        self.pk4("add", X1, X1, XV)
        self.rnd2(X1, X1 + 1, t)
        self.rnd2(X1 + 2, X1 + 3, t + 1)

    def ln_norm(self, S1, S2, X, U0, U1):
        A = self.A
        A(f"s_mov_b32 s58, {f32(1.0/512)}")
        A(f"v_mul_f32 v{S1}, s58, v{S1}")
        A(f"v_mul_f32 v{S2}, s58, v{S2}")
        A(f"v_fma_f32 v{S2}, -v{S1}, v{S1}, v{S2}")
        A(f"v_max_f32 v{S2}, 0, v{S2}")
        self.rnd2(S1, S2, U0)
        A(f"v_add_f32 v{S2}, {f32(1e-5)}, v{S2}")
        self.rnd1(S2)
        A(f"v_sqrt_f32 v{S2}, v{S2}")
        for k in range(4):
            A(f"v_sub_f32 v{X+k}, v{X+k}, v{S1}")
        self.rnd1(S2)
        A(f"v_rcp_f32 v{S2}, v{S2}")
        self.rnd2(X, X + 1, U0)
        self.rnd2(X + 2, X + 3, U1)
        for k in range(4):
            A(f"v_mul_f32 v{X+k}, v{X+k}, v{S2}")
        self.rnd2(X, X + 1, U0)
        self.rnd2(X + 2, X + 3, U1)

    def modulate(self, N, T4, sp0, sp1, t0, w, VAW):
        A = self.A
        self.pk4("mul", N, N, T4)
        self.rnd2(N, N + 1, t0)
        self.rnd2(N + 2, N + 3, t0 + 1)
        self.unpack2(sp0, w, w + 1)
        self.unpack2(sp1, w + 2, w + 3)
        self.pk4("add", N, N, w)
        A(f"v_cvt_pk_bf16_f32 v{w+4}, v{N}, v{N+1}")
        A(f"v_cvt_pk_bf16_f32 v{w+5}, v{N+2}, v{N+3}")
        A(f"ds_write_b64 v{VAW}, v[{w+4}:{w+5}]")


HEADER = open("cdna_kernels/%s.s.ref" % NAME).read().split("; Override launch geometry")[0] if True else ""


DOC = """;
"""

if __name__ == "__main__":
    import argparse
    ap = argparse.ArgumentParser()
    ap.add_argument("-o", default="k.s")
    ap.add_argument("--R", type=int, default=3)
    ap.add_argument("--B", type=int, default=32)
    ap.add_argument("--stamps", action="store_true")
    ap.add_argument("--sleep", type=int, default=1)
    ap.add_argument("--NS", type=int, default=12)
    ap.add_argument("--R0", type=int, default=3)
    ap.add_argument("--grp", default="iod")
    ap.add_argument("--CP", type=int, default=0)
    ap.add_argument("--dbg", default="")
    ap.add_argument("--pace", type=int, default=0)
    ap.add_argument("--tpol", default="nt")
    ap.add_argument("--xmap", action="store_true")
    ap.add_argument("--flagq", action="store_true")
    ap.add_argument("--TH", type=int, default=480)
    ap.add_argument("--kvpol", default="nt")
    ap.add_argument("--dry", action="store_true")
    ap.add_argument("--pm", action="store_true")
    ap.add_argument("--rot", type=int, default=0)
    ap.add_argument("--H", type=int, default=1)
    ap.add_argument("--xl", type=int, default=0)
    ap.add_argument("--npol", default=None)
    ap.add_argument("--cpf", type=int, default=0)
    ap.add_argument("--late", action="store_true")
    ap.add_argument("--hold", action="store_true")
    ap.add_argument("--px", type=int, default=33)
    ap.add_argument("--egw", type=int, default=0)
    ap.add_argument("--cstr", type=int, default=4224)
    ap.add_argument("--ps1", type=int, default=1)
    ap.add_argument("--ps2", type=int, default=1)
    a = ap.parse_args()
    B = a.B
    if a.stamps and B > 32:
        B = 32
    g = Gen(R=a.R, B=B, stamps=a.stamps, sleep=a.sleep, NS=a.NS, R0=a.R0, grp=a.grp, CP=a.CP, dbg=a.dbg, pace=a.pace, tpol=a.tpol, xmap=a.xmap, flagq=a.flagq, ps1=a.ps1, ps2=a.ps2, TH=a.TH, kvpol=a.kvpol, dry=a.dry, pm=a.pm, rot=a.rot, H=a.H, cstr=a.cstr, egw=a.egw, px=a.px, late=a.late, hold=a.hold, cpf=a.cpf, npol=a.npol, xl=a.xl)
    open(a.o, "w").write(HEADER + g.build())
```

```python
import sys, struct

NAME = "adaLN_cond__mha_block_cached__glu_gated_swiglu__decode"

def f32(x):
    return "0x%08x" % struct.unpack("<I", struct.pack("<f", x))[0]

LOG2E = 1.4426950408889634
SCALE = 128 ** -0.5

MOD_OFF = 0x0000
Q_OFF = 0x8000
PART_OFF = 0x10000
ATT_OFF = 0x90000
HH_OFF = 0x98000
CNT_OFF = 0x9A000
CTR_OFF = 0x100000
WS_USED = 0x9C000
STAMP_OFF = 0x10000000
L_A = 0
L_D = L_A + 2048
L_ST = L_D + 2048
L_Q = L_ST + 64
L_Z = L_Q + 512
L_CNT = L_Z
L_QF = L_Z + 16
L_PF = L_Z + 48
L_DONE = L_Z + 64
L_NEED = L_Z + 32
L_RL = L_Z + 256
L_ML = L_Z + 512
L_P = 5376
L_W = L_P + 16384
LDS_BYTES = L_W + 90112
assert L_ML + 128 <= L_P and L_P % 128 == 0

R_MOD0, R_Q0, R_WO0, R_WO1, R_UP0, R_UP1, R_DN0 = 0, 48, 112, 176, 192, 235, 240
SENT = 0xFFFFFFFF


class Gen:
    def __init__(self, R=3, B=32, stamps=False, NS=12, sleep=1, R0=3, grp='iod', CP=0, dbg='', pace=0, tpol='nt', xmap=False, flagq=False, ps1=1, ps2=1, TH=480, kvpol='nt', dry=False, pm=False, rot=0, H=1, cstr=4224, egw=0, px=33, late=False, hold=False, cpf=0, npol=None, xl=0, inc=False):
        self.o = []
        self.R, self.B, self.stamps, self.NS, self.sleep, self.R0, self.grp = R, B, stamps, NS, sleep, R0, grp
        self.uid = 0
        self.CP = CP
        self.dbg = dbg
        self.inc = inc
        self.xl = xl
        self.npol = npol
        self.cpf = cpf
        self.late, self.hold = late, hold
        self.px = px
        self.egw = egw
        self.cstr = cstr
        self.H = H
        self.rot = rot
        self.pm = pm
        self.dry = dry
        self.kvpol = kvpol
        self.TH = TH
        self.ps1, self.ps2 = ps1, ps2
        self.pace, self.tpol, self.xmap, self.flagq = pace, tpol, xmap, flagq

    def A(self, s):
        self.o.append("    " + s)

    def L(self, s):
        self.o.append(s + ":")

    def lab(self, p):
        self.uid += 1
        return f"L_{p}_{self.uid}"

    def nop(self, n):
        while n > 0:
            k = min(n, 16)
            self.A(f"s_nop {k-1}")
            n -= k

    def srd(self, d, b, nbytes):
        self.A(f"s_mov_b32 s{d}, s{b}")
        self.A(f"s_mov_b32 s{d+1}, s{b+1}")
        self.A(f"s_mov_b32 s{d+2}, {nbytes}")
        self.A(f"s_mov_b32 s{d+3}, 0x20000")

    def stamp(self, idx, src=None, wave=False):
        if not self.stamps:
            return
        A = self.A
        if src is None:
            A("s_memrealtime s[90:91]")
        else:
            A(f"s_mov_b64 s[90:91], {src}")
        A("s_mov_b64 s[92:93], exec")
        A("s_mov_b64 exec, 1")
        A("s_lshl_b32 s94, s2, 9")
        if wave:
            A("s_lshl_b32 s95, s3, 5")
            A("s_add_u32 s94, s94, s95")
        A(f"s_add_u32 s94, s94, {STAMP_OFF + idx*8}")
        A("s_waitcnt lgkmcnt(0)")
        A("v_mov_b32 v166, s90")
        A("v_mov_b32 v167, s91")
        A("buffer_store_dwordx2 v[166:167], off, s[84:87], s94")
        A("s_mov_b64 exec, s[92:93]")

    def rnd2(self, a, b, t):
        self.A(f"v_cvt_pk_bf16_f32 v{t}, v{a}, v{b}")
        self.A(f"v_lshlrev_b32 v{a}, 16, v{t}")
        self.A(f"v_and_b32 v{b}, 0xffff0000, v{t}")

    def pk4(self, op, d, a, b):
        assert d % 2 == 0 and a % 2 == 0 and b % 2 == 0
        for k in (0, 2):
            self.A(f"v_pk_{op}_f32 v[{d+k}:{d+k+1}], v[{a+k}:{a+k+1}], v[{b+k}:{b+k+1}]")

    def rnd1(self, a):
        self.A(f"v_cvt_pk_bf16_f32 v{a}, v{a}, v{a}")
        self.A(f"v_and_b32 v{a}, 0xffff0000, v{a}")

    def unpack2(self, src, lo, hi):
        self.A(f"v_lshlrev_b32 v{lo}, 16, v{src}")
        self.A(f"v_and_b32 v{hi}, 0xffff0000, v{src}")

    def allred32(self, regs, tmps):
        A = self.A
        for rot in (8, 4, 2, 1):
            self.nop(2 if len(regs) < 2 else max(0, 2 - (len(regs) - 1)))
            for r in regs:
                A(f"v_add_f32_dpp v{r}, v{r}, v{r} row_ror:{rot} row_mask:0xf bank_mask:0xf")
        for r, t in zip(regs, tmps):
            A(f"v_mov_b32 v{t}, v{r}")
        self.nop(2)
        for r, t in zip(regs, tmps):
            A(f"v_permlane16_swap_b32 v{r}, v{t}")
        self.nop(1)
        for r, t in zip(regs, tmps):
            A(f"v_add_f32 v{r}, v{r}, v{t}")

    def slice_of(self, dst, r0, n):
        A = self.A
        A(f"s_sub_u32 s{dst}, s89, {r0}")
        if not self.xmap:
            return
        q, rem = divmod(n, 8)
        A(f"s_and_b32 s68, s{dst}, 7")
        A(f"s_lshr_b32 s{dst}, s{dst}, 3")
        A(f"s_min_u32 s69, s68, {rem}")
        A(f"s_mul_i32 s68, s68, {q}")
        A(f"s_add_u32 s{dst}, s{dst}, s68")
        A(f"s_add_u32 s{dst}, s{dst}, s69")

    def dstamp(self, word, mn=False, tagreg=80, srd=76):
        if "dtime" not in self.dbg:
            return
        A = self.A
        A("s_memrealtime s[90:91]")
        A("s_mov_b64 s[92:93], exec")
        A("s_mov_b64 exec, 1")
        A("s_waitcnt lgkmcnt(0)")
        A(f"s_sub_u32 s90, s90, s{tagreg}")
        if mn:
            A("s_sub_u32 s90, 100000, s90")
        A("v_mov_b32 v166, s90")
        A(f"buffer_atomic_umax v166, off, s[{srd}:{srd+3}], 0 offset:{word*4} sc1")
        A("s_mov_b64 exec, s[92:93]")

    def dmark(self, k):
        if "dpro" in self.dbg:
            r = [4, 6, 100, 42][k]
            self.A(f"s_memrealtime s[{r}:{r+1}]")

    def demit(self):
        if "dpro" not in self.dbg:
            return
        A, L = self.A, self.L
        A("s_waitcnt lgkmcnt(0)")
        A("s_mov_b64 exec, 1")
        def em(reg, word, mn=False):
            l = self.lab("de")
            A(f"s_cmp_eq_u32 s{reg}, 0")
            A(f"s_cbranch_scc1 {l}")
            A(f"s_sub_u32 s90, s{reg}, s80")
            if mn:
                A("s_sub_u32 s90, 100000, s90")
            A("v_mov_b32 v166, s90")
            A(f"buffer_atomic_umax v166, off, s[76:79], 0 offset:{word*4} sc1")
            L(l)
        em(4, 3); em(4, 6, True)
        em(100, 9); em(100, 10, True)
        a = self.lab("da"); b = self.lab("db")
        A("s_cmp_lt_u32 s89, 16")
        A(f"s_cbranch_scc0 {a}")
        em(6, 7); em(42, 11)
        L(a)
        A("s_cmp_ge_u32 s89, 48")
        A(f"s_cbranch_scc0 {b}")
        em(6, 8); em(42, 12)
        L(b)
        A("s_mov_b64 exec, -1")

    def bar(self):
        if not self.dry:
            self.A("s_barrier")
            return
        l = self.lab("nb")
        self.A("s_cmp_eq_u32 s69, 0")
        self.A(f"s_cbranch_scc0 {l}")
        self.A("s_barrier")
        self.L(l)

    def poll_head(self):
        l = self.lab("poll")
        self.L(l)
        return l

    def poll_tail(self, l, sleep=None):
        A = self.A
        d = self.lab("pdone")
        A(f"s_cbranch_vccz {d}")
        A("s_cmp_eq_u32 s88, 0")
        A(f"s_cbranch_scc1 {d}")
        A("s_sub_u32 s88, s88, 1")
        if (self.sleep if sleep is None else sleep):
            A(f"s_sleep {self.sleep if sleep is None else sleep}")
        A(f"s_branch {l}")
        self.L(d)

    def poll_multi(self, loads, t):
        A, L = self.A, self.L
        n = len(loads)
        if not self.pm:
            pl = self.poll_head()
            for lines, regs in loads:
                for x in lines:
                    A(x)
            A("s_waitcnt vmcnt(0)")
            self.check_sent([r for lines, regs in loads for r in regs], t)
            self.poll_tail(pl)
            return
        A(f"s_mov_b32 s95, {(1 << n) - 1}")
        first = True
        top = self.lab("mp")
        done = self.lab("mpd")
        for lines, regs in loads:
            for x in lines:
                A(x)
        chk = self.lab("mpc")
        A(f"s_branch {chk}")
        L(top)
        for r, (lines, regs) in enumerate(loads):
            sk = self.lab("mps")
            A(f"s_bitcmp1_b32 s95, {r}")
            A(f"s_cbranch_scc0 {sk}")
            for x in lines:
                A(x)
            L(sk)
        L(chk)
        A("s_waitcnt vmcnt(0)")
        for r, (lines, regs) in enumerate(loads):
            sk = self.lab("mpk")
            A(f"s_bitcmp1_b32 s95, {r}")
            A(f"s_cbranch_scc0 {sk}")
            self.check_sent(regs, t)
            A(f"s_cbranch_vccnz {sk}")
            A(f"s_bitset0_b32 s95, {r}")
            L(sk)
        A("s_cmp_eq_u32 s95, 0")
        A(f"s_cbranch_scc1 {done}")
        A("s_cmp_eq_u32 s88, 0")
        A(f"s_cbranch_scc1 {done}")
        A("s_sub_u32 s88, s88, 1")
        if self.sleep:
            A(f"s_sleep {self.sleep}")
        A(f"s_branch {top}")
        L(done)

    def check_sent(self, regs, t):
        A = self.A
        regs = list(regs)
        if len(regs) >= 3:
            A(f"v_max3_u32 v{t}, v{regs[0]}, v{regs[1]}, v{regs[2]}")
            regs = regs[3:]
        else:
            A(f"v_max_u32 v{t}, v{regs[0]}, v{regs[1]}")
            regs = regs[2:]
        while len(regs) >= 2:
            A(f"v_max3_u32 v{t}, v{t}, v{regs[0]}, v{regs[1]}")
            regs = regs[2:]
        if regs:
            A(f"v_max_u32 v{t}, v{t}, v{regs[0]}")
        A(f"v_cmp_eq_u32 vcc, -1, v{t}")

    def check_tags(self, regs, t):
        A = self.A
        A(f"v_xor_b32 v{t}, s80, v{regs[0]}")
        for r in regs[1:]:
            A(f"v_xor_b32 v{t+1}, s80, v{r}")
            A(f"v_or_b32 v{t}, v{t}, v{t+1}")
        A(f"v_cmp_ne_u32 vcc, 0, v{t}")

    def dma_weights(self, srd, nins, voff, row_step_bytes, lds_base_s, soff0=0, pol="nt", skip=""):
        A = self.A
        if "notaildma" in self.dbg and getattr(self, "intail", False):
            return
        if "noprodma" in self.dbg and not getattr(self, "intail", False):
            nins = 16
            A(f"s_mov_b32 s{srd+2}, 0")
        A(f"s_mov_b32 s70, {soff0}")
        A(f"s_add_u32 s71, s{lds_base_s}, {L_W}")
        intail = getattr(self, "intail", False)
        if intail:
            pol = self.tpol
            if skip in ("noup", "nodn") and self.npol is not None:
                pol = self.npol
            if skip and skip in self.dbg:
                return
        for i in range(nins):
            if intail and self.pace and i >= self.pace:
                A(f"s_waitcnt vmcnt({self.pace-1})")
            A("s_mov_b32 m0, s71")
            A(f"s_add_u32 s71, s71, 1024")
            A(f"buffer_load_dwordx4 v{voff}, s[{srd}:{srd+3}], s70 offen {pol} lds")
            A(f"s_add_u32 s70, s70, {row_step_bytes}")

    def tr_reads(self, vaddr, breg, nk, cgs, rowb):
        for t in range(nk):
            for ci, cgoff in enumerate(cgs):
                r = breg + (t * len(cgs) + ci) * 4
                off = t * 32 * rowb + cgoff
                self.A(f"ds_read_b64_tr_b16 v[{r}:{r+1}], v{vaddr} offset:{off}")
                self.A(f"ds_read_b64_tr_b16 v[{r+2}:{r+3}], v{vaddr} offset:{off + 4*rowb}")

    def mfmas(self, areg, breg, dreg, nk, ncg, lgkm=False):
        for t in range(nk):
            if lgkm:
                self.A(f"s_waitcnt lgkmcnt({nk-1-t})")
            for c in range(ncg):
                a = areg + 4 * t
                b = breg + (t * ncg + c) * 4
                d = dreg + 4 * c
                src = "0" if t == 0 else f"v[{d}:{d+3}]"
                self.A(f"v_mfma_f32_16x16x32_bf16 v[{d}:{d+3}], v[{a}:{a+3}], v[{b}:{b+3}], {src}")

    def d_to_lds(self, dreg, ncg, x0, x1, vaddr):
        A = self.A
        self.nop(8)
        for c in range(ncg):
            A(f"v_mov_b32_dpp v{x0}, v{dreg+4*c} quad_perm:[0,1,2,3] row_mask:{1<<c:#x} bank_mask:0xf")
            A(f"v_mov_b32_dpp v{x1}, v{dreg+4*c+1} quad_perm:[0,1,2,3] row_mask:{1<<c:#x} bank_mask:0xf")
        A(f"ds_write_b32 v{vaddr}, v{x0}")
        A(f"ds_write_b32 v{vaddr}, v{x1} offset:256")

    def a_frags_from_stage(self, vaddr, areg):
        for t in range(4):
            self.A(f"ds_read_b128 v[{areg+4*t}:{areg+4*t+3}], v{vaddr} offset:{t*64}")

    def build(self):
        A, L = self.A, self.L
        o = self.o
        o.append(f"; @launch grid=(256,1,1) block=(768,1,1) lds={LDS_BYTES}")
        o.append(DOC.rstrip("\n"))
        o.append('.amdgcn_target "amdgcn-amd-amdhsa--gfx950"')
        o.append(".text")
        o.append(f".globl {NAME}_kernel")
        o.append(".p2align 8")
        o.append(f".type {NAME}_kernel,@function")
        L(f"{NAME}_kernel")
        if self.stamps:
            A("s_memrealtime s[100:101]")
        A("s_cmp_ge_u32 s2, 256")
        A("s_cbranch_scc1 L_end")
        A("s_load_dwordx4 s[4:7], s[0:1], 8")
        A("s_load_dwordx4 s[96:99], s[0:1], 96")
        A("v_lshrrev_b32 v1, 6, v0")
        A("v_and_b32 v2, 63, v0")
        A("v_readfirstlane_b32 s3, v1")
        if self.grp == "pair":
            A("s_and_b32 s40, s2, 7")
            A("s_lshr_b32 s40, s40, 1")
            A("s_lshr_b32 s43, s2, 4")
            A("s_lshl_b32 s43, s43, 2")
            A("s_add_u32 s40, s40, s43")
            A("s_and_b32 s41, s2, 1")
            A("s_lshr_b32 s43, s2, 3")
            A("s_and_b32 s43, s43, 1")
            A("s_lshl_b32 s43, s43, 1")
            A("s_add_u32 s41, s41, s43")
        else:
            A("s_lshr_b32 s41, s2, 1")
            A("s_xor_b32 s40, s41, s2")
            A("s_and_b32 s40, s40, 1")
            A("s_and_b32 s41, s41, 3")
            A("s_lshr_b32 s43, s2, 3")
            A("s_lshl_b32 s43, s43, 1")
            A("s_add_u32 s40, s40, s43")
        A("s_lshr_b32 s89, s40, 1")
        A("s_add_u32 s89, s89, s41")
        A("s_and_b32 s89, s89, 3")
        A("s_lshl_b32 s89, s89, 6")
        A("s_add_u32 s89, s89, s40")
        A("s_cmp_ge_u32 s3, 8")
        A("s_cbranch_scc1 L_helper")
        self.streamer()
        L("L_helper")
        self.helper()
        L("L_end")
        A("s_endpgm")
        L("L_codeend")
        o.append('.section .rodata,"a"')
        o.append(".p2align 6")
        o.append(f".amdhsa_kernel {NAME}_kernel")
        o.append("  .amdhsa_next_free_vgpr 168")
        o.append("  .amdhsa_next_free_sgpr 102")
        o.append("  .amdhsa_accum_offset 168")
        o.append("  .amdhsa_group_segment_fixed_size 0")
        o.append("  .amdhsa_kernarg_size 112")
        o.append("  .amdhsa_user_sgpr_count 2")
        o.append("  .amdhsa_user_sgpr_kernarg_segment_ptr 1")
        o.append("  .amdhsa_system_sgpr_workgroup_id_x 1")
        o.append("  .amdhsa_float_denorm_mode_32 3")
        o.append(".end_amdhsa_kernel")
        return "\n".join(o) + "\n"

    def streamer(self):
        A, L = self.A, self.L
        R, B, NS, R0 = self.R, self.B, self.NS, self.R0
        VOFF, QF, MK, D, M, MN, LS = 1, 2, 6, 10, 14, 15, 16
        AC, T0, T1, S, PP = 17, 21, 22, 23, 24
        AS = 26
        LANE = 34
        EP, CLM = 35, 25
        RING = 168 - 4 * B - (2 if self.stamps else 0)
        RING -= RING % 2
        assert RING >= 36
        A(f"v_mov_b32 v{LANE}, v2")
        A("s_lshl_b32 s44, s41, 3")
        A("s_add_u32 s44, s44, s3")
        A("s_lshl_b32 s44, s44, 12")
        A(f"s_mul_i32 s45, s40, {self.rot}")
        A("s_lshl_b32 s45, s45, 15")
        A("s_add_u32 s44, s44, s45")
        A("s_lshl_b32 s33, s40, 21")
        A(f"v_lshlrev_b32 v{VOFF}, 4, v2")
        A("s_waitcnt lgkmcnt(0)")
        self.srd(8, 4, 0x8000000)
        self.srd(12, 6, 0x8000000)
        N = (NS - 1) * 8 + R
        NC = (NS - 1) * 8

        def issue(p):
            i, j = divmod(p, 8)
            t, j = divmod(j, 4)
            r = RING + 4 * (p % B)
            srd = "s[8:11]" if t == 0 else "s[12:15]"
            if j == 0 and t == 0:
                A(f"s_add_u32 s16, s44, {i * 32 * 4096}")
                A("s_and_b32 s16, s16, 0x1fffff")
                A("s_add_u32 s16, s16, s33")
                if self.stamps and i < 12:
                    A(f"s_memrealtime s[{48+2*i}:{49+2*i}]")
            if B <= p < B + self.xl:
                a, b = self.lab("xa"), self.lab("xb")
                A(f"s_cmp_ge_u32 s89, {R_WO0}")
                A(f"s_cbranch_scc1 {a}")
                A(f"buffer_load_dwordx4 v[{r}:{r+3}], v{VOFF}, {srd}, s16 offen offset:{j*1024} {self.kvpol}")
                A(f"s_branch {b}")
                L(a)
                A(f"v_add_u32 v{T0}, s36, v{VOFF}")
                A("buffer_load_dword v37, off, s[8:11], s37")
                A(f"ds_read_b128 v[{r}:{r+3}], v{T0} offset:{(p-B)*1024}")
                L(b)
                return
            A(f"buffer_load_dwordx4 v[{r}:{r+3}], v{VOFF}, {srd}, s16 offen offset:{j*1024} {self.kvpol}")

        if self.hold:
            A("s_cmp_lt_u32 s89, 16")
            A("s_cbranch_scc0 L_nohold")
            A("s_barrier")
            L("L_nohold")
        for p in range(R0):
            issue(p)
        if self.stamps:
            A("s_memrealtime s[30:31]")
        self.srd(84, 98, 0x20000000)
        if self.hold:
            A("s_cmp_lt_u32 s89, 16")
            A("s_cbranch_scc1 L_nohold2")
        A("s_barrier")
        if self.hold:
            L("L_nohold2")
        if self.H == 2:
            A(f"s_xor_b32 s43, s40, {self.px}")
            A("s_min_u32 s43, s43, s40")
            A(f"s_xor_b32 s39, s43, {self.px}")
            A("s_lshl_b32 s39, s39, 21")
        else:
            A("s_mov_b32 s43, s40")
        A("s_lshl_b32 s45, s43, 3")
        A("s_add_u32 s45, s45, s3")
        A(f"s_mul_i32 s45, s45, {self.cstr}")
        A(f"s_add_u32 s45, s45, {CTR_OFF}")
        A("s_lshl_b32 s42, s3, 12")
        A(f"s_mul_i32 s38, s43, {self.rot}")
        A("s_lshl_b32 s38, s38, 15")
        A("s_add_u32 s42, s42, s38")
        A("s_lshl_b32 s43, s43, 21")
        if self.H == 2:
            A("s_lshr_b32 s32, s40, 5")
        else:
            A("s_mov_b32 s32, 0")
        A("s_mov_b32 s28, s32")
        A("s_mov_b32 s29, s32")
        A("s_add_u32 s26, s98, s45")
        A("s_addc_u32 s27, s99, 0")
        A(f"v_and_b32 v{T0}, 15, v{LANE}")
        A(f"v_and_b32 v{T1}, 1, v{LANE}")
        A(f"v_lshlrev_b32 v{T1}, 4, v{T1}")
        A(f"s_mov_b32 s17, 0xffff")
        A(f"v_mov_b32 v{S}, s17")
        A(f"v_lshlrev_b32 v{T1}, v{T1}, v{S}")
        A(f"v_lshrrev_b32 v{T0}, 1, v{T0}")
        for k in range(4):
            A(f"v_cmp_eq_u32 vcc, {k}, v{T0}")
            self.nop(2)
            A(f"v_cndmask_b32 v{MK+k}, 0, v{T1}, vcc")
        for k in range(4):
            A(f"v_mov_b32 v{D+k}, 0")
        A(f"v_mov_b32 v{M}, {f32(-3.0e38)}")
        A(f"v_mov_b32 v{MN}, 0")
        A(f"v_mov_b32 v{LS}, 0")
        A(f"v_and_b32 v35, 15, v{LANE}")
        A(f"v_lshlrev_b32 v35, 5, v35")
        A(f"v_lshrrev_b32 v{T1}, 4, v{LANE}")
        A(f"v_and_b32 v{S}, 1, v{T1}")
        A(f"v_lshl_add_u32 v35, v{S}, 4, v35")
        A(f"v_lshrrev_b32 v{T1}, 1, v{T1}")
        A(f"v_lshl_add_u32 v35, v{T1}, 9, v35")
        A("s_lshl_b32 s20, s3, 10")
        A(f"v_add_u32 v35, s20, v35")
        A("s_lshl_b32 s20, s3, 3")
        A(f"v_mov_b32 v25, s20")
        if self.xl:
            A("s_lshl_b32 s36, s3, 13")
            A(f"s_add_u32 s36, s36, {L_W}")
            A("s_mov_b32 s37, 0x7ffffff0")
        A(f"s_mov_b32 s18, {f32(SCALE)}")
        A(f"s_mov_b32 s19, {f32(LOG2E)}")
        for p in range(R0, B):
            A(f"s_waitcnt vmcnt({R0-1 if p < 8 else R-1})")
            issue(p)
        if self.xl:
            assert B % 8 == 0 and self.xl == 8 and not self.rot
            A(f"s_cmp_ge_u32 s89, {R_WO0}")
            A("s_cbranch_scc0 L_noxl")
            A(f"s_add_u32 s20, s44, {(B // 8) * 32 * 4096}")
            A("s_add_u32 s20, s20, s33")
            for q in range(8):
                t, j = divmod(q, 4)
                if j == 0:
                    A(f"s_add_u32 s21, s36, {t * 4096}")
                    A("s_mov_b32 m0, s21")
                A(f"s_waitcnt vmcnt({R-1})")
                A(f"buffer_load_dwordx4 v{VOFF}, {'s[8:11]' if t == 0 else 's[12:15]'}, s20 offen offset:{j*1024} {self.kvpol} lds")
            L("L_noxl")
        self.stamp(1)
        self.stamp(11, "s[100:101]")
        self.stamp(12, "s[30:31]")
        A(f"v_and_b32 v{T0}, 15, v{LANE}")
        A(f"v_lshlrev_b32 v{T0}, 4, v{T0}")
        A("s_lshl_b32 s20, s32, 8")
        A(f"v_add_u32 v{T0}, s20, v{T0}")
        if not self.flagq:
            A("s_barrier")
            A(f"ds_read_b128 v[{QF}:{QF+3}], v{T0} offset:{L_Q}")
            A("s_waitcnt lgkmcnt(0)")
        else:
            A(f"v_mov_b32 v{T1}, 0")
            A("s_mov_b32 s88, 0x400000")
            pl = self.poll_head()
            A(f"ds_read_b32 v{AS}, v{T1} offset:{L_QF}")
            A(f"ds_read_b128 v[{QF}:{QF+3}], v{T0} offset:{L_Q}")
            A("s_waitcnt lgkmcnt(0)")
            A(f"v_cmp_eq_u32 vcc, 0, v{AS}")
            self.poll_tail(pl, sleep=1)
        if self.stamps:
            A("s_waitcnt vmcnt(0)")
        beta = [0, 2, 1, 3]
        st = {"I": B, "landed": (B if self.stamps else B - R)}

        def need(c):
            if c >= st["landed"]:
                A(f"s_waitcnt vmcnt({st['I'] - 1 - c})")
                st["landed"] = c + 1

        def paced_issue():
            I = st["I"]
            if I >= N:
                return
            if I - st["landed"] >= R:
                A(f"s_waitcnt vmcnt({R-1})")
                st["landed"] = I - (R - 1)
            issue(I)
            st["I"] = I + 1

        def consume(c):
            i, j = divmod(c, 8)
            t, j = divmod(j, 4)
            r = RING + 4 * (c % B)
            need(c)
            if B <= c < B + self.xl:
                A("s_waitcnt lgkmcnt(0)")
            if "nocomp" in self.dbg:
                A(f"v_xor_b32 v{AC}, v{AC}, v{r}")
            elif t == 0:
                A(f"v_dot2_f32_bf16 v{AC+j}, v{r}, v{QF}, 0")
                for k in range(1, 4):
                    A(f"v_dot2_f32_bf16 v{AC+j}, v{r+k}, v{QF+k}, v{AC+j}")
            else:
                a = AS + 4 * (j & 1)
                for k in range(4):
                    A(f"v_and_b32_dpp v{a+k}, v{PP}, v{MK+k} row_newbcast:{4*beta[j]} row_mask:0xf bank_mask:0xf")
                self.nop(2)
                A(f"v_mfma_f32_16x16x32_bf16 v[{D}:{D+3}], v[{a}:{a+3}], v[{r}:{r+3}], v[{D}:{D+3}]")

        def softmax():
            if "nocomp" in self.dbg:
                return
            self.nop(3)
            A(f"v_add_f32_dpp v{T0}, v{AC}, v{AC} row_ror:8 row_mask:0xf bank_mask:0x3")
            A(f"v_add_f32_dpp v{T1}, v{AC+2}, v{AC+2} row_ror:8 row_mask:0xf bank_mask:0x3")
            A(f"v_add_f32_dpp v{T0}, v{AC+1}, v{AC+1} row_ror:8 row_mask:0xf bank_mask:0xc")
            A(f"v_add_f32_dpp v{T1}, v{AC+3}, v{AC+3} row_ror:8 row_mask:0xf bank_mask:0xc")
            self.nop(1)
            A(f"v_add_f32_dpp v{S}, v{T0}, v{T0} row_shl:4 row_mask:0xf bank_mask:0x5")
            A(f"v_add_f32_dpp v{S}, v{T1}, v{T1} row_shr:4 row_mask:0xf bank_mask:0xa")
            self.nop(2)
            A(f"v_add_f32_dpp v{S}, v{S}, v{S} quad_perm:[2,3,0,1] row_mask:0xf bank_mask:0xf")
            self.nop(2)
            A(f"v_add_f32_dpp v{S}, v{S}, v{S} quad_perm:[1,0,3,2] row_mask:0xf bank_mask:0xf")
            self.rnd1(S)
            A(f"v_mul_f32 v{S}, s18, v{S}")
            self.rnd1(S)
            A(f"v_cmp_gt_f32 vcc, v{S}, v{M}")
            bk = self.lab("back")
            A(f"s_cbranch_vccz {bk}")
            A("s_call_b64 s[46:47], L_rare")
            L(bk)
            A(f"v_sub_f32 v{T0}, v{S}, v{M}")
            A(f"v_mul_f32 v{T0}, s19, v{T0}")
            A(f"v_exp_f32 v{T0}, v{T0}")
            self.nop(1)
            A(f"v_add_f32 v{LS}, v{LS}, v{T0}")
            A(f"v_cvt_pk_bf16_f32 v{PP}, v{T0}, v{T0}")
            self.nop(2)

        c = 0
        while c < NC:
            lag = st["I"] - c
            ncons = 2 if lag > R + 1 else 1
            if st["I"] < N and st["I"] - B < c and lag <= R:
                paced_issue()
            for _ in range(ncons):
                if c >= NC:
                    break
                consume(c)
                c += 1
                if c % 8 == 4:
                    softmax()
                if self.xl and c == B + self.xl:
                    A(f"v_mov_b32 v{T0}, 0")
                    A(f"v_mov_b32 v{T1}, 1")
                    A("s_mov_b64 exec, 1")
                    A(f"ds_add_u32 v{T0}, v{T1} offset:{L_PF}")
                    A("s_mov_b64 exec, -1")
            if st["I"] < N and st["I"] - B < c and (st["I"] - c) > R:
                paced_issue()
        assert st["I"] == N, (st, N)
        base = (NS - 1) * 8
        alt = base + 8
        st["landed"] = 1 << 30

        def ld(pos, sl, soff):
            t, jl = divmod(pos, 4)
            r = RING + 4 * (sl % B)
            srd = "s[8:11]" if t == 0 else "s[12:15]"
            A(f"buffer_load_dwordx4 v[{r}:{r+3}], v{VOFF}, {srd}, {soff} offen offset:{jl*1024} {self.kvpol}")

        CP = self.CP

        def claim():
            if "fake" in self.dbg:
                A("s_add_u32 s39, s39, 4")
                A("s_mov_b32 s24, s39")
                if "fakeld" in self.dbg:
                    A("s_load_dword s38, s[26:27], 0 glc")
                if "fakeat" in self.dbg:
                    A("s_mov_b32 s38, 1")
                    A("s_atomic_add s38, s[26:27], 0 glc")
                return
            A("s_mov_b32 s24, 1")
            A("s_atomic_add s24, s[26:27], 0 glc")

        def eat(sl, j_from, younger):
            for j in range(j_from, 8):
                A(f"s_waitcnt vmcnt({younger + 7 - j})")
                consume(sl + j)
                if j == 3:
                    softmax()

        CX = RING + 4 * ((base + 16) % B)
        assert (base + 16) % B + 4 <= B
        ACT = [QF, QF + 1, QF + 2, QF + 3, D, D + 1, D + 2, D + 3, M, MN, LS]
        SAV = [CX + k for k in range(11)]
        self.ctx = (ACT, SAV)
        if self.H == 2:
            A(f"v_and_b32 v{T0}, 15, v{LANE}")
            A(f"v_lshlrev_b32 v{T0}, 4, v{T0}")
            A("s_xor_b32 s20, s32, 1")
            A("s_lshl_b32 s20, s20, 8")
            A(f"v_add_u32 v{T0}, s20, v{T0}")
            A(f"ds_read_b128 v[{CX}:{CX+3}], v{T0} offset:{L_Q}")
            for k in range(4, 8):
                A(f"v_mov_b32 v{CX+k}, 0")
            A(f"v_mov_b32 v{CX+8}, {f32(-3.0e38)}")
            A(f"v_mov_b32 v{CX+9}, 0")
            A(f"v_mov_b32 v{CX+10}, 0")

        def decode(dst, hd, src=24):
            if self.H == 1:
                A(f"s_lshl_b32 s{dst}, s{src}, 15")
                A(f"s_add_u32 s{dst}, s{dst}, s42")
                if self.rot:
                    A(f"s_and_b32 s{dst}, s{dst}, 0x1fffff")
                A(f"s_add_u32 s{dst}, s{dst}, s43")
                return
            A(f"s_and_b32 s{hd}, s{src}, 1")
            A(f"s_lshr_b32 s{dst}, s{src}, 1")
            A(f"s_lshl_b32 s{dst}, s{dst}, 15")
            A(f"s_add_u32 s{dst}, s{dst}, s42")
            A(f"s_mul_i32 s21, s{hd}, {((32 * self.rot) & 63) << 15}")
            A(f"s_add_u32 s{dst}, s{dst}, s21")
            A(f"s_and_b32 s{dst}, s{dst}, 0x1fffff")
            A(f"s_lshl_b32 s21, s{hd}, 26")
            A(f"s_add_u32 s{dst}, s{dst}, s21")
            A(f"s_add_u32 s{dst}, s{dst}, s43")

        def switch(hd):
            if self.H == 1:
                return
            l = self.lab("nosw")
            A(f"s_cmp_eq_u32 s32, s{hd}")
            A(f"s_cbranch_scc1 {l}")
            A("s_call_b64 s[46:47], L_swap")
            L(l)

        if self.stamps:
            A("s_mov_b32 s78, 0")
            A("s_mov_b32 s79, 0")
        j0 = 8 - R
        assert CP < j0
        RLA, RLV, NDV, ZA = CX + 12, CX + 13, CX + 14, CX + 15
        END = 64 * self.H + 1
        A(f"v_mov_b32 v{RLA}, 0")
        A(f"v_mov_b32 v{ZA}, 0")
        A(f"v_mov_b32 v{NDV}, 1")
        if CP < 0:
            A(f"ds_max_u32 v{ZA}, v{NDV} offset:{L_NEED}")
        if self.H == 1:
            A("s_sub_u32 s42, s42, 0x8000")
            A("s_add_u32 s42, s42, s43")
        else:
            A("s_add_u32 s43, s43, s42")
            A("s_add_u32 s39, s39, s42")

        def rl_read():
            A(f"ds_read_b32 v{RLV}, v{RLA} offset:{L_RL}")

        def rl_get():
            got = self.lab("got")
            A("s_waitcnt lgkmcnt(0)")
            A(f"v_readfirstlane_b32 s24, v{RLV}")
            A("s_cmp_lg_u32 s24, 0")
            A(f"s_cbranch_scc1 {got}")
            A("s_call_b64 s[46:47], L_rlspin")
            L(got)

        def rl_next(dst, hd, ann=True):
            A(f"v_add_u32 v{NDV}, 1, v{NDV}")
            A(f"v_add_u32 v{RLA}, 4, v{RLA}")
            if ann:
                A(f"ds_max_u32 v{ZA}, v{NDV} offset:{L_NEED}")
            if self.H == 1:
                A(f"s_lshl_b32 s{dst}, s24, 15")
                A(f"s_add_u32 s{dst}, s{dst}, s42")
            else:
                A("s_sub_u32 s24, s24, 1")
                A(f"s_and_b32 s{hd}, s24, 1")
                A("s_cselect_b32 s21, s39, s43")
                A(f"s_lshr_b32 s{dst}, s24, 1")
                A(f"s_lshl_b32 s{dst}, s{dst}, 15")
                A(f"s_add_u32 s{dst}, s{dst}, s21")

        L("L_dyn")
        if self.stamps:
            A("s_add_u32 s78, s78, 1")
        switch(28)
        for j in range(8):
            if j == CP:
                A(f"ds_max_u32 v{ZA}, v{NDV} offset:{L_NEED}")
            if j == j0 - 1:
                rl_read()
            if j == j0:
                if self.stamps:
                    A("s_memrealtime s[34:35]")
                rl_get()
                if self.stamps:
                    A("s_mov_b32 m0, s78")
                    A("v_writelane_b32 v36, s34, m0")
                    A("s_add_u32 m0, s78, 32")
                    A("s_sub_u32 s35, s24, 1")
                    A("v_writelane_b32 v36, s35, m0")
                A(f"s_cmp_ge_u32 s24, {self.TH * self.H // 8 + 1}")
                A("s_cbranch_scc1 L_fin")
                rl_next(16, 28, CP < 0)
            A(f"s_waitcnt vmcnt({R-1})")
            jj = j + R
            ld(jj % 8, base + jj % 8, "s16")
            consume(base + j)
            if j == 3:
                softmax()
        A("s_branch L_dyn")
        L("L_rlspin")
        pl = self.poll_head()
        rl_read()
        A("s_waitcnt lgkmcnt(0)")
        A(f"v_cmp_eq_u32 vcc, 0, v{RLV}")
        self.poll_tail(pl, sleep=1)
        A(f"v_readfirstlane_b32 s24, v{RLV}")
        A("s_cmp_eq_u32 s24, 0")
        A(f"s_cselect_b32 s24, {END}, s24")
        A("s_setpc_b64 s[46:47]")
        L("L_fin")
        if self.stamps:
            A("s_memrealtime s[76:77]")
        if self.TH < 512:
            A(f"s_cmp_ge_u32 s24, {END}")
            A("s_cbranch_scc1 L_fin_last")
            rl_next(25, 29)
            for jj in range(8):
                ld(jj, alt + jj, "s25")
            eat(base, j0, 8)
            for (P, Q, hp, hq, me) in ((alt, base, 29, 28, "A"), (base, alt, 28, 29, "B")):
                L(f"L_eg{me}")
                if self.egw:
                    A(f"s_waitcnt vmcnt({8 - self.egw})")
                rl_read()
                rl_get()
                A(f"s_cmp_ge_u32 s24, {END}")
                A(f"s_cbranch_scc1 L_drain{me}")
                rl_next(25, hq)
                for jj in range(8):
                    ld(jj, Q + jj, "s25")
                switch(hp)
                eat(P, 0, 8)
                if me == "B":
                    A("s_branch L_egA")
            L("L_drainA")
            switch(29)
            eat(alt, 0, 0)
            A("s_branch L_done")
            L("L_drainB")
            switch(28)
            eat(base, 0, 0)
            A("s_branch L_done")
            L("L_fin_last")
        eat(base, j0, 0)
        L("L_done")
        self.stamp(2)
        if self.stamps:
            A("s_lshl_b32 s36, s2, 11")
            A("s_lshl_b32 s37, s3, 8")
            A("s_add_u32 s36, s36, s37")
            A(f"s_add_u32 s36, s36, {STAMP_OFF + 0x40000}")
            A(f"v_lshlrev_b32 v37, 2, v{LANE}")
            A("buffer_store_dword v36, v37, s[84:87], s36 offen")
        self.stamp(32, wave=True)
        self.stamp(33, "s[76:77]", wave=True)
        self.stamp(34, "s[78:79]", wave=True)
        if self.stamps:
            A("s_cmp_eq_u32 s3, 0")
            A("s_cbranch_scc0 L_noprof")
            for i in range(min(NS, 12)):
                self.stamp(16 + i, f"s[{48+2*i}:{49+2*i}]")
            self.stamp(16 + 14)
            L("L_noprof")
        if self.H == 1:
            for ctl, msk in (("row_ror:4", "0xf"), ("row_ror:8", "0xf"), ("row_bcast:15", "0xa"), ("row_bcast:31", "0xc")):
                A(f"v_add_f32_dpp v{LS}, v{LS}, v{LS} {ctl} row_mask:{msk} bank_mask:0xf")
                if ctl == "row_ror:4":
                    A("s_lshl_b32 s20, 1, s3")
                    A(f"v_mov_b32 v{T0}, 0")
                elif ctl == "row_ror:8":
                    A(f"v_mov_b32 v{T1}, s20")
                    self.nop(1)
                else:
                    self.nop(2)
            A(f"ds_write_b128 v35, v[{D}:{D+3}] offset:{L_P}")
            A(f"v_mov_b32 v{MN}, v{LS}")
            A("s_mov_b32 exec_lo, 0")
            A("s_mov_b32 exec_hi, 0x80000000")
            A(f"ds_write_b64 v25, v[{M}:{M+1}] offset:{L_ML}")
            if self.inc:
                A(f"ds_or_b32 v{T0}, v{T1} offset:{L_DONE}")
            else:
                A("s_waitcnt lgkmcnt(0)")
                A("s_barrier")
            A("s_endpgm")
        else:
            LS2, M2, D2 = CX + 10, CX + 8, CX + 4
            for ctl, msk in (("row_ror:4", "0xf"), ("row_ror:8", "0xf"), ("row_bcast:15", "0xa"), ("row_bcast:31", "0xc")):
                A(f"v_add_f32_dpp v{LS}, v{LS}, v{LS} {ctl} row_mask:{msk} bank_mask:0xf")
                A(f"v_add_f32_dpp v{LS2}, v{LS2}, v{LS2} {ctl} row_mask:{msk} bank_mask:0xf")
                self.nop(1)
            A("s_lshl_b32 s20, s32, 13")
            A("s_xor_b32 s21, s20, 8192")
            A(f"v_add_u32 v{T0}, s20, v35")
            A(f"v_add_u32 v{T1}, s21, v35")
            A(f"ds_write_b128 v{T0}, v[{D}:{D+3}] offset:{L_P}")
            A(f"ds_write_b128 v{T1}, v[{D2}:{D2+3}] offset:{L_P}")
            A(f"v_mov_b32 v{MN}, v{LS}")
            A(f"v_mov_b32 v{M2+1}, v{LS2}")
            A("s_lshl_b32 s20, s32, 6")
            A("s_xor_b32 s21, s20, 64")
            A(f"v_add_u32 v{T0}, s20, v25")
            A(f"v_add_u32 v{T1}, s21, v25")
            A("s_mov_b32 exec_lo, 0")
            A("s_mov_b32 exec_hi, 0x80000000")
            A(f"ds_write_b64 v{T0}, v[{M}:{M+1}] offset:{L_ML}")
            A(f"ds_write_b64 v{T1}, v[{M2}:{M2+1}] offset:{L_ML}")
            A("s_waitcnt lgkmcnt(0)")
            A("s_barrier")
            A("s_endpgm")
            L("L_swap")
            self.nop(8)
            for a, b in zip(ACT, SAV):
                A(f"v_swap_b32 v{a}, v{b}")
            A("s_xor_b32 s32, s32, 1")
            A("s_setpc_b64 s[46:47]")

        L("L_rare")
        A(f"v_max_f32_dpp v{T0}, v{S}, v{S} row_ror:4 row_mask:0xf bank_mask:0xf")
        self.nop(2)
        A(f"v_max_f32_dpp v{T0}, v{T0}, v{T0} row_ror:8 row_mask:0xf bank_mask:0xf")
        self.nop(1)
        A(f"v_readlane_b32 s20, v{T0}, 0")
        A(f"v_readlane_b32 s21, v{T0}, 16")
        A(f"v_readlane_b32 s22, v{T0}, 32")
        A(f"v_readlane_b32 s23, v{T0}, 48")
        A(f"v_max_f32 v{T1}, s20, v{M}")
        A(f"v_max_f32 v{T1}, s21, v{T1}")
        A(f"v_max_f32 v{T1}, s22, v{T1}")
        A(f"v_max_f32 v{T1}, s23, v{T1}")
        A(f"v_sub_f32 v{T0}, v{M}, v{T1}")
        A(f"v_mul_f32 v{T0}, s19, v{T0}")
        A(f"v_exp_f32 v{T0}, v{T0}")
        A(f"v_mov_b32 v{M}, v{T1}")
        for k in range(4):
            A(f"v_mul_f32 v{D+k}, v{D+k}, v{T0}")
        A(f"v_mul_f32 v{LS}, v{LS}, v{T0}")
        A("s_setpc_b64 s[46:47]")

    def helper(self):
        A, L = self.A, self.L
        A("s_setprio 2")
        A("s_sub_u32 s3, s3, 8")
        A("s_load_dwordx2 s[24:25], s[0:1], 0")
        A("s_load_dwordx4 s[28:31], s[0:1], 24")
        A("s_load_dwordx4 s[32:35], s[0:1], 48")
        A("s_load_dwordx4 s[36:39], s[0:1], 64")
        A("s_load_dwordx4 s[48:51], s[0:1], 80")
        A("s_memrealtime s[66:67]")
        A("s_mov_b32 s88, 0x80000")
        A("v_mov_b32 v12, 0")
        A("v_mov_b32 v13, 0")
        A("v_mov_b32 v14, 0")
        A("v_mov_b32 v15, 0")
        A("v_lshlrev_b32 v14, 2, v2")
        A(f"ds_write_b32 v14, v12 offset:{L_Z}")
        A(f"ds_write_b32 v14, v12 offset:{L_Z+256}")
        HB, HI, G, TT = 3, 4, 5, 6
        A(f"v_lshrrev_b32 v{HB}, 5, v2")
        A(f"v_and_b32 v{HI}, 31, v2")
        A(f"v_lshrrev_b32 v{G}, 4, v2")
        A(f"v_and_b32 v{TT}, 15, v2")
        VAW, VAR, VDW, VTR = 7, 8, 9, 10
        A("s_lshl_b32 s52, s3, 9")
        A(f"v_lshlrev_b32 v{VAW}, 8, v{HB}")
        A(f"v_lshl_add_u32 v{VAW}, v{HI}, 3, v{VAW}")
        A(f"s_add_u32 s53, s52, {L_A}")
        A(f"v_add_u32 v{VAW}, s53, v{VAW}")
        A(f"v_and_b32 v{VAR}, 1, v2")
        A(f"v_lshlrev_b32 v{VAR}, 8, v{VAR}")
        A(f"v_lshl_add_u32 v{VAR}, v{G}, 4, v{VAR}")
        A(f"v_add_u32 v{VAR}, s53, v{VAR}")
        A(f"s_add_u32 s53, s52, {L_D}")
        A(f"v_lshlrev_b32 v{VDW}, 2, v2")
        A(f"v_add_u32 v{VDW}, s53, v{VDW}")
        A("s_waitcnt lgkmcnt(0)")
        self.srd(84, 98, 0x20000000)
        self.srd(76, 96, 256)
        A("s_or_b32 s54, s2, s3")
        A("s_cmp_eq_u32 s54, 0")
        A("s_cbranch_scc0 L_notagw")
        A("s_or_b32 s66, s66, 1")
        A("v_mov_b32 v12, s66")
        A("s_mov_b64 exec, 1")
        A("buffer_atomic_cmpswap v[12:13], off, s[76:79], 0 sc1")
        A("s_mov_b64 exec, -1")
        L("L_notagw")
        self.srd(20, 24, 2048)
        A(f"s_add_u32 s16, s98, {HH_OFF}")
        A("s_addc_u32 s17, s99, 0")
        A(f"s_mov_b32 s18, {43*128}")
        A("s_mov_b32 s19, 0x20000")
        self.srd(72, 50, 2048)
        for r in range(10, 24):
            A(f"v_mov_b32 v{r}, 0")
        for r in (54, 55, 56, 57, 59, 60, 61, 62):
            A(f"s_mov_b32 s{r}, 0")
        if self.H == 1:
            A("s_lshl_b32 s83, s40, 3")
            A("s_add_u32 s83, s83, s41")
            A("s_lshl_b32 s83, s83, 10")
            A(f"s_add_u32 s83, s83, {PART_OFF}")
            A("s_mov_b32 s82, s40")
            A("s_mov_b32 s81, s41")
            A("s_mov_b32 s67, s83")
        else:
            A(f"s_xor_b32 s82, s40, {self.px}")
            A("s_min_u32 s82, s82, s40")
            A("s_lshr_b32 s54, s40, 5")
            A("s_lshl_b32 s54, s54, 2")
            A("s_add_u32 s54, s54, s41")
            A("s_lshl_b32 s54, s54, 10")
            A(f"s_add_u32 s54, s54, {PART_OFF}")
            A("s_lshl_b32 s83, s82, 13")
            A("s_add_u32 s83, s83, s54")
            A(f"s_xor_b32 s67, s82, {self.px}")
            A("s_lshl_b32 s67, s67, 13")
            A("s_add_u32 s67, s67, s54")
            A("s_lshr_b32 s81, s40, 5")
            A("s_or_b32 s81, s81, s41")
        A("s_mov_b32 s45, s82")
        A("s_lshl_b32 s82, s82, 7")
        A(f"s_add_u32 s82, s82, {CNT_OFF}")
        if "dpro" in self.dbg:
            for r in (4, 6, 100, 42):
                A(f"s_mov_b32 s{r}, 0")
        self.stamp(0)
        A("s_mov_b32 s44, 0")
        A(f"s_cmp_lt_u32 s89, {16 if self.late else R_Q0}")
        A("s_cbranch_scc1 L_pro_mod")
        A(f"s_sub_u32 s54, s89, {R_Q0}")
        A(f"s_cmp_lt_u32 s54, {R_WO0 - R_Q0}")
        A("s_cbranch_scc1 L_pro_q")
        if self.cpf:
            A(f"s_cmp_lt_u32 s2, {self.cpf}")
            A("s_cbranch_scc0 L_nocpf")
            A("s_getpc_b64 s[8:9]")
            L("L_pc")
            A(f"s_sub_u32 s8, s8, L_pc-{NAME}_kernel")
            A("s_subb_u32 s9, s9, 0")
            A(f"s_mov_b32 s10, L_codeend-{NAME}_kernel")
            A("s_mov_b32 s11, 0x20000")
            A("v_lshlrev_b32 v11, 4, v2")
            A("s_lshl_b32 s54, s3, 10")
            for i in range(9):
                A(f"buffer_load_dwordx4 v[{40+4*i}:{43+4*i}], v11, s[8:11], s54 offen")
                A("s_add_u32 s54, s54, 4096")
            L("L_nocpf")
        A("s_barrier")
        A("s_branch L_common1")

        BF, AF, DT = 40, 24, 12
        DT = 104
        TMP = 120

        def wide_voff(rowbytes, colbyte_s):
            A("s_lshl_b32 s54, s3, 7")
            A("v_lshrrev_b32 v11, 3, v2")
            A("v_add_u32 v11, s54, v11")
            A(f"s_mov_b32 s55, {rowbytes}")
            A("v_mul_lo_u32 v11, v11, s55")
            A(f"v_and_b32 v{TMP}, 7, v2")
            A(f"v_lshl_add_u32 v11, v{TMP}, 4, v11")
            A(f"v_add_u32 v11, s{colbyte_s}, v11")

        def wide_tr_base():
            A(f"v_lshrrev_b32 v{VTR}, 2, v{TT}")
            A(f"v_lshl_add_u32 v{VTR}, v{G}, 3, v{VTR}")
            A(f"v_lshlrev_b32 v{VTR}, 7, v{VTR}")
            A(f"v_and_b32 v{TMP}, 3, v{TT}")
            A(f"v_lshl_add_u32 v{VTR}, v{TMP}, 3, v{VTR}")
            A("s_lshl_b32 s54, s3, 14")
            A(f"s_add_u32 s54, s54, {L_W}")
            A(f"v_add_u32 v{VTR}, s54, v{VTR}")

        L("L_pro_mod")
        self.srd(12, 38, 2048)
        A(f"v_lshlrev_b32 v{TMP}, 10, v{HB}")
        A(f"v_lshl_add_u32 v{TMP}, v{HI}, 3, v{TMP}")
        A("s_lshl_b32 s54, s3, 8")
        A(f"buffer_load_dwordx2 v[{TMP+2}:{TMP+3}], v{TMP}, s[12:15], s54 offen")
        self.srd(8, 48, 512 * 6144)
        A("s_lshl_b32 s56, s89, 7")
        wide_voff(6144, 56)
        A("s_lshl_b32 s57, s3, 14")
        self.dma_weights(8, 16, 11, 8 * 6144, 57)
        if self.late or self.hold:
            if self.late and self.hold:
                A("s_branch L_mod_nob1")
            elif self.late:
                A("s_cmp_eq_u32 s44, 0")
                A("s_cbranch_scc0 L_mod_nob1")
            else:
                A("s_cmp_lt_u32 s89, 16")
                A("s_cbranch_scc1 L_mod_nob1")
        A("s_barrier")
        L("L_mod_nob1")
        wide_tr_base()
        A("s_waitcnt vmcnt(16)")
        X = TMP + 4
        self.unpack2(TMP + 2, X, X + 1)
        self.unpack2(TMP + 3, X + 2, X + 3)
        A(f"s_mov_b32 s58, {f32(-LOG2E)}")
        for k in range(4):
            A(f"v_mul_f32 v{X+4+k}, s58, v{X+k}")
        for k in range(4):
            A(f"v_exp_f32 v{X+4+k}, v{X+4+k}")
        self.nop(1)
        for k in range(4):
            A(f"v_add_f32 v{X+4+k}, 1.0, v{X+4+k}")
        for k in range(4):
            A(f"v_rcp_f32 v{X+4+k}, v{X+4+k}")
        self.nop(1)
        for k in range(4):
            A(f"v_mul_f32 v{X+k}, v{X+k}, v{X+4+k}")
        A(f"v_cvt_pk_bf16_f32 v{X+8}, v{X}, v{X+1}")
        A(f"v_cvt_pk_bf16_f32 v{X+9}, v{X+2}, v{X+3}")
        A(f"ds_write_b64 v{VAW}, v[{X+8}:{X+9}]")
        A("s_lshr_b32 s60, s89, 3")
        A("s_lshl_b32 s60, s60, 12")
        A("s_and_b32 s61, s89, 7")
        A("s_lshl_b32 s61, s61, 8")
        A("s_add_u32 s60, s60, s61")
        A(f"s_add_u32 s60, s60, {MOD_OFF}")
        A("s_mov_b32 s61, 2048")
        A("s_mov_b32 s62, 0")
        if self.late:
            A("s_cmp_eq_u32 s44, 0")
            A("s_cbranch_scc1 L_common1")
            A("s_waitcnt vmcnt(0)")
            A("s_branch L_gemv0")
        else:
            A("s_branch L_common1")

        L("L_pro_q")
        A(f"v_lshlrev_b32 v{TMP}, 10, v{HB}")
        A(f"v_lshl_add_u32 v{TMP+1}, v{HI}, 5, v{TMP}")
        A(f"buffer_load_dwordx4 v[{TMP+4}:{TMP+7}], v{TMP+1}, s[20:23], 0 offen")
        A(f"buffer_load_dwordx4 v[{TMP+8}:{TMP+11}], v{TMP+1}, s[20:23], 0 offen offset:16")
        A(f"v_lshl_add_u32 v{TMP}, v{HI}, 3, v{TMP}")
        A("s_lshl_b32 s54, s3, 8")
        A(f"buffer_load_dwordx2 v[{TMP+2}:{TMP+3}], v{TMP}, s[20:23], s54 offen")
        self.srd(8, 28, 512 * 8192)
        A(f"s_sub_u32 s59, s89, {R_Q0}")
        A("s_lshl_b32 s56, s59, 7")
        wide_voff(8192, 56)
        A("s_lshl_b32 s57, s3, 14")
        self.dma_weights(8, 16, 11, 8 * 8192, 57)
        A("s_barrier")
        wide_tr_base()
        A("s_waitcnt vmcnt(16)")
        S1, S2, U0, U1 = TMP + 12, TMP + 13, TMP + 14, TMP + 15
        A(f"v_mov_b32 v{S1}, 0")
        A(f"v_mov_b32 v{S2}, 0")
        for k in range(8):
            self.unpack2(TMP + 4 + k, U0, U1)
            A(f"v_add_f32 v{S1}, v{S1}, v{U0}")
            A(f"v_fmac_f32 v{S2}, v{U0}, v{U0}")
            A(f"v_add_f32 v{S1}, v{S1}, v{U1}")
            A(f"v_fmac_f32 v{S2}, v{U1}, v{U1}")
        self.allred32([S1, S2], [U0, U1])
        NX = TMP + 16
        self.unpack2(TMP + 2, NX, NX + 1)
        self.unpack2(TMP + 3, NX + 2, NX + 3)
        self.ln_norm(S1, S2, NX, U0, U1)
        A("s_lshl_b32 s60, s59, 8")
        A(f"s_add_u32 s60, s60, {Q_OFF}")
        A("s_mov_b32 s61, 16384")
        A("s_mov_b32 s62, 1")
        L("L_common1")
        A("buffer_load_dword v165, off, s[76:79], 0 sc1")
        CL = TMP + 24
        for k in range(4):
            A(f"v_mov_b32 v{CL+k}, -1")
        A("s_cmp_eq_u32 s3, 3")
        A("s_cbranch_scc0 L_noclear")
        A(f"v_lshlrev_b32 v{CL+4}, 4, v2")
        A("s_mov_b32 exec_lo, -1")
        A("s_mov_b32 exec_hi, 1")
        A(f"buffer_store_dwordx4 v[{CL}:{CL+3}], v{CL+4}, s[84:87], s83 offen sc1")
        if self.H == 2:
            A(f"buffer_store_dwordx4 v[{CL}:{CL+3}], v{CL+4}, s[84:87], s67 offen sc1")
        A("s_mov_b64 exec, -1")
        A(f"s_sub_u32 s64, s89, {R_WO0}")
        A("s_cmp_lt_u32 s64, 64")
        A("s_cbranch_scc0 L_noclr_wo")
        self.slice_of(64, R_WO0, 64)
        A("s_lshr_b32 s65, s64, 3")
        A("s_lshl_b32 s65, s65, 12")
        A("s_and_b32 s66, s64, 7")
        A("s_lshl_b32 s66, s66, 8")
        A("s_add_u32 s65, s65, s66")
        A(f"s_add_u32 s65, s65, {ATT_OFF}")
        A(f"v_lshlrev_b32 v{CL+4}, 11, v{G}")
        A(f"v_lshl_add_u32 v{CL+4}, v{TT}, 4, v{CL+4}")
        A("s_mov_b32 exec_hi, 0")
        A(f"buffer_store_dwordx4 v[{CL}:{CL+3}], v{CL+4}, s[84:87], s65 offen sc1")
        A("s_mov_b64 exec, -1")
        L("L_noclr_wo")
        A(f"s_sub_u32 s64, s89, {R_UP0}")
        A("s_cmp_lt_u32 s64, 43")
        A("s_cbranch_scc0 L_noclr_up")
        self.slice_of(64, R_UP0, 43)
        A("s_lshl_b32 s65, s64, 7")
        A(f"s_add_u32 s65, s65, {HH_OFF}")
        A(f"v_lshlrev_b32 v{CL+4}, 4, v2")
        A("s_mov_b64 exec, 0xff")
        A(f"buffer_store_dwordx4 v[{CL}:{CL+3}], v{CL+4}, s[84:87], s65 offen sc1")
        A("s_mov_b64 exec, -1")
        L("L_noclr_up")
        A("s_cmp_eq_u32 s81, 0")
        A("s_cbranch_scc0 L_noclr_cnt")
        A(f"v_mov_b32 v{CL+4}, {self.NS*4*self.H}")
        A(f"s_mul_i32 s65, s45, {self.cstr}")
        A(f"s_add_u32 s65, s65, {CTR_OFF}")
        A("s_mov_b64 exec, 1")
        A(f"buffer_store_dword v{CL+4}, off, s[84:87], s65 sc1")
        A("s_mov_b64 exec, -1")
        L("L_noclr_cnt")
        L("L_noclear")
        A("s_waitcnt vmcnt(0)")
        if self.hold:
            A("s_cmp_lt_u32 s89, 16")
            A("s_cbranch_scc0 L_nohold3")
            A("s_barrier")
            L("L_nohold3")
        A("v_cmp_eq_u32 vcc, 0, v165")
        A("s_cbranch_vccz L_gottag")
        pl = self.poll_head()
        A("buffer_load_dword v165, off, s[76:79], 0 sc1")
        A("s_waitcnt vmcnt(0)")
        A("v_cmp_eq_u32 vcc, 0, v165")
        self.poll_tail(pl, sleep=2)
        L("L_gottag")
        A("v_readfirstlane_b32 s80, v165")
        self.dmark(3)
        self.stamp(10)
        A("s_cmp_eq_u32 s3, 3")
        A("s_cbranch_scc0 L_nocount")
        A("s_and_b32 s63, s2, 3")
        A("s_lshl_b32 s63, s63, 2")
        A("s_add_u32 s63, s63, 128")
        A(f"v_mov_b32 v{CL+5}, 1")
        A("s_mov_b64 exec, 1")
        A(f"buffer_atomic_add v{CL+5}, off, s[76:79], s63 sc1")
        A("s_cmp_eq_u32 s81, 0")
        A("s_cbranch_scc0 L_nocnttag")
        A(f"v_mov_b32 v{CL+4}, s80")
        A(f"buffer_store_dword v{CL+4}, off, s[84:87], s82 offset:64 sc1")
        L("L_nocnttag")
        A("s_mov_b64 exec, -1")
        L("L_nocount")
        A(f"s_cmp_lt_u32 s89, {R_WO0}")
        A("s_cbranch_scc0 L_qgather")
        if self.late:
            A("s_sub_u32 s54, s89, 16")
            A("s_cmp_lt_u32 s54, 32")
            A("s_cbranch_scc1 L_qgather")
        L("L_gemv0")
        self.tr_reads(VTR, BF, 4, [0, 32, 64, 96], 128)
        A("s_cmp_eq_u32 s62, 0")
        A("s_cbranch_scc1 L_pro_gemv")
        GA = TMP + 4
        A(f"v_lshlrev_b32 v{TMP}, 11, v{HB}")
        A(f"v_lshl_add_u32 v{TMP}, v{HI}, 4, v{TMP}")
        A("s_lshl_b32 s54, s3, 9")
        A(f"s_add_u32 s54, s54, {MOD_OFF}")
        A(f"s_add_u32 s55, s54, 4096")
        pl = self.poll_head()
        A(f"buffer_load_dwordx4 v[{GA}:{GA+3}], v{TMP}, s[84:87], s55 offen sc1")
        A(f"buffer_load_dwordx4 v[{GA+4}:{GA+7}], v{TMP}, s[84:87], s54 offen sc1")
        A("s_waitcnt vmcnt(0)")
        self.check_tags([GA + 1, GA + 3, GA + 5, GA + 7], TMP + 1)
        self.poll_tail(pl, sleep=self.ps1)
        self.stamp(3)
        self.dmark(2)
        T4 = TMP + 20
        self.unpack2(GA, T4, T4 + 1)
        self.unpack2(GA + 2, T4 + 2, T4 + 3)
        for k in range(4):
            A(f"v_add_f32 v{T4+k}, 1.0, v{T4+k}")
        self.rnd2(T4, T4 + 1, TMP + 1)
        self.rnd2(T4 + 2, T4 + 3, TMP + 2)
        self.modulate(NX, T4, GA + 4, GA + 6, TMP + 1, TMP + 24, VAW)
        L("L_pro_gemv")
        self.a_frags_from_stage(VAR, AF)
        self.mfmas(AF, BF, DT, 4, 4, lgkm=True)
        self.d_to_lds(DT, 4, TMP, TMP + 1, VDW)
        A(f"v_mov_b32 v{TMP+2}, {L_CNT}")
        A(f"v_mov_b32 v{TMP+3}, 1")
        A("s_mov_b64 exec, 1")
        A(f"ds_add_rtn_u32 v{TMP+4}, v{TMP+2}, v{TMP+3}")
        A("s_mov_b64 exec, -1")
        A("s_waitcnt lgkmcnt(0)")
        A(f"v_readfirstlane_b32 s54, v{TMP+4}")
        A("s_cmp_eq_u32 s54, 3")
        A("s_cbranch_scc0 L_qgather")
        self.d_sum(G, TT, TMP)
        A(f"v_cvt_pk_bf16_f32 v{TMP+8}, v{TMP+4}, v{TMP+5}")
        A(f"v_mov_b32 v{TMP+9}, s80")
        A(f"v_cvt_pk_bf16_f32 v{TMP+10}, v{TMP+6}, v{TMP+7}")
        A(f"v_mov_b32 v{TMP+11}, s80")
        A(f"v_mul_lo_u32 v{TMP}, v{G}, s61")
        A(f"v_lshl_add_u32 v{TMP}, v{TT}, 4, v{TMP}")
        A("s_mov_b32 exec_hi, 0")
        A(f"buffer_store_dwordx4 v[{TMP+8}:{TMP+11}], v{TMP}, s[84:87], s60 offen sc1")
        A("s_mov_b64 exec, -1")
        self.stamp(4)
        self.dmark(1)
        L("L_qgather")
        if self.late:
            A("s_cmp_eq_u32 s44, 0")
            A("s_cbranch_scc0 L_b3")
        A("s_cmp_eq_u32 s3, 3")
        A("s_cbranch_scc0 L_qg2")
        pl = self.poll_head()
        A(f"buffer_load_dword v{TMP}, off, s[84:87], s82 offset:64 sc1")
        A("s_waitcnt vmcnt(0)")
        A(f"v_cmp_ne_u32 vcc, s80, v{TMP}")
        self.poll_tail(pl, sleep=8)
        if self.flagq:
            A(f"v_mov_b32 v{TMP}, 0")
            A(f"v_mov_b32 v{TMP+1}, 1")
            A(f"ds_write_b32 v{TMP}, v{TMP+1} offset:{L_QF+4}")
        L("L_qg2")
        A("s_cmp_eq_u32 s3, 0")
        A("s_cbranch_scc0 L_b2")
        A("s_lshl_b32 s54, s45, 9")
        A(f"s_add_u32 s54, s54, {Q_OFF}")
        A(f"s_xor_b32 s55, s45, {self.px}")
        A("s_lshl_b32 s55, s55, 9")
        A(f"s_add_u32 s55, s55, {Q_OFF}")
        A(f"v_lshlrev_b32 v{TMP}, 3, v2")
        pl = self.poll_head()
        A(f"buffer_load_dwordx2 v[{TMP+2}:{TMP+3}], v{TMP}, s[84:87], s54 offen sc1")
        if self.H == 2:
            A(f"buffer_load_dwordx2 v[{TMP+4}:{TMP+5}], v{TMP}, s[84:87], s55 offen sc1")
        A("s_waitcnt vmcnt(0)")
        self.check_tags([TMP + 3, TMP + 5][:self.H], TMP + 6)
        self.poll_tail(pl, sleep=self.ps2)
        A(f"v_lshlrev_b32 v{TMP}, 2, v2")
        A(f"ds_write_b32 v{TMP}, v{TMP+2} offset:{L_Q}")
        if self.H == 2:
            A(f"ds_write_b32 v{TMP}, v{TMP+4} offset:{L_Q+256}")
        if self.flagq:
            A(f"v_mov_b32 v{TMP}, 0")
            A(f"v_mov_b32 v{TMP+1}, 1")
            A(f"ds_write_b32 v{TMP}, v{TMP+1} offset:{L_QF}")
        A("s_waitcnt lgkmcnt(0)")
        self.stamp(5)
        self.dmark(0)
        L("L_b2")
        if not self.flagq:
            A("s_barrier")
        else:
            A(f"v_mov_b32 v{TMP}, 0")
            pl = self.poll_head()
            A(f"ds_read_b32 v{TMP+1}, v{TMP} offset:{L_PF if self.xl else L_QF}")
            A("s_waitcnt lgkmcnt(0)")
            A(f"v_cmp_gt_u32 vcc, {8 if self.xl else 1}, v{TMP+1}")
            self.poll_tail(pl, sleep=4)
        if self.late:
            A("s_sub_u32 s54, s89, 16")
            A("s_cmp_lt_u32 s54, 32")
            A("s_cselect_b32 s44, 1, 0")
            A("s_cbranch_scc1 L_pro_mod")
        A(f"s_cmp_lt_u32 s89, {R_WO0}")
        A("s_cbranch_scc1 L_b3")
        A(f"s_cmp_lt_u32 s89, {R_WO1}")
        A("s_cbranch_scc1 L_prep_wo")
        A(f"s_cmp_ge_u32 s89, {R_DN0}")
        A("s_cbranch_scc1 L_prep_dn")
        A(f"s_cmp_lt_u32 s89, {R_UP0}")
        A("s_cbranch_scc1 L_b3")
        A(f"s_cmp_lt_u32 s89, {R_UP1}")
        A("s_cbranch_scc1 L_prep_up")
        A("s_branch L_b3")

        def narrow_voff(rowbytes, rows_per_wave, colbyte_s):
            A(f"s_mul_i32 s54, s3, {rows_per_wave}")
            A("v_lshrrev_b32 v11, 2, v2")
            A("v_add_u32 v11, s54, v11")
            A(f"s_mov_b32 s55, {rowbytes}")
            A("v_mul_lo_u32 v11, v11, s55")
            A(f"v_and_b32 v{VTR}, 3, v2")
            A(f"v_lshl_add_u32 v11, v{VTR}, 4, v11")
            A(f"v_add_u32 v11, s{colbyte_s}, v11")

        def narrow_tr_base(rows_per_wave):
            A(f"v_lshrrev_b32 v{VTR}, 2, v{TT}")
            A(f"v_lshl_add_u32 v{VTR}, v{G}, 3, v{VTR}")
            A(f"v_lshlrev_b32 v{VTR}, 6, v{VTR}")
            A(f"v_and_b32 v12, 3, v{TT}")
            A(f"v_lshl_add_u32 v{VTR}, v12, 3, v{VTR}")
            A(f"s_mul_i32 s54, s3, {rows_per_wave*64}")
            A(f"s_add_u32 s54, s54, {L_W}")
            A(f"v_add_u32 v{VTR}, s54, v{VTR}")

        def wait_cleared(t):
            pl = self.poll_head()
            A(f"buffer_load_dwordx4 v[{t}:{t+3}], off, s[76:79], 0 offset:128 sc1")
            A("s_waitcnt vmcnt(0)")
            A(f"v_add_u32 v{t}, v{t}, v{t+1}")
            A(f"v_add3_u32 v{t}, v{t}, v{t+2}, v{t+3}")
            A(f"v_cmp_gt_u32 vcc, 256, v{t}")
            self.poll_tail(pl, sleep=16)

        self.intail = True
        L("L_prep_wo")
        self.slice_of(59, R_WO0, 64)
        self.srd(8, 30, 4096 * 1024)
        A("s_lshr_b32 s56, s59, 3")
        A("s_lshl_b32 s56, s56, 19")
        A("s_and_b32 s57, s59, 7")
        A("s_lshl_b32 s57, s57, 7")
        A("s_add_u32 s56, s56, s57")
        wide_voff(1024, 56)
        A("s_lshl_b32 s57, s3, 14")
        self.dma_weights(8, 16, 11, 8 * 1024, 57, skip='nowo')
        wide_tr_base()
        wait_cleared(TMP)
        self.tr_reads(VTR, BF, 4, [0, 32, 64, 96], 128)
        A(f"v_lshlrev_b32 v11, 18, v{HB}")
        A(f"v_lshl_add_u32 v12, v{HI}, 4, v11")
        A(f"v_and_b32 v{TMP}, {4*self.H-1}, v2")
        A(f"v_lshl_add_u32 v11, v{TMP}, 10, v11")
        A("s_lshr_b32 s56, s59, 3")
        A("s_lshl_b32 s60, s56, 12")
        A("s_lshl_b32 s56, s56, 2")
        A("s_add_u32 s56, s56, s3")
        A("s_lshl_b32 s56, s56, 13")
        A(f"s_add_u32 s56, s56, {PART_OFF}")
        A("s_add_u32 s55, s56, 4096")
        A("s_and_b32 s57, s59, 7")
        A("s_lshl_b32 s57, s57, 8")
        A("s_add_u32 s60, s60, s57")
        A(f"s_add_u32 s60, s60, {ATT_OFF}")
        A("s_waitcnt lgkmcnt(0)")
        A("s_branch L_b3")

        XV, GAV, T4U, SBV = TMP + 28, TMP + 32, TMP + 36, TMP + 40
        L("L_prep_up")
        self.slice_of(59, R_UP0, 43)
        self.srd(8, 32, 512 * 2752)
        self.srd(12, 34, 512 * 2752)
        A("s_lshl_b32 s56, s59, 6")
        narrow_voff(2752, 128, 56)
        A("s_lshl_b32 s57, s3, 13")
        self.dma_weights(8, 8, 11, 16 * 2752, 57, skip='noup')
        A("s_add_u32 s57, s57, 32768")
        self.dma_weights(12, 8, 11, 16 * 2752, 57, skip='noup')
        narrow_tr_base(128)
        A(f"v_lshlrev_b32 v{TMP}, 10, v{HB}")
        A(f"v_lshl_add_u32 v{TMP}, v{HI}, 3, v{TMP}")
        A("s_lshl_b32 s54, s3, 8")
        A(f"buffer_load_dwordx2 v[{TMP+2}:{TMP+3}], v{TMP}, s[20:23], s54 offen")
        A(f"v_lshlrev_b32 v{TMP}, 11, v{HB}")
        A(f"v_lshl_add_u32 v{TMP}, v{HI}, 4, v{TMP}")
        A("s_lshl_b32 s54, s3, 9")
        A(f"s_add_u32 s54, s54, {MOD_OFF + 2*4096}")
        A(f"s_add_u32 s55, s54, 4096")
        A(f"s_add_u32 s56, s54, 8192")
        GA = TMP + 4
        pl = self.poll_head()
        A(f"buffer_load_dwordx4 v[{GA}:{GA+3}], v{TMP}, s[84:87], s54 offen sc1")
        A(f"buffer_load_dwordx4 v[{GA+4}:{GA+7}], v{TMP}, s[84:87], s55 offen sc1")
        A(f"buffer_load_dwordx4 v[{GA+8}:{GA+11}], v{TMP}, s[84:87], s56 offen sc1")
        A("s_waitcnt vmcnt(0)")
        self.check_tags([GA + 1, GA + 3, GA + 5, GA + 7, GA + 9, GA + 11], TMP + 16)
        self.poll_tail(pl)
        self.unpack2(TMP + 2, XV, XV + 1)
        self.unpack2(TMP + 3, XV + 2, XV + 3)
        self.unpack2(GA, GAV, GAV + 1)
        self.unpack2(GA + 2, GAV + 2, GAV + 3)
        A(f"v_mov_b32 v{SBV}, v{GA+4}")
        A(f"v_mov_b32 v{SBV+1}, v{GA+6}")
        self.unpack2(GA + 8, T4U, T4U + 1)
        self.unpack2(GA + 10, T4U + 2, T4U + 3)
        for k in range(4):
            A(f"v_add_f32 v{T4U+k}, 1.0, v{T4U+k}")
        self.rnd2(T4U, T4U + 1, TMP + 1)
        self.rnd2(T4U + 2, T4U + 3, TMP + 1)
        wait_cleared(TMP)
        self.tr_reads(VTR, BF, 4, [0, 32, 32768, 32768 + 32], 64)
        A(f"v_lshlrev_b32 v12, 11, v{HB}")
        A(f"v_lshl_add_u32 v12, v{HI}, 4, v12")
        A("s_lshl_b32 s56, s3, 9")
        A(f"s_add_u32 s56, s56, {ATT_OFF}")
        A("s_lshl_b32 s60, s59, 7")
        A(f"s_add_u32 s60, s60, {HH_OFF}")
        A("s_waitcnt lgkmcnt(0)")
        A("s_branch L_b3")

        DBF, DAF, DDT = 32, 120, 24
        L("L_prep_dn")
        self.slice_of(59, R_DN0, 16)
        self.srd(8, 36, 1376 * 1024)
        A("s_lshl_b32 s56, s59, 6")
        narrow_voff(1024, 352, 56)
        A(f"s_mul_i32 s57, s3, {352*64}")
        self.dma_weights(8, 22, 11, 16 * 1024, 57, skip='nodn')
        narrow_tr_base(352)
        A("v_lshrrev_b32 v13, 3, v2")
        A("v_and_b32 v13, 1, v13")
        A("v_and_b32 v14, 7, v2")
        A("v_lshlrev_b32 v15, 10, v13")
        A("v_lshl_add_u32 v15, v14, 3, v15")
        A("buffer_load_dwordx2 v[16:17], v15, s[20:23], s56 offen")
        A("v_lshlrev_b32 v15, 11, v13")
        A("v_lshl_add_u32 v15, v14, 4, v15")
        A("s_lshl_b32 s54, s59, 7")
        A(f"s_add_u32 s55, s54, {MOD_OFF + 5*4096}")
        A(f"s_add_u32 s54, s54, {MOD_OFF + 2*4096}")
        pl = self.poll_head()
        A(f"buffer_load_dwordx4 v[{DAF}:{DAF+3}], v15, s[84:87], s54 offen sc1")
        A(f"buffer_load_dwordx4 v[{DAF+4}:{DAF+7}], v15, s[84:87], s55 offen sc1")
        A("s_waitcnt vmcnt(0)")
        self.check_tags([DAF + 1, DAF + 3, DAF + 5, DAF + 7], DAF + 8)
        self.poll_tail(pl)
        A(f"v_mov_b32 v18, v{DAF}")
        A(f"v_mov_b32 v19, v{DAF+2}")
        A(f"v_mov_b32 v20, v{DAF+4}")
        A(f"v_mov_b32 v21, v{DAF+6}")
        wait_cleared(DAF)
        self.tr_reads(VTR, DBF, 11, [0, 32], 64)
        A("s_lshl_b32 s56, s59, 7")
        A(f"s_add_u32 s56, s56, {ATT_OFF}")
        A("v_and_b32 v12, 1, v2")
        A("v_lshlrev_b32 v12, 6, v12")
        A(f"v_lshl_add_u32 v12, v{G}, 4, v12")
        A(f"s_mul_i32 s57, s3, {352*64}")
        A(f"s_add_u32 s57, s57, {L_W}")
        A("v_add_u32 v12, s57, v12")
        A("v_lshlrev_b32 v7, 4, v2")
        A("v_add_u32 v8, s57, v7")
        A(f"s_mul_i32 s57, s3, {11*128}")
        A("s_waitcnt lgkmcnt(0)")
        L("L_b3")
        A("s_cmp_eq_u32 s3, 2")
        A("s_cbranch_scc0 L_b3x")
        A("s_setprio 1")
        A(f"s_mul_i32 s65, s45, {self.cstr}")
        A(f"s_add_u32 s65, s65, {CTR_OFF}")
        A("s_add_u32 s26, s98, s65")
        A("s_addc_u32 s27, s99, 0")
        A("v_mov_b32 v22, 0")
        pl = self.poll_head()
        A(f"ds_read_b32 v23, v22 offset:{L_QF+4}")
        A("s_waitcnt lgkmcnt(0)")
        A("v_cmp_eq_u32 vcc, 0, v23")
        self.poll_tail(pl, sleep=8)
        A("s_mov_b32 s64, 0")
        L("L_disp")
        A(f"ds_read_b32 v23, v22 offset:{L_NEED}")
        A("s_waitcnt lgkmcnt(0)")
        A("v_readfirstlane_b32 s65, v23")
        A("s_cmp_lt_u32 s64, s65")
        A("s_cbranch_scc1 L_disp_go")
        A("s_cmp_eq_u32 s88, 0")
        A("s_cbranch_scc1 L_disp_end")
        A("s_sub_u32 s88, s88, 1")
        A("s_sleep 1")
        A("s_branch L_disp")
        L("L_disp_go")
        A("s_mov_b32 s66, 1")
        A("s_atomic_add s66, s[26:27], 0 glc")
        A("s_lshl_b32 s65, s64, 2")
        A("v_mov_b32 v24, s65")
        A("s_waitcnt lgkmcnt(0)")
        A(f"s_cmp_ge_u32 s66, {64 * self.H}")
        A("s_cbranch_scc1 L_disp_end")
        A("s_add_u32 s66, s66, 1")
        A("v_mov_b32 v23, s66")
        A(f"ds_write_b32 v24, v23 offset:{L_RL}")
        A("s_add_u32 s64, s64, 1")
        A("s_cmp_lt_u32 s64, 63")
        A("s_cbranch_scc1 L_disp")
        L("L_disp_end")
        A("v_lshlrev_b32 v24, 2, v2")
        A(f"v_mov_b32 v23, {64 * self.H + 1}")
        A("v_cmp_le_u32 vcc, s64, v2")
        A("s_mov_b64 exec, vcc")
        A(f"ds_write_b32 v24, v23 offset:{L_RL}")
        A("s_mov_b64 exec, -1")
        A("s_setprio 2")
        L("L_b3x")
        if self.dry:
            A("s_mov_b32 s69, 1")
            A("s_mov_b32 s86, 0")
            A("s_mov_b32 s18, 0")
            A("s_mov_b32 s74, 0")
            A("s_branch L_after_b3")
            L("L_exit")
            A("s_cmp_eq_u32 s69, 0")
            A("s_cbranch_scc1 L_end")
            A("s_mov_b64 exec, -1")
            A("s_mov_b32 s69, 0")
            A("s_mov_b32 s86, 0x20000000")
            A(f"s_mov_b32 s18, {43*128}")
            A("s_mov_b32 s74, 2048")
            A("s_waitcnt vmcnt(0) lgkmcnt(0)")
        if self.inc:
            assert self.H == 1 and not self.dry
            EX = "L_end"
            C = 120
            O4, MM_, LL_, AB, PO, PM = C, C + 4, C + 5, C + 6, C + 8, C + 12
            A(f"v_mov_b32 v{C+16}, 0")
            A("s_cmp_eq_u32 s3, 0")
            A("s_cbranch_scc1 L_merge0")
            pl = self.poll_head()
            A(f"ds_read_b32 v{C+17}, v{C+16} offset:{L_DONE}")
            A("s_waitcnt lgkmcnt(0)")
            A(f"v_cmp_ne_u32 vcc, 0xff, v{C+17}")
            self.poll_tail(pl, sleep=2)
            self.stamp(6)
            A("s_branch L_tail")
            L("L_merge0")
            for k in range(4):
                A(f"v_mov_b32 v{O4+k}, 0")
            A(f"v_mov_b32 v{MM_}, {f32(-3.0e38)}")
            A(f"v_mov_b32 v{LL_}, 0")
            A(f"v_lshlrev_b32 v{C+18}, 4, v2")
            A(f"s_mov_b32 s58, {f32(LOG2E)}")
            A("s_mov_b32 s64, 0")
            L("L_merge")
            A(f"ds_read_b32 v{C+17}, v{C+16} offset:{L_DONE}")
            A("s_waitcnt lgkmcnt(0)")
            A(f"v_readfirstlane_b32 s65, v{C+17}")
            A("s_andn2_b32 s65, s65, s64")
            A("s_cbranch_scc1 L_merge1")
            A("s_cmp_eq_u32 s88, 0")
            A("s_cbranch_scc1 L_merged")
            A("s_sub_u32 s88, s88, 1")
            A("s_sleep 1")
            A("s_branch L_merge")
            L("L_merge1")
            A("s_ff1_i32_b32 s65, s65")
            A("s_bitset1_b32 s64, s65")
            A("s_lshl_b32 s66, s65, 10")
            A(f"v_add_u32 v{C+19}, s66, v{C+18}")
            A("s_lshl_b32 s66, s65, 3")
            A(f"v_mov_b32 v{C+20}, s66")
            A(f"ds_read_b64 v[{PM}:{PM+1}], v{C+20} offset:{L_ML}")
            A(f"ds_read_b128 v[{PO}:{PO+3}], v{C+19} offset:{L_P}")
            A("s_waitcnt lgkmcnt(1)")
            A(f"v_max_f32 v{C+21}, v{MM_}, v{PM}")
            A(f"v_sub_f32 v{AB}, v{MM_}, v{C+21}")
            A(f"v_sub_f32 v{AB+1}, v{PM}, v{C+21}")
            A(f"v_mul_f32 v{AB}, s58, v{AB}")
            A(f"v_mul_f32 v{AB+1}, s58, v{AB+1}")
            A(f"v_exp_f32 v{AB}, v{AB}")
            A(f"v_exp_f32 v{AB+1}, v{AB+1}")
            A(f"v_mov_b32 v{MM_}, v{C+21}")
            A(f"v_mul_f32 v{LL_}, v{LL_}, v{AB}")
            A(f"v_pk_mul_f32 v[{O4}:{O4+1}], v[{O4}:{O4+1}], v[{AB}:{AB+1}] op_sel_hi:[1,0]")
            A(f"v_pk_mul_f32 v[{O4+2}:{O4+3}], v[{O4+2}:{O4+3}], v[{AB}:{AB+1}] op_sel_hi:[1,0]")
            A(f"v_fmac_f32 v{LL_}, v{PM+1}, v{AB+1}")
            A("s_waitcnt lgkmcnt(0)")
            A(f"v_pk_fma_f32 v[{O4}:{O4+1}], v[{PO}:{PO+1}], v[{AB}:{AB+1}], v[{O4}:{O4+1}] op_sel:[0,1,0] op_sel_hi:[1,1,1]")
            A(f"v_pk_fma_f32 v[{O4+2}:{O4+3}], v[{PO+2}:{PO+3}], v[{AB}:{AB+1}], v[{O4+2}:{O4+3}] op_sel:[0,1,0] op_sel_hi:[1,1,1]")
            A("s_cmp_lg_u32 s64, 0xff")
            A("s_cbranch_scc1 L_merge")
            L("L_merged")
            self.stamp(6)
            for r in range(O4, O4 + 6):
                A(f"v_min_u32 v{r}, -2, v{r}")
            A("s_mov_b32 exec_hi, 0")
            A(f"buffer_store_dwordx4 v[{O4}:{O4+3}], v{C+18}, s[84:87], s83 offen sc1")
            A("s_mov_b64 exec, 1")
            A(f"buffer_store_dwordx2 v[{MM_}:{MM_+1}], off, s[84:87], s83 offset:512 sc1")
            A("s_mov_b64 exec, -1")
        else:
            A("s_barrier")
            L("L_after_b3")
            self.demit()
            EX = "L_exit" if self.dry else "L_end"
            self.stamp(6)
            A(f"s_cmp_lt_u32 s3, {self.H}")
            A("s_cbranch_scc0 L_tail")
            C = 120
            A(f"v_and_b32 v{C}, 7, v2")
            A(f"v_lshlrev_b32 v{C}, 3, v{C}")
            A("s_lshl_b32 s63, s3, 6")
            A(f"v_add_u32 v{C}, s63, v{C}")
            A(f"ds_read_b64 v[{C+2}:{C+3}], v{C} offset:{L_ML}")
            A(f"v_lshlrev_b32 v{C+1}, 3, v2")
            A("s_lshl_b32 s63, s3, 13")
            A(f"v_add_u32 v{C+7}, s63, v{C+1}")
            for w in range(8):
                A(f"ds_read_b64 v[{C+8+2*w}:{C+9+2*w}], v{C+7} offset:{L_P + w*1024}")
            A("s_waitcnt lgkmcnt(8)")
            A(f"v_max_f32_dpp v{C+4}, v{C+2}, v{C+2} row_ror:1 row_mask:0xf bank_mask:0xf")
            self.nop(2)
            A(f"v_max_f32_dpp v{C+4}, v{C+4}, v{C+4} row_ror:2 row_mask:0xf bank_mask:0xf")
            self.nop(2)
            A(f"v_max_f32_dpp v{C+4}, v{C+4}, v{C+4} row_ror:4 row_mask:0xf bank_mask:0xf")
            A(f"s_mov_b32 s58, {f32(LOG2E)}")
            A(f"v_sub_f32 v{C+6}, v{C+2}, v{C+4}")
            A(f"v_mul_f32 v{C+6}, s58, v{C+6}")
            A(f"v_exp_f32 v{C+6}, v{C+6}")
            self.nop(1)
            A(f"v_mul_f32 v{C+5}, v{C+6}, v{C+3}")
            self.nop(2)
            A(f"v_add_f32_dpp v{C+5}, v{C+5}, v{C+5} row_ror:1 row_mask:0xf bank_mask:0xf")
            self.nop(2)
            A(f"v_add_f32_dpp v{C+5}, v{C+5}, v{C+5} row_ror:2 row_mask:0xf bank_mask:0xf")
            self.nop(2)
            A(f"v_add_f32_dpp v{C+5}, v{C+5}, v{C+5} row_ror:4 row_mask:0xf bank_mask:0xf")
            A("s_waitcnt lgkmcnt(0)")
            A(f"v_mul_f32_dpp v{C+24}, v{C+6}, v{C+8} row_newbcast:0 row_mask:0xf bank_mask:0xf")
            A(f"v_mul_f32_dpp v{C+25}, v{C+6}, v{C+9} row_newbcast:0 row_mask:0xf bank_mask:0xf")
            for w in range(1, 8):
                A(f"v_fmac_f32_dpp v{C+24}, v{C+6}, v{C+8+2*w} row_newbcast:{w} row_mask:0xf bank_mask:0xf")
                A(f"v_fmac_f32_dpp v{C+25}, v{C+6}, v{C+9+2*w} row_newbcast:{w} row_mask:0xf bank_mask:0xf")
            for r in (C + 24, C + 25, C + 4, C + 5):
                A(f"v_min_u32 v{r}, -2, v{r}")
            A("s_cmp_eq_u32 s3, 0")
            A("s_cselect_b32 s63, s83, s67")
            A(f"v_mov_b32_dpp v{C+26}, v{C+24} quad_perm:[1,1,3,3] row_mask:0xf bank_mask:0xf")
            A(f"v_mov_b32_dpp v{C+27}, v{C+25} quad_perm:[1,1,3,3] row_mask:0xf bank_mask:0xf")
            A("s_mov_b32 exec_lo, 0x55555555")
            A("s_mov_b32 exec_hi, 0x55555555")
            A(f"buffer_store_dwordx4 v[{C+24}:{C+27}], v{C+1}, s[84:87], s63 offen sc1")
            A("s_mov_b64 exec, 1")
            A(f"buffer_store_dwordx2 v[{C+4}:{C+5}], off, s[84:87], s63 offset:512 sc1")
            A("s_mov_b64 exec, -1")
        self.stamp(7)
        self.dstamp(2)
        L("L_tail")
        A(f"s_cmp_lt_u32 s89, {R_WO0}")
        A(f"s_cbranch_scc1 {EX}")
        A(f"s_cmp_lt_u32 s89, {R_WO1}")
        A("s_cbranch_scc1 L_tail_wo")
        A(f"s_cmp_ge_u32 s89, {R_DN0}")
        A("s_cbranch_scc1 L_tail_dn")
        A(f"s_cmp_lt_u32 s89, {R_UP0}")
        A(f"s_cbranch_scc1 {EX}")
        A(f"s_cmp_lt_u32 s89, {R_UP1}")
        A("s_cbranch_scc1 L_tail_up")
        A(f"s_branch {EX}")

        L("L_tail_wo")
        regs = [AF + 4 * i for i in range(4)] + [DT + 4 * i for i in range(4)]
        O = TMP
        lds_ = [([f"buffer_load_dwordx4 v[{regs[r]}:{regs[r]+3}], v12, s[84:87], {'s56' if r < 4 else 's55'} offen offset:{(r & 3)*1024} sc1"],
                 [regs[r] + k for k in range(4)]) for r in range(4 * self.H)]
        lds_.append(([f"buffer_load_dwordx2 v[{O}:{O+1}], v11, s[84:87], s56 offen offset:512 sc1"], [O, O + 1]))
        self.poll_multi(lds_, O + 2)
        self.stamp(8)
        MM, FF, LL = O + 2, O + 3, O + 6
        A(f"v_max_f32_dpp v{MM}, v{O}, v{O} row_ror:1 row_mask:0xf bank_mask:0xf")
        A(f"s_mov_b32 s58, {f32(LOG2E)}")
        self.nop(1)
        A(f"v_max_f32_dpp v{MM}, v{MM}, v{MM} row_ror:2 row_mask:0xf bank_mask:0xf")
        if self.H == 2:
            self.nop(2)
            A(f"v_max_f32_dpp v{MM}, v{MM}, v{MM} row_ror:4 row_mask:0xf bank_mask:0xf")
        A(f"v_sub_f32 v{FF}, v{O}, v{MM}")
        A(f"v_mul_f32 v{FF}, s58, v{FF}")
        A(f"v_exp_f32 v{FF}, v{FF}")
        self.nop(1)
        A(f"v_mul_f32 v{LL}, v{FF}, v{O+1}")
        self.nop(1)
        for k in range(4):
            A(f"v_mul_f32_dpp v{O+8+k}, v{FF}, v{regs[0]+k} row_newbcast:0 row_mask:0xf bank_mask:0xf")
        A(f"v_add_f32_dpp v{LL}, v{LL}, v{LL} row_ror:1 row_mask:0xf bank_mask:0xf")
        for r in range(1, 4 * self.H):
            for k in range(4):
                A(f"v_fmac_f32_dpp v{O+8+k}, v{FF}, v{regs[r]+k} row_newbcast:{r} row_mask:0xf bank_mask:0xf")
            if r == 1:
                A(f"v_add_f32_dpp v{LL}, v{LL}, v{LL} row_ror:2 row_mask:0xf bank_mask:0xf")
            if r == 2 and self.H == 2:
                A(f"v_add_f32_dpp v{LL}, v{LL}, v{LL} row_ror:4 row_mask:0xf bank_mask:0xf")
            if r == 1 + self.H:
                A(f"v_rcp_f32 v{LL}, v{LL}")
        for k in range(4):
            A(f"v_mul_f32 v{O+8+k}, v{LL}, v{O+8+k}")
        A(f"v_cvt_pk_bf16_f32 v{O+4}, v{O+8}, v{O+9}")
        A(f"v_cvt_pk_bf16_f32 v{O+5}, v{O+10}, v{O+11}")
        A(f"ds_write_b64 v{VAW}, v[{O+4}:{O+5}]")
        self.a_frags_from_stage(VAR, AF)
        self.mfmas(AF, BF, DT, 4, 4, lgkm=True)
        self.d_to_lds(DT, 4, TMP, TMP + 1, VDW)
        A("s_waitcnt lgkmcnt(0)")
        self.bar()
        A("s_cmp_eq_u32 s3, 0")
        A(f"s_cbranch_scc0 {EX}")
        self.d_sum(G, TT, TMP)
        for k in range(4):
            A(f"v_min_u32 v{TMP+4+k}, -2, v{TMP+4+k}")
        A(f"v_lshlrev_b32 v{TMP}, 11, v{G}")
        A(f"v_lshl_add_u32 v{TMP}, v{TT}, 4, v{TMP}")
        A("s_mov_b32 exec_hi, 0")
        A(f"buffer_store_dwordx4 v[{TMP+4}:{TMP+7}], v{TMP}, s[84:87], s60 offen sc1")
        self.stamp(9)
        self.dstamp(4)
        A(f"s_branch {EX}")

        L("L_tail_up")
        P = 12
        P = DT
        regs = [AF + 4 * i for i in range(4)] + [DT + 4 * i for i in range(4)]
        self.poll_multi([([f"s_add_u32 s57, s56, {hg*4096}", f"buffer_load_dwordx4 v[{regs[hg]}:{regs[hg]+3}], v12, s[84:87], s57 offen sc1"],
                          [regs[hg] + k for k in range(4)]) for hg in range(8)], TMP)
        self.stamp(8)
        X1 = TMP + 4
        self.sum8_x1(regs, X1, XV, GAV, TMP)
        S1, S2, U0, U1 = TMP + 8, TMP + 9, TMP + 10, TMP + 11
        A(f"v_add_f32 v{S1}, v{X1}, v{X1+1}")
        A(f"v_mul_f32 v{S2}, v{X1}, v{X1}")
        A(f"v_add_f32 v{U0}, v{X1+2}, v{X1+3}")
        A(f"v_fmac_f32 v{S2}, v{X1+1}, v{X1+1}")
        A(f"v_add_f32 v{S1}, v{S1}, v{U0}")
        A(f"v_fmac_f32 v{S2}, v{X1+2}, v{X1+2}")
        A(f"v_fmac_f32 v{S2}, v{X1+3}, v{X1+3}")
        self.allred32([S1, S2], [U0, U1])
        A(f"v_lshlrev_b32 v{U0}, 5, v{HB}")
        A("s_lshl_b32 s54, s3, 3")
        A(f"v_add_u32 v{U1}, s54, v{U0}")
        A(f"ds_write_b64 v{U1}, v[{S1}:{S2}] offset:{L_ST}")
        A("s_waitcnt lgkmcnt(0)")
        self.bar()
        Q8 = TMP + 12
        A(f"ds_read_b128 v[{Q8}:{Q8+3}], v{U0} offset:{L_ST}")
        A(f"ds_read_b128 v[{Q8+4}:{Q8+7}], v{U0} offset:{L_ST+16}")
        A("s_waitcnt lgkmcnt(0)")
        A(f"v_add_f32 v{S1}, v{Q8}, v{Q8+2}")
        A(f"v_add_f32 v{S2}, v{Q8+1}, v{Q8+3}")
        A(f"v_add_f32 v{U0}, v{Q8+4}, v{Q8+6}")
        A(f"v_add_f32 v{U1}, v{Q8+5}, v{Q8+7}")
        A(f"v_add_f32 v{S1}, v{S1}, v{U0}")
        A(f"v_add_f32 v{S2}, v{S2}, v{U1}")
        self.ln_norm(S1, S2, X1, U0, U1)
        self.modulate(X1, T4U, SBV, SBV + 1, TMP, TMP + 12, VAW)
        self.a_frags_from_stage(VAR, AF)
        self.mfmas(AF, BF, DT, 4, 4, lgkm=True)
        self.d_to_lds(DT, 4, TMP, TMP + 1, VDW)
        A("s_waitcnt lgkmcnt(0)")
        self.bar()
        A("s_cmp_eq_u32 s3, 0")
        A(f"s_cbranch_scc0 {EX}")
        A(f"v_lshrrev_b32 v{TMP}, 3, v2")
        A(f"v_and_b32 v{TMP}, 1, v{TMP}")
        A(f"v_and_b32 v{TMP+1}, 7, v2")
        A(f"v_lshlrev_b32 v{TMP+2}, 8, v{TMP}")
        A(f"v_lshl_add_u32 v{TMP+2}, v{TMP+1}, 4, v{TMP+2}")
        GT = AF
        for j in range(4):
            A(f"ds_read_b128 v[{AF+4*j}:{AF+4*j+3}], v{TMP+2} offset:{L_D + j*512}")
            A(f"ds_read_b128 v[{DT+4*j}:{DT+4*j+3}], v{TMP+2} offset:{L_D + j*512 + 128}")
        A(f"v_lshlrev_b32 v{TMP+3}, 6, v{TMP}")
        A(f"v_lshl_add_u32 v{TMP+3}, v{TMP+1}, 3, v{TMP+3}")
        A("s_waitcnt lgkmcnt(0)")
        for base in (AF, DT):
            self.pk4("add", base, base, base + 4)
            self.pk4("add", base + 8, base + 8, base + 12)
            self.pk4("add", base, base, base + 8)
            self.rnd2(base, base + 1, base + 4)
            self.rnd2(base + 2, base + 3, base + 5)
        A(f"s_mov_b32 s58, {f32(-LOG2E)}")
        for k in range(4):
            A(f"v_mul_f32 v{AF+4+k}, s58, v{AF+k}")
        for k in range(4):
            A(f"v_exp_f32 v{AF+4+k}, v{AF+4+k}")
        self.nop(1)
        for k in range(4):
            A(f"v_add_f32 v{AF+4+k}, 1.0, v{AF+4+k}")
        for k in range(4):
            A(f"v_rcp_f32 v{AF+4+k}, v{AF+4+k}")
        self.nop(1)
        self.pk4("mul", AF, AF, AF + 4)
        self.rnd2(AF, AF + 1, AF + 4)
        self.rnd2(AF + 2, AF + 3, AF + 5)
        self.pk4("mul", AF, AF, DT)
        A(f"v_cvt_pk_bf16_f32 v{AF+8}, v{AF}, v{AF+1}")
        A(f"v_cvt_pk_bf16_f32 v{AF+9}, v{AF+2}, v{AF+3}")
        A(f"v_min_u32 v{AF+8}, -2, v{AF+8}")
        A(f"v_min_u32 v{AF+9}, -2, v{AF+9}")
        self.nop(1)
        A(f"v_mov_b32_dpp v{AF+10}, v{AF+8} quad_perm:[1,1,3,3] row_mask:0xf bank_mask:0xf")
        A(f"v_mov_b32_dpp v{AF+11}, v{AF+9} quad_perm:[1,1,3,3] row_mask:0xf bank_mask:0xf")
        A("s_mov_b64 exec, 0x5555")
        A(f"buffer_store_dwordx4 v[{AF+8}:{AF+11}], v{TMP+3}, s[84:87], s60 offen sc1")
        self.stamp(9)
        self.dstamp(5)
        A(f"s_branch {EX}")

        L("L_tail_dn")
        A("s_cmp_eq_u32 s3, 0")
        A("s_cbranch_scc0 L_dn_hh")
        regs = [DAF + 4 * i for i in range(8)]
        self.poll_multi([([f"s_add_u32 s54, s56, {hg*4096}", f"buffer_load_dwordx4 v[{regs[hg]}:{regs[hg]+3}], v15, s[84:87], s54 offen sc1"],
                          [regs[hg] + k for k in range(4)]) for hg in range(8)], DAF + 32)
        self.unpack2(16, DAF + 32, DAF + 33)
        self.unpack2(17, DAF + 34, DAF + 35)
        self.unpack2(18, DAF + 36, DAF + 37)
        self.unpack2(19, DAF + 38, DAF + 39)
        self.sum8_x1(regs, DAF + 40, DAF + 32, DAF + 36, 22)
        A(f"v_cvt_pk_bf16_f32 v10, v{DAF+40}, v{DAF+41}")
        A(f"v_cvt_pk_bf16_f32 v11, v{DAF+42}, v{DAF+43}")
        L("L_dn_hh")
        self.poll_multi([([f"buffer_load_dwordx4 v[{DAF+36+4*t}:{DAF+39+4*t}], v7, s[16:19], s57 offen offset:{t*1024} sc1"],
                          [DAF + 36 + 4 * t + k for k in range(4)]) for t in range(2)], 22)
        self.stamp(8)
        A(f"ds_write_b128 v8, v[{DAF+36}:{DAF+39}]")
        A(f"ds_write_b128 v8, v[{DAF+40}:{DAF+43}] offset:1024")
        for t in range(11):
            A(f"ds_read_b128 v[{DAF+4*t}:{DAF+4*t+3}], v12 offset:{t*128}")
        self.mfmas(DAF, DBF, DDT, 11, 2, lgkm=True)
        self.d_to_lds(DDT, 2, 22, 23, VDW)
        A("s_waitcnt lgkmcnt(0)")
        self.bar()
        A("s_cmp_eq_u32 s3, 0")
        A(f"s_cbranch_scc0 {EX}")
        A("v_lshlrev_b32 v22, 8, v13")
        A("v_lshl_add_u32 v22, v14, 4, v22")
        F = DAF
        for j in range(4):
            A(f"ds_read_b128 v[{F+4*j}:{F+4*j+3}], v22 offset:{L_D + j*512}")
        self.unpack2(20, F + 16, F + 17)
        self.unpack2(21, F + 18, F + 19)
        self.unpack2(10, F + 20, F + 21)
        self.unpack2(11, F + 22, F + 23)
        A("v_lshlrev_b32 v23, 10, v13")
        A("v_lshl_add_u32 v23, v14, 3, v23")
        A("s_lshl_b32 s54, s59, 6")
        A("s_waitcnt lgkmcnt(0)")
        self.pk4("add", F, F, F + 4)
        self.pk4("add", F + 8, F + 8, F + 12)
        self.pk4("add", F, F, F + 8)
        self.rnd2(F, F + 1, F + 4)
        self.rnd2(F + 2, F + 3, F + 5)
        self.pk4("mul", F, F, F + 16)
        self.rnd2(F, F + 1, F + 4)
        self.rnd2(F + 2, F + 3, F + 5)
        self.pk4("add", F, F, F + 20)
        A(f"v_cvt_pk_bf16_f32 v{F+8}, v{F}, v{F+1}")
        A(f"v_cvt_pk_bf16_f32 v{F+9}, v{F+2}, v{F+3}")
        A("s_mov_b64 exec, 0xffff")
        A(f"buffer_store_dwordx2 v[{F+8}:{F+9}], v23, s[72:75], s54 offen")
        self.stamp(9)
        self.dstamp(1)
        A(f"s_branch {EX}")

    def d_sum(self, G, TT, t):
        A = self.A
        A(f"v_and_b32 v{t}, 1, v{G}")
        A(f"v_lshlrev_b32 v{t}, 8, v{t}")
        A(f"v_lshl_add_u32 v{t}, v{TT}, 4, v{t}")
        for j in range(4):
            A(f"ds_read_b128 v[{t+4+4*j}:{t+7+4*j}], v{t} offset:{L_D + j*512}")
        A("s_waitcnt lgkmcnt(0)")
        self.pk4("add", t + 4, t + 4, t + 8)
        self.pk4("add", t + 12, t + 12, t + 16)
        self.pk4("add", t + 4, t + 4, t + 12)

    def sum8_x1(self, regs, X1, XV, GAV, t):
        A = self.A
        for a, b in ((0, 1), (2, 3), (4, 5), (6, 7), (0, 2), (4, 6)):
            self.pk4("add", regs[a], regs[a], regs[b])
        self.pk4("add", X1, regs[0], regs[4])
        self.rnd2(X1, X1 + 1, t)
        self.rnd2(X1 + 2, X1 + 3, t + 1)
        self.pk4("mul", X1, X1, GAV)
        self.rnd2(X1, X1 + 1, t)
        self.rnd2(X1 + 2, X1 + 3, t + 1)
        self.pk4("add", X1, X1, XV)
        self.rnd2(X1, X1 + 1, t)
        self.rnd2(X1 + 2, X1 + 3, t + 1)

    def ln_norm(self, S1, S2, X, U0, U1):
        A = self.A
        A(f"s_mov_b32 s58, {f32(1.0/512)}")
        A(f"v_mul_f32 v{S1}, s58, v{S1}")
        A(f"v_mul_f32 v{S2}, s58, v{S2}")
        A(f"v_fma_f32 v{S2}, -v{S1}, v{S1}, v{S2}")
        A(f"v_max_f32 v{S2}, 0, v{S2}")
        self.rnd2(S1, S2, U0)
        A(f"v_add_f32 v{S2}, {f32(1e-5)}, v{S2}")
        self.rnd1(S2)
        A(f"v_sqrt_f32 v{S2}, v{S2}")
        for k in range(4):
            A(f"v_sub_f32 v{X+k}, v{X+k}, v{S1}")
        self.rnd1(S2)
        A(f"v_rcp_f32 v{S2}, v{S2}")
        self.rnd2(X, X + 1, U0)
        self.rnd2(X + 2, X + 3, U1)
        for k in range(4):
            A(f"v_mul_f32 v{X+k}, v{X+k}, v{S2}")
        self.rnd2(X, X + 1, U0)
        self.rnd2(X + 2, X + 3, U1)

    def modulate(self, N, T4, sp0, sp1, t0, w, VAW):
        A = self.A
        self.pk4("mul", N, N, T4)
        self.rnd2(N, N + 1, t0)
        self.rnd2(N + 2, N + 3, t0 + 1)
        self.unpack2(sp0, w, w + 1)
        self.unpack2(sp1, w + 2, w + 3)
        self.pk4("add", N, N, w)
        A(f"v_cvt_pk_bf16_f32 v{w+4}, v{N}, v{N+1}")
        A(f"v_cvt_pk_bf16_f32 v{w+5}, v{N+2}, v{N+3}")
        A(f"ds_write_b64 v{VAW}, v[{w+4}:{w+5}]")


HEADER = open("cdna_kernels/%s.s.ref" % NAME).read().split("; Override launch geometry")[0] if True else ""


DOC = """;
"""

if __name__ == "__main__":
    import argparse
    ap = argparse.ArgumentParser()
    ap.add_argument("-o", default="k.s")
    ap.add_argument("--R", type=int, default=3)
    ap.add_argument("--B", type=int, default=32)
    ap.add_argument("--stamps", action="store_true")
    ap.add_argument("--sleep", type=int, default=1)
    ap.add_argument("--NS", type=int, default=12)
    ap.add_argument("--R0", type=int, default=3)
    ap.add_argument("--grp", default="iod")
    ap.add_argument("--CP", type=int, default=0)
    ap.add_argument("--dbg", default="")
    ap.add_argument("--pace", type=int, default=0)
    ap.add_argument("--tpol", default="nt")
    ap.add_argument("--xmap", action="store_true")
    ap.add_argument("--flagq", action="store_true")
    ap.add_argument("--TH", type=int, default=480)
    ap.add_argument("--kvpol", default="nt")
    ap.add_argument("--dry", action="store_true")
    ap.add_argument("--pm", action="store_true")
    ap.add_argument("--rot", type=int, default=0)
    ap.add_argument("--H", type=int, default=1)
    ap.add_argument("--inc", action="store_true")
    ap.add_argument("--xl", type=int, default=0)
    ap.add_argument("--npol", default=None)
    ap.add_argument("--cpf", type=int, default=0)
    ap.add_argument("--late", action="store_true")
    ap.add_argument("--hold", action="store_true")
    ap.add_argument("--px", type=int, default=33)
    ap.add_argument("--egw", type=int, default=0)
    ap.add_argument("--cstr", type=int, default=4224)
    ap.add_argument("--ps1", type=int, default=1)
    ap.add_argument("--ps2", type=int, default=1)
    a = ap.parse_args()
    B = a.B
    if a.stamps and B > 32:
        B = 32
    g = Gen(R=a.R, B=B, stamps=a.stamps, sleep=a.sleep, NS=a.NS, R0=a.R0, grp=a.grp, CP=a.CP, dbg=a.dbg, pace=a.pace, tpol=a.tpol, xmap=a.xmap, flagq=a.flagq, ps1=a.ps1, ps2=a.ps2, TH=a.TH, kvpol=a.kvpol, dry=a.dry, pm=a.pm, rot=a.rot, H=a.H, cstr=a.cstr, egw=a.egw, px=a.px, late=a.late, hold=a.hold, cpf=a.cpf, npol=a.npol, xl=a.xl, inc=a.inc)
    open(a.o, "w").write(HEADER + g.build())
```
